```python
import torch

def _softmax(x, axis=-1):
    return torch.softmax(x, dim=axis)
def _gelu(x):
    return torch.nn.functional.gelu(x, approximate="tanh")
def _silu(x):
    return torch.nn.functional.silu(x)
def _sigmoid(x):
    return torch.sigmoid(x)
def _layernorm(x, axis=-1, eps=1e-5):
    m = x.mean(dim=axis, keepdim=True)
    v = x.var(dim=axis, keepdim=True, unbiased=False)
    return (x - m) / torch.sqrt(v + eps)
def _scatter_add(tgt, idx, src, axis=0):
    return tgt.clone().index_add_(axis, idx, src)
def _segment_sum(src, seg, n):
    out = torch.zeros((n,) + src.shape[1:], dtype=src.dtype)
    return out.index_add_(0, seg, src)
def _pad(x, pw):
    flat = tuple(v for pair in reversed(pw) for v in pair)
    return torch.nn.functional.pad(x, flat)

kernel_name = 'concat_heads__sliding_block_cached__sliding_block_cached__decode'

def setup_inputs():

    _w = (lambda a: (lambda t: t.to(torch.bfloat16) if t.is_floating_point() else t)(torch.as_tensor(a)))
    def _A_setup():
        B, Sq, D = 1, 1, 640
        Hq, Hkv, Sk, Dh = 32, 32, 4096, 192
        assert Hq % Hkv == 0, (Hq, Hkv)
        return {
            "x": _w((lambda *s: torch.randn(*s, dtype=torch.bfloat16) * 1.6)(B, Sq, D)),
            "k_cache": _w((lambda *s: torch.randn(*s, dtype=torch.bfloat16) * 1.6)(B, Hkv, Sk, Dh)),
            "v_cache": _w((lambda *s: torch.randn(*s, dtype=torch.bfloat16) * 0.05)(B, Hkv, Sk, Dh)),
            "wq": _w((lambda *s: torch.randn(*s, dtype=torch.bfloat16) * 1.6)(D, Hq * Dh) * (D ** -0.5)),
            "wo": _w((lambda *s: torch.randn(*s, dtype=torch.bfloat16) * 0.05)(Hq * Dh, D) * ((Hq * Dh) ** -0.5)),
        }
    _A_in = _A_setup()

    def _B_setup():
        B, Sq, D = 1, 1, 640
        Hq, Hkv, Sk, Dh = 32, 32, 4096, 192
        assert Hq % Hkv == 0, (Hq, Hkv)
        return {
            "x": _w((lambda *s: torch.randn(*s, dtype=torch.bfloat16) * 1.6)(B, Sq, D)),
            "k_cache": _w((lambda *s: torch.randn(*s, dtype=torch.bfloat16) * 1.6)(B, Hkv, Sk, Dh)),
            "v_cache": _w((lambda *s: torch.randn(*s, dtype=torch.bfloat16) * 0.05)(B, Hkv, Sk, Dh)),
            "wq": _w((lambda *s: torch.randn(*s, dtype=torch.bfloat16) * 1.6)(D, Hq * Dh) * (D ** -0.5)),
            "wo": _w((lambda *s: torch.randn(*s, dtype=torch.bfloat16) * 0.05)(Hq * Dh, D) * ((Hq * Dh) ** -0.5)),
        }
    _B_in = _B_setup()

    return {
        "A_x": _A_in["x"],
        "A_k_cache": _A_in["k_cache"],
        "A_v_cache": _A_in["v_cache"],
        "A_wq": _A_in["wq"],
        "A_wo": _A_in["wo"],
        "B_x": _B_in["x"],
        "B_k_cache": _B_in["k_cache"],
        "B_v_cache": _B_in["v_cache"],
        "B_wq": _B_in["wq"],
        "B_wo": _B_in["wo"],
    }

def reference(A_x, A_k_cache, A_v_cache, A_wq, A_wo, B_x, B_k_cache, B_v_cache, B_wq, B_wo):
    def _A_ref(x, k_cache, v_cache, wq, wo):
        B, Sq, D = x.shape
        Hq, Dh = 32, 192
        Hkv, Sk = k_cache.shape[1], k_cache.shape[2]
        W = min(4096, max(256, Sk // 4))
        rep = Hq // Hkv
        q = (lambda x, *d: x.permute(*d))((x @ wq).reshape(B, Sq, Hq, Dh), 0, 2, 1, 3)
        k = (lambda x, n, axis: torch.repeat_interleave(x, n, dim=axis))(k_cache[:, :, Sk - W:, :], rep, axis=1)
        v = (lambda x, n, axis: torch.repeat_interleave(x, n, dim=axis))(v_cache[:, :, Sk - W:, :], rep, axis=1)
        scores = torch.einsum("bhqd,bhkd->bhqk", q, k) * (Dh ** -0.5)
        p = _softmax(scores, axis=-1)
        o = torch.einsum("bhqk,bhkd->bhqd", p, v)
        return (lambda x, *d: x.permute(*d))(o, 0, 2, 1, 3).reshape(B, Sq, Hq * Dh) @ wo

    def _B_ref(x, k_cache, v_cache, wq, wo):
        B, Sq, D = x.shape
        Hq, Dh = 32, 192
        Hkv, Sk = k_cache.shape[1], k_cache.shape[2]
        W = min(4096, max(256, Sk // 4))
        rep = Hq // Hkv
        q = (lambda x, *d: x.permute(*d))((x @ wq).reshape(B, Sq, Hq, Dh), 0, 2, 1, 3)
        k = (lambda x, n, axis: torch.repeat_interleave(x, n, dim=axis))(k_cache[:, :, Sk - W:, :], rep, axis=1)
        v = (lambda x, n, axis: torch.repeat_interleave(x, n, dim=axis))(v_cache[:, :, Sk - W:, :], rep, axis=1)
        scores = torch.einsum("bhqd,bhkd->bhqk", q, k) * (Dh ** -0.5)
        p = _softmax(scores, axis=-1)
        o = torch.einsum("bhqk,bhkd->bhqd", p, v)
        return (lambda x, *d: x.permute(*d))(o, 0, 2, 1, 3).reshape(B, Sq, Hq * Dh) @ wo

    a = _A_ref(A_x, A_k_cache, A_v_cache, A_wq, A_wo)
    b = _B_ref(B_x, B_k_cache, B_v_cache, B_wq, B_wo)
    return torch.concatenate([a, b], axis=-1)
```

```python
NAME = "concat_heads__sliding_block_cached__sliding_block_cached__decode"
hdr = open(f"cdna_kernels/{NAME}.s.ref").read().split("; Override launch")[0]
L = []
A = L.append
A(hdr.rstrip())
A("; @launch kernel=k1_kernel grid=(48,1,1) block=(256,1,1) lds=0")
A("; @launch kernel=k2_kernel grid=(64,1,1) block=(256,1,1) lds=8192")
A("; @launch kernel=k3_kernel grid=(5,1,1) block=(256,1,1) lds=0")
A('.amdgcn_target "amdgcn-amd-amdhsa--gfx950"')
A(".text")

def srd(d, lo, hi, nbytes):
    A(f"  s_mov_b32 s{d}, s{lo}")
    A(f"  s_and_b32 s{d+1}, s{hi}, 0xffff")
    A(f"  s_mov_b32 s{d+2}, {nbytes}")
    A(f"  s_mov_b32 s{d+3}, 0x00020000")

def bf16r(v, t):
    A(f"  v_bfe_u32 v{t}, v{v}, 16, 1")
    A(f"  v_add_u32 v{t}, 0x7fff, v{t}")
    A(f"  v_add_u32 v{v}, v{v}, v{t}")
    A(f"  v_and_b32 v{v}, 0xffff0000, v{v}")

def kd(name, vg=64, sg=64):
    A('.section .rodata,"a"')
    A(".p2align 6")
    A(f".amdhsa_kernel {name}")
    A(f"  .amdhsa_next_free_vgpr {vg}")
    A(f"  .amdhsa_next_free_sgpr {sg}")
    A(f"  .amdhsa_accum_offset {vg}")
    A("  .amdhsa_group_segment_fixed_size 0")
    A("  .amdhsa_kernarg_size 104")
    A("  .amdhsa_user_sgpr_count 2")
    A("  .amdhsa_user_sgpr_kernarg_segment_ptr 1")
    A("  .amdhsa_system_sgpr_workgroup_id_x 1")
    A(".end_amdhsa_kernel")
    A(".text")

A(".globl k1_kernel\n.p2align 8\n.type k1_kernel,@function\nk1_kernel:")
A("  s_cmp_ge_u32 s2, 48")
A("  s_cbranch_scc1 k1_done")
A("  s_cmp_ge_u32 s2, 24")
A("  s_cselect_b32 s3, 40, 0")
A("  s_cselect_b32 s20, 24, 0")
A("  s_sub_u32 s20, s2, s20")
A("  s_add_u32 s4, s0, s3")
A("  s_addc_u32 s5, s1, 0")
A("  s_load_dwordx2 s[6:7], s[4:5], 0")
A("  s_load_dwordx2 s[8:9], s[4:5], 24")
A("  s_load_dwordx2 s[10:11], s[0:1], 96")
A("  s_waitcnt lgkmcnt(0)")
srd(12, 6, 7, 1280)
srd(16, 8, 9, 640*12288)
srd(24, 10, 11, 0x10000000)
A("  s_lshl_b32 s21, s20, 9")
A("  v_lshlrev_b32 v1, 1, v0")
A("  v_add_u32 v1, s21, v1")
A("  v_mov_b32 v2, 0")
A("  v_mov_b32 v3, 0")
A("  s_mov_b32 s22, 0")
A("k1_loop:")
for u in range(8):
    A(f"  buffer_load_ushort v{8+u}, v1, s[16:19], s22 offen")
    A(f"  buffer_load_ushort v{16+u}, v3, s[12:15], 0 offen offset:{2*u}")
    A("  s_add_u32 s22, s22, 12288")
A("  s_waitcnt vmcnt(0)")
for u in range(8):
    A(f"  v_lshlrev_b32 v{8+u}, 16, v{8+u}")
    A(f"  v_lshlrev_b32 v{16+u}, 16, v{16+u}")
    A(f"  v_fmac_f32 v2, v{8+u}, v{16+u}")
A("  v_add_u32 v3, 16, v3")
A(f"  s_cmp_lt_u32 s22, {640*12288}")
A("  s_cbranch_scc1 k1_loop")
bf16r(2, 4)
A("  s_lshl_b32 s21, s2, 10")
A("  v_lshlrev_b32 v1, 2, v0")
A("  v_add_u32 v1, s21, v1")
A("  buffer_store_dword v2, v1, s[24:27], 0 offen")
A("k1_done:")
A("  s_endpgm")
kd("k1_kernel")

A(".globl k2_kernel\n.p2align 8\n.type k2_kernel,@function\nk2_kernel:")
A("  s_cmp_ge_u32 s2, 64")
A("  s_cbranch_scc1 k2_done")
A("  s_cmp_ge_u32 s2, 32")
A("  s_cselect_b32 s3, 40, 0")
A("  s_and_b32 s20, s2, 31")
A("  s_add_u32 s4, s0, s3")
A("  s_addc_u32 s5, s1, 0")
A("  s_load_dwordx2 s[6:7], s[4:5], 8")
A("  s_load_dwordx2 s[8:9], s[4:5], 16")
A("  s_load_dwordx2 s[10:11], s[0:1], 96")
A("  s_waitcnt lgkmcnt(0)")
srd(12, 6, 7, 50331648)
srd(16, 8, 9, 50331648)
srd(24, 10, 11, 0x10000000)
A("  s_mul_i32 s21, s2, 768")
A("  v_lshlrev_b32 v1, 2, v0")
A("  v_add_u32 v2, s21, v1")
A("  v_cmp_gt_u32 vcc, 192, v0")
A("  s_and_saveexec_b64 s[30:31], vcc")
A("  buffer_load_dword v3, v2, s[24:27], 0 offen")
A("  s_waitcnt vmcnt(0)")
A("  ds_write_b32 v1, v3")
A("  s_mov_b64 exec, s[30:31]")
A("  s_waitcnt lgkmcnt(0)")
A("  s_barrier")
A("  s_mul_i32 s22, s20, 1572864")
A(f"  s_add_u32 s22, s22, {3072*384}")
A("  v_mul_u32_u24 v4, 384, v0")
A("  v_mov_b32 v40, 0xff800000")
A("  s_mov_b32 s23, 0")
A("k2_kloop:")
A("  v_mov_b32 v5, 0")
A("  s_mul_i32 s28, s23, 98304")
A("  s_add_u32 s28, s28, s22")
A("  v_mov_b32 v6, 0")
for c in range(24):
    A(f"  buffer_load_dwordx4 v[8:11], v4, s[12:15], s28 offen offset:{16*c}")
    A(f"  ds_read_b128 v[12:15], v6 offset:{32*c}")
    A(f"  ds_read_b128 v[16:19], v6 offset:{32*c+16}")
    A("  s_waitcnt vmcnt(0) lgkmcnt(0)")
    for e in range(4):
        A(f"  v_lshlrev_b32 v20, 16, v{8+e}")
        A(f"  v_and_b32 v21, 0xffff0000, v{8+e}")
        A(f"  v_fmac_f32 v5, v20, v{12+2*e}")
        A(f"  v_fmac_f32 v5, v21, v{13+2*e}")
bf16r(5, 7)
A("  v_mul_f32 v5, 0x3d93cd3a, v5")
bf16r(5, 7)
A("  v_max_f32 v40, v40, v5")
A("  s_lshl_b32 s28, s23, 10")
A("  v_add_u32 v7, s28, v1")
A("  ds_write_b32 v7, v5 offset:1024")
A("  s_add_u32 s23, s23, 1")
A("  s_cmp_lt_u32 s23, 4")
A("  s_cbranch_scc1 k2_kloop")
A("  ds_write_b32 v1, v40 offset:6144")
A("  s_waitcnt lgkmcnt(0)")
A("  s_barrier")
A("  v_mov_b32 v6, 0")
for i in range(64):
    A(f"  ds_read_b128 v[12:15], v6 offset:{6144+16*i}")
    A("  s_waitcnt lgkmcnt(0)")
    A("  v_max_f32 v40, v40, v12")
    A("  v_max_f32 v40, v40, v13")
    A("  v_max_f32 v40, v40, v14")
    A("  v_max_f32 v40, v40, v15")
A("  s_barrier")
A("  v_mov_b32 v41, 0")
for g in range(4):
    A(f"  ds_read_b32 v{24+g}, v1 offset:{1024+1024*g}")
A("  s_waitcnt lgkmcnt(0)")
for g in range(4):
    A(f"  v_sub_f32 v{24+g}, v{24+g}, v40")
    A(f"  v_mul_f32 v{24+g}, 0x3fb8aa3b, v{24+g}")
    A(f"  v_exp_f32 v{24+g}, v{24+g}")
    A("  s_nop 1")
    A(f"  v_add_f32 v41, v41, v{24+g}")
A("  ds_write_b32 v1, v41 offset:6144")
A("  s_waitcnt lgkmcnt(0)")
A("  s_barrier")
A("  v_mov_b32 v41, 0")
for i in range(64):
    A(f"  ds_read_b128 v[12:15], v6 offset:{6144+16*i}")
    A("  s_waitcnt lgkmcnt(0)")
    A("  v_add_f32 v41, v41, v12")
    A("  v_add_f32 v41, v41, v13")
    A("  v_add_f32 v41, v41, v14")
    A("  v_add_f32 v41, v41, v15")
A("  v_rcp_f32 v41, v41")
A("  s_nop 1")
for g in range(4):
    A(f"  v_mul_f32 v{24+g}, v{24+g}, v41")
    bf16r(24+g, 7)
    A(f"  ds_write_b32 v1, v{24+g} offset:{1024+1024*g}")
A("  s_waitcnt lgkmcnt(0)")
A("  s_barrier")
A("  v_cmp_gt_u32 vcc, 192, v0")
A("  s_and_saveexec_b64 s[30:31], vcc")
A("  s_cbranch_execz k2_done")
A("  v_lshlrev_b32 v2, 1, v0")
A("  v_mov_b32 v5, 0")
A("  v_mov_b32 v6, 0")
A("  s_mov_b32 s28, s22")
A("  s_mov_b32 s23, 0")
A("k2_vloop:")
for u in range(8):
    A(f"  buffer_load_ushort v{8+u}, v2, s[16:19], s28 offen offset:{384*u}")
A("  ds_read_b128 v[16:19], v6 offset:1024")
A("  ds_read_b128 v[20:23], v6 offset:1040")
A("  s_waitcnt vmcnt(0) lgkmcnt(0)")
for u in range(8):
    A(f"  v_lshlrev_b32 v{8+u}, 16, v{8+u}")
    A(f"  v_fmac_f32 v5, v{8+u}, v{16+u}")
A("  v_add_u32 v6, 32, v6")
A("  s_add_u32 s28, s28, 3072")
A("  s_add_u32 s23, s23, 1")
A("  s_cmp_lt_u32 s23, 128")
A("  s_cbranch_scc1 k2_vloop")
bf16r(5, 7)
A("  s_add_u32 s21, s21, 65536")
A("  v_add_u32 v2, s21, v1")
A("  buffer_store_dword v5, v2, s[24:27], 0 offen")
A("k2_done:")
A("  s_endpgm")
kd("k2_kernel")

A(".globl k3_kernel\n.p2align 8\n.type k3_kernel,@function\nk3_kernel:")
A("  s_cmp_ge_u32 s2, 5")
A("  s_cbranch_scc1 k3_done")
A("  s_load_dwordx2 s[6:7], s[0:1], 32")
A("  s_load_dwordx2 s[8:9], s[0:1], 72")
A("  s_load_dwordx2 s[10:11], s[0:1], 96")
A("  s_load_dwordx2 s[32:33], s[0:1], 80")
A("  s_waitcnt lgkmcnt(0)")
srd(12, 6, 7, 6144*1280)
srd(16, 8, 9, 6144*1280)
srd(24, 10, 11, 0x10000000)
srd(36, 32, 33, 2560)
A("  s_lshl_b32 s21, s2, 8")
A("  v_add_u32 v1, s21, v0")
A("  v_cmp_le_u32 vcc, 640, v1")
A("  v_mov_b32 v3, 0")
A("  v_mov_b32 v4, 640")
A("  v_cndmask_b32 v4, v3, v4, vcc")
A("  v_sub_u32 v2, v1, v4")
A("  v_lshlrev_b32 v2, 1, v2")
A("  v_mov_b32 v4, 24576")
A("  v_cndmask_b32 v4, v3, v4, vcc")
A("  v_add_u32 v4, 65536, v4")
A("  s_mov_b64 s[40:41], vcc")
A("  v_mov_b32 v5, 0")
A("  s_mov_b32 s22, 0")
A("k3_loop:")
for u in range(8):
    A(f"  buffer_load_ushort v{8+u}, v2, s[12:15], s22 offen offset:{1280*(u%2)}")
    A(f"  buffer_load_ushort v{24+u}, v2, s[16:19], s22 offen offset:{1280*(u%2)}")
    A(f"  buffer_load_dword v{16+u}, v4, s[24:27], 0 offen offset:{4*u}")
    if u % 2:
        A("  s_add_u32 s22, s22, 2560")
A("  s_waitcnt vmcnt(0)")
for u in range(8):
    A(f"  v_cndmask_b32 v{8+u}, v{8+u}, v{24+u}, s[40:41]")
    A(f"  v_lshlrev_b32 v{8+u}, 16, v{8+u}")
    A(f"  v_fmac_f32 v5, v{8+u}, v{16+u}")
A("  v_add_u32 v4, 32, v4")
A(f"  s_cmp_lt_u32 s22, {6144*1280}")
A("  s_cbranch_scc1 k3_loop")
bf16r(5, 7)
A("  v_lshrrev_b32 v5, 16, v5")
A("  v_lshlrev_b32 v1, 1, v1")
A("  buffer_store_short v5, v1, s[36:39], 0 offen")
A("k3_done:")
A("  s_endpgm")
kd("k3_kernel")
open("simple.s", "w").write("\n".join(L) + "\n")
```

```python
NAME = "concat_heads__sliding_block_cached__sliding_block_cached__decode"
KNAME = NAME + "_kernel"

class Asm:
    def __init__(self):
        self.L = []
        self.nlabel = 0
    def __call__(self, s):
        for line in s.split("\n"):
            self.L.append("  " + line.strip() if line.strip() and not line.strip().endswith(":") else line.strip())
    def label(self, base="L"):
        self.nlabel += 1
        return f"{base}_{self.nlabel}"
    def header(self, grid, block, lds):
        hdr = open(f"cdna_kernels/{NAME}.s.ref").read().split("; Override launch")[0]
        self.L.append(hdr.rstrip())
        self.L.append(f"; @launch grid=({grid},1,1) block=({block},1,1) lds={lds}")
        self.L.append('.amdgcn_target "amdgcn-amd-amdhsa--gfx950"')
        self.L.append(".text")
        self.L.append(f".globl {KNAME}\n.p2align 8\n.type {KNAME},@function\n{KNAME}:")
    def footer(self, vgpr, sgpr=102, agpr=0):
        acc = (vgpr + 3) // 4 * 4
        self.L.append(f""".section .rodata,"a"
.p2align 6
.amdhsa_kernel {KNAME}
  .amdhsa_next_free_vgpr {acc + agpr if agpr else vgpr}
  .amdhsa_next_free_sgpr {sgpr}
  .amdhsa_accum_offset {acc}
  .amdhsa_group_segment_fixed_size 0
  .amdhsa_kernarg_size 104
  .amdhsa_user_sgpr_count 2
  .amdhsa_user_sgpr_kernarg_segment_ptr 1
  .amdhsa_system_sgpr_workgroup_id_x 1
.end_amdhsa_kernel""")
    def srd(self, d, lo, nbytes):
        self(f"s_mov_b32 s{d}, s{lo}\ns_and_b32 s{d+1}, s{lo+1}, 0xffff\ns_mov_b32 s{d+2}, {nbytes}\ns_mov_b32 s{d+3}, 0x00020000")
    def write(self, path):
        open(path, "w").write("\n".join(self.L) + "\n")
```

```python
import sys, argparse
from asmlib import *
ap = argparse.ArgumentParser()
ap.add_argument("out")
ap.add_argument("--stamps", type=int, default=0)
ap.add_argument("--prio", type=int, default=1)
ap.add_argument("--lds", type=int, default=163840)
ap.add_argument("--nopoll", type=int, default=0)
ap.add_argument("--near", type=int, default=0)
ap.add_argument("--kfull", type=int, default=0)
ap.add_argument("--psleep", type=int, default=0)
ap.add_argument("--lat", type=int, default=0)
ap.add_argument("--thr", type=int, default=0)
ap.add_argument("--rot", type=int, default=0)
ap.add_argument("--pdepth", type=int, default=3)
ap.add_argument("--pgap", type=int, default=16)
ap.add_argument("--fgap", type=int, default=5)
ap.add_argument("--fdepth", type=int, default=3)
ap.add_argument("--g2", type=int, default=1)
a = ap.parse_args()

A = Asm()
NW = 12 if a.lat else 11
A.header(256, 64 * NW, a.lds)

QBOX = 0x10000
OBOX = 0x40000
SBOX = 0x70000
FBOX = 0x80000
STAMP = 0x8000000
L_GOT = 0
L_QF = 48
L_MX = 64
L_LS = 96
L_FF = 128
L_FFLAG = 144
L_OF = 160
L_PF = 176
L_KI = 192
L_Q = 256
L_P = 640
L_O = 1152
sH, sJ, sP, sHH = 4, 5, 6, 7
sX, sK, sV, sWQ, sWO = 12, 14, 16, 18, 20
sWSP = 22
sWAVE = 24
sT = 25
sSPIN = 26
sC = 27
WS = 28
SR = 32
sOFF = 36
sTMP, sTMP2, sTMP3 = 37, 38, 39
sSEL = 40
sSELA, sSELB = 44, 45
sFL = sT
SR2 = 48
sM = 52
sST = 64
vL = 0
vOFF = 1
vAD = 2
vT = 3
vACC = 4
vA0, vA1 = 8, 12
vSEL = 16
vCO = 24
vD = 40

nstamp = [0]
def stamp(k):
    if a.stamps:
        A(f"s_memrealtime s[{sST+2*k}:{sST+2*k+1}]")

def thr(n):
    if a.thr and n >= a.thr:
        A(f"s_waitcnt vmcnt({a.thr-1})")

def prio(p):
    if a.prio:
        A(f"s_setprio {p}")

def spin_tail(loop, sleep=1):
    if sleep:
        A(f"s_sleep {sleep}")
    A(f"s_sub_u32 s{sSPIN}, s{sSPIN}, 1\ns_cbranch_scc0 {loop}\ns_branch L_end")

def lds_wait(off, positions, nread, vt):
    if a.nopoll >= 2: return
    lp = A.label("Lw"); dn = A.label("Lwd")
    vz = vt + nread + 1
    vx = vt + nread
    A(f"v_mov_b32 v{vz}, 0")
    A(f"{lp}:")
    k = 0
    while k < nread:
        n = min(4, nread - k)
        op = {1: "ds_read_b32", 2: "ds_read_b64", 4: "ds_read_b128"}[n]
        reg = f"v{vt+k}" if n == 1 else f"v[{vt+k}:{vt+k+n-1}]"
        A(f"{op} {reg}, v{vz} offset:{off+4*k}")
        k += n
    A("s_waitcnt lgkmcnt(0)")
    first = True
    for p in positions:
        if first:
            A(f"v_xor_b32 v{vx}, s{sFL}, v{vt+p}")
            first = False
        else:
            A(f"v_xor_b32 v{vz}, s{sFL}, v{vt+p}\nv_or_b32 v{vx}, v{vx}, v{vz}")
    A(f"v_mov_b32 v{vz}, 0")
    A(f"v_cmp_ne_u32 vcc, 0, v{vx}")
    A(f"s_cmp_eq_u64 vcc, 0\ns_cbranch_scc1 {dn}")
    spin_tail(lp)
    A(f"{dn}:")

def lds_flag(off, vtmp):
    A(f"v_mov_b32 v{vtmp}, 0\nds_write_b32 v{vtmp}, v{vT} offset:{off}")

def get_T():
    A("s_waitcnt lgkmcnt(0)")
    A(f"s_mul_i32 s{sT}, s{sT}, 0x9E3779B1\ns_add_u32 s{sT}, s{sT}, 0x7F4A7C15\ns_or_b32 s{sT}, s{sT}, 1")
    A(f"v_mov_b32 v{vT}, s{sT}")

def make_selectors():
    t0, t1, t2, t3 = vA0, vA0 + 1, vA0 + 2, vA0 + 3
    A(f"v_bfe_u32 v{t0}, v{vL}, 2, 2")
    A(f"v_bfe_u32 v{t1}, v{vL}, 1, 1")
    A(f"v_cmp_eq_u32 vcc, 1, v{t1}")
    A(f"v_mov_b32 v{t2}, 0x0c0c0100\nv_mov_b32 v{t3}, 0x01000c0c")
    A(f"v_cndmask_b32 v{t2}, v{t2}, v{t3}, vcc")
    A(f"v_mov_b32 v{t1}, 0x0c0c0302\nv_mov_b32 v{t3}, 0x03020c0c")
    A(f"v_cndmask_b32 v{t3}, v{t1}, v{t3}, vcc")
    A(f"v_mov_b32 v{t1}, 0x0c0c0c0c")
    for t in range(4):
        A(f"v_cmp_eq_u32 vcc, {t}, v{t0}\ns_nop 1")
        A(f"v_cndmask_b32 v{vSEL+2*t}, v{t1}, v{t2}, vcc\nv_cndmask_b32 v{vSEL+2*t+1}, v{t1}, v{t3}, vcc")

def build_A(b, buf):
    src = vCO + b // 2
    for t in range(4):
        A(f"v_perm_b32 v{buf+t}, v{src}, v{src}, v{vSEL+2*t+(b&1)}")

def diag_gemv(nb, extra_after=0):
    build_A(0, vA0)
    for b in range(nb):
        if b + 1 < nb:
            build_A(b + 1, vA1 if (b & 1) == 0 else vA0)
        else:
            A("s_nop 1")
        A(f"s_waitcnt vmcnt({nb-1-b+extra_after})")
        buf = vA0 if (b & 1) == 0 else vA1
        c = "0" if b == 0 else f"v[{vACC}:{vACC+3}]"
        A(f"v_mfma_f32_16x16x32_bf16 v[{vACC}:{vACC+3}], v[{buf}:{buf+3}], v[{vD+4*b}:{vD+4*b+3}], {c}")

def combine(g):
    A("s_nop 7")
    A(f"v_add_f32_dpp v{g}, v{vACC+1}, v{vACC} row_ror:8 row_mask:0xf bank_mask:0xf")
    A(f"v_add_f32_dpp v{g+1}, v{vACC+3}, v{vACC+2} row_ror:8 row_mask:0xf bank_mask:0xf")
    A(f"v_mov_b32 v{g+2}, 0\nv_mov_b32 v{g+3}, 0")
    A("s_nop 1")
    A(f"v_permlane16_swap_b32 v{g}, v{g+2}\nv_permlane16_swap_b32 v{g+1}, v{g+3}")
    A("s_nop 1")
    for k in range(4):
        A(f"v_perm_b32 v{g+k}, v{g+k}, v{vT}, s{sSEL+k}")

def poll(g, voff, soff, sleep=0, depth=None, gap=None):
    if a.nopoll >= 1: return
    depth = depth or a.pdepth
    gap = a.pgap if gap is None else gap
    lp = A.label("Lp"); dn = A.label("Lpd")
    sets = [g + 8 + 4 * k for k in range(depth)]
    def issue(r):
        A(f"buffer_load_dwordx4 v[{r}:{r+3}], v{voff}, s[{WS}:{WS+3}], s{soff} offen sc1")
    for k in range(depth - 1):
        issue(sets[k])
        if gap: A(f"s_sleep {gap}")
    A(f"{lp}:")
    fins = []
    for k in range(depth):
        issue(sets[(k + depth - 1) % depth])
        r = sets[k]
        A(f"s_waitcnt vmcnt({depth-1})")
        A(f"v_perm_b32 v{g+4}, v{r+1}, v{r}, s{sSELA}\nv_perm_b32 v{g+5}, v{r+3}, v{r+2}, s{sSELB}")
        A(f"v_or_b32 v{g+4}, v{g+4}, v{g+5}")
        A(f"v_cmp_ne_u32 vcc, s{sT}, v{g+4}")
        fl = A.label("Lpf"); fins.append((fl, r))
        A(f"s_cmp_eq_u64 vcc, 0\ns_cbranch_scc1 {fl}")
    spin_tail(lp, 0)
    for i, (fl, r) in enumerate(fins):
        A(f"{fl}:")
        for k in range(4):
            A(f"v_mov_b32 v{g+k}, v{r+k}")
        if i < len(fins) - 1: A(f"s_branch {dn}")
    A(f"{dn}:")
    A("s_nop 1")

def publish_gather(box, ldsdst, ldsflag, fscale, g=vD, h=None):
    combine(g)
    A(f"v_and_b32 v{g+8}, 7, v{vL}\nv_lshrrev_b32 v{g+9}, 5, v{vL}\nv_lshl_add_u32 v{g+8}, v{g+8}, 1, v{g+9}\nv_lshlrev_b32 v{g+8}, 6, v{g+8}")
    A(f"s_mul_i32 s{sOFF}, s{sH}, 3072\ns_lshl_b32 s{sTMP}, s{sC}, 10\ns_add_u32 s{sOFF}, s{sOFF}, s{sTMP}\ns_add_u32 s{sOFF}, s{sOFF}, {box}")
    A(f"s_lshl_b32 s{sTMP}, s{sJ}, 4\ns_add_u32 s{sTMP}, s{sTMP}, s{sOFF}")
    A("s_mov_b32 exec_lo, 0xff\ns_mov_b32 exec_hi, 0xff")
    A(f"buffer_store_dwordx4 v[{g}:{g+3}], v{g+8}, s[{WS}:{WS+3}], s{sTMP} offen sc1")
    A("s_mov_b64 exec, -1")
    stamp(3)
    A(f"v_and_b32 v{g+10}, 3, v{vL}\nv_lshrrev_b32 v{g+11}, 2, v{vL}\nv_lshlrev_b32 v{g+12}, 4, v{vL}")
    if fscale:
        lds_wait(L_FFLAG, [0], 1, g + 16)
        A(f"v_lshlrev_b32 v{g+13}, 2, v{g+10}\nds_read_b32 v{g+13}, v{g+13} offset:{L_FF}")
    h = h or g + 20
    poll(h, g + 12, sOFF)
    stamp(4)
    if fscale:
        A("s_waitcnt lgkmcnt(0)")
        for k in range(4):
            A(f"v_mul_f32 v{h+k}, v{h+k}, v{g+13}")
    for k in range(4):
        A(f"v_add_f32_dpp v{h+4+k}, v{h+k}, v{h+k} quad_perm:[1,0,3,2] row_mask:0xf bank_mask:0xf")
    for k in range(4):
        A(f"v_add_f32_dpp v{h+k}, v{h+4+k}, v{h+4+k} quad_perm:[2,3,0,1] row_mask:0xf bank_mask:0xf")
    A(f"v_cvt_pk_bf16_f32 v{h+4}, v{h}, v{h+1}\nv_cvt_pk_bf16_f32 v{h+5}, v{h+2}, v{h+3}")
    A(f"s_lshl_b32 s{sTMP}, s{sC}, 7\nv_lshlrev_b32 v{g+11}, 3, v{g+11}\nv_add_u32 v{g+11}, s{sTMP}, v{g+11}")
    A(f"s_lshl_b32 s{sTMP}, s{sC}, 2\nv_mov_b32 v{g+10}, s{sTMP}")
    A("s_mov_b32 exec_lo, 0x11111111\ns_mov_b32 exec_hi, 0x11111111")
    A(f"ds_write_b64 v{g+11}, v[{h+4}:{h+5}] offset:{ldsdst}")
    A(f"ds_write_b32 v{g+10}, v{vT} offset:{ldsflag}")
    A("s_mov_b64 exec, -1")

def coef_addr(vdst, per):
    A(f"v_lshrrev_b32 v{vdst}, 4, v{vL}\nv_and_b32 v{vA0}, 1, v{vL}\nv_lshl_add_u32 v{vdst}, v{vdst}, 1, v{vA0}\nv_mul_u32_u24 v{vdst}, {per}, v{vdst}")

def data_voff(rowstep):
    A(f"v_lshrrev_b32 v{vOFF}, 3, v{vL}\nv_mul_u32_u24 v{vOFF}, {rowstep}, v{vOFF}\nv_and_b32 v{vA0}, 7, v{vL}\nv_lshl_add_u32 v{vOFF}, v{vA0}, 4, v{vOFF}")

def srd(d, lo, n):
    A.srd(d, lo, n)

A("s_cmp_ge_u32 s2, 256\ns_cbranch_scc1 L_done")
stamp(0)
if a.stamps:
    for k in range(2, 18):
        A(f"s_mov_b32 s{sST+k}, 0")
A(f"s_load_dwordx2 s[{sWSP}:{sWSP+1}], s[0:1], 96")
A(f"s_add_u32 s3, s2, {a.rot}\ns_and_b32 s3, s3, 7\ns_lshr_b32 s{sH}, s2, 3\ns_and_b32 s{sJ}, s{sH}, 3\ns_lshr_b32 s{sH}, s{sH}, 2\ns_lshl_b32 s3, s3, 3\ns_add_u32 s{sH}, s{sH}, s3")
A(f"s_lshr_b32 s{sP}, s{sH}, 5\ns_and_b32 s{sHH}, s{sH}, 31")
A(f"s_lshl_b32 s9, s{sP}, 7")
A(f"s_mul_i32 s8, s{sP}, 40\ns_add_u32 s10, s0, s8\ns_addc_u32 s11, s1, 0")
A(f"s_load_dwordx8 s[{sX}:{sX+7}], s[10:11], 0")
A(f"s_load_dwordx2 s[{sWO}:{sWO+1}], s[10:11], 32")
A(f"v_lshrrev_b32 v1, 6, v0\nv_and_b32 v0, 63, v0\nv_readfirstlane_b32 s{sWAVE}, v1")
A(f"s_mov_b32 s{sSPIN}, 200000")
for k in range(4):
    A(f"s_mov_b32 s{sSEL+k}, {0x07060500 + k:#x}")
A(f"s_mov_b32 s{sSELA}, 0x0c0c0400\ns_mov_b32 s{sSELB}, 0x04000c0c")
A(f"""s_cmp_lt_u32 s{sWAVE}, 3
s_cbranch_scc1 L_w
s_cmp_eq_u32 s{sWAVE}, 3
s_cbranch_scc1 L_aux
s_cmp_lt_u32 s{sWAVE}, 8
s_cbranch_scc1 L_k
s_cmp_lt_u32 s{sWAVE}, 11
s_cbranch_scc1 L_v
s_branch L_aux""")

A("L_w:")
prio(3)
A(f"s_mov_b32 s{sC}, s{sWAVE}")
A(f"s_lshr_b32 s{sTMP}, s{sJ}, 1\ns_mul_i32 s{sTMP2}, s{sTMP}, 320\ns_and_b32 s{sTMP}, s{sJ}, 1\ns_lshl_b32 s{sTMP3}, s{sTMP}, 7\ns_add_u32 s{sTMP2}, s{sTMP2}, s{sTMP3}")
A(f"s_mul_i32 s{sOFF}, s{sTMP2}, 12288\ns_mul_i32 s{sTMP3}, s{sHH}, 384\ns_add_u32 s{sOFF}, s{sOFF}, s{sTMP3}\ns_lshl_b32 s{sTMP3}, s{sC}, 7\ns_add_u32 s{sOFF}, s{sOFF}, s{sTMP3}")
A(f"s_lshl_b32 s{sTMP2}, s{sTMP2}, 1")
A(f"s_cmp_eq_u32 s{sTMP}, 1\ns_cbranch_scc1 L_w24")
for nb in (16, 24):
    if nb == 24: A("L_w24:")
    data_voff(nb * 12288)
    coef_addr(vAD, 2 * nb)
    A("s_waitcnt lgkmcnt(0)")
    A(f"s_load_dword s{sT}, s[{sWSP}:{sWSP+1}], s9")
    srd(SR, sWQ, 640 * 12288)
    srd(SR2, sX, 1280)
    for k in range(nb // 8):
        A(f"buffer_load_dwordx4 v[{vCO+4*k}:{vCO+4*k+3}], v{vAD}, s[{SR2}:{SR2+3}], s{sTMP2} offen offset:{16*k}")
    for b in range(nb):
        thr(b)
        A(f"buffer_load_dwordx4 v[{vD+4*b}:{vD+4*b+3}], v{vOFF}, s[{SR}:{SR+3}], s{sOFF} offen nt")
        if b < nb - 1: A(f"s_add_u32 s{sOFF}, s{sOFF}, 12288")
    stamp(1)
    A("s_barrier")
    srd(WS, sWSP, 0x10000000)
    make_selectors()
    get_T()
    A(f"s_waitcnt vmcnt({nb})")
    diag_gemv(nb)
    if nb == 16: A("s_branch L_wq_done")
A("L_wq_done:")
stamp(2)
publish_gather(QBOX, L_Q, L_QF, False, g=vD, h=136)
stamp(5)
vF = 160
A(f"s_lshl_b32 s{sTMP}, s{sC}, 2\nv_mov_b32 v{vF+1}, s{sTMP}")
A(f"s_and_b32 s{sTMP}, s{sJ}, 1\ns_add_u32 s{sTMP}, s{sTMP}, s{sC}\ns_cmp_eq_u32 s{sTMP}, 3\ns_cbranch_scc1 L_w_fin")
prio(0)
srd(SR, sWO, 6144 * 1280)
data_voff(24 * 1280)
A(f"s_mul_i32 s{sTMP}, s{sJ}, 5\ns_add_u32 s{sTMP}, s{sTMP}, 1\ns_lshr_b32 s{sTMP}, s{sTMP}, 1\ns_add_u32 s{sM}, s{sTMP}, s{sC}")
A(f"s_mul_i32 s{sOFF}, s{sHH}, {192*1280}\ns_lshl_b32 s{sTMP}, s{sM}, 7\ns_add_u32 s{sOFF}, s{sOFF}, s{sTMP}")
for b in range(24):
    thr(b)
    A(f"buffer_load_dwordx4 v[{vD+4*b}:{vD+4*b+3}], v{vOFF}, s[{SR}:{SR+3}], s{sOFF} offen nt")
    if b < 23: A(f"s_add_u32 s{sOFF}, s{sOFF}, 1280")
prio(3)
stamp(6)
coef_addr(vAD, 48)
A(f"v_and_b32 v{vF}, 7, v{vL}\nv_lshrrev_b32 v{vF+2}, 5, v{vL}\nv_lshlrev_b32 v{vF}, 10, v{vF}\nv_lshl_add_u32 v{vF}, v{vF+2}, 9, v{vF}")
A(f"s_lshl_b32 s{sTMP}, s{sP}, 2\ns_add_u32 s{sTMP}, s{sTMP}, s{sJ}\ns_mul_i32 s{sOFF}, s{sTMP}, 24576\ns_lshl_b32 s{sTMP}, s{sHH}, 4\ns_add_u32 s{sOFF}, s{sOFF}, s{sTMP}\ns_lshl_b32 s{sTMP}, s{sC}, 13\ns_add_u32 s{sOFF}, s{sOFF}, s{sTMP}\ns_add_u32 s{sOFF}, s{sOFF}, {FBOX}")
lds_wait(L_OF, [0, 1, 2], 4, vCO)
for k in range(3):
    A(f"ds_read_b128 v[{vCO+4*k}:{vCO+4*k+3}], v{vAD} offset:{L_O+16*k}")
A("s_waitcnt lgkmcnt(0)")
diag_gemv(24)
combine(vCO)
A("s_mov_b32 exec_lo, 0xff\ns_mov_b32 exec_hi, 0xff")
A(f"buffer_store_dwordx4 v[{vCO}:{vCO+3}], v{vF}, s[{WS}:{WS+3}], s{sOFF} offen sc1")
A("s_mov_b64 exec, -1")
A("L_w_fin:")
A(f"ds_write_b32 v{vF+1}, v{vT} offset:{L_PF}")
stamp(7)
A("s_branch L_end")

A("L_k:")
prio(2)
A(f"s_sub_u32 s{sC}, s{sWAVE}, 4")
A(f"v_and_b32 v{vOFF}, 7, v{vL}\nv_mul_u32_u24 v{vOFF}, 384, v{vOFF}\nv_bfe_u32 v8, v{vL}, 3, 1\nv_lshl_add_u32 v{vOFF}, v8, 6, v{vOFF}\nv_lshrrev_b32 v8, 4, v{vL}\nv_lshl_add_u32 v{vOFF}, v8, 4, v{vOFF}")
A(f"v_and_b32 v{vAD}, 1, v{vL}\nv_lshlrev_b32 v{vAD}, 6, v{vAD}\nv_lshl_add_u32 v{vAD}, v8, 4, v{vAD}")
A(f"s_mul_i32 s{sOFF}, s{sHH}, 1572864\ns_mul_i32 s{sTMP}, s{sJ}, 98304\ns_add_u32 s{sOFF}, s{sOFF}, s{sTMP}\ns_mul_i32 s{sTMP}, s{sC}, 24576\ns_add_u32 s{sOFF}, s{sOFF}, s{sTMP}\ns_add_u32 s{sOFF}, s{sOFF}, {3072*384}")
A("s_waitcnt lgkmcnt(0)")
A(f"s_load_dword s{sT}, s[{sWSP}:{sWSP+1}], s9")
srd(SR, sK, 50331648)
srd(WS, sWSP, 0x10000000)
A("s_barrier")
get_T()
for t in range(24):
    thr(t)
    A(f"buffer_load_dwordx4 v[{vD+4*t}:{vD+4*t+3}], v{vOFF}, s[{SR}:{SR+3}], s{sOFF} offen offset:{128*(t%3)} nt")
    if t % 3 == 2 and t < 23: A(f"s_add_u32 s{sOFF}, s{sOFF}, 3072")
if a.g2:
    A(f"s_lshl_b32 s{sTMP}, s{sC}, 2\nv_mov_b32 v8, s{sTMP}\nds_write_b32 v8, v{vT} offset:{L_KI}")
prio(3)
stamp(1)
vQ = 8
vS = 136
lds_wait(L_QF, [0, 1, 2], 4, 24)
stamp(2)
for u in range(3):
    A(f"ds_read_b128 v[{vQ+4*u}:{vQ+4*u+3}], v{vAD} offset:{L_Q+128*u}")
A("s_waitcnt lgkmcnt(0)")
s_ = 24
for t in range(24):
    G, u = divmod(t, 3)
    A(f"s_waitcnt vmcnt({23-t})")
    c = "0" if u == 0 else f"v[{vS+4*G}:{vS+4*G+3}]"
    A(f"v_mfma_f32_16x16x32_bf16 v[{vS+4*G}:{vS+4*G+3}], v[{vQ+4*u}:{vQ+4*u+3}], v[{vD+4*t}:{vD+4*t+3}], {c}")
stamp(3)
A("s_nop 7")
for G in range(8):
    d0, d1 = vS + 4 * G, vS + 4 * G + 1
    if G & 1:
        A(f"v_add_f32_dpp v{s_}, v{d0}, v{d1} row_ror:8 row_mask:{1 << (G >> 1):#x} bank_mask:0xc")
    else:
        A(f"v_add_f32_dpp v{s_}, v{d1}, v{d0} row_ror:8 row_mask:{1 << (G >> 1):#x} bank_mask:0x3")
A(f"v_cvt_pk_bf16_f32 v{s_}, v{s_}, v{s_}\nv_lshlrev_b32 v{s_}, 16, v{s_}")
A(f"v_mul_f32 v{s_}, 0x3d93cd3a, v{s_}")
A(f"v_cvt_pk_bf16_f32 v{s_}, v{s_}, v{s_}\nv_lshlrev_b32 v{s_}, 16, v{s_}")
def wave_reduce(op, v):
    for d in ["row_shr:1", "row_shr:2", "row_shr:4", "row_shr:8"]:
        A(f"s_nop 1\n{op}_dpp v{v}, v{v}, v{v} {d} row_mask:0xf bank_mask:0xf")
    A(f"s_nop 1\n{op}_dpp v{v}, v{v}, v{v} row_bcast:15 row_mask:0xa bank_mask:0xf")
    A(f"s_nop 1\n{op}_dpp v{v}, v{v}, v{v} row_bcast:31 row_mask:0xc bank_mask:0xf")
A(f"v_mov_b32 v{s_+1}, v{s_}")
wave_reduce("v_max_f32", s_ + 1)
A(f"s_nop 0\nv_readlane_b32 s{sTMP}, v{s_+1}, 63")
A(f"s_lshl_b32 s{sTMP2}, s{sC}, 3\nv_mov_b32 v{s_+4}, s{sTMP2}\nv_mov_b32 v{s_+2}, s{sTMP}\nv_mov_b32 v{s_+3}, s{sT}")
A(f"ds_write_b64 v{s_+4}, v[{s_+2}:{s_+3}] offset:{L_MX}")
lds_wait(L_MX, [1, 3, 5, 7], 8, s_ + 8)
A(f"v_max_f32 v{s_+8}, v{s_+8}, v{s_+10}\nv_max3_f32 v{s_+8}, v{s_+8}, v{s_+12}, v{s_+14}")
A(f"v_sub_f32 v{s_}, v{s_}, v{s_+8}\nv_mul_f32 v{s_}, 0x3fb8aa3b, v{s_}\nv_exp_f32 v{s_}, v{s_}\ns_nop 0")
A(f"v_cvt_pk_bf16_f32 v{s_+1}, v{s_}, v{s_}")
A(f"s_lshl_b32 s{sTMP}, s{sC}, 7\nv_lshlrev_b32 v{s_+5}, 1, v{vL}\nv_add_u32 v{s_+5}, s{sTMP}, v{s_+5}")
A(f"ds_write_b16 v{s_+5}, v{s_+1} offset:{L_P}")
wave_reduce("v_add_f32", s_)
A(f"s_nop 0\nv_readlane_b32 s{sTMP}, v{s_}, 63\ns_nop 1\nv_mov_b32 v{s_+2}, s{sTMP}")
A(f"ds_write_b64 v{s_+4}, v[{s_+2}:{s_+3}] offset:{L_LS}")
stamp(4)
A("s_branch L_end")

A("L_v:")
prio(1)
A(f"s_sub_u32 s{sC}, s{sWAVE}, 8")
data_voff(384 if a.near else 32 * 384)
A(f"s_mul_i32 s{sOFF}, s{sHH}, 1572864\ns_mul_i32 s{sTMP}, s{sJ}, 98304\ns_add_u32 s{sOFF}, s{sOFF}, s{sTMP}\ns_lshl_b32 s{sTMP}, s{sC}, 7\ns_add_u32 s{sOFF}, s{sOFF}, s{sTMP}\ns_add_u32 s{sOFF}, s{sOFF}, {3072*384}")
A("s_waitcnt lgkmcnt(0)")
A(f"s_load_dword s{sT}, s[{sWSP}:{sWSP+1}], s9")
srd(SR, sV, 50331648)
srd(WS, sWSP, 0x10000000)
A("s_barrier")
get_T()
if a.g2:
    lds_wait(L_KI, [0, 1, 2, 3], 4, vCO)
for b in range(32):
    thr(b)
    if a.near:
        A(f"buffer_load_dwordx4 v[{vD+4*b}:{vD+4*b+3}], v{vOFF}, s[{SR}:{SR+3}], s{sOFF} offen nt\ns_add_u32 s{sOFF}, s{sOFF}, 3072")
        continue
    A(f"buffer_load_dwordx4 v[{vD+4*b}:{vD+4*b+3}], v{vOFF}, s[{SR}:{SR+3}], s{sOFF} offen offset:{384*(b%8)} nt")
    if b % 8 == 7 and b < 31: A(f"s_add_u32 s{sOFF}, s{sOFF}, 3072")
prio(3)
stamp(1)
make_selectors()
coef_addr(vAD, 64)
lds_wait(L_LS, [1, 3, 5, 7], 8, vCO)
for k in range(4):
    A(f"ds_read_b128 v[{vCO+4*k}:{vCO+4*k+3}], v{vAD} offset:{L_P+16*k}")
A("s_waitcnt lgkmcnt(0)")
stamp(2)
diag_gemv(32)
publish_gather(OBOX, L_O, L_OF, True)
stamp(5)
A("s_branch L_end")

A("L_aux:")
prio(3)
A(f"v_lshlrev_b32 v8, 2, v{vL}\nv_mov_b32 v9, 0\nds_write_b32 v8, v9")
A(f"s_load_dwordx4 s[{sM}:{sM+3}], s[0:1], 80")
A("s_waitcnt lgkmcnt(0)")
A(f"s_load_dword s{sT}, s[{sWSP}:{sWSP+1}], s9")
srd(WS, sWSP, 0x10000000)
srd(SR2, sM, 2560)
A("s_waitcnt lgkmcnt(0)\ns_barrier")
get_T()
if a.lat:
    A(f"v_lshlrev_b32 v37, 4, v{vL}")
    A(f"s_lshl_b32 s{sOFF}, s2, 10\ns_add_u32 s{sOFF}, s{sOFF}, 0x200000")
    A(f"s_cmp_eq_u32 s{sWAVE}, 11\ns_cbranch_scc1 L_lat2")
    for k in range(4):
        A(f"s_memrealtime s[{sST+4*k}:{sST+4*k+1}]\ns_waitcnt lgkmcnt(0)")
        A(f"buffer_load_dwordx4 v[40:43], v37, s[{WS}:{WS+3}], s{sOFF} offen sc1\ns_waitcnt vmcnt(0)")
        A(f"s_memrealtime s[{sST+4*k+2}:{sST+4*k+3}]\ns_waitcnt lgkmcnt(0)")
        A("s_sleep 40")
    A("s_branch L_end")
    A("L_lat2:")
    A(f"s_add_u32 s{sOFF}, s{sOFF}, 0x100000")
    A(f"buffer_load_dwordx4 v[40:43], v37, s[{WS}:{WS+3}], s{sOFF} offen {'nt' if a.lat == 1 else 'sc1'}\ns_waitcnt vmcnt(0)")
    for k in range(4):
        A(f"s_memrealtime s[{sST+4*k}:{sST+4*k+1}]\ns_waitcnt lgkmcnt(0)")
        A(f"buffer_load_dwordx4 v[40:43], v37, s[{WS}:{WS+3}], s{sOFF} offen {'nt' if a.lat == 1 else 'sc1'}\ns_waitcnt vmcnt(0)")
        A(f"s_memrealtime s[{sST+4*k+2}:{sST+4*k+3}]\ns_waitcnt lgkmcnt(0)")
        A("s_sleep 40")
    A("s_branch L_end")
stamp(1)
lds_wait(L_LS, [1, 3, 5, 7], 8, 8)
A(f"v_mov_b32 v30, 0\nds_read_b128 v[20:23], v30 offset:{L_MX}\nds_read_b128 v[24:27], v30 offset:{L_MX+16}\ns_waitcnt lgkmcnt(0)")
A("v_max_f32 v32, v20, v22\nv_max3_f32 v32, v32, v24, v26")
A("v_add_f32 v33, v8, v10\nv_add_f32 v34, v12, v14\nv_add_f32 v33, v33, v34\nv_mov_b32 v34, 0\nv_mov_b32 v35, 0")
for k in range(4):
    A(f"v_perm_b32 v{32+k}, v{32+k}, v{vT}, s{sSEL+k}")
A(f"s_lshl_b32 s{sOFF}, s{sH}, 7\ns_add_u32 s{sOFF}, s{sOFF}, {SBOX}\ns_lshl_b32 s{sTMP}, s{sJ}, 4\ns_add_u32 s{sTMP}, s{sTMP}, s{sOFF}")
A("s_mov_b64 exec, 1")
A(f"buffer_store_dwordx4 v[32:35], v30, s[{WS}:{WS+3}], s{sTMP} offen sc1")
A("s_mov_b64 exec, -1")
stamp(2)
A(f"v_and_b32 v36, 3, v{vL}\nv_lshlrev_b32 v37, 4, v36")
poll(40, 37, sOFF)
stamp(3)
A("v_and_b32 v40, 0xffffff00, v40\ns_nop 1")
A("v_max_f32_dpp v44, v40, v40 quad_perm:[1,0,3,2] row_mask:0xf bank_mask:0xf\ns_nop 1")
A("v_max_f32_dpp v44, v44, v44 quad_perm:[2,3,0,1] row_mask:0xf bank_mask:0xf")
A("v_sub_f32 v40, v40, v44\nv_mul_f32 v40, 0x3fb8aa3b, v40\nv_exp_f32 v40, v40\ns_nop 0")
A("v_mul_f32 v41, v41, v40\ns_nop 1")
A("v_add_f32_dpp v44, v41, v41 quad_perm:[1,0,3,2] row_mask:0xf bank_mask:0xf\ns_nop 1")
A("v_add_f32_dpp v44, v44, v44 quad_perm:[2,3,0,1] row_mask:0xf bank_mask:0xf")
A("v_rcp_f32 v44, v44\ns_nop 0\nv_mul_f32 v40, v40, v44")
A("v_lshlrev_b32 v36, 2, v36")
A("s_mov_b64 exec, 15")
A(f"ds_write_b32 v36, v40 offset:{L_FF}")
A(f"ds_write_b32 v30, v{vT} offset:{L_FFLAG}")
A("s_mov_b64 exec, -1")
A(f"s_and_b32 s{sTMP}, s{sJ}, 1\ns_lshl_b32 s{sTMP}, s{sTMP}, 3\ns_add_u32 s{sTMP}, s{sTMP}, s{sHH}\ns_cmp_ge_u32 s{sTMP}, 24\ns_cbranch_scc1 L_end")
A(f"s_lshl_b32 s{sTMP}, s{sP}, 2\ns_add_u32 s{sTMP}, s{sTMP}, s{sJ}\ns_mul_i32 s{sOFF}, s{sTMP}, 24\ns_add_u32 s{sOFF}, s{sOFF}, s{sHH}")
A(f"s_lshl_b32 s{sOFF}, s{sOFF}, 10\ns_add_u32 s{sOFF}, s{sOFF}, {FBOX}")
A(f"s_mul_i32 s{sTMP}, s{sJ}, 5\ns_add_u32 s{sTMP}, s{sTMP}, 1\ns_lshr_b32 s{sTMP}, s{sTMP}, 1\ns_lshl_b32 s{sTMP2}, s{sTMP}, 7")
A(f"s_mul_i32 s{sTMP}, s{sP}, 1280\ns_add_u32 s{sTMP2}, s{sTMP2}, s{sTMP}\ns_lshl_b32 s{sTMP}, s{sHH}, 4\ns_add_u32 s{sTMP2}, s{sTMP2}, s{sTMP}")
A(f"v_lshlrev_b32 v37, 4, v{vL}\nv_lshrrev_b32 v38, 5, v{vL}\nv_lshlrev_b32 v38, 3, v38")
lds_wait(L_PF, [0, 1, 2], 4, 8)
stamp(4)
poll(80, 37, sOFF, depth=a.fdepth, gap=a.fgap)
for k in range(4):
    A(f"v_mov_b32 v{40+k}, v{80+k}")
A("s_nop 1")
stamp(5)
for d in ["row_shr:1", "row_shr:2", "row_shr:4", "row_shr:8"]:
    for k in range(4):
        A(f"v_add_f32_dpp v{40+k}, v{40+k}, v{40+k} {d} row_mask:0xf bank_mask:0xf")
for k in range(4):
    A(f"v_add_f32_dpp v{40+k}, v{40+k}, v{40+k} row_bcast:15 row_mask:0xa bank_mask:0xf")
A("v_cvt_pk_bf16_f32 v44, v40, v41\nv_cvt_pk_bf16_f32 v45, v42, v43")
A("s_mov_b32 exec_lo, 0x80000000\ns_mov_b32 exec_hi, 0x80000000")
A(f"buffer_store_dwordx2 v[44:45], v38, s[{SR2}:{SR2+3}], s{sTMP2} offen")
A(f"s_or_b32 s{sTMP}, s{sJ}, s{sHH}\ns_cmp_lg_u32 s{sTMP}, 0\ns_cbranch_scc1 L_aux2")
A("s_mov_b64 exec, 1")
A(f"buffer_store_dword v{vT}, v30, s[{WS}:{WS+3}], s9 offen")
A("L_aux2:")
A("s_mov_b64 exec, -1")
stamp(6)

A("L_end:")
if a.stamps:
    A("s_mov_b64 exec, -1")
    A("s_waitcnt vmcnt(0) lgkmcnt(0)")
    A(f"s_memrealtime s[{sST+16}:{sST+17}]\ns_waitcnt lgkmcnt(0)")
    A(f"s_lshl_b32 s{sTMP}, s2, 4\ns_add_u32 s{sTMP}, s{sTMP}, s{sWAVE}\ns_mul_i32 s{sTMP}, s{sTMP}, 80\ns_add_u32 s{sTMP}, s{sTMP}, {STAMP}")
    for k in range(18):
        A(f"v_mov_b32 v{8+k}, s{sST+k}")
    A("v_mov_b32 v30, 0\ns_mov_b64 exec, 1")
    for k in range(4):
        A(f"buffer_store_dwordx4 v[{8+4*k}:{11+4*k}], v30, s[{WS}:{WS+3}], s{sTMP} offen offset:{16*k}")
    A("s_getreg_b32 s3, hwreg(HW_REG_XCC_ID)\nv_mov_b32 v26, s3\nv_mov_b32 v27, 0")
    A(f"buffer_store_dwordx4 v[24:27], v30, s[{WS}:{WS+3}], s{sTMP} offen offset:64")
A("L_done:\ns_endpgm")
A.footer(168)
A.write(a.out)
```

```python
import sys, argparse
from asmlib import *
ap = argparse.ArgumentParser()
ap.add_argument("out")
ap.add_argument("--stamps", type=int, default=0)
ap.add_argument("--prio", type=int, default=1)
ap.add_argument("--lds", type=int, default=163840)
ap.add_argument("--nopoll", type=int, default=0)
ap.add_argument("--near", type=int, default=0)
ap.add_argument("--kfull", type=int, default=0)
ap.add_argument("--psleep", type=int, default=0)
a = ap.parse_args()

A = Asm()
NW = 11
A.header(256, 64 * NW, a.lds)

QBOX = 0x10000
OBOX = 0x40000
SBOX = 0x70000
FBOX = 0x80000
STAMP = 0x8000000
L_GOT = 0
L_QF = 48
L_MX = 64
L_LS = 96
L_FF = 128
L_FFLAG = 144
L_OF = 160
L_PF = 176
L_Q = 256
L_P = 640
L_O = 1152
sH, sJ, sP, sHH = 4, 5, 6, 7
sX, sK, sV, sWQ, sWO = 12, 14, 16, 18, 20
sWSP = 22
sWAVE = 24
sT = 25
sSPIN = 26
sC = 27
WS = 28
SR = 32
sOFF = 36
sTMP, sTMP2, sTMP3 = 37, 38, 39
sSEL = 40
sSELA, sSELB = 44, 45
sFL = sT
SR2 = 48
sM = 52
sST = 64
vL = 0
vOFF = 1
vAD = 2
vT = 3
vACC = 4
vA0, vA1 = 8, 12
vSEL = 16
vCO = 24
vD = 40

nstamp = [0]
def stamp(k):
    if a.stamps:
        A(f"s_memrealtime s[{sST+2*k}:{sST+2*k+1}]")

def prio(p):
    if a.prio:
        A(f"s_setprio {p}")

def spin_tail(loop, sleep=1):
    if sleep:
        A(f"s_sleep {sleep}")
    A(f"s_sub_u32 s{sSPIN}, s{sSPIN}, 1\ns_cbranch_scc0 {loop}\ns_branch L_end")

def lds_wait(off, positions, nread, vt):
    if a.nopoll >= 2: return
    lp = A.label("Lw"); dn = A.label("Lwd")
    vz = vt + nread + 1
    vx = vt + nread
    A(f"v_mov_b32 v{vz}, 0")
    A(f"{lp}:")
    k = 0
    while k < nread:
        n = min(4, nread - k)
        op = {1: "ds_read_b32", 2: "ds_read_b64", 4: "ds_read_b128"}[n]
        reg = f"v{vt+k}" if n == 1 else f"v[{vt+k}:{vt+k+n-1}]"
        A(f"{op} {reg}, v{vz} offset:{off+4*k}")
        k += n
    A("s_waitcnt lgkmcnt(0)")
    first = True
    for p in positions:
        if first:
            A(f"v_xor_b32 v{vx}, s{sFL}, v{vt+p}")
            first = False
        else:
            A(f"v_xor_b32 v{vz}, s{sFL}, v{vt+p}\nv_or_b32 v{vx}, v{vx}, v{vz}")
    A(f"v_mov_b32 v{vz}, 0")
    A(f"v_cmp_ne_u32 vcc, 0, v{vx}")
    A(f"s_cmp_eq_u64 vcc, 0\ns_cbranch_scc1 {dn}")
    spin_tail(lp)
    A(f"{dn}:")

def lds_flag(off, vtmp):
    A(f"v_mov_b32 v{vtmp}, 0\nds_write_b32 v{vtmp}, v{vT} offset:{off}")

def get_T():
    A("s_waitcnt lgkmcnt(0)")
    A(f"s_mul_i32 s{sT}, s{sT}, 0x9E3779B1\ns_add_u32 s{sT}, s{sT}, 0x7F4A7C15\ns_or_b32 s{sT}, s{sT}, 1")
    A(f"v_mov_b32 v{vT}, s{sT}")

def make_selectors():
    t0, t1, t2, t3 = vA0, vA0 + 1, vA0 + 2, vA0 + 3
    A(f"v_bfe_u32 v{t0}, v{vL}, 2, 2")
    A(f"v_bfe_u32 v{t1}, v{vL}, 1, 1")
    A(f"v_cmp_eq_u32 vcc, 1, v{t1}")
    A(f"v_mov_b32 v{t2}, 0x0c0c0100\nv_mov_b32 v{t3}, 0x01000c0c")
    A(f"v_cndmask_b32 v{t2}, v{t2}, v{t3}, vcc")
    A(f"v_mov_b32 v{t1}, 0x0c0c0302\nv_mov_b32 v{t3}, 0x03020c0c")
    A(f"v_cndmask_b32 v{t3}, v{t1}, v{t3}, vcc")
    A(f"v_mov_b32 v{t1}, 0x0c0c0c0c")
    for t in range(4):
        A(f"v_cmp_eq_u32 vcc, {t}, v{t0}\ns_nop 1")
        A(f"v_cndmask_b32 v{vSEL+2*t}, v{t1}, v{t2}, vcc\nv_cndmask_b32 v{vSEL+2*t+1}, v{t1}, v{t3}, vcc")

def build_A(b, buf):
    src = vCO + b // 2
    for t in range(4):
        A(f"v_perm_b32 v{buf+t}, v{src}, v{src}, v{vSEL+2*t+(b&1)}")

def diag_gemv(nb, extra_after=0):
    build_A(0, vA0)
    for b in range(nb):
        if b + 1 < nb:
            build_A(b + 1, vA1 if (b & 1) == 0 else vA0)
        else:
            A("s_nop 1")
        A(f"s_waitcnt vmcnt({nb-1-b+extra_after})")
        buf = vA0 if (b & 1) == 0 else vA1
        c = "0" if b == 0 else f"v[{vACC}:{vACC+3}]"
        A(f"v_mfma_f32_16x16x32_bf16 v[{vACC}:{vACC+3}], v[{buf}:{buf+3}], v[{vD+4*b}:{vD+4*b+3}], {c}")

def combine(g):
    A("s_nop 7")
    A(f"v_add_f32_dpp v{g}, v{vACC+1}, v{vACC} row_ror:8 row_mask:0xf bank_mask:0xf")
    A(f"v_add_f32_dpp v{g+1}, v{vACC+3}, v{vACC+2} row_ror:8 row_mask:0xf bank_mask:0xf")
    A(f"v_mov_b32 v{g+2}, 0\nv_mov_b32 v{g+3}, 0")
    A("s_nop 1")
    A(f"v_permlane16_swap_b32 v{g}, v{g+2}\nv_permlane16_swap_b32 v{g+1}, v{g+3}")
    A("s_nop 1")
    for k in range(4):
        A(f"v_perm_b32 v{g+k}, v{g+k}, v{vT}, s{sSEL+k}")

def poll(g, voff, soff, sleep=0):
    if a.nopoll >= 1: return
    sleep = a.psleep
    lp = A.label("Lp"); dn = A.label("Lpd")
    A(f"{lp}:")
    A(f"buffer_load_dwordx4 v[{g}:{g+3}], v{voff}, s[{WS}:{WS+3}], s{soff} offen sc1")
    A("s_waitcnt vmcnt(0)")
    A(f"v_perm_b32 v{g+4}, v{g+1}, v{g}, s{sSELA}\nv_perm_b32 v{g+5}, v{g+3}, v{g+2}, s{sSELB}")
    A(f"v_or_b32 v{g+4}, v{g+4}, v{g+5}")
    A(f"v_cmp_ne_u32 vcc, s{sT}, v{g+4}")
    A(f"s_cmp_eq_u64 vcc, 0\ns_cbranch_scc1 {dn}")
    spin_tail(lp, sleep)
    A(f"{dn}:")

def publish_gather(box, ldsdst, ldsflag, fscale):
    g = vD
    combine(g)
    A(f"v_and_b32 v{g+8}, 7, v{vL}\nv_lshrrev_b32 v{g+9}, 5, v{vL}\nv_lshl_add_u32 v{g+8}, v{g+8}, 1, v{g+9}\nv_lshlrev_b32 v{g+8}, 4, v{g+8}")
    A(f"s_mul_i32 s{sOFF}, s{sH}, 3072\ns_lshl_b32 s{sTMP}, s{sC}, 10\ns_add_u32 s{sOFF}, s{sOFF}, s{sTMP}\ns_add_u32 s{sOFF}, s{sOFF}, {box}")
    A(f"s_lshl_b32 s{sTMP}, s{sJ}, 8\ns_add_u32 s{sTMP}, s{sTMP}, s{sOFF}")
    A("s_mov_b32 exec_lo, 0xff\ns_mov_b32 exec_hi, 0xff")
    A(f"buffer_store_dwordx4 v[{g}:{g+3}], v{g+8}, s[{WS}:{WS+3}], s{sTMP} offen sc1")
    A("s_mov_b64 exec, -1")
    stamp(3)
    A(f"v_and_b32 v{g+10}, 3, v{vL}\nv_lshrrev_b32 v{g+11}, 2, v{vL}\nv_lshlrev_b32 v{g+12}, 8, v{g+10}\nv_lshl_add_u32 v{g+12}, v{g+11}, 4, v{g+12}")
    if fscale:
        lds_wait(L_FFLAG, [0], 1, g + 16)
        A(f"v_lshlrev_b32 v{g+13}, 2, v{g+10}\nds_read_b32 v{g+13}, v{g+13} offset:{L_FF}")
    h = g + 20
    poll(h, g + 12, sOFF)
    stamp(4)
    if fscale:
        A("s_waitcnt lgkmcnt(0)")
        for k in range(4):
            A(f"v_mul_f32 v{h+k}, v{h+k}, v{g+13}")
    for k in range(4):
        A(f"v_add_f32_dpp v{h+8+k}, v{h+k}, v{h+k} quad_perm:[1,0,3,2] row_mask:0xf bank_mask:0xf")
    for k in range(4):
        A(f"v_add_f32_dpp v{h+k}, v{h+8+k}, v{h+8+k} quad_perm:[2,3,0,1] row_mask:0xf bank_mask:0xf")
    A(f"v_cvt_pk_bf16_f32 v{h+8}, v{h}, v{h+1}\nv_cvt_pk_bf16_f32 v{h+9}, v{h+2}, v{h+3}")
    A(f"s_lshl_b32 s{sTMP}, s{sC}, 7\nv_lshlrev_b32 v{g+11}, 3, v{g+11}\nv_add_u32 v{g+11}, s{sTMP}, v{g+11}")
    A(f"s_lshl_b32 s{sTMP}, s{sC}, 2\nv_mov_b32 v{g+10}, s{sTMP}")
    A("s_mov_b32 exec_lo, 0x11111111\ns_mov_b32 exec_hi, 0x11111111")
    A(f"ds_write_b64 v{g+11}, v[{h+8}:{h+9}] offset:{ldsdst}")
    A(f"ds_write_b32 v{g+10}, v{vT} offset:{ldsflag}")
    A("s_mov_b64 exec, -1")

def coef_addr(vdst, per):
    A(f"v_lshrrev_b32 v{vdst}, 4, v{vL}\nv_and_b32 v{vA0}, 1, v{vL}\nv_lshl_add_u32 v{vdst}, v{vdst}, 1, v{vA0}\nv_mul_u32_u24 v{vdst}, {per}, v{vdst}")

def data_voff(rowstep):
    A(f"v_lshrrev_b32 v{vOFF}, 3, v{vL}\nv_mul_u32_u24 v{vOFF}, {rowstep}, v{vOFF}\nv_and_b32 v{vA0}, 7, v{vL}\nv_lshl_add_u32 v{vOFF}, v{vA0}, 4, v{vOFF}")

def srd(d, lo, n):
    A.srd(d, lo, n)

A("s_cmp_ge_u32 s2, 256\ns_cbranch_scc1 L_done")
stamp(0)
if a.stamps:
    for k in range(2, 18):
        A(f"s_mov_b32 s{sST+k}, 0")
A(f"s_load_dwordx2 s[{sWSP}:{sWSP+1}], s[0:1], 96")
A(f"s_and_b32 s3, s2, 7\ns_lshr_b32 s{sH}, s2, 3\ns_and_b32 s{sJ}, s{sH}, 3\ns_lshr_b32 s{sH}, s{sH}, 2\ns_lshl_b32 s3, s3, 3\ns_add_u32 s{sH}, s{sH}, s3")
A(f"s_lshr_b32 s{sP}, s{sH}, 5\ns_and_b32 s{sHH}, s{sH}, 31")
A(f"s_lshl_b32 s9, s{sP}, 7")
A(f"s_mul_i32 s8, s{sP}, 40\ns_add_u32 s10, s0, s8\ns_addc_u32 s11, s1, 0")
A(f"s_load_dwordx8 s[{sX}:{sX+7}], s[10:11], 0")
A(f"s_load_dwordx2 s[{sWO}:{sWO+1}], s[10:11], 32")
A(f"v_lshrrev_b32 v1, 6, v0\nv_and_b32 v0, 63, v0\nv_readfirstlane_b32 s{sWAVE}, v1")
A(f"s_mov_b32 s{sSPIN}, 200000")
for k in range(4):
    A(f"s_mov_b32 s{sSEL+k}, {0x07060500 + k:#x}")
A(f"s_mov_b32 s{sSELA}, 0x0c0c0400\ns_mov_b32 s{sSELB}, 0x04000c0c")
A(f"""s_cmp_lt_u32 s{sWAVE}, 3
s_cbranch_scc1 L_w
s_cmp_eq_u32 s{sWAVE}, 3
s_cbranch_scc1 L_aux
s_cmp_lt_u32 s{sWAVE}, 8
s_cbranch_scc1 L_k
s_branch L_v""")

A("L_w:")
prio(3)
A(f"s_mov_b32 s{sC}, s{sWAVE}")
data_voff(12288 if a.near else 20 * 12288)
coef_addr(vAD, 40)
A(f"s_mul_i32 s{sOFF}, s{sJ}, {160*12288}\ns_mul_i32 s{sTMP}, s{sHH}, 384\ns_add_u32 s{sOFF}, s{sOFF}, s{sTMP}\ns_lshl_b32 s{sTMP}, s{sC}, 7\ns_add_u32 s{sOFF}, s{sOFF}, s{sTMP}")
A(f"s_mul_i32 s{sTMP2}, s{sJ}, 320")
A("s_waitcnt lgkmcnt(0)")
A(f"s_load_dword s{sT}, s[{sWSP}:{sWSP+1}], s9")
srd(SR, sWQ, 640 * 12288)
srd(SR2, sX, 1280)
A(f"buffer_load_dwordx4 v[{vCO}:{vCO+3}], v{vAD}, s[{SR2}:{SR2+3}], s{sTMP2} offen")
A(f"buffer_load_dwordx4 v[{vCO+4}:{vCO+7}], v{vAD}, s[{SR2}:{SR2+3}], s{sTMP2} offen offset:16")
A(f"buffer_load_dwordx2 v[{vCO+8}:{vCO+9}], v{vAD}, s[{SR2}:{SR2+3}], s{sTMP2} offen offset:32")
for b in range(20):
    A(f"buffer_load_dwordx4 v[{vD+4*b}:{vD+4*b+3}], v{vOFF}, s[{SR}:{SR+3}], s{sOFF} offen nt")
    if b < 19: A(f"s_add_u32 s{sOFF}, s{sOFF}, {12288 * (8 if a.near else 1)}")
stamp(1)
A("s_barrier")
srd(WS, sWSP, 0x10000000)
make_selectors()
get_T()
A("s_waitcnt vmcnt(20)")
diag_gemv(20)
stamp(2)
publish_gather(QBOX, L_Q, L_QF, False)
stamp(5)
prio(0)
srd(SR, sWO, 6144 * 1280)
data_voff(1280 if a.near else 24 * 1280)
A(f"s_mul_i32 s{sTMP}, s{sJ}, 5\ns_lshr_b32 s{sTMP}, s{sTMP}, 1\ns_add_u32 s{sM}, s{sTMP}, s{sC}")
A(f"s_mul_i32 s{sOFF}, s{sHH}, {192*1280}\ns_lshl_b32 s{sTMP}, s{sM}, 7\ns_add_u32 s{sOFF}, s{sOFF}, s{sTMP}")
for b in range(24):
    A(f"buffer_load_dwordx4 v[{vD+4*b}:{vD+4*b+3}], v{vOFF}, s[{SR}:{SR+3}], s{sOFF} offen nt")
    if b < 23: A(f"s_add_u32 s{sOFF}, s{sOFF}, {1280 * (8 if a.near else 1)}")
prio(3)
stamp(6)
coef_addr(vAD, 48)
vF = 136
A(f"v_and_b32 v{vF}, 7, v{vL}\nv_lshrrev_b32 v{vF+1}, 5, v{vL}\nv_lshl_add_u32 v{vF}, v{vF}, 1, v{vF+1}")
A(f"s_lshl_b32 s{sTMP}, s{sM}, 4\ns_mul_i32 s{sTMP2}, s{sJ}, 40\ns_sub_u32 s{sTMP}, s{sTMP}, s{sTMP2}")
A(f"v_add_u32 v{vF}, s{sTMP}, v{vF}")
A(f"v_cmp_gt_u32 s[{sM+2}:{sM+3}], 40, v{vF}")
A(f"v_lshrrev_b32 v{vF+1}, 1, v{vF}\nv_and_b32 v{vF}, 1, v{vF}\nv_lshlrev_b32 v{vF}, 9, v{vF}\nv_lshl_add_u32 v{vF}, v{vF+1}, 10, v{vF}")
A(f"s_and_b32 s{sM+2}, s{sM+2}, 0xff\ns_and_b32 s{sM+3}, s{sM+3}, 0xff")
A(f"s_lshl_b32 s{sTMP}, s{sP}, 2\ns_add_u32 s{sTMP}, s{sTMP}, s{sJ}\ns_mul_i32 s{sOFF}, s{sTMP}, 20480\ns_lshl_b32 s{sTMP}, s{sHH}, 4\ns_add_u32 s{sOFF}, s{sOFF}, s{sTMP}\ns_add_u32 s{sOFF}, s{sOFF}, {FBOX}")
lds_wait(L_OF, [0, 1, 2], 4, 140)
for k in range(3):
    A(f"ds_read_b128 v[{vCO+4*k}:{vCO+4*k+3}], v{vAD} offset:{L_O+16*k}")
A("s_waitcnt lgkmcnt(0)")
diag_gemv(24)
combine(140)
A(f"s_mov_b64 exec, s[{sM+2}:{sM+3}]")
A(f"buffer_store_dwordx4 v[140:143], v{vF}, s[{WS}:{WS+3}], s{sOFF} offen sc1")
A("s_mov_b64 exec, -1")
A(f"s_lshl_b32 s{sTMP}, s{sC}, 2\nv_mov_b32 v{vF+1}, s{sTMP}\nds_write_b32 v{vF+1}, v{vT} offset:{L_PF}")
stamp(7)
A("s_branch L_end")

A("L_k:")
prio(2)
A(f"s_sub_u32 s{sC}, s{sWAVE}, 4")
A(f"v_and_b32 v{vOFF}, 15, v{vL}\nv_lshrrev_b32 v{vAD}, 4, v{vL}\nv_mul_u32_u24 v{vOFF}, 384, v{vOFF}\nv_lshl_add_u32 v{vOFF}, v{vAD}, 4, v{vOFF}\nv_lshlrev_b32 v{vAD}, 4, v{vAD}")
A(f"s_mul_i32 s{sOFF}, s{sHH}, 1572864\ns_mul_i32 s{sTMP}, s{sJ}, 98304\ns_add_u32 s{sOFF}, s{sOFF}, s{sTMP}\ns_mul_i32 s{sTMP}, s{sC}, 24576\ns_add_u32 s{sOFF}, s{sOFF}, s{sTMP}\ns_add_u32 s{sOFF}, s{sOFF}, {3072*384}")
A("s_waitcnt lgkmcnt(0)")
A(f"s_load_dword s{sT}, s[{sWSP}:{sWSP+1}], s9")
srd(SR, sK, 50331648)
srd(WS, sWSP, 0x10000000)
A("s_barrier")
get_T()
if a.kfull:
    A(f"v_lshlrev_b32 v{vOFF}, 4, v{vL}")
for t in range(24):
    G, ks = divmod(t, 6)
    if a.kfull:
        A(f"buffer_load_dwordx4 v[{vD+4*t}:{vD+4*t+3}], v{vOFF}, s[{SR}:{SR+3}], s{sOFF} offen nt\ns_add_u32 s{sOFF}, s{sOFF}, 1024")
        continue
    A(f"buffer_load_dwordx4 v[{vD+4*t}:{vD+4*t+3}], v{vOFF}, s[{SR}:{SR+3}], s{sOFF} offen offset:{64*ks} nt")
    if ks == 5 and G < 3: A(f"s_add_u32 s{sOFF}, s{sOFF}, 6144")
prio(3)
stamp(1)
vQ = 8
vS = 136
lds_wait(L_QF, [0, 1, 2], 4, 152)
stamp(2)
for ks in range(6):
    A(f"ds_read_b128 v[{vQ+4*ks}:{vQ+4*ks+3}], v{vAD} offset:{L_Q+64*ks}")
A("s_waitcnt lgkmcnt(0)")
for t in range(24):
    G, ks = divmod(t, 6)
    A(f"s_waitcnt vmcnt({23-t})")
    c = "0" if ks == 0 else f"v[{vS+4*G}:{vS+4*G+3}]"
    A(f"v_mfma_f32_16x16x32_bf16 v[{vS+4*G}:{vS+4*G+3}], v[{vQ+4*ks}:{vQ+4*ks+3}], v[{vD+4*t}:{vD+4*t+3}], {c}")
stamp(3)
A(f"s_mov_b32 s{sM}, 0xffff0000\ns_mov_b32 s{sM+1}, 0\ns_mov_b32 s{sM+2}, 0\ns_mov_b32 s{sM+3}, 0xffff\ns_mov_b32 s{sM+4}, 0\ns_mov_b32 s{sM+5}, 0xffff0000")
A("s_nop 4")
s_ = 40
A(f"v_cndmask_b32 v{s_}, v{vS}, v{vS+4}, s[{sM}:{sM+1}]")
A(f"v_cndmask_b32 v{s_}, v{s_}, v{vS+8}, s[{sM+2}:{sM+3}]")
A(f"v_cndmask_b32 v{s_}, v{s_}, v{vS+12}, s[{sM+4}:{sM+5}]")
A(f"v_cvt_pk_bf16_f32 v{s_}, v{s_}, v{s_}\nv_lshlrev_b32 v{s_}, 16, v{s_}")
A(f"v_mul_f32 v{s_}, 0x3d93cd3a, v{s_}")
A(f"v_cvt_pk_bf16_f32 v{s_}, v{s_}, v{s_}\nv_lshlrev_b32 v{s_}, 16, v{s_}")
def wave_reduce(op, v):
    for d in ["row_shr:1", "row_shr:2", "row_shr:4", "row_shr:8"]:
        A(f"s_nop 1\n{op}_dpp v{v}, v{v}, v{v} {d} row_mask:0xf bank_mask:0xf")
    A(f"s_nop 1\n{op}_dpp v{v}, v{v}, v{v} row_bcast:15 row_mask:0xa bank_mask:0xf")
    A(f"s_nop 1\n{op}_dpp v{v}, v{v}, v{v} row_bcast:31 row_mask:0xc bank_mask:0xf")
A(f"v_mov_b32 v{s_+1}, v{s_}")
wave_reduce("v_max_f32", s_ + 1)
A(f"s_nop 0\nv_readlane_b32 s{sTMP}, v{s_+1}, 63")
A(f"s_lshl_b32 s{sTMP2}, s{sC}, 3\nv_mov_b32 v{s_+4}, s{sTMP2}\nv_mov_b32 v{s_+2}, s{sTMP}\nv_mov_b32 v{s_+3}, s{sT}")
A(f"ds_write_b64 v{s_+4}, v[{s_+2}:{s_+3}] offset:{L_MX}")
lds_wait(L_MX, [1, 3, 5, 7], 8, s_ + 8)
A(f"v_max_f32 v{s_+8}, v{s_+8}, v{s_+10}\nv_max3_f32 v{s_+8}, v{s_+8}, v{s_+12}, v{s_+14}")
A(f"v_sub_f32 v{s_}, v{s_}, v{s_+8}\nv_mul_f32 v{s_}, 0x3fb8aa3b, v{s_}\nv_exp_f32 v{s_}, v{s_}\ns_nop 0")
A(f"v_cvt_pk_bf16_f32 v{s_+1}, v{s_}, v{s_}")
A(f"s_lshl_b32 s{sTMP}, s{sC}, 7\nv_lshlrev_b32 v{s_+5}, 1, v{vL}\nv_add_u32 v{s_+5}, s{sTMP}, v{s_+5}")
A(f"ds_write_b16 v{s_+5}, v{s_+1} offset:{L_P}")
wave_reduce("v_add_f32", s_)
A(f"s_nop 0\nv_readlane_b32 s{sTMP}, v{s_}, 63\ns_nop 1\nv_mov_b32 v{s_+2}, s{sTMP}")
A(f"ds_write_b64 v{s_+4}, v[{s_+2}:{s_+3}] offset:{L_LS}")
stamp(4)
A("s_branch L_end")

A("L_v:")
prio(1)
A(f"s_sub_u32 s{sC}, s{sWAVE}, 8")
data_voff(384 if a.near else 32 * 384)
A(f"s_mul_i32 s{sOFF}, s{sHH}, 1572864\ns_mul_i32 s{sTMP}, s{sJ}, 98304\ns_add_u32 s{sOFF}, s{sOFF}, s{sTMP}\ns_lshl_b32 s{sTMP}, s{sC}, 7\ns_add_u32 s{sOFF}, s{sOFF}, s{sTMP}\ns_add_u32 s{sOFF}, s{sOFF}, {3072*384}")
A("s_waitcnt lgkmcnt(0)")
A(f"s_load_dword s{sT}, s[{sWSP}:{sWSP+1}], s9")
srd(SR, sV, 50331648)
srd(WS, sWSP, 0x10000000)
A("s_barrier")
get_T()
for b in range(32):
    if a.near:
        A(f"buffer_load_dwordx4 v[{vD+4*b}:{vD+4*b+3}], v{vOFF}, s[{SR}:{SR+3}], s{sOFF} offen nt\ns_add_u32 s{sOFF}, s{sOFF}, 3072")
        continue
    A(f"buffer_load_dwordx4 v[{vD+4*b}:{vD+4*b+3}], v{vOFF}, s[{SR}:{SR+3}], s{sOFF} offen offset:{384*(b%8)} nt")
    if b % 8 == 7 and b < 31: A(f"s_add_u32 s{sOFF}, s{sOFF}, 3072")
prio(3)
stamp(1)
make_selectors()
coef_addr(vAD, 64)
lds_wait(L_LS, [1, 3, 5, 7], 8, vCO)
for k in range(4):
    A(f"ds_read_b128 v[{vCO+4*k}:{vCO+4*k+3}], v{vAD} offset:{L_P+16*k}")
A("s_waitcnt lgkmcnt(0)")
stamp(2)
diag_gemv(32)
publish_gather(OBOX, L_O, L_OF, True)
stamp(5)
A("s_branch L_end")

A("L_aux:")
prio(3)
A(f"v_lshlrev_b32 v8, 2, v{vL}\nv_mov_b32 v9, 0\nds_write_b32 v8, v9")
A(f"s_load_dwordx4 s[{sM}:{sM+3}], s[0:1], 80")
A("s_waitcnt lgkmcnt(0)")
A(f"s_load_dword s{sT}, s[{sWSP}:{sWSP+1}], s9")
srd(WS, sWSP, 0x10000000)
srd(SR2, sM, 2560)
A("s_waitcnt lgkmcnt(0)\ns_barrier")
get_T()
stamp(1)
lds_wait(L_LS, [1, 3, 5, 7], 8, 8)
A(f"v_mov_b32 v30, 0\nds_read_b128 v[20:23], v30 offset:{L_MX}\nds_read_b128 v[24:27], v30 offset:{L_MX+16}\ns_waitcnt lgkmcnt(0)")
A("v_max_f32 v32, v20, v22\nv_max3_f32 v32, v32, v24, v26")
A("v_add_f32 v33, v8, v10\nv_add_f32 v34, v12, v14\nv_add_f32 v33, v33, v34\nv_mov_b32 v34, 0\nv_mov_b32 v35, 0")
for k in range(4):
    A(f"v_perm_b32 v{32+k}, v{32+k}, v{vT}, s{sSEL+k}")
A(f"s_lshl_b32 s{sOFF}, s{sH}, 7\ns_add_u32 s{sOFF}, s{sOFF}, {SBOX}\ns_lshl_b32 s{sTMP}, s{sJ}, 4\ns_add_u32 s{sTMP}, s{sTMP}, s{sOFF}")
A("s_mov_b64 exec, 1")
A(f"buffer_store_dwordx4 v[32:35], v30, s[{WS}:{WS+3}], s{sTMP} offen sc1")
A("s_mov_b64 exec, -1")
stamp(2)
A(f"v_and_b32 v36, 3, v{vL}\nv_lshlrev_b32 v37, 4, v36")
poll(40, 37, sOFF)
stamp(3)
A("v_and_b32 v40, 0xffffff00, v40\ns_nop 1")
A("v_max_f32_dpp v44, v40, v40 quad_perm:[1,0,3,2] row_mask:0xf bank_mask:0xf\ns_nop 1")
A("v_max_f32_dpp v44, v44, v44 quad_perm:[2,3,0,1] row_mask:0xf bank_mask:0xf")
A("v_sub_f32 v40, v40, v44\nv_mul_f32 v40, 0x3fb8aa3b, v40\nv_exp_f32 v40, v40\ns_nop 0")
A("v_mul_f32 v41, v41, v40\ns_nop 1")
A("v_add_f32_dpp v44, v41, v41 quad_perm:[1,0,3,2] row_mask:0xf bank_mask:0xf\ns_nop 1")
A("v_add_f32_dpp v44, v44, v44 quad_perm:[2,3,0,1] row_mask:0xf bank_mask:0xf")
A("v_rcp_f32 v44, v44\ns_nop 0\nv_mul_f32 v40, v40, v44")
A("v_lshlrev_b32 v36, 2, v36")
A("s_mov_b64 exec, 15")
A(f"ds_write_b32 v36, v40 offset:{L_FF}")
A(f"ds_write_b32 v30, v{vT} offset:{L_FFLAG}")
A("s_mov_b64 exec, -1")
A(f"s_cmp_ge_u32 s{sHH}, 20\ns_cbranch_scc1 L_end")
A(f"s_lshl_b32 s{sTMP}, s{sP}, 2\ns_add_u32 s{sTMP}, s{sTMP}, s{sJ}\ns_mul_i32 s{sOFF}, s{sTMP}, 20\ns_add_u32 s{sOFF}, s{sOFF}, s{sHH}")
A(f"s_lshl_b32 s{sTMP2}, s{sOFF}, 4")
A(f"s_lshl_b32 s{sOFF}, s{sOFF}, 10\ns_add_u32 s{sOFF}, s{sOFF}, {FBOX}")
A(f"v_lshlrev_b32 v37, 4, v{vL}\nv_lshrrev_b32 v38, 5, v{vL}\nv_lshlrev_b32 v38, 3, v38")
lds_wait(L_PF, [0, 1, 2], 4, 8)
stamp(4)
poll(40, 37, sOFF)
stamp(5)
for d in ["row_shr:1", "row_shr:2", "row_shr:4", "row_shr:8"]:
    for k in range(4):
        A(f"v_add_f32_dpp v{40+k}, v{40+k}, v{40+k} {d} row_mask:0xf bank_mask:0xf")
for k in range(4):
    A(f"v_add_f32_dpp v{40+k}, v{40+k}, v{40+k} row_bcast:15 row_mask:0xa bank_mask:0xf")
A("v_cvt_pk_bf16_f32 v44, v40, v41\nv_cvt_pk_bf16_f32 v45, v42, v43")
A("s_mov_b32 exec_lo, 0x80000000\ns_mov_b32 exec_hi, 0x80000000")
A(f"buffer_store_dwordx2 v[44:45], v38, s[{SR2}:{SR2+3}], s{sTMP2} offen")
A(f"s_or_b32 s{sTMP}, s{sJ}, s{sHH}\ns_cmp_lg_u32 s{sTMP}, 0\ns_cbranch_scc1 L_aux2")
A("s_mov_b64 exec, 1")
A(f"buffer_store_dword v{vT}, v30, s[{WS}:{WS+3}], s9 offen")
A("L_aux2:")
A("s_mov_b64 exec, -1")
stamp(6)

A("L_end:")
if a.stamps:
    A("s_mov_b64 exec, -1")
    A("s_waitcnt vmcnt(0) lgkmcnt(0)")
    A(f"s_memrealtime s[{sST+16}:{sST+17}]\ns_waitcnt lgkmcnt(0)")
    A(f"s_lshl_b32 s{sTMP}, s2, 4\ns_add_u32 s{sTMP}, s{sTMP}, s{sWAVE}\ns_mul_i32 s{sTMP}, s{sTMP}, 80\ns_add_u32 s{sTMP}, s{sTMP}, {STAMP}")
    for k in range(18):
        A(f"v_mov_b32 v{8+k}, s{sST+k}")
    A("v_mov_b32 v30, 0\ns_mov_b64 exec, 1")
    for k in range(4):
        A(f"buffer_store_dwordx4 v[{8+4*k}:{11+4*k}], v30, s[{WS}:{WS+3}], s{sTMP} offen offset:{16*k}")
    A(f"buffer_store_dwordx2 v[24:25], v30, s[{WS}:{WS+3}], s{sTMP} offen offset:64")
A("L_done:\ns_endpgm")
A.footer(168)
A.write(a.out)
```

```python
import sys, argparse
from asmlib import *
ap = argparse.ArgumentParser()
ap.add_argument("out")
ap.add_argument("--stamps", type=int, default=0)
ap.add_argument("--prio", type=int, default=1)
ap.add_argument("--lds", type=int, default=163840)
ap.add_argument("--nopoll", type=int, default=0)
ap.add_argument("--near", type=int, default=0)
ap.add_argument("--kfull", type=int, default=0)
ap.add_argument("--psleep", type=int, default=0)
ap.add_argument("--lat", type=int, default=0)
ap.add_argument("--thr", type=int, default=0)
ap.add_argument("--rot", type=int, default=0)
ap.add_argument("--pdepth", type=int, default=3)
ap.add_argument("--pgap", type=int, default=16)
ap.add_argument("--fgap", type=int, default=5)
ap.add_argument("--fdepth", type=int, default=3)
ap.add_argument("--g2", type=int, default=1)
ap.add_argument("--dbg", type=int, default=0)
ap.add_argument("--win", type=str, default="")
ap.add_argument("--gsleep", type=int, default=1)
ap.add_argument("--nt", type=int, default=12)
ap.add_argument("--xmap", type=int, default=0)
a = ap.parse_args()
WIN = [int(x) for x in a.win.split(",")] if a.win else None
if a.dbg: a.stamps = 1

A = Asm()
NW = 12 if a.lat else 11
A.header(256, 64 * NW, a.lds)

QBOX = 0x10000
OBOX = 0x40000
SBOX = 0x70000
FBOX = 0x80000
STAMP = 0x8000000
L_PW, L_PK, L_PV = 0, 16, 32
L_QF = 48
L_MX = 64
L_LS = 96
L_FF = 128
L_FFLAG = 144
L_MODE = 148
L_OF = 160
L_PF = 176
L_KI = 192
L_DN = 208
L_ST = 2048
L_Q = 256
L_P = 640
L_O = 1152
sH, sJ, sP, sHH = 4, 5, 6, 7
sX, sK, sV, sWQ, sWO = 12, 14, 16, 18, 20
sWSP = 22
sWAVE = 24
sT = 25
sSPIN = 26
sC = 27
WS = 28
SR = 32
sOFF = 36
sTMP, sTMP2, sTMP3 = 37, 38, 39
sSEL = 40
sSELA, sSELB = 44, 45
sFL = sT
SR2 = 48
sM = 52
sNEED, sHAVE = 56, 57
sMODE, sCNT = 58, 59
sXCC = 60
sST = 64
vL = 0
vOFF = 1
vAD = 2
vT = 3
vACC = 4
vA0, vA1 = 8, 12
vSEL = 16
vCO = 24
vD = 40

nstamp = [0]
def stamp(k):
    if a.stamps:
        A(f"s_memrealtime s[{sST+2*k}:{sST+2*k+1}]")

def thr(n):
    if a.thr and n >= a.thr:
        A(f"s_waitcnt vmcnt({a.thr-1})")

def prio(p):
    if a.prio:
        A(f"s_setprio {p}")

def spin_tail(loop, sleep=1):
    if sleep:
        A(f"s_sleep {sleep}")
    A(f"s_sub_u32 s{sSPIN}, s{sSPIN}, 1\ns_cbranch_scc0 {loop}\ns_branch L_end")

def lds_wait(off, positions, nread, vt):
    if a.nopoll >= 2: return
    lp = A.label("Lw"); dn = A.label("Lwd")
    vz = vt + nread + 1
    vx = vt + nread
    A(f"v_mov_b32 v{vz}, 0")
    A(f"{lp}:")
    k = 0
    while k < nread:
        n = min(4, nread - k)
        op = {1: "ds_read_b32", 2: "ds_read_b64", 4: "ds_read_b128"}[n]
        reg = f"v{vt+k}" if n == 1 else f"v[{vt+k}:{vt+k+n-1}]"
        A(f"{op} {reg}, v{vz} offset:{off+4*k}")
        k += n
    A("s_waitcnt lgkmcnt(0)")
    first = True
    for p in positions:
        if first:
            A(f"v_xor_b32 v{vx}, s{sFL}, v{vt+p}")
            first = False
        else:
            A(f"v_xor_b32 v{vz}, s{sFL}, v{vt+p}\nv_or_b32 v{vx}, v{vx}, v{vz}")
    A(f"v_mov_b32 v{vz}, 0")
    A(f"v_cmp_ne_u32 vcc, 0, v{vx}")
    A(f"s_cmp_eq_u64 vcc, 0\ns_cbranch_scc1 {dn}")
    spin_tail(lp)
    A(f"{dn}:")

def gate_init(widx, NP, vz):
    A(f"s_add_u32 s{sNEED}, s{widx}, 1\ns_mul_i32 s{sNEED}, s{sNEED}, {NP}\ns_mov_b32 s{sHAVE}, 0\nv_mov_b32 v{vz}, 0")

def gate(loff, kS, NP, NS, vz, vt):
    lp = A.label("Lg"); go = A.label("Lgo")
    A(f"{lp}:\ns_cmp_ge_u32 s{sHAVE}, s{sNEED}\ns_cbranch_scc1 {go}")
    A(f"ds_read_b128 v[{vt}:{vt+3}], v{vz} offset:{loff}\ns_waitcnt lgkmcnt(0)")
    A(f"v_add3_u32 v{vt}, v{vt}, v{vt+1}, v{vt+2}\nv_add_u32 v{vt}, v{vt}, v{vt+3}\ns_nop 0\nv_readfirstlane_b32 s{sHAVE}, v{vt}")
    A(f"s_mul_i32 s{sHAVE}, s{sHAVE}, {NS}\ns_cmp_ge_u32 s{sHAVE}, s{sNEED}\ns_cbranch_scc1 {go}")
    spin_tail(lp, a.gsleep)
    A(f"{go}:\ns_add_u32 s{sNEED}, s{sNEED}, {kS*NP}")

def credit(loff, vaddr, vval, n):
    A(f"v_mov_b32 v{vval}, {n}\nds_write_b32 v{vaddr}, v{vval} offset:{loff}")

def lds_flag(off, vtmp):
    A(f"v_mov_b32 v{vtmp}, 0\nds_write_b32 v{vtmp}, v{vT} offset:{off}")

def get_T():
    A("s_waitcnt lgkmcnt(0)")
    A(f"s_mul_i32 s{sT}, s{sT}, 0x9E3779B1\ns_add_u32 s{sT}, s{sT}, 0x7F4A7C15\ns_andn2_b32 s{sT}, s{sT}, 15\ns_or_b32 s{sT}, s{sT}, 8\ns_or_b32 s{sT}, s{sT}, s{sXCC}")
    A(f"v_mov_b32 v{vT}, s{sT}")

def make_selectors():
    t0, t1, t2, t3 = vA0, vA0 + 1, vA0 + 2, vA0 + 3
    A(f"v_bfe_u32 v{t0}, v{vL}, 2, 2")
    A(f"v_bfe_u32 v{t1}, v{vL}, 1, 1")
    A(f"v_cmp_eq_u32 vcc, 1, v{t1}")
    A(f"v_mov_b32 v{t2}, 0x0c0c0100\nv_mov_b32 v{t3}, 0x01000c0c")
    A(f"v_cndmask_b32 v{t2}, v{t2}, v{t3}, vcc")
    A(f"v_mov_b32 v{t1}, 0x0c0c0302\nv_mov_b32 v{t3}, 0x03020c0c")
    A(f"v_cndmask_b32 v{t3}, v{t1}, v{t3}, vcc")
    A(f"v_mov_b32 v{t1}, 0x0c0c0c0c")
    for t in range(4):
        A(f"v_cmp_eq_u32 vcc, {t}, v{t0}\ns_nop 1")
        A(f"v_cndmask_b32 v{vSEL+2*t}, v{t1}, v{t2}, vcc\nv_cndmask_b32 v{vSEL+2*t+1}, v{t1}, v{t3}, vcc")

def build_A(b, buf):
    src = vCO + b // 2
    for t in range(4):
        A(f"v_perm_b32 v{buf+t}, v{src}, v{src}, v{vSEL+2*t+(b&1)}")

def diag_gemv(nb, extra_after=0, win=None, hook=None):
    build_A(0, vA0)
    for b in range(nb):
        if b + 1 < nb:
            build_A(b + 1, vA1 if (b & 1) == 0 else vA0)
        else:
            A("s_nop 1")
        A(f"s_waitcnt vmcnt({min(nb-1-b, (win or nb)-1)+extra_after})")
        if hook: hook(b)
        buf = vA0 if (b & 1) == 0 else vA1
        c = "0" if b == 0 else f"v[{vACC}:{vACC+3}]"
        A(f"v_mfma_f32_16x16x32_bf16 v[{vACC}:{vACC+3}], v[{buf}:{buf+3}], v[{vD+4*b}:{vD+4*b+3}], {c}")

def combine(g):
    A("s_nop 7")
    A(f"v_add_f32_dpp v{g}, v{vACC+1}, v{vACC} row_ror:8 row_mask:0xf bank_mask:0xf")
    A(f"v_add_f32_dpp v{g+1}, v{vACC+3}, v{vACC+2} row_ror:8 row_mask:0xf bank_mask:0xf")
    A(f"v_mov_b32 v{g+2}, 0\nv_mov_b32 v{g+3}, 0")
    A("s_nop 1")
    A(f"v_permlane16_swap_b32 v{g}, v{g+2}\nv_permlane16_swap_b32 v{g+1}, v{g+3}")
    A("s_nop 1")
    for k in range(4):
        A(f"v_perm_b32 v{g+k}, v{g+k}, v{vT}, s{sSEL+k}")

def poll(g, voff, soff, sleep=0, depth=None, gap=None, on_timeout=None):
    if a.nopoll >= 1: return
    depth = depth or a.pdepth
    gap = a.pgap if gap is None else gap
    lp = A.label("Lp"); dn = A.label("Lpd")
    sets = [g + 8 + 4 * k for k in range(depth)]
    def issue(r):
        A(f"buffer_load_dwordx4 v[{r}:{r+3}], v{voff}, s[{WS}:{WS+3}], s{soff} offen sc1")
    for k in range(depth - 1):
        issue(sets[k])
        if gap: A(f"s_sleep {gap}")
    if on_timeout: A(f"s_mov_b32 s{sCNT}, 0")
    A(f"{lp}:")
    fins = []
    for k in range(depth):
        issue(sets[(k + depth - 1) % depth])
        r = sets[k]
        A(f"s_waitcnt vmcnt({depth-1})")
        A(f"v_perm_b32 v{g+4}, v{r+1}, v{r}, s{sSELA}\nv_perm_b32 v{g+5}, v{r+3}, v{r+2}, s{sSELB}")
        A(f"v_or_b32 v{g+4}, v{g+4}, v{g+5}\nv_xor_b32 v{g+4}, s{sT}, v{g+4}")
        A(f"v_cmp_lt_u32 vcc, 7, v{g+4}")
        fl = A.label("Lpf"); fins.append((fl, r))
        A(f"s_cmp_eq_u64 vcc, 0\ns_cbranch_scc1 {fl}")
    if on_timeout:
        A(f"s_add_u32 s{sCNT}, s{sCNT}, 1\ns_cmp_lg_u32 s{sCNT}, {a.nt}\ns_cbranch_scc1 {lp}_t")
        on_timeout()
        A(f"{lp}_t:")
    spin_tail(lp, 0)
    for i, (fl, r) in enumerate(fins):
        A(f"{fl}:")
        for k in range(4):
            A(f"v_mov_b32 v{g+k}, v{r+k}")
        if i < len(fins) - 1: A(f"s_branch {dn}")
    A(f"{dn}:")
    A("s_nop 1")

def lds_mode(vz, vr):
    A(f"v_mov_b32 v{vz}, 0\nds_read_b32 v{vr}, v{vz} offset:{L_MODE}")

def publish_gather(box, ldsdst, ldsflag, fscale, g=vD, h=None):
    combine(g)
    A(f"v_and_b32 v{g+8}, 7, v{vL}\nv_lshrrev_b32 v{g+9}, 5, v{vL}\nv_lshl_add_u32 v{g+8}, v{g+8}, 1, v{g+9}\nv_lshlrev_b32 v{g+8}, 4, v{g+8}")
    A(f"s_mul_i32 s{sOFF}, s{sH}, 3072\ns_lshl_b32 s{sTMP}, s{sC}, 10\ns_add_u32 s{sOFF}, s{sOFF}, s{sTMP}\ns_add_u32 s{sOFF}, s{sOFF}, {box}")
    A(f"s_lshl_b32 s{sTMP3}, s{sJ}, 8\ns_add_u32 s{sTMP3}, s{sTMP3}, s{sOFF}")
    def store(fl):
        A("s_mov_b32 exec_lo, 0xff\ns_mov_b32 exec_hi, 0xff")
        A(f"buffer_store_dwordx4 v[{g}:{g+3}], v{g+8}, s[{WS}:{WS+3}], s{sTMP3} offen{fl}")
        A("s_mov_b64 exec, -1")
    if fscale:
        l1 = A.label("Ls"); l2 = A.label("Ls")
        A(f"s_cmp_lg_u32 s{sMODE}, 0\ns_cbranch_scc1 {l1}")
        store("")
        A(f"s_branch {l2}\n{l1}:")
        store(" sc1")
        A(f"{l2}:")
    else:
        store("")
    stamp(3)
    A(f"v_and_b32 v{g+10}, 3, v{vL}\nv_lshrrev_b32 v{g+11}, 2, v{vL}\nv_lshlrev_b32 v{g+12}, 4, v{g+11}\nv_lshl_add_u32 v{g+12}, v{g+10}, 8, v{g+12}")
    if fscale:
        lds_wait(L_FFLAG, [0], 1, g + 16)
        A(f"v_lshlrev_b32 v{g+13}, 2, v{g+10}\nds_read_b32 v{g+13}, v{g+13} offset:{L_FF}")
    h = h or g + 20
    poll(h, g + 12, sOFF, on_timeout=None if fscale else (lambda: store(" sc1")))
    stamp(4)
    if fscale:
        A("s_waitcnt lgkmcnt(0)")
        for k in range(4):
            A(f"v_mul_f32 v{h+k}, v{h+k}, v{g+13}")
    else:
        A(f"v_cmp_ne_u32 vcc, 0, v{h+4}\ns_cmp_lg_u64 vcc, 0\ns_cselect_b32 s{sMODE}, 1, 0\nv_mov_b32 v{g+13}, s{sMODE}\nv_mov_b32 v{g+14}, 0")
        l1 = A.label("Ls")
        A(f"s_cbranch_scc0 {l1}")
        store(" sc1")
        A(f"{l1}:")
    for k in range(4):
        A(f"v_add_f32_dpp v{h+4+k}, v{h+k}, v{h+k} quad_perm:[1,0,3,2] row_mask:0xf bank_mask:0xf")
    for k in range(4):
        A(f"v_add_f32_dpp v{h+k}, v{h+4+k}, v{h+4+k} quad_perm:[2,3,0,1] row_mask:0xf bank_mask:0xf")
    A(f"v_cvt_pk_bf16_f32 v{h+4}, v{h}, v{h+1}\nv_cvt_pk_bf16_f32 v{h+5}, v{h+2}, v{h+3}")
    A(f"s_lshl_b32 s{sTMP}, s{sC}, 7\nv_lshlrev_b32 v{g+11}, 3, v{g+11}\nv_add_u32 v{g+11}, s{sTMP}, v{g+11}")
    A(f"s_lshl_b32 s{sTMP}, s{sC}, 2\nv_mov_b32 v{g+10}, s{sTMP}")
    A("s_mov_b32 exec_lo, 0x11111111\ns_mov_b32 exec_hi, 0x11111111")
    A(f"ds_write_b64 v{g+11}, v[{h+4}:{h+5}] offset:{ldsdst}")
    if not fscale:
        A(f"ds_write_b32 v{g+14}, v{g+13} offset:{L_MODE}")
    A(f"ds_write_b32 v{g+10}, v{vT} offset:{ldsflag}")
    A("s_mov_b64 exec, -1")

def coef_addr(vdst, per):
    A(f"v_lshrrev_b32 v{vdst}, 4, v{vL}\nv_and_b32 v{vA0}, 1, v{vL}\nv_lshl_add_u32 v{vdst}, v{vdst}, 1, v{vA0}\nv_mul_u32_u24 v{vdst}, {per}, v{vdst}")

def data_voff(rowstep):
    A(f"v_lshrrev_b32 v{vOFF}, 3, v{vL}\nv_mul_u32_u24 v{vOFF}, {rowstep}, v{vOFF}\nv_and_b32 v{vA0}, 7, v{vL}\nv_lshl_add_u32 v{vOFF}, v{vA0}, 4, v{vOFF}")

def srd(d, lo, n):
    A.srd(d, lo, n)

A("s_cmp_ge_u32 s2, 256\ns_cbranch_scc1 L_done")
stamp(0)
if a.stamps:
    for k in range(2, 18):
        A(f"s_mov_b32 s{sST+k}, 0")
A(f"s_load_dwordx2 s[{sWSP}:{sWSP+1}], s[0:1], 96")
if a.xmap == 1:
    A(f"s_and_b32 s{sJ}, s2, 3\ns_lshr_b32 s{sH}, s2, 2")
elif a.xmap == 2:
    A(f"s_lshr_b32 s{sH}, s2, 3\ns_and_b32 s{sJ}, s{sH}, 3\ns_cmp_eq_u32 s{sJ}, 3\ns_cselect_b32 s3, 1, 0\ns_add_u32 s3, s3, s2\ns_and_b32 s3, s3, 7\ns_lshr_b32 s{sH}, s{sH}, 2\ns_lshl_b32 s3, s3, 3\ns_add_u32 s{sH}, s{sH}, s3")
else:
    A(f"s_add_u32 s3, s2, {a.rot}\ns_and_b32 s3, s3, 7\ns_lshr_b32 s{sH}, s2, 3\ns_and_b32 s{sJ}, s{sH}, 3\ns_lshr_b32 s{sH}, s{sH}, 2\ns_lshl_b32 s3, s3, 3\ns_add_u32 s{sH}, s{sH}, s3")
A(f"s_lshr_b32 s{sP}, s{sH}, 5\ns_and_b32 s{sHH}, s{sH}, 31")
A(f"s_lshl_b32 s9, s{sP}, 7")
A(f"s_mul_i32 s8, s{sP}, 40\ns_add_u32 s10, s0, s8\ns_addc_u32 s11, s1, 0")
A(f"s_load_dwordx8 s[{sX}:{sX+7}], s[10:11], 0")
A(f"s_load_dwordx2 s[{sWO}:{sWO+1}], s[10:11], 32")
A(f"v_lshrrev_b32 v1, 6, v0\nv_and_b32 v0, 63, v0\nv_readfirstlane_b32 s{sWAVE}, v1")
A(f"s_mov_b32 s{sSPIN}, 200000\ns_getreg_b32 s{sXCC}, hwreg(HW_REG_XCC_ID, 0, 3)")
for k in range(4):
    A(f"s_mov_b32 s{sSEL+k}, {0x07060500 + k:#x}")
A(f"s_mov_b32 s{sSELA}, 0x0c0c0400\ns_mov_b32 s{sSELB}, 0x04000c0c")
A(f"""s_cmp_lt_u32 s{sWAVE}, 3
s_cbranch_scc1 L_w
s_cmp_eq_u32 s{sWAVE}, 3
s_cbranch_scc1 L_aux
s_cmp_lt_u32 s{sWAVE}, 8
s_cbranch_scc1 L_k
s_cmp_lt_u32 s{sWAVE}, 11
s_cbranch_scc1 L_v
s_branch L_aux""")

A("L_w:")
prio(3)
A(f"s_mov_b32 s{sC}, s{sWAVE}")
A(f"s_mul_i32 s{sOFF}, s{sJ}, {160*12288}\ns_mul_i32 s{sTMP3}, s{sHH}, 384\ns_add_u32 s{sOFF}, s{sOFF}, s{sTMP3}\ns_lshl_b32 s{sTMP3}, s{sC}, 7\ns_add_u32 s{sOFF}, s{sOFF}, s{sTMP3}")
A(f"s_mul_i32 s{sTMP2}, s{sJ}, 320")
for nb in (20,):
    data_voff(nb * 12288)
    coef_addr(vAD, 2 * nb)
    A("s_waitcnt lgkmcnt(0)")
    A(f"s_load_dword s{sT}, s[{sWSP}:{sWSP+1}], s9")
    srd(SR, sWQ, 640 * 12288)
    srd(SR2, sX, 1280)
    for k in range(nb // 8):
        A(f"buffer_load_dwordx4 v[{vCO+4*k}:{vCO+4*k+3}], v{vAD}, s[{SR2}:{SR2+3}], s{sTMP2} offen offset:{16*k}")
    A(f"buffer_load_dwordx2 v[{vCO+8}:{vCO+9}], v{vAD}, s[{SR2}:{SR2+3}], s{sTMP2} offen offset:32")
    nw = WIN[0] if WIN else nb
    def wq_load(b):
        A(f"buffer_load_dwordx4 v[{vD+4*b}:{vD+4*b+3}], v{vOFF}, s[{SR}:{SR+3}], s{sOFF} offen nt")
        if b < nb - 1: A(f"s_add_u32 s{sOFF}, s{sOFF}, 12288")
    for b in range(nw):
        thr(b)
        wq_load(b)
    stamp(1)
    A("s_barrier")
    srd(WS, sWSP, 0x10000000)
    make_selectors()
    get_T()
    A(f"s_waitcnt vmcnt({nw})")
    if WIN:
        A(f"s_lshl_b32 s{sTMP}, s{sC}, 2\nv_mov_b32 v{vAD}, s{sTMP}")
        def hook(b):
            if b + nw < nb: wq_load(b + nw)
            else: credit(L_PW, vAD, vCO - 1 - 0 if False else 164, b + nw - nb + 1)
        diag_gemv(nb, win=nw, hook=hook)
    else:
        diag_gemv(nb)
stamp(2)
publish_gather(QBOX, L_Q, L_QF, False, g=vD, h=136)
stamp(5)
vF = 160
A(f"s_lshl_b32 s{sTMP}, s{sC}, 2\nv_mov_b32 v{vF+1}, s{sTMP}")
A(f"s_and_b32 s{sTMP}, s{sJ}, 1\ns_add_u32 s{sTMP}, s{sTMP}, s{sC}\ns_cmp_eq_u32 s{sTMP}, 3\ns_cbranch_scc1 L_w_fin")
prio(0)
srd(SR, sWO, 6144 * 1280)
data_voff(24 * 1280)
A(f"s_mul_i32 s{sTMP}, s{sJ}, 5\ns_add_u32 s{sTMP}, s{sTMP}, 1\ns_lshr_b32 s{sTMP}, s{sTMP}, 1\ns_add_u32 s{sM}, s{sTMP}, s{sC}")
A(f"s_mul_i32 s{sOFF}, s{sHH}, {192*1280}\ns_lshl_b32 s{sTMP}, s{sM}, 7\ns_add_u32 s{sOFF}, s{sOFF}, s{sTMP}")
if WIN: gate_init(sC, 3 * WIN[2], vCO)
for b in range(24):
    thr(b)
    if WIN:
        if b < WIN[3]: gate(L_PV, 3, 3 * WIN[2], 3 * WIN[3], vCO, vCO + 4)
        else: A(f"s_waitcnt vmcnt({WIN[3]-1})")
    A(f"buffer_load_dwordx4 v[{vD+4*b}:{vD+4*b+3}], v{vOFF}, s[{SR}:{SR+3}], s{sOFF} offen nt")
    if b < 23: A(f"s_add_u32 s{sOFF}, s{sOFF}, 1280")
prio(3)
stamp(6)
coef_addr(vAD, 48)
A(f"v_and_b32 v{vF}, 7, v{vL}\nv_lshrrev_b32 v{vF+2}, 5, v{vL}\nv_lshlrev_b32 v{vF}, 10, v{vF}\nv_lshl_add_u32 v{vF}, v{vF+2}, 9, v{vF}")
A(f"s_lshl_b32 s{sTMP}, s{sP}, 2\ns_add_u32 s{sTMP}, s{sTMP}, s{sJ}\ns_mul_i32 s{sOFF}, s{sTMP}, 24576\ns_lshl_b32 s{sTMP}, s{sHH}, 4\ns_add_u32 s{sOFF}, s{sOFF}, s{sTMP}\ns_lshl_b32 s{sTMP}, s{sC}, 13\ns_add_u32 s{sOFF}, s{sOFF}, s{sTMP}\ns_add_u32 s{sOFF}, s{sOFF}, {FBOX}")
lds_wait(L_OF, [0, 1, 2], 4, vCO)
for k in range(3):
    A(f"ds_read_b128 v[{vCO+4*k}:{vCO+4*k+3}], v{vAD} offset:{L_O+16*k}")
A("s_waitcnt lgkmcnt(0)")
diag_gemv(24)
combine(vCO)
A("s_mov_b32 exec_lo, 0xff\ns_mov_b32 exec_hi, 0xff")
A(f"buffer_store_dwordx4 v[{vCO}:{vCO+3}], v{vF}, s[{WS}:{WS+3}], s{sOFF} offen sc1")
A("s_mov_b64 exec, -1")
A("L_w_fin:")
A(f"ds_write_b32 v{vF+1}, v{vT} offset:{L_PF}")
stamp(7)
A("s_branch L_end")

A("L_k:")
prio(2)
A(f"s_sub_u32 s{sC}, s{sWAVE}, 4")
A(f"v_and_b32 v{vOFF}, 7, v{vL}\nv_mul_u32_u24 v{vOFF}, 384, v{vOFF}\nv_bfe_u32 v8, v{vL}, 3, 1\nv_lshl_add_u32 v{vOFF}, v8, 6, v{vOFF}\nv_lshrrev_b32 v8, 4, v{vL}\nv_lshl_add_u32 v{vOFF}, v8, 4, v{vOFF}")
A(f"v_and_b32 v{vAD}, 1, v{vL}\nv_lshlrev_b32 v{vAD}, 6, v{vAD}\nv_lshl_add_u32 v{vAD}, v8, 4, v{vAD}")
A(f"s_mul_i32 s{sOFF}, s{sHH}, 1572864\ns_mul_i32 s{sTMP}, s{sJ}, 98304\ns_add_u32 s{sOFF}, s{sOFF}, s{sTMP}\ns_mul_i32 s{sTMP}, s{sC}, 24576\ns_add_u32 s{sOFF}, s{sOFF}, s{sTMP}\ns_add_u32 s{sOFF}, s{sOFF}, {3072*384}")
A("s_waitcnt lgkmcnt(0)")
A(f"s_load_dword s{sT}, s[{sWSP}:{sWSP+1}], s9")
srd(SR, sK, 50331648)
srd(WS, sWSP, 0x10000000)
A("s_barrier")
get_T()
if WIN: gate_init(sC, 3 * WIN[0], 24)
for t in range(24):
    thr(t)
    if WIN:
        if t < WIN[1]: gate(L_PW, 4, 3 * WIN[0], 4 * WIN[1], 24, 28)
        else: A(f"s_waitcnt vmcnt({WIN[1]-1})")
    A(f"buffer_load_dwordx4 v[{vD+4*t}:{vD+4*t+3}], v{vOFF}, s[{SR}:{SR+3}], s{sOFF} offen offset:{128*(t%3)} nt")
    if t % 3 == 2 and t < 23: A(f"s_add_u32 s{sOFF}, s{sOFF}, 3072")
if WIN:
    prio(3)
    A(f"s_lshl_b32 s{sTMP}, s{sC}, 2\nv_mov_b32 v8, s{sTMP}")
    for i in range(WIN[1]):
        A(f"s_waitcnt vmcnt({WIN[1]-1-i})")
        credit(L_PK, 8, 9, i + 1)
elif a.g2:
    A(f"s_lshl_b32 s{sTMP}, s{sC}, 2\nv_mov_b32 v8, s{sTMP}\nds_write_b32 v8, v{vT} offset:{L_KI}")
prio(3)
stamp(1)
vQ = 8
vS = 136
lds_wait(L_QF, [0, 1, 2], 4, 24)
stamp(2)
for u in range(3):
    A(f"ds_read_b128 v[{vQ+4*u}:{vQ+4*u+3}], v{vAD} offset:{L_Q+128*u}")
A("s_waitcnt lgkmcnt(0)")
s_ = 24
for t in range(24):
    G, u = divmod(t, 3)
    A(f"s_waitcnt vmcnt({23-t})")
    c = "0" if u == 0 else f"v[{vS+4*G}:{vS+4*G+3}]"
    A(f"v_mfma_f32_16x16x32_bf16 v[{vS+4*G}:{vS+4*G+3}], v[{vQ+4*u}:{vQ+4*u+3}], v[{vD+4*t}:{vD+4*t+3}], {c}")
stamp(3)
A("s_nop 7")
for G in range(8):
    d0, d1 = vS + 4 * G, vS + 4 * G + 1
    if G & 1:
        A(f"v_add_f32_dpp v{s_}, v{d0}, v{d1} row_ror:8 row_mask:{1 << (G >> 1):#x} bank_mask:0xc")
    else:
        A(f"v_add_f32_dpp v{s_}, v{d1}, v{d0} row_ror:8 row_mask:{1 << (G >> 1):#x} bank_mask:0x3")
A(f"v_cvt_pk_bf16_f32 v{s_}, v{s_}, v{s_}\nv_lshlrev_b32 v{s_}, 16, v{s_}")
A(f"v_mul_f32 v{s_}, 0x3d93cd3a, v{s_}")
A(f"v_cvt_pk_bf16_f32 v{s_}, v{s_}, v{s_}\nv_lshlrev_b32 v{s_}, 16, v{s_}")
def wave_reduce(op, v):
    for d in ["row_shr:1", "row_shr:2", "row_shr:4", "row_shr:8"]:
        A(f"s_nop 1\n{op}_dpp v{v}, v{v}, v{v} {d} row_mask:0xf bank_mask:0xf")
    A(f"s_nop 1\n{op}_dpp v{v}, v{v}, v{v} row_bcast:15 row_mask:0xa bank_mask:0xf")
    A(f"s_nop 1\n{op}_dpp v{v}, v{v}, v{v} row_bcast:31 row_mask:0xc bank_mask:0xf")
A(f"v_mov_b32 v{s_+1}, v{s_}")
wave_reduce("v_max_f32", s_ + 1)
A(f"s_nop 0\nv_readlane_b32 s{sTMP}, v{s_+1}, 63")
A(f"s_lshl_b32 s{sTMP2}, s{sC}, 3\nv_mov_b32 v{s_+4}, s{sTMP2}\nv_mov_b32 v{s_+2}, s{sTMP}\nv_mov_b32 v{s_+3}, s{sT}")
A(f"ds_write_b64 v{s_+4}, v[{s_+2}:{s_+3}] offset:{L_MX}")
lds_wait(L_MX, [1, 3, 5, 7], 8, s_ + 8)
A(f"v_max_f32 v{s_+8}, v{s_+8}, v{s_+10}\nv_max3_f32 v{s_+8}, v{s_+8}, v{s_+12}, v{s_+14}")
A(f"v_sub_f32 v{s_}, v{s_}, v{s_+8}\nv_mul_f32 v{s_}, 0x3fb8aa3b, v{s_}\nv_exp_f32 v{s_}, v{s_}\ns_nop 0")
A(f"v_cvt_pk_bf16_f32 v{s_+1}, v{s_}, v{s_}")
A(f"s_lshl_b32 s{sTMP}, s{sC}, 7\nv_lshlrev_b32 v{s_+5}, 1, v{vL}\nv_add_u32 v{s_+5}, s{sTMP}, v{s_+5}")
A(f"ds_write_b16 v{s_+5}, v{s_+1} offset:{L_P}")
wave_reduce("v_add_f32", s_)
A(f"s_nop 0\nv_readlane_b32 s{sTMP}, v{s_}, 63\ns_nop 1\nv_mov_b32 v{s_+2}, s{sTMP}")
A(f"ds_write_b64 v{s_+4}, v[{s_+2}:{s_+3}] offset:{L_LS}")
stamp(4)
A("s_branch L_end")

A("L_v:")
prio(1)
A(f"s_sub_u32 s{sC}, s{sWAVE}, 8")
data_voff(384 if a.near else 32 * 384)
A(f"s_mul_i32 s{sOFF}, s{sHH}, 1572864\ns_mul_i32 s{sTMP}, s{sJ}, 98304\ns_add_u32 s{sOFF}, s{sOFF}, s{sTMP}\ns_lshl_b32 s{sTMP}, s{sC}, 7\ns_add_u32 s{sOFF}, s{sOFF}, s{sTMP}\ns_add_u32 s{sOFF}, s{sOFF}, {3072*384}")
A("s_waitcnt lgkmcnt(0)")
A(f"s_load_dword s{sT}, s[{sWSP}:{sWSP+1}], s9")
srd(SR, sV, 50331648)
srd(WS, sWSP, 0x10000000)
A("s_barrier")
get_T()
if WIN:
    gate_init(sC, 4 * WIN[1], vCO)
elif a.g2:
    lds_wait(L_KI, [0, 1, 2, 3], 4, vCO)
if WIN:
    make_selectors()
    coef_addr(vAD, 64)
for b in range(32):
    thr(b)
    if WIN:
        if b < WIN[2]: gate(L_PK, 3, 4 * WIN[1], 3 * WIN[2], vCO, vCO + 4)
        else: A(f"s_waitcnt vmcnt({WIN[2]-1})")
    if a.near:
        A(f"buffer_load_dwordx4 v[{vD+4*b}:{vD+4*b+3}], v{vOFF}, s[{SR}:{SR+3}], s{sOFF} offen nt\ns_add_u32 s{sOFF}, s{sOFF}, 3072")
        continue
    A(f"buffer_load_dwordx4 v[{vD+4*b}:{vD+4*b+3}], v{vOFF}, s[{SR}:{SR+3}], s{sOFF} offen offset:{384*(b%8)} nt")
    if b % 8 == 7 and b < 31: A(f"s_add_u32 s{sOFF}, s{sOFF}, 3072")
prio(3)
stamp(1)
if WIN:
    nv = WIN[2]
    A(f"s_lshl_b32 s{sTMP}, s{sC}, 2\nv_mov_b32 v{vOFF}, s{sTMP}")
    A(f"v_mov_b32 v{vCO+9}, 0\nds_read_b128 v[{vCO}:{vCO+3}], v{vCO+9} offset:{L_LS}\nds_read_b128 v[{vCO+4}:{vCO+7}], v{vCO+9} offset:{L_LS+16}\ns_waitcnt lgkmcnt(0)")
    A(f"v_xor_b32 v{vCO+1}, s{sFL}, v{vCO+1}\nv_xor_b32 v{vCO+3}, s{sFL}, v{vCO+3}\nv_xor_b32 v{vCO+5}, s{sFL}, v{vCO+5}\nv_xor_b32 v{vCO+7}, s{sFL}, v{vCO+7}")
    A(f"v_or3_b32 v{vCO+1}, v{vCO+1}, v{vCO+3}, v{vCO+5}\nv_or_b32 v{vCO+1}, v{vCO+1}, v{vCO+7}\nv_cmp_ne_u32 vcc, 0, v{vCO+1}\ns_cmp_eq_u64 vcc, 0\ns_cbranch_scc1 L_v_fast")
    for i in range(nv):
        A(f"s_waitcnt vmcnt({nv-1-i})")
        credit(L_PV, vOFF, vCO, i + 1)
    lds_wait(L_LS, [1, 3, 5, 7], 8, vCO)
    A(f"s_mov_b32 s{sNEED}, 1\ns_branch L_v_go\nL_v_fast:\ns_mov_b32 s{sNEED}, 0\nL_v_go:")
else:
    make_selectors()
    coef_addr(vAD, 64)
    lds_wait(L_LS, [1, 3, 5, 7], 8, vCO)
for k in range(4):
    A(f"ds_read_b128 v[{vCO+4*k}:{vCO+4*k+3}], v{vAD} offset:{L_P+16*k}")
lds_mode(vA0, vA0 + 1)
A(f"s_waitcnt lgkmcnt(0)\nv_readfirstlane_b32 s{sMODE}, v{vA0+1}")
stamp(2)
if WIN:
    def vhook(b):
        if b >= 32 - nv: credit(L_PV, vOFF, vAD, b - (32 - nv) + 1)
    diag_gemv(32, hook=vhook)
else:
    diag_gemv(32)
publish_gather(OBOX, L_O, L_OF, True)
stamp(5)
A("s_branch L_end")

A("L_aux:")
prio(3)
if a.dbg: A("s_memtime s[84:85]")
A(f"v_lshlrev_b32 v8, 2, v{vL}\nv_mov_b32 v9, 0\nds_write_b32 v8, v9")
A(f"s_load_dwordx4 s[{sM}:{sM+3}], s[0:1], 80")
A("s_waitcnt lgkmcnt(0)")
A(f"s_load_dword s{sT}, s[{sWSP}:{sWSP+1}], s9")
srd(WS, sWSP, 0x10000000)
srd(SR2, sM, 2560)
A("s_waitcnt lgkmcnt(0)\ns_barrier")
get_T()
if a.lat:
    A(f"v_lshlrev_b32 v37, 4, v{vL}")
    A(f"s_lshl_b32 s{sOFF}, s2, 10\ns_add_u32 s{sOFF}, s{sOFF}, 0x200000")
    A(f"s_cmp_eq_u32 s{sWAVE}, 11\ns_cbranch_scc1 L_lat2")
    for k in range(4):
        A(f"s_memrealtime s[{sST+4*k}:{sST+4*k+1}]\ns_waitcnt lgkmcnt(0)")
        A(f"buffer_load_dwordx4 v[40:43], v37, s[{WS}:{WS+3}], s{sOFF} offen sc1\ns_waitcnt vmcnt(0)")
        A(f"s_memrealtime s[{sST+4*k+2}:{sST+4*k+3}]\ns_waitcnt lgkmcnt(0)")
        A("s_sleep 40")
    A("s_branch L_end")
    A("L_lat2:")
    A(f"s_add_u32 s{sOFF}, s{sOFF}, 0x100000")
    A(f"buffer_load_dwordx4 v[40:43], v37, s[{WS}:{WS+3}], s{sOFF} offen {'nt' if a.lat == 1 else 'sc1'}\ns_waitcnt vmcnt(0)")
    for k in range(4):
        A(f"s_memrealtime s[{sST+4*k}:{sST+4*k+1}]\ns_waitcnt lgkmcnt(0)")
        A(f"buffer_load_dwordx4 v[40:43], v37, s[{WS}:{WS+3}], s{sOFF} offen {'nt' if a.lat == 1 else 'sc1'}\ns_waitcnt vmcnt(0)")
        A(f"s_memrealtime s[{sST+4*k+2}:{sST+4*k+3}]\ns_waitcnt lgkmcnt(0)")
        A("s_sleep 40")
    A("s_branch L_end")
stamp(1)
lds_wait(L_LS, [1, 3, 5, 7], 8, 8)
A(f"v_mov_b32 v30, 0\nds_read_b128 v[20:23], v30 offset:{L_MX}\nds_read_b128 v[24:27], v30 offset:{L_MX+16}\nds_read_b32 v31, v30 offset:{L_MODE}\ns_waitcnt lgkmcnt(0)\nv_readfirstlane_b32 s{sMODE}, v31")
A("v_max_f32 v32, v20, v22\nv_max3_f32 v32, v32, v24, v26")
A("v_add_f32 v33, v8, v10\nv_add_f32 v34, v12, v14\nv_add_f32 v33, v33, v34\nv_mov_b32 v34, 0\nv_mov_b32 v35, 0")
for k in range(4):
    A(f"v_perm_b32 v{32+k}, v{32+k}, v{vT}, s{sSEL+k}")
A(f"s_lshl_b32 s{sOFF}, s{sH}, 7\ns_add_u32 s{sOFF}, s{sOFF}, {SBOX}\ns_lshl_b32 s{sTMP}, s{sJ}, 4\ns_add_u32 s{sTMP}, s{sTMP}, s{sOFF}")
A("s_mov_b64 exec, 1")
A(f"s_cmp_lg_u32 s{sMODE}, 0\ns_cbranch_scc1 L_ux1")
A(f"buffer_store_dwordx4 v[32:35], v30, s[{WS}:{WS+3}], s{sTMP} offen\ns_branch L_ux2\nL_ux1:")
A(f"buffer_store_dwordx4 v[32:35], v30, s[{WS}:{WS+3}], s{sTMP} offen sc1\nL_ux2:")
A("s_mov_b64 exec, -1")
stamp(2)
A(f"v_and_b32 v36, 3, v{vL}\nv_lshlrev_b32 v37, 4, v36")
poll(40, 37, sOFF)
stamp(3)
A("v_and_b32 v40, 0xffffff00, v40\ns_nop 1")
A("v_max_f32_dpp v44, v40, v40 quad_perm:[1,0,3,2] row_mask:0xf bank_mask:0xf\ns_nop 1")
A("v_max_f32_dpp v44, v44, v44 quad_perm:[2,3,0,1] row_mask:0xf bank_mask:0xf")
A("v_sub_f32 v40, v40, v44\nv_mul_f32 v40, 0x3fb8aa3b, v40\nv_exp_f32 v40, v40\ns_nop 0")
A("v_mul_f32 v41, v41, v40\ns_nop 1")
A("v_add_f32_dpp v44, v41, v41 quad_perm:[1,0,3,2] row_mask:0xf bank_mask:0xf\ns_nop 1")
A("v_add_f32_dpp v44, v44, v44 quad_perm:[2,3,0,1] row_mask:0xf bank_mask:0xf")
A("v_rcp_f32 v44, v44\ns_nop 0\nv_mul_f32 v40, v40, v44")
A("v_lshlrev_b32 v36, 2, v36")
A("s_mov_b64 exec, 15")
A(f"ds_write_b32 v36, v40 offset:{L_FF}")
A(f"ds_write_b32 v30, v{vT} offset:{L_FFLAG}")
A("s_mov_b64 exec, -1")
A(f"s_and_b32 s{sTMP}, s{sJ}, 1\ns_lshl_b32 s{sTMP}, s{sTMP}, 3\ns_add_u32 s{sTMP}, s{sTMP}, s{sHH}\ns_cmp_ge_u32 s{sTMP}, 24\ns_cbranch_scc1 L_end")
A(f"s_lshl_b32 s{sTMP}, s{sP}, 2\ns_add_u32 s{sTMP}, s{sTMP}, s{sJ}\ns_mul_i32 s{sOFF}, s{sTMP}, 24\ns_add_u32 s{sOFF}, s{sOFF}, s{sHH}")
A(f"s_lshl_b32 s{sOFF}, s{sOFF}, 10\ns_add_u32 s{sOFF}, s{sOFF}, {FBOX}")
A(f"s_mul_i32 s{sTMP}, s{sJ}, 5\ns_add_u32 s{sTMP}, s{sTMP}, 1\ns_lshr_b32 s{sTMP}, s{sTMP}, 1\ns_lshl_b32 s{sTMP2}, s{sTMP}, 7")
A(f"s_mul_i32 s{sTMP}, s{sP}, 1280\ns_add_u32 s{sTMP2}, s{sTMP2}, s{sTMP}\ns_lshl_b32 s{sTMP}, s{sHH}, 4\ns_add_u32 s{sTMP2}, s{sTMP2}, s{sTMP}")
A(f"v_lshlrev_b32 v37, 4, v{vL}\nv_lshrrev_b32 v38, 5, v{vL}\nv_lshlrev_b32 v38, 3, v38")
lds_wait(L_PF, [0, 1, 2], 4, 8)
stamp(4)
poll(80, 37, sOFF, depth=a.fdepth, gap=a.fgap)
for k in range(4):
    A(f"v_mov_b32 v{40+k}, v{80+k}")
A("s_nop 1")
stamp(5)
for d in ["row_shr:1", "row_shr:2", "row_shr:4", "row_shr:8"]:
    for k in range(4):
        A(f"v_add_f32_dpp v{40+k}, v{40+k}, v{40+k} {d} row_mask:0xf bank_mask:0xf")
for k in range(4):
    A(f"v_add_f32_dpp v{40+k}, v{40+k}, v{40+k} row_bcast:15 row_mask:0xa bank_mask:0xf")
A("v_cvt_pk_bf16_f32 v44, v40, v41\nv_cvt_pk_bf16_f32 v45, v42, v43")
A("s_mov_b32 exec_lo, 0x80000000\ns_mov_b32 exec_hi, 0x80000000")
A(f"buffer_store_dwordx2 v[44:45], v38, s[{SR2}:{SR2+3}], s{sTMP2} offen")
A(f"s_or_b32 s{sTMP}, s{sJ}, s{sHH}\ns_cmp_lg_u32 s{sTMP}, 0\ns_cbranch_scc1 L_aux2")
A("s_mov_b64 exec, 1")
A(f"buffer_store_dword v{vT}, v30, s[{WS}:{WS+3}], s9 offen")
A("L_aux2:")
A("s_mov_b64 exec, -1")
stamp(6)

A("L_end:")
if a.dbg:
    A("s_mov_b64 exec, -1")
    A("s_waitcnt vmcnt(0) lgkmcnt(0)")
    A(f"s_memrealtime s[{sST+16}:{sST+17}]\ns_memtime s[86:87]\ns_waitcnt lgkmcnt(0)")
    for k in range(9):
        A(f"v_mov_b32 v{8+k}, s{sST+2*k}")
    A(f"s_sub_u32 s86, s86, s84\ns_sub_u32 s87, s{sST+16}, s{sST}\nv_mov_b32 v17, s86\nv_mov_b32 v18, s87\nv_not_b32 v19, v8")
    A(f"s_lshl_b32 s{sTMP}, s{sWAVE}, 6\nv_mov_b32 v30, s{sTMP}\ns_lshl_b32 s{sTMP}, s{sWAVE}, 2\nv_mov_b32 v31, s{sTMP}\ns_mov_b64 exec, 1")
    for k in range(3):
        A(f"ds_write_b128 v30, v[{8+4*k}:{11+4*k}] offset:{L_ST+16*k}")
    A(f"ds_write_b32 v31, v{vT} offset:{L_DN}")
    A("s_mov_b64 exec, -1")
    A(f"s_cmp_lg_u32 s{sWAVE}, 3\ns_cbranch_scc1 L_done")
    A(f"L_dw:\nv_lshlrev_b32 v8, 2, v{vL}\nv_min_u32 v8, 40, v8\nds_read_b32 v9, v8 offset:{L_DN}\ns_waitcnt lgkmcnt(0)\nv_cmp_ne_u32 vcc, s{sT}, v9\ns_cmp_eq_u64 vcc, 0\ns_cbranch_scc1 L_dw2\ns_sleep 4\ns_sub_u32 s{sSPIN}, s{sSPIN}, 1\ns_cbranch_scc0 L_dw\ns_branch L_done\nL_dw2:")
    A("s_sleep 127\ns_sleep 127")
    adds = [(3,0,1),(0,2,2),(0,4,3),(4,4,4),(8,2,5),(8,3,6),(8,4,7),(0,7,8),(3,9,13),(3,10,14)]
    maxs = [(3,11,0),(0,7,9),(1,7,9),(2,7,9),(3,8,10),(8,3,11),(9,3,11),(10,3,11),(8,4,12),(9,4,12),(10,4,12),(3,0,15)]
    A("v_mov_b32 v20, 0\nv_mov_b32 v21, 0")
    for k, (w, st, d) in enumerate(adds + maxs):
        A(f"s_mov_b32 s{sTMP}, {L_ST + w*64 + st*4}\nv_writelane_b32 v20, s{sTMP}, {k}\ns_mov_b32 s{sTMP}, {d*4}\nv_writelane_b32 v21, s{sTMP}, {k}")
    A("ds_read_b32 v22, v20")
    A(f"s_load_dwordx2 s[{sM+2}:{sM+3}], s[0:1], 88\ns_waitcnt lgkmcnt(0)")
    srd(SR, sM + 2, 256)
    A("s_waitcnt lgkmcnt(0)")
    A(f"s_mov_b64 exec, {(1 << len(adds)) - 1}")
    A(f"buffer_atomic_add v22, v21, s[{SR}:{SR+3}], 0 offen")
    A(f"s_mov_b64 exec, {((1 << len(maxs)) - 1) << len(adds)}")
    A(f"buffer_atomic_umax v22, v21, s[{SR}:{SR+3}], 0 offen")
elif a.stamps:
    A("s_mov_b64 exec, -1")
    A("s_waitcnt vmcnt(0) lgkmcnt(0)")
    A(f"s_memrealtime s[{sST+16}:{sST+17}]\ns_waitcnt lgkmcnt(0)")
    A(f"s_lshl_b32 s{sTMP}, s2, 4\ns_add_u32 s{sTMP}, s{sTMP}, s{sWAVE}\ns_mul_i32 s{sTMP}, s{sTMP}, 80\ns_add_u32 s{sTMP}, s{sTMP}, {STAMP}")
    for k in range(18):
        A(f"v_mov_b32 v{8+k}, s{sST+k}")
    A("v_mov_b32 v30, 0\ns_mov_b64 exec, 1")
    for k in range(4):
        A(f"buffer_store_dwordx4 v[{8+4*k}:{11+4*k}], v30, s[{WS}:{WS+3}], s{sTMP} offen offset:{16*k}")
    A("s_getreg_b32 s3, hwreg(HW_REG_XCC_ID)\nv_mov_b32 v26, s3\nv_mov_b32 v27, 0")
    A(f"buffer_store_dwordx4 v[24:27], v30, s[{WS}:{WS+3}], s{sTMP} offen offset:64")
A("L_done:\ns_endpgm")
A.footer(168)
A.write(a.out)
```

```python
import sys, argparse
from asmlib import *
ap = argparse.ArgumentParser()
ap.add_argument("out")
ap.add_argument("--stamps", type=int, default=0)
ap.add_argument("--prio", type=int, default=1)
ap.add_argument("--lds", type=int, default=163840)
ap.add_argument("--nopoll", type=int, default=0)
ap.add_argument("--near", type=int, default=0)
ap.add_argument("--kfull", type=int, default=0)
ap.add_argument("--psleep", type=int, default=0)
ap.add_argument("--lat", type=int, default=0)
ap.add_argument("--thr", type=int, default=0)
ap.add_argument("--rot", type=int, default=0)
ap.add_argument("--pdepth", type=int, default=3)
ap.add_argument("--pgap", type=int, default=16)
ap.add_argument("--fgap", type=int, default=5)
ap.add_argument("--fdepth", type=int, default=3)
ap.add_argument("--g2", type=int, default=1)
ap.add_argument("--dbg", type=int, default=0)
ap.add_argument("--win", type=str, default="")
ap.add_argument("--gsleep", type=int, default=1)
ap.add_argument("--nt", type=int, default=12)
ap.add_argument("--nofin", type=int, default=0)
ap.add_argument("--lsleep", type=int, default=1)
ap.add_argument("--x1", type=int, default=0)
ap.add_argument("--fmask", type=int, default=0)
ap.add_argument("--fsl", type=int, default=0)
ap.add_argument("--pro", type=int, default=0)
ap.add_argument("--contig", type=str, default="")
ap.add_argument("--fp", type=int, default=0)
ap.add_argument("--xmap", type=int, default=0)
ap.add_argument("--pnt", type=int, default=3)
a = ap.parse_args()
PN = " nt" if a.pnt & 1 else ""
FN = " nt" if a.pnt & 2 else ""
XN = " nt" if a.pnt & 4 else ""
WIN = [int(x) for x in a.win.split(",")] if a.win else None
if a.dbg: a.stamps = 1

A = Asm()
NW = 12 if a.lat else 11
A.header(256, 64 * NW, a.lds)

QBOX = 0x10000
OBOX = 0x40000
SBOX = 0x70000
FBOX = 0x80000
STAMP = 0x8000000
L_PW, L_PK, L_PV = 0, 16, 32
L_QF = 48
L_MX = 64
L_LS = 96
L_FF = 128
L_FFLAG = 144
L_MODE = 148
L_OF = 160
L_PF = 176
L_KI = 192
L_DN = 208
L_ST = 2048
L_Q = 256
L_P = 640
L_O = 1152
sH, sJ, sP, sHH = 4, 5, 6, 7
sX, sK, sV, sWQ, sWO = 12, 14, 16, 18, 20
sWSP = 22
sWAVE = 24
sT = 25
sSPIN = 26
sC = 27
WS = 28
SR = 32
sOFF = 36
sTMP, sTMP2, sTMP3 = 37, 38, 39
sSEL = 40
sSELA, sSELB = 44, 45
sFL = sT
SR2 = 48
sM = 52
sNEED, sHAVE = 56, 57
sMODE, sCNT = 58, 59
sXCC = 60
sST = 64
vL = 0
vOFF = 1
vAD = 2
vT = 3
vACC = 4
vA0, vA1 = 8, 12
vSEL = 16
vCO = 24
vD = 40

nstamp = [0]
def stamp(k):
    if a.stamps:
        A(f"s_memrealtime s[{sST+2*k}:{sST+2*k+1}]")

def thr(n):
    if a.thr and n >= a.thr:
        A(f"s_waitcnt vmcnt({a.thr-1})")

def prio(p):
    if a.prio:
        A(f"s_setprio {p}")

def spin_tail(loop, sleep=1):
    if sleep:
        A(f"s_sleep {sleep}")
    A(f"s_sub_u32 s{sSPIN}, s{sSPIN}, 1\ns_cbranch_scc0 {loop}\ns_branch L_end")

def lds_wait(off, positions, nread, vt):
    if a.nopoll >= 2: return
    lp = A.label("Lw"); dn = A.label("Lwd")
    vz = vt + nread + 1
    vx = vt + nread
    A(f"v_mov_b32 v{vz}, 0")
    A(f"{lp}:")
    k = 0
    while k < nread:
        n = min(4, nread - k)
        op = {1: "ds_read_b32", 2: "ds_read_b64", 4: "ds_read_b128"}[n]
        reg = f"v{vt+k}" if n == 1 else f"v[{vt+k}:{vt+k+n-1}]"
        A(f"{op} {reg}, v{vz} offset:{off+4*k}")
        k += n
    A("s_waitcnt lgkmcnt(0)")
    first = True
    for p in positions:
        if first:
            A(f"v_xor_b32 v{vx}, s{sFL}, v{vt+p}")
            first = False
        else:
            A(f"v_xor_b32 v{vz}, s{sFL}, v{vt+p}\nv_or_b32 v{vx}, v{vx}, v{vz}")
    A(f"v_mov_b32 v{vz}, 0")
    A(f"v_cmp_ne_u32 vcc, 0, v{vx}")
    A(f"s_cmp_eq_u64 vcc, 0\ns_cbranch_scc1 {dn}")
    spin_tail(lp, a.lsleep)
    A(f"{dn}:")

def gate_init(widx, NP, vz):
    A(f"s_add_u32 s{sNEED}, s{widx}, 1\ns_mul_i32 s{sNEED}, s{sNEED}, {NP}\ns_mov_b32 s{sHAVE}, 0\nv_mov_b32 v{vz}, 0")

def gate(loff, kS, NP, NS, vz, vt):
    lp = A.label("Lg"); go = A.label("Lgo")
    A(f"{lp}:\ns_cmp_ge_u32 s{sHAVE}, s{sNEED}\ns_cbranch_scc1 {go}")
    if a.x1: A("s_mov_b64 exec, 1")
    A(f"ds_read_b128 v[{vt}:{vt+3}], v{vz} offset:{loff}\ns_waitcnt lgkmcnt(0)")
    A(f"v_add3_u32 v{vt}, v{vt}, v{vt+1}, v{vt+2}\nv_add_u32 v{vt}, v{vt}, v{vt+3}\ns_nop 0\nv_readfirstlane_b32 s{sHAVE}, v{vt}")
    if a.x1: A("s_mov_b64 exec, -1")
    A(f"s_mul_i32 s{sHAVE}, s{sHAVE}, {NS}\ns_cmp_ge_u32 s{sHAVE}, s{sNEED}\ns_cbranch_scc1 {go}")
    spin_tail(lp, a.gsleep)
    A(f"{go}:\ns_add_u32 s{sNEED}, s{sNEED}, {kS*NP}")

def credit(loff, vaddr, vval, n):
    A(f"v_mov_b32 v{vval}, {n}\nds_write_b32 v{vaddr}, v{vval} offset:{loff}")

def lds_flag(off, vtmp):
    A(f"v_mov_b32 v{vtmp}, 0\nds_write_b32 v{vtmp}, v{vT} offset:{off}")

def get_T():
    A("s_waitcnt lgkmcnt(0)")
    A(f"s_mul_i32 s{sT}, s{sT}, 0x9E3779B1\ns_add_u32 s{sT}, s{sT}, 0x7F4A7C15\ns_andn2_b32 s{sT}, s{sT}, 15\ns_or_b32 s{sT}, s{sT}, 8\ns_or_b32 s{sT}, s{sT}, s{sXCC}")
    A(f"v_mov_b32 v{vT}, s{sT}")

def make_selectors():
    t0, t1, t2, t3 = vA0, vA0 + 1, vA0 + 2, vA0 + 3
    A(f"v_bfe_u32 v{t0}, v{vL}, 2, 2")
    A(f"v_bfe_u32 v{t1}, v{vL}, 1, 1")
    A(f"v_cmp_eq_u32 vcc, 1, v{t1}")
    A(f"v_mov_b32 v{t2}, 0x0c0c0100\nv_mov_b32 v{t3}, 0x01000c0c")
    A(f"v_cndmask_b32 v{t2}, v{t2}, v{t3}, vcc")
    A(f"v_mov_b32 v{t1}, 0x0c0c0302\nv_mov_b32 v{t3}, 0x03020c0c")
    A(f"v_cndmask_b32 v{t3}, v{t1}, v{t3}, vcc")
    A(f"v_mov_b32 v{t1}, 0x0c0c0c0c")
    for t in range(4):
        A(f"v_cmp_eq_u32 vcc, {t}, v{t0}\ns_nop 1")
        A(f"v_cndmask_b32 v{vSEL+2*t}, v{t1}, v{t2}, vcc\nv_cndmask_b32 v{vSEL+2*t+1}, v{t1}, v{t3}, vcc")

def build_A(b, buf):
    src = vCO + b // 2
    for t in range(4):
        A(f"v_perm_b32 v{buf+t}, v{src}, v{src}, v{vSEL+2*t+(b&1)}")

def diag_gemv(nb, extra_after=0, win=None, hook=None):
    build_A(0, vA0)
    for b in range(nb):
        if b + 1 < nb:
            build_A(b + 1, vA1 if (b & 1) == 0 else vA0)
        else:
            A("s_nop 1")
        A(f"s_waitcnt vmcnt({min(nb-1-b, (win or nb)-1)+extra_after})")
        if hook: hook(b)
        buf = vA0 if (b & 1) == 0 else vA1
        c = "0" if b == 0 else f"v[{vACC}:{vACC+3}]"
        A(f"v_mfma_f32_16x16x32_bf16 v[{vACC}:{vACC+3}], v[{buf}:{buf+3}], v[{vD+4*b}:{vD+4*b+3}], {c}")

def combine(g):
    A("s_nop 7")
    A(f"v_add_f32_dpp v{g}, v{vACC+1}, v{vACC} row_ror:8 row_mask:0xf bank_mask:0xf")
    A(f"v_add_f32_dpp v{g+1}, v{vACC+3}, v{vACC+2} row_ror:8 row_mask:0xf bank_mask:0xf")
    A(f"v_mov_b32 v{g+2}, 0\nv_mov_b32 v{g+3}, 0")
    A("s_nop 1")
    A(f"v_permlane16_swap_b32 v{g}, v{g+2}\nv_permlane16_swap_b32 v{g+1}, v{g+3}")
    A("s_nop 1")
    for k in range(4):
        A(f"v_perm_b32 v{g+k}, v{g+k}, v{vT}, s{sSEL+k}")

def poll(g, voff, soff, sleep=0, depth=None, gap=None, on_timeout=None, lfl=None):
    if a.nopoll >= 1: return
    depth = depth or a.pdepth
    gap = a.pgap if gap is None else gap
    lp = A.label("Lp"); dn = A.label("Lpd")
    sets = [g + 8 + 4 * k for k in range(depth)]
    def issue(r):
        A(f"buffer_load_dwordx4 v[{r}:{r+3}], v{voff}, s[{WS}:{WS+3}], s{soff} offen sc1{PN if lfl is None else lfl}")
    for k in range(depth - 1):
        issue(sets[k])
        if gap: A(f"s_sleep {gap}")
    if on_timeout: A(f"s_mov_b32 s{sCNT}, 0")
    A(f"{lp}:")
    fins = []
    for k in range(depth):
        issue(sets[(k + depth - 1) % depth])
        r = sets[k]
        A(f"s_waitcnt vmcnt({depth-1})")
        A(f"v_perm_b32 v{g+4}, v{r+1}, v{r}, s{sSELA}\nv_perm_b32 v{g+5}, v{r+3}, v{r+2}, s{sSELB}")
        A(f"v_or_b32 v{g+4}, v{g+4}, v{g+5}\nv_xor_b32 v{g+4}, s{sT}, v{g+4}")
        A(f"v_cmp_lt_u32 vcc, 7, v{g+4}")
        fl = A.label("Lpf"); fins.append((fl, r))
        A(f"s_cmp_eq_u64 vcc, 0\ns_cbranch_scc1 {fl}")
    if on_timeout:
        A(f"s_add_u32 s{sCNT}, s{sCNT}, 1\ns_cmp_lg_u32 s{sCNT}, {a.nt}\ns_cbranch_scc1 {lp}_t")
        on_timeout()
        A(f"{lp}_t:")
    spin_tail(lp, 0)
    for i, (fl, r) in enumerate(fins):
        A(f"{fl}:")
        for k in range(4):
            A(f"v_mov_b32 v{g+k}, v{r+k}")
        if i < len(fins) - 1: A(f"s_branch {dn}")
    A(f"{dn}:")
    A("s_nop 1")

def lds_mode(vz, vr):
    A(f"v_mov_b32 v{vz}, 0\nds_read_b32 v{vr}, v{vz} offset:{L_MODE}")

def publish_gather(box, ldsdst, ldsflag, fscale, g=vD, h=None):
    combine(g)
    A(f"v_and_b32 v{g+8}, 7, v{vL}\nv_lshrrev_b32 v{g+9}, 5, v{vL}\nv_lshl_add_u32 v{g+8}, v{g+8}, 1, v{g+9}\nv_lshlrev_b32 v{g+8}, 4, v{g+8}")
    A(f"s_mul_i32 s{sOFF}, s{sH}, 3072\ns_lshl_b32 s{sTMP}, s{sC}, 10\ns_add_u32 s{sOFF}, s{sOFF}, s{sTMP}\ns_add_u32 s{sOFF}, s{sOFF}, {box}")
    A(f"s_lshl_b32 s{sTMP3}, s{sJ}, 8\ns_add_u32 s{sTMP3}, s{sTMP3}, s{sOFF}")
    def store(fl):
        A("s_mov_b32 exec_lo, 0xff\ns_mov_b32 exec_hi, 0xff")
        A(f"buffer_store_dwordx4 v[{g}:{g+3}], v{g+8}, s[{WS}:{WS+3}], s{sTMP3} offen{fl}")
        A("s_mov_b64 exec, -1")
    if fscale:
        l1 = A.label("Ls"); l2 = A.label("Ls")
        A(f"s_cmp_lg_u32 s{sMODE}, 0\ns_cbranch_scc1 {l1}")
        store("")
        A(f"s_branch {l2}\n{l1}:")
        store(" sc1")
        A(f"{l2}:")
    else:
        store("")
    stamp(3)
    A(f"v_and_b32 v{g+10}, 3, v{vL}\nv_lshrrev_b32 v{g+11}, 2, v{vL}\nv_lshlrev_b32 v{g+12}, 4, v{g+11}\nv_lshl_add_u32 v{g+12}, v{g+10}, 8, v{g+12}")
    if fscale:
        lds_wait(L_FFLAG, [0], 1, g + 16)
        A(f"v_lshlrev_b32 v{g+13}, 2, v{g+10}\nds_read_b32 v{g+13}, v{g+13} offset:{L_FF}")
    h = h or g + 20
    poll(h, g + 12, sOFF, on_timeout=None if fscale else (lambda: store(" sc1")))
    stamp(4)
    if fscale:
        A("s_waitcnt lgkmcnt(0)")
        for k in range(4):
            A(f"v_mul_f32 v{h+k}, v{h+k}, v{g+13}")
    else:
        if a.nopoll: A(f"v_mov_b32 v{h+4}, 0")
        A(f"v_cmp_ne_u32 vcc, 0, v{h+4}\ns_cmp_lg_u64 vcc, 0\ns_cselect_b32 s{sMODE}, 1, 0\nv_mov_b32 v{g+13}, s{sMODE}\nv_mov_b32 v{g+14}, 0")
        l1 = A.label("Ls")
        A(f"s_cbranch_scc0 {l1}")
        store(" sc1")
        A(f"{l1}:")
    for k in range(4):
        A(f"v_add_f32_dpp v{h+4+k}, v{h+k}, v{h+k} quad_perm:[1,0,3,2] row_mask:0xf bank_mask:0xf")
    for k in range(4):
        A(f"v_add_f32_dpp v{h+k}, v{h+4+k}, v{h+4+k} quad_perm:[2,3,0,1] row_mask:0xf bank_mask:0xf")
    A(f"v_cvt_pk_bf16_f32 v{h+4}, v{h}, v{h+1}\nv_cvt_pk_bf16_f32 v{h+5}, v{h+2}, v{h+3}")
    A(f"s_lshl_b32 s{sTMP}, s{sC}, 7\nv_lshlrev_b32 v{g+11}, 3, v{g+11}\nv_add_u32 v{g+11}, s{sTMP}, v{g+11}")
    A(f"s_lshl_b32 s{sTMP}, s{sC}, 2\nv_mov_b32 v{g+10}, s{sTMP}")
    A("s_mov_b32 exec_lo, 0x11111111\ns_mov_b32 exec_hi, 0x11111111")
    A(f"ds_write_b64 v{g+11}, v[{h+4}:{h+5}] offset:{ldsdst}")
    if not fscale:
        A(f"ds_write_b32 v{g+14}, v{g+13} offset:{L_MODE}")
    A(f"ds_write_b32 v{g+10}, v{vT} offset:{ldsflag}")
    A("s_mov_b64 exec, -1")

def coef_addr(vdst, per):
    A(f"v_lshrrev_b32 v{vdst}, 4, v{vL}\nv_and_b32 v{vA0}, 1, v{vL}\nv_lshl_add_u32 v{vdst}, v{vdst}, 1, v{vA0}\nv_mul_u32_u24 v{vdst}, {per}, v{vdst}")

def data_voff(rowstep):
    A(f"v_lshrrev_b32 v{vOFF}, 3, v{vL}\nv_mul_u32_u24 v{vOFF}, {rowstep}, v{vOFF}\nv_and_b32 v{vA0}, 7, v{vL}\nv_lshl_add_u32 v{vOFF}, v{vA0}, 4, v{vOFF}")

def srd(d, lo, n):
    A.srd(d, lo, n)

A("s_cmp_ge_u32 s2, 256\ns_cbranch_scc1 L_done")
stamp(0)
if a.stamps:
    for k in range(2, 18):
        A(f"s_mov_b32 s{sST+k}, 0")
A(f"s_load_dwordx2 s[{sWSP}:{sWSP+1}], s[0:1], 96")
if a.xmap == 1:
    A(f"s_and_b32 s{sJ}, s2, 3\ns_lshr_b32 s{sH}, s2, 2")
elif a.xmap == 2:
    A(f"s_lshr_b32 s{sH}, s2, 3\ns_and_b32 s{sJ}, s{sH}, 3\ns_cmp_eq_u32 s{sJ}, 3\ns_cselect_b32 s3, 1, 0\ns_add_u32 s3, s3, s2\ns_and_b32 s3, s3, 7\ns_lshr_b32 s{sH}, s{sH}, 2\ns_lshl_b32 s3, s3, 3\ns_add_u32 s{sH}, s{sH}, s3")
else:
    A(f"s_add_u32 s3, s2, {a.rot}\ns_and_b32 s3, s3, 7\ns_lshr_b32 s{sH}, s2, 3\ns_and_b32 s{sJ}, s{sH}, 3\ns_lshr_b32 s{sH}, s{sH}, 2\ns_lshl_b32 s3, s3, 3\ns_add_u32 s{sH}, s{sH}, s3")
A(f"s_lshr_b32 s{sP}, s{sH}, 5\ns_and_b32 s{sHH}, s{sH}, 31")
A(f"s_lshl_b32 s9, s{sP}, 7")
A(f"s_mul_i32 s8, s{sP}, 40\ns_add_u32 s10, s0, s8\ns_addc_u32 s11, s1, 0")
A(f"s_load_dwordx8 s[{sX}:{sX+7}], s[10:11], 0")
A(f"s_load_dwordx2 s[{sWO}:{sWO+1}], s[10:11], 32")
A(f"v_lshrrev_b32 v1, 6, v0\nv_and_b32 v0, 63, v0\nv_readfirstlane_b32 s{sWAVE}, v1")
A(f"s_mov_b32 s{sSPIN}, 200000\ns_getreg_b32 s{sXCC}, hwreg(HW_REG_XCC_ID, 0, 3)")
for k in range(4):
    A(f"s_mov_b32 s{sSEL+k}, {0x07060500 + k:#x}")
A(f"s_mov_b32 s{sSELA}, 0x0c0c0400\ns_mov_b32 s{sSELB}, 0x04000c0c")
A(f"""s_cmp_lt_u32 s{sWAVE}, 3
s_cbranch_scc1 L_w
s_cmp_eq_u32 s{sWAVE}, 3
s_cbranch_scc1 L_aux
s_cmp_lt_u32 s{sWAVE}, 8
s_cbranch_scc1 L_k
s_cmp_lt_u32 s{sWAVE}, 11
s_cbranch_scc1 L_v
s_branch L_aux""")

A("L_w:")
prio(3)
A(f"s_mov_b32 s{sC}, s{sWAVE}")
A(f"s_mul_i32 s{sOFF}, s{sJ}, {160*12288}\ns_mul_i32 s{sTMP3}, s{sHH}, 384\ns_add_u32 s{sOFF}, s{sOFF}, s{sTMP3}\ns_lshl_b32 s{sTMP3}, s{sC}, 7\ns_add_u32 s{sOFF}, s{sOFF}, s{sTMP3}")
A(f"s_mul_i32 s{sTMP2}, s{sJ}, 320")
for nb in (20,):
    data_voff(nb * 12288)
    if "q" in a.contig:
        A(f"v_lshlrev_b32 v{vOFF}, 4, v{vL}\ns_lshl_b32 s{sOFF}, s{sHH}, 2\ns_add_u32 s{sOFF}, s{sOFF}, s{sJ}\ns_mul_i32 s{sOFF}, s{sOFF}, 3\ns_add_u32 s{sOFF}, s{sOFF}, s{sC}\ns_mul_i32 s{sOFF}, s{sOFF}, 20480")
    coef_addr(vAD, 2 * nb)
    A("s_waitcnt lgkmcnt(0)")
    if a.pro: stamp(5)
    A(f"s_load_dword s{sT}, s[{sWSP}:{sWSP+1}], s9")
    srd(SR, sWQ, 640 * 12288)
    srd(SR2, sX, 1280)
    for k in range(nb // 8):
        A(f"buffer_load_dwordx4 v[{vCO+4*k}:{vCO+4*k+3}], v{vAD}, s[{SR2}:{SR2+3}], s{sTMP2} offen offset:{16*k}{XN}")
    A(f"buffer_load_dwordx2 v[{vCO+8}:{vCO+9}], v{vAD}, s[{SR2}:{SR2+3}], s{sTMP2} offen offset:32{XN}")
    nw = WIN[0] if WIN else nb
    def wq_load(b):
        A(f"buffer_load_dwordx4 v[{vD+4*b}:{vD+4*b+3}], v{vOFF}, s[{SR}:{SR+3}], s{sOFF} offen nt")
        if b < nb - 1: A(f"s_add_u32 s{sOFF}, s{sOFF}, {1024 if 'q' in a.contig else 12288}")
    for b in range(nw):
        thr(b)
        wq_load(b)
    stamp(1)
    A("s_barrier")
    srd(WS, sWSP, 0x10000000)
    make_selectors()
    get_T()
    A(f"s_waitcnt vmcnt({nw})")
    if a.pro:
        A(f"s_waitcnt vmcnt({nw-1})")
        stamp(6)
    if WIN:
        A(f"s_lshl_b32 s{sTMP}, s{sC}, 2\nv_mov_b32 v{vAD}, s{sTMP}")
        def hook(b):
            if b + nw < nb: wq_load(b + nw)
            else: credit(L_PW, vAD, vCO - 1 - 0 if False else 164, b + nw - nb + 1)
        diag_gemv(nb, win=nw, hook=hook)
    else:
        diag_gemv(nb)
stamp(2)
publish_gather(QBOX, L_Q, L_QF, False, g=vD, h=136)
if not a.pro: stamp(5)
vF = 160
A(f"s_lshl_b32 s{sTMP}, s{sC}, 2\nv_mov_b32 v{vF+1}, s{sTMP}")
A(f"s_and_b32 s{sTMP}, s{sJ}, 1\ns_add_u32 s{sTMP}, s{sTMP}, s{sC}\ns_cmp_eq_u32 s{sTMP}, 3\ns_cbranch_scc1 L_w_fin")
prio(0)
srd(SR, sWO, 6144 * 1280)
data_voff(24 * 1280)
A(f"s_mul_i32 s{sTMP}, s{sJ}, 5\ns_add_u32 s{sTMP}, s{sTMP}, 1\ns_lshr_b32 s{sTMP}, s{sTMP}, 1\ns_add_u32 s{sM}, s{sTMP}, s{sC}")
A(f"s_mul_i32 s{sOFF}, s{sHH}, {192*1280}\ns_lshl_b32 s{sTMP}, s{sM}, 7\ns_add_u32 s{sOFF}, s{sOFF}, s{sTMP}")
if "o" in a.contig:
    A(f"v_lshlrev_b32 v{vOFF}, 4, v{vL}\ns_mul_i32 s{sOFF}, s{sHH}, 10\ns_add_u32 s{sOFF}, s{sOFF}, s{sM}\ns_mul_i32 s{sOFF}, s{sOFF}, 24576")
if WIN: gate_init(sC, 3 * WIN[2], vCO)
for b in range(24):
    thr(b)
    if WIN:
        if b < WIN[3]: gate(L_PV, 3, 3 * WIN[2], 3 * WIN[3], vCO, vCO + 4)
        else: A(f"s_waitcnt vmcnt({WIN[3]-1})")
    A(f"buffer_load_dwordx4 v[{vD+4*b}:{vD+4*b+3}], v{vOFF}, s[{SR}:{SR+3}], s{sOFF} offen nt")
    if b < 23: A(f"s_add_u32 s{sOFF}, s{sOFF}, {1024 if 'o' in a.contig else 1280}")
prio(3)
if not a.pro: stamp(6)
coef_addr(vAD, 48)
if a.fp:
    gp = a.fp // 16; lg = gp.bit_length() - 1
    A(f"v_and_b32 v{vF}, 7, v{vL}\nv_lshrrev_b32 v{vF+2}, 5, v{vL}\nv_lshl_add_u32 v{vF}, v{vF}, 1, v{vF+2}")
    A(f"v_and_b32 v{vF+2}, {gp-1}, v{vF}\nv_lshrrev_b32 v{vF}, {lg}, v{vF}\nv_mul_u32_u24 v{vF}, {32*a.fp}, v{vF}\nv_lshl_add_u32 v{vF}, v{vF+2}, 4, v{vF}")
    A(f"s_mul_i32 s{sOFF}, s{sP}, 10\ns_add_u32 s{sOFF}, s{sOFF}, s{sM}\ns_lshl_b32 s{sOFF}, s{sOFF}, 13\ns_mul_i32 s{sTMP}, s{sHH}, {a.fp}\ns_add_u32 s{sOFF}, s{sOFF}, s{sTMP}\ns_add_u32 s{sOFF}, s{sOFF}, {FBOX}")
else:
    A(f"v_and_b32 v{vF}, 7, v{vL}\nv_lshrrev_b32 v{vF+2}, 5, v{vL}\nv_lshlrev_b32 v{vF}, 10, v{vF}\nv_lshl_add_u32 v{vF}, v{vF+2}, 9, v{vF}")
    A(f"s_lshl_b32 s{sTMP}, s{sP}, 2\ns_add_u32 s{sTMP}, s{sTMP}, s{sJ}\ns_mul_i32 s{sOFF}, s{sTMP}, 24576\ns_lshl_b32 s{sTMP}, s{sHH}, 4\ns_add_u32 s{sOFF}, s{sOFF}, s{sTMP}\ns_lshl_b32 s{sTMP}, s{sC}, 13\ns_add_u32 s{sOFF}, s{sOFF}, s{sTMP}\ns_add_u32 s{sOFF}, s{sOFF}, {FBOX}")
lds_wait(L_OF, [0, 1, 2], 4, vCO)
for k in range(3):
    A(f"ds_read_b128 v[{vCO+4*k}:{vCO+4*k+3}], v{vAD} offset:{L_O+16*k}")
A("s_waitcnt lgkmcnt(0)")
diag_gemv(24)
combine(vCO)
A("s_mov_b32 exec_lo, 0xff\ns_mov_b32 exec_hi, 0xff")
if a.nofin != 1: A(f"buffer_store_dwordx4 v[{vCO}:{vCO+3}], v{vF}, s[{WS}:{WS+3}], s{sOFF} offen{'' if a.nofin == 3 else ' sc1'}")
A("s_mov_b64 exec, -1")
A("L_w_fin:")
A(f"ds_write_b32 v{vF+1}, v{vT} offset:{L_PF}")
stamp(7)
A("s_branch L_end")

A("L_k:")
prio(2)
A(f"s_sub_u32 s{sC}, s{sWAVE}, 4")
A(f"v_and_b32 v{vOFF}, 7, v{vL}\nv_mul_u32_u24 v{vOFF}, 384, v{vOFF}\nv_bfe_u32 v8, v{vL}, 3, 1\nv_lshl_add_u32 v{vOFF}, v8, 6, v{vOFF}\nv_lshrrev_b32 v8, 4, v{vL}\nv_lshl_add_u32 v{vOFF}, v8, 4, v{vOFF}")
A(f"v_and_b32 v{vAD}, 1, v{vL}\nv_lshlrev_b32 v{vAD}, 6, v{vAD}\nv_lshl_add_u32 v{vAD}, v8, 4, v{vAD}")
A(f"s_mul_i32 s{sOFF}, s{sHH}, 1572864\ns_mul_i32 s{sTMP}, s{sJ}, 98304\ns_add_u32 s{sOFF}, s{sOFF}, s{sTMP}\ns_mul_i32 s{sTMP}, s{sC}, 24576\ns_add_u32 s{sOFF}, s{sOFF}, s{sTMP}\ns_add_u32 s{sOFF}, s{sOFF}, {3072*384}")
A("s_waitcnt lgkmcnt(0)")
A(f"s_load_dword s{sT}, s[{sWSP}:{sWSP+1}], s9")
srd(SR, sK, 50331648)
srd(WS, sWSP, 0x10000000)
A("s_barrier")
get_T()
if WIN: gate_init(sC, 3 * WIN[0], 24)
for t in range(24):
    thr(t)
    if WIN:
        if t < WIN[1]: gate(L_PW, 4, 3 * WIN[0], 4 * WIN[1], 24, 28)
        else: A(f"s_waitcnt vmcnt({WIN[1]-1})")
    A(f"buffer_load_dwordx4 v[{vD+4*t}:{vD+4*t+3}], v{vOFF}, s[{SR}:{SR+3}], s{sOFF} offen offset:{128*(t%3)} nt")
    if t % 3 == 2 and t < 23: A(f"s_add_u32 s{sOFF}, s{sOFF}, 3072")
if WIN:
    prio(3)
    A(f"s_lshl_b32 s{sTMP}, s{sC}, 2\nv_mov_b32 v8, s{sTMP}")
    for i in range(WIN[1]):
        A(f"s_waitcnt vmcnt({WIN[1]-1-i})")
        credit(L_PK, 8, 9, i + 1)
elif a.g2:
    A(f"s_lshl_b32 s{sTMP}, s{sC}, 2\nv_mov_b32 v8, s{sTMP}\nds_write_b32 v8, v{vT} offset:{L_KI}")
prio(3)
stamp(1)
vQ = 8
vS = 136
lds_wait(L_QF, [0, 1, 2], 4, 24)
stamp(2)
for u in range(3):
    A(f"ds_read_b128 v[{vQ+4*u}:{vQ+4*u+3}], v{vAD} offset:{L_Q+128*u}")
A("s_waitcnt lgkmcnt(0)")
s_ = 24
for t in range(24):
    G, u = divmod(t, 3)
    A(f"s_waitcnt vmcnt({23-t})")
    c = "0" if u == 0 else f"v[{vS+4*G}:{vS+4*G+3}]"
    A(f"v_mfma_f32_16x16x32_bf16 v[{vS+4*G}:{vS+4*G+3}], v[{vQ+4*u}:{vQ+4*u+3}], v[{vD+4*t}:{vD+4*t+3}], {c}")
stamp(3)
A("s_nop 7")
for G in range(8):
    d0, d1 = vS + 4 * G, vS + 4 * G + 1
    if G & 1:
        A(f"v_add_f32_dpp v{s_}, v{d0}, v{d1} row_ror:8 row_mask:{1 << (G >> 1):#x} bank_mask:0xc")
    else:
        A(f"v_add_f32_dpp v{s_}, v{d1}, v{d0} row_ror:8 row_mask:{1 << (G >> 1):#x} bank_mask:0x3")
A(f"v_cvt_pk_bf16_f32 v{s_}, v{s_}, v{s_}\nv_lshlrev_b32 v{s_}, 16, v{s_}")
A(f"v_mul_f32 v{s_}, 0x3d93cd3a, v{s_}")
A(f"v_cvt_pk_bf16_f32 v{s_}, v{s_}, v{s_}\nv_lshlrev_b32 v{s_}, 16, v{s_}")
def wave_reduce(op, v):
    for d in ["row_shr:1", "row_shr:2", "row_shr:4", "row_shr:8"]:
        A(f"s_nop 1\n{op}_dpp v{v}, v{v}, v{v} {d} row_mask:0xf bank_mask:0xf")
    A(f"s_nop 1\n{op}_dpp v{v}, v{v}, v{v} row_bcast:15 row_mask:0xa bank_mask:0xf")
    A(f"s_nop 1\n{op}_dpp v{v}, v{v}, v{v} row_bcast:31 row_mask:0xc bank_mask:0xf")
A(f"v_mov_b32 v{s_+1}, v{s_}")
wave_reduce("v_max_f32", s_ + 1)
A(f"s_nop 0\nv_readlane_b32 s{sTMP}, v{s_+1}, 63")
A(f"s_lshl_b32 s{sTMP2}, s{sC}, 3\nv_mov_b32 v{s_+4}, s{sTMP2}\nv_mov_b32 v{s_+2}, s{sTMP}\nv_mov_b32 v{s_+3}, s{sT}")
A(f"ds_write_b64 v{s_+4}, v[{s_+2}:{s_+3}] offset:{L_MX}")
lds_wait(L_MX, [1, 3, 5, 7], 8, s_ + 8)
A(f"v_max_f32 v{s_+8}, v{s_+8}, v{s_+10}\nv_max3_f32 v{s_+8}, v{s_+8}, v{s_+12}, v{s_+14}")
A(f"v_sub_f32 v{s_}, v{s_}, v{s_+8}\nv_mul_f32 v{s_}, 0x3fb8aa3b, v{s_}\nv_exp_f32 v{s_}, v{s_}\ns_nop 0")
A(f"v_cvt_pk_bf16_f32 v{s_+1}, v{s_}, v{s_}")
A(f"s_lshl_b32 s{sTMP}, s{sC}, 7\nv_lshlrev_b32 v{s_+5}, 1, v{vL}\nv_add_u32 v{s_+5}, s{sTMP}, v{s_+5}")
A(f"ds_write_b16 v{s_+5}, v{s_+1} offset:{L_P}")
wave_reduce("v_add_f32", s_)
A(f"s_nop 0\nv_readlane_b32 s{sTMP}, v{s_}, 63\ns_nop 1\nv_mov_b32 v{s_+2}, s{sTMP}")
A(f"ds_write_b64 v{s_+4}, v[{s_+2}:{s_+3}] offset:{L_LS}")
stamp(4)
A("s_branch L_end")

A("L_v:")
prio(1)
A(f"s_sub_u32 s{sC}, s{sWAVE}, 8")
data_voff(384 if a.near else 32 * 384)
A(f"s_mul_i32 s{sOFF}, s{sHH}, 1572864\ns_mul_i32 s{sTMP}, s{sJ}, 98304\ns_add_u32 s{sOFF}, s{sOFF}, s{sTMP}\ns_lshl_b32 s{sTMP}, s{sC}, 7\ns_add_u32 s{sOFF}, s{sOFF}, s{sTMP}\ns_add_u32 s{sOFF}, s{sOFF}, {3072*384}")
if "k" in a.contig:
    data_voff(384)
    A(f"s_mul_i32 s{sTMP}, s{sC}, {30720-128}\ns_add_u32 s{sOFF}, s{sOFF}, s{sTMP}")
if "v" in a.contig:
    A(f"v_lshlrev_b32 v{vOFF}, 4, v{vL}\ns_mul_i32 s{sTMP}, s{sC}, {32768-128}\ns_add_u32 s{sOFF}, s{sOFF}, s{sTMP}")
A("s_waitcnt lgkmcnt(0)")
A(f"s_load_dword s{sT}, s[{sWSP}:{sWSP+1}], s9")
srd(SR, sV, 50331648)
srd(WS, sWSP, 0x10000000)
A("s_barrier")
get_T()
if WIN:
    gate_init(sC, 4 * WIN[1], vCO)
elif a.g2:
    lds_wait(L_KI, [0, 1, 2, 3], 4, vCO)
if WIN:
    make_selectors()
    coef_addr(vAD, 64)
for b in range(32):
    thr(b)
    if WIN:
        if b < WIN[2]: gate(L_PK, 3, 4 * WIN[1], 3 * WIN[2], vCO, vCO + 4)
        else: A(f"s_waitcnt vmcnt({WIN[2]-1})")
    if "k" in a.contig:
        A(f"buffer_load_dwordx4 v[{vD+4*b}:{vD+4*b+3}], v{vOFF}, s[{SR}:{SR+3}], s{sOFF} offen offset:{128*(b%3)} nt")
        if b % 3 == 2: A(f"s_add_u32 s{sOFF}, s{sOFF}, 3072")
        continue
    if a.near or "v" in a.contig:
        A(f"buffer_load_dwordx4 v[{vD+4*b}:{vD+4*b+3}], v{vOFF}, s[{SR}:{SR+3}], s{sOFF} offen nt\ns_add_u32 s{sOFF}, s{sOFF}, {3072 if a.near else 1024}")
        continue
    A(f"buffer_load_dwordx4 v[{vD+4*b}:{vD+4*b+3}], v{vOFF}, s[{SR}:{SR+3}], s{sOFF} offen offset:{384*(b%8)} nt")
    if b % 8 == 7 and b < 31: A(f"s_add_u32 s{sOFF}, s{sOFF}, 3072")
prio(3)
stamp(1)
if WIN:
    nv = WIN[2]
    A(f"s_lshl_b32 s{sTMP}, s{sC}, 2\nv_mov_b32 v{vOFF}, s{sTMP}")
    A(f"v_mov_b32 v{vCO+9}, 0\nds_read_b128 v[{vCO}:{vCO+3}], v{vCO+9} offset:{L_LS}\nds_read_b128 v[{vCO+4}:{vCO+7}], v{vCO+9} offset:{L_LS+16}\ns_waitcnt lgkmcnt(0)")
    A(f"v_xor_b32 v{vCO+1}, s{sFL}, v{vCO+1}\nv_xor_b32 v{vCO+3}, s{sFL}, v{vCO+3}\nv_xor_b32 v{vCO+5}, s{sFL}, v{vCO+5}\nv_xor_b32 v{vCO+7}, s{sFL}, v{vCO+7}")
    A(f"v_or3_b32 v{vCO+1}, v{vCO+1}, v{vCO+3}, v{vCO+5}\nv_or_b32 v{vCO+1}, v{vCO+1}, v{vCO+7}\nv_cmp_ne_u32 vcc, 0, v{vCO+1}\ns_cmp_eq_u64 vcc, 0\ns_cbranch_scc1 L_v_fast")
    for i in range(nv):
        A(f"s_waitcnt vmcnt({nv-1-i})")
        credit(L_PV, vOFF, vCO, i + 1)
    lds_wait(L_LS, [1, 3, 5, 7], 8, vCO)
    A(f"s_mov_b32 s{sNEED}, 1\ns_branch L_v_go\nL_v_fast:\ns_mov_b32 s{sNEED}, 0\nL_v_go:")
else:
    make_selectors()
    coef_addr(vAD, 64)
    lds_wait(L_LS, [1, 3, 5, 7], 8, vCO)
for k in range(4):
    A(f"ds_read_b128 v[{vCO+4*k}:{vCO+4*k+3}], v{vAD} offset:{L_P+16*k}")
lds_mode(vA0, vA0 + 1)
A(f"s_waitcnt lgkmcnt(0)\nv_readfirstlane_b32 s{sMODE}, v{vA0+1}")
stamp(2)
if WIN:
    def vhook(b):
        if b >= 32 - nv: credit(L_PV, vOFF, vAD, b - (32 - nv) + 1)
    diag_gemv(32, hook=vhook)
else:
    diag_gemv(32)
publish_gather(OBOX, L_O, L_OF, True)
stamp(5)
A("s_branch L_end")

A("L_aux:")
prio(3)
if a.dbg: A("s_memtime s[84:85]")
A(f"v_lshlrev_b32 v8, 2, v{vL}\nv_mov_b32 v9, 0\nds_write_b32 v8, v9")
A(f"s_load_dwordx4 s[{sM}:{sM+3}], s[0:1], 80")
A("s_waitcnt lgkmcnt(0)")
A(f"s_load_dword s{sT}, s[{sWSP}:{sWSP+1}], s9")
srd(WS, sWSP, 0x10000000)
srd(SR2, sM, 2560)
A("s_waitcnt lgkmcnt(0)\ns_barrier")
get_T()
if a.lat:
    A(f"v_lshlrev_b32 v37, 4, v{vL}")
    A(f"s_lshl_b32 s{sOFF}, s2, 10\ns_add_u32 s{sOFF}, s{sOFF}, 0x200000")
    A(f"s_cmp_eq_u32 s{sWAVE}, 11\ns_cbranch_scc1 L_lat2")
    for k in range(4):
        A(f"s_memrealtime s[{sST+4*k}:{sST+4*k+1}]\ns_waitcnt lgkmcnt(0)")
        A(f"buffer_load_dwordx4 v[40:43], v37, s[{WS}:{WS+3}], s{sOFF} offen sc1\ns_waitcnt vmcnt(0)")
        A(f"s_memrealtime s[{sST+4*k+2}:{sST+4*k+3}]\ns_waitcnt lgkmcnt(0)")
        A("s_sleep 40")
    A("s_branch L_end")
    A("L_lat2:")
    A(f"s_add_u32 s{sOFF}, s{sOFF}, 0x100000")
    A(f"buffer_load_dwordx4 v[40:43], v37, s[{WS}:{WS+3}], s{sOFF} offen {'nt' if a.lat == 1 else 'sc1'}\ns_waitcnt vmcnt(0)")
    for k in range(4):
        A(f"s_memrealtime s[{sST+4*k}:{sST+4*k+1}]\ns_waitcnt lgkmcnt(0)")
        A(f"buffer_load_dwordx4 v[40:43], v37, s[{WS}:{WS+3}], s{sOFF} offen {'nt' if a.lat == 1 else 'sc1'}\ns_waitcnt vmcnt(0)")
        A(f"s_memrealtime s[{sST+4*k+2}:{sST+4*k+3}]\ns_waitcnt lgkmcnt(0)")
        A("s_sleep 40")
    A("s_branch L_end")
stamp(1)
lds_wait(L_LS, [1, 3, 5, 7], 8, 8)
A(f"v_mov_b32 v30, 0\nds_read_b128 v[20:23], v30 offset:{L_MX}\nds_read_b128 v[24:27], v30 offset:{L_MX+16}\nds_read_b32 v31, v30 offset:{L_MODE}\ns_waitcnt lgkmcnt(0)\nv_readfirstlane_b32 s{sMODE}, v31")
A("v_max_f32 v32, v20, v22\nv_max3_f32 v32, v32, v24, v26")
A("v_add_f32 v33, v8, v10\nv_add_f32 v34, v12, v14\nv_add_f32 v33, v33, v34\nv_mov_b32 v34, 0\nv_mov_b32 v35, 0")
for k in range(4):
    A(f"v_perm_b32 v{32+k}, v{32+k}, v{vT}, s{sSEL+k}")
A(f"s_lshl_b32 s{sOFF}, s{sH}, 7\ns_add_u32 s{sOFF}, s{sOFF}, {SBOX}\ns_lshl_b32 s{sTMP}, s{sJ}, 4\ns_add_u32 s{sTMP}, s{sTMP}, s{sOFF}")
A("s_mov_b64 exec, 1")
A(f"s_cmp_lg_u32 s{sMODE}, 0\ns_cbranch_scc1 L_ux1")
A(f"buffer_store_dwordx4 v[32:35], v30, s[{WS}:{WS+3}], s{sTMP} offen\ns_branch L_ux2\nL_ux1:")
A(f"buffer_store_dwordx4 v[32:35], v30, s[{WS}:{WS+3}], s{sTMP} offen sc1\nL_ux2:")
A("s_mov_b64 exec, -1")
stamp(2)
A(f"v_and_b32 v36, 3, v{vL}\nv_lshlrev_b32 v37, 4, v36")
poll(40, 37, sOFF)
stamp(3)
A("v_and_b32 v40, 0xffffff00, v40\ns_nop 1")
A("v_max_f32_dpp v44, v40, v40 quad_perm:[1,0,3,2] row_mask:0xf bank_mask:0xf\ns_nop 1")
A("v_max_f32_dpp v44, v44, v44 quad_perm:[2,3,0,1] row_mask:0xf bank_mask:0xf")
A("v_sub_f32 v40, v40, v44\nv_mul_f32 v40, 0x3fb8aa3b, v40\nv_exp_f32 v40, v40\ns_nop 0")
A("v_mul_f32 v41, v41, v40\ns_nop 1")
A("v_add_f32_dpp v44, v41, v41 quad_perm:[1,0,3,2] row_mask:0xf bank_mask:0xf\ns_nop 1")
A("v_add_f32_dpp v44, v44, v44 quad_perm:[2,3,0,1] row_mask:0xf bank_mask:0xf")
A("v_rcp_f32 v44, v44\ns_nop 0\nv_mul_f32 v40, v40, v44")
A("v_lshlrev_b32 v36, 2, v36")
A("s_mov_b64 exec, 15")
A(f"ds_write_b32 v36, v40 offset:{L_FF}")
A(f"ds_write_b32 v30, v{vT} offset:{L_FFLAG}")
A("s_mov_b64 exec, -1")
if a.fp:
    gp = a.fp // 16; lg = gp.bit_length() - 1; nx = 256 // a.fp; R = 10 * nx; nl = a.fp // 32
    A(f"s_and_b32 s{sTMP}, s{sHH}, 7\ns_lshl_b32 s{sTMP}, s{sTMP}, 2\ns_lshr_b32 s{sTMP2}, s{sHH}, 3\ns_add_u32 s{sTMP}, s{sTMP}, s{sTMP2}\ns_lshl_b32 s{sTMP}, s{sTMP}, 1\ns_lshr_b32 s{sTMP2}, s{sJ}, 1\ns_add_u32 s{sTMP}, s{sTMP}, s{sTMP2}")
    A(f"s_and_b32 s{sTMP2}, s{sJ}, 1\ns_xor_b32 s{sTMP2}, s{sTMP2}, 1\ns_lshl_b32 s{sTMP2}, s{sTMP2}, 6\ns_add_u32 s{sCNT}, s{sTMP}, s{sTMP2}\ns_cmp_ge_u32 s{sCNT}, {R}\ns_cbranch_scc1 L_end")
    A(f"s_mul_i32 s{sOFF}, s{sP}, {R}\ns_add_u32 s{sOFF}, s{sOFF}, s{sCNT}\ns_mul_i32 s{sTMP2}, s{sOFF}, {gp*8}\ns_mul_i32 s{sOFF}, s{sOFF}, {32*a.fp}\ns_add_u32 s{sOFF}, s{sOFF}, {FBOX}")
    A(f"v_lshlrev_b32 v37, 4, v{vL}\nv_lshlrev_b32 v38, 3, v{vL}")
    lds_wait(L_PF, [0, 1, 2], 4, 8)
    stamp(4)
    if a.nofin: A("s_branch L_end")
    A("L_fp:")
    for i in range(nl):
        A(f"buffer_load_dwordx4 v[{80+4*i}:{83+4*i}], v37, s[{WS}:{WS+3}], s{sOFF} offen offset:{1024*i} sc1{FN}")
    for i in range(nl):
        r = 80 + 4 * i
        A(f"s_waitcnt vmcnt({nl-1-i})")
        A(f"v_perm_b32 v44, v{r+1}, v{r}, s{sSELA}\nv_perm_b32 v45, v{r+3}, v{r+2}, s{sSELB}\nv_or_b32 v44, v44, v45\nv_xor_b32 v44, s{sT}, v44")
        A(f"v_or_b32 v46, v46, v44" if i else "v_mov_b32 v46, v44")
        for k in range(4):
            A(f"v_add_f32 v{40+k}, v{40+k}, v{r+k}" if i else f"v_mov_b32 v{40+k}, v{r+k}")
    A("v_cmp_lt_u32 vcc, 7, v46\ns_cmp_eq_u64 vcc, 0\ns_cbranch_scc1 L_fpd")
    spin_tail("L_fp", a.fsl)
    A("L_fpd:")
    stamp(5)
    d = gp
    while d < 16:
        for k in range(4):
            A(f"v_add_f32_dpp v{40+k}, v{40+k}, v{40+k} row_ror:{d} row_mask:0xf bank_mask:0xf")
        if d * 2 < 16: A("s_nop 0")
        d *= 2
    for op in ("v_permlane16_swap_b32", "v_permlane32_swap_b32"):
        for k in range(4): A(f"v_mov_b32 v{44+k}, v{40+k}")
        A("s_nop 1")
        for k in range(4): A(f"{op} v{40+k}, v{44+k}")
        A("s_nop 1")
        for k in range(4): A(f"v_add_f32 v{40+k}, v{40+k}, v{44+k}")
    A("v_cvt_pk_bf16_f32 v44, v40, v41\nv_cvt_pk_bf16_f32 v45, v42, v43")
    A(f"s_mov_b64 exec, {(1 << gp) - 1}")
    A(f"buffer_store_dwordx2 v[44:45], v38, s[{SR2}:{SR2+3}], s{sTMP2} offen")
    A(f"s_cmp_lg_u32 s{sCNT}, 0\ns_cbranch_scc1 L_aux2")
    A("s_mov_b64 exec, 1")
    A(f"buffer_store_dword v{vT}, v30, s[{WS}:{WS+3}], s9 offen")
    A("L_aux2:")
    A("s_mov_b64 exec, -1")
    stamp(6)
else:
    A(f"s_and_b32 s{sTMP}, s{sJ}, 1\ns_lshl_b32 s{sTMP}, s{sTMP}, 3\ns_add_u32 s{sTMP}, s{sTMP}, s{sHH}\ns_cmp_ge_u32 s{sTMP}, 24\ns_cbranch_scc1 L_end")
    A(f"s_lshl_b32 s{sTMP}, s{sP}, 2\ns_add_u32 s{sTMP}, s{sTMP}, s{sJ}\ns_mul_i32 s{sOFF}, s{sTMP}, 24\ns_add_u32 s{sOFF}, s{sOFF}, s{sHH}")
    A(f"s_lshl_b32 s{sOFF}, s{sOFF}, 10\ns_add_u32 s{sOFF}, s{sOFF}, {FBOX}")
    A(f"s_mul_i32 s{sTMP}, s{sJ}, 5\ns_add_u32 s{sTMP}, s{sTMP}, 1\ns_lshr_b32 s{sTMP}, s{sTMP}, 1\ns_lshl_b32 s{sTMP2}, s{sTMP}, 7")
    A(f"s_mul_i32 s{sTMP}, s{sP}, 1280\ns_add_u32 s{sTMP2}, s{sTMP2}, s{sTMP}\ns_lshl_b32 s{sTMP}, s{sHH}, 4\ns_add_u32 s{sTMP2}, s{sTMP2}, s{sTMP}")
    A(f"v_lshlrev_b32 v37, 4, v{vL}\nv_lshrrev_b32 v38, 5, v{vL}\nv_lshlrev_b32 v38, 3, v38")
    lds_wait(L_PF, [0, 1, 2], 4, 8)
    stamp(4)
    if a.nofin: A("s_branch L_end")
    if a.fmask:
        D = a.fdepth
        mk = sM + 4
        sets = [80 + 4 * k for k in range(D)]
        A(f"s_mov_b64 s[{mk}:{mk+1}], -1")
        for k in range(D):
            for q in range(4): A(f"v_mov_b32 v{sets[k]+q}, 0")
        A(f"v_not_b32 v{sets[0]}, v{vT}")
        for k in range(1, D): A(f"v_mov_b32 v{sets[k]}, v{sets[0]}")
        def issue(r):
            A(f"s_mov_b64 exec, s[{mk}:{mk+1}]\nbuffer_load_dwordx4 v[{r}:{r+3}], v37, s[{WS}:{WS+3}], s{sOFF} offen sc1\ns_mov_b64 exec, -1")
        for k in range(D - 1):
            issue(sets[k])
            if a.fgap: A(f"s_sleep {a.fgap}")
        A("L_fp:")
        for k in range(D):
            issue(sets[(k + D - 1) % D])
            r = sets[k]
            A(f"s_waitcnt vmcnt({D-1})")
            A(f"v_perm_b32 v44, v{r+1}, v{r}, s{sSELA}\nv_perm_b32 v45, v{r+3}, v{r+2}, s{sSELB}\nv_or_b32 v44, v44, v45\nv_xor_b32 v44, s{sT}, v44")
            A(f"v_cmp_ge_u32 vcc, 7, v44")
            A(f"s_and_b64 vcc, vcc, s[{mk}:{mk+1}]\ns_andn2_b64 s[{mk}:{mk+1}], s[{mk}:{mk+1}], vcc\ns_mov_b64 exec, vcc")
            for q in range(4): A(f"v_mov_b32 v{40+q}, v{r+q}")
            A(f"s_mov_b64 exec, -1\ns_cmp_eq_u64 s[{mk}:{mk+1}], 0\ns_cbranch_scc1 L_fpd")
            if a.fsl: A(f"s_sleep {a.fsl}")
        spin_tail("L_fp", 0)
        A("L_fpd:")
    else:
        poll(80, 37, sOFF, depth=a.fdepth, gap=a.fgap, lfl=FN)
        for k in range(4):
            A(f"v_mov_b32 v{40+k}, v{80+k}")
    A("s_nop 1")
    stamp(5)
    for d in ["row_shr:1", "row_shr:2", "row_shr:4", "row_shr:8"]:
        for k in range(4):
            A(f"v_add_f32_dpp v{40+k}, v{40+k}, v{40+k} {d} row_mask:0xf bank_mask:0xf")
    for k in range(4):
        A(f"v_add_f32_dpp v{40+k}, v{40+k}, v{40+k} row_bcast:15 row_mask:0xa bank_mask:0xf")
    A("v_cvt_pk_bf16_f32 v44, v40, v41\nv_cvt_pk_bf16_f32 v45, v42, v43")
    A("s_mov_b32 exec_lo, 0x80000000\ns_mov_b32 exec_hi, 0x80000000")
    A(f"buffer_store_dwordx2 v[44:45], v38, s[{SR2}:{SR2+3}], s{sTMP2} offen")
    A(f"s_or_b32 s{sTMP}, s{sJ}, s{sHH}\ns_cmp_lg_u32 s{sTMP}, 0\ns_cbranch_scc1 L_aux2")
    A("s_mov_b64 exec, 1")
    A(f"buffer_store_dword v{vT}, v30, s[{WS}:{WS+3}], s9 offen")
    A("L_aux2:")
    A("s_mov_b64 exec, -1")
    stamp(6)


A("L_end:")
if a.dbg:
    A("s_mov_b64 exec, -1")
    A("s_waitcnt vmcnt(0) lgkmcnt(0)")
    A(f"s_memrealtime s[{sST+16}:{sST+17}]\ns_memtime s[86:87]\ns_waitcnt lgkmcnt(0)")
    for k in range(9):
        A(f"v_mov_b32 v{8+k}, s{sST+2*k}")
    A(f"s_sub_u32 s86, s86, s84\ns_sub_u32 s87, s{sST+16}, s{sST}\nv_mov_b32 v17, s86\nv_mov_b32 v18, s87\nv_not_b32 v19, v8")
    A(f"s_lshl_b32 s{sTMP}, s{sWAVE}, 6\nv_mov_b32 v30, s{sTMP}\ns_lshl_b32 s{sTMP}, s{sWAVE}, 2\nv_mov_b32 v31, s{sTMP}\ns_mov_b64 exec, 1")
    for k in range(3):
        A(f"ds_write_b128 v30, v[{8+4*k}:{11+4*k}] offset:{L_ST+16*k}")
    A(f"ds_write_b32 v31, v{vT} offset:{L_DN}")
    A("s_mov_b64 exec, -1")
    A(f"s_cmp_lg_u32 s{sWAVE}, 3\ns_cbranch_scc1 L_done")
    A(f"L_dw:\nv_lshlrev_b32 v8, 2, v{vL}\nv_min_u32 v8, 40, v8\nds_read_b32 v9, v8 offset:{L_DN}\ns_waitcnt lgkmcnt(0)\nv_cmp_ne_u32 vcc, s{sT}, v9\ns_cmp_eq_u64 vcc, 0\ns_cbranch_scc1 L_dw2\ns_sleep 4\ns_sub_u32 s{sSPIN}, s{sSPIN}, 1\ns_cbranch_scc0 L_dw\ns_branch L_done\nL_dw2:")
    A("s_sleep 127\ns_sleep 127")
    adds = [(3,0,1),(0,2,2),(0,4,3),(4,4,4),(8,2,5),(8,3,6),(8,4,7),(0,7,8),(3,9,13),(3,10,14)]
    maxs = [(3,11,0),(0,7,9),(1,7,9),(2,7,9),(3,8,10),(8,3,11),(9,3,11),(10,3,11),(8,4,12),(9,4,12),(10,4,12),(3,0,15)]
    A("v_mov_b32 v20, 0\nv_mov_b32 v21, 0")
    for k, (w, st, d) in enumerate(adds + maxs):
        A(f"s_mov_b32 s{sTMP}, {L_ST + w*64 + st*4}\nv_writelane_b32 v20, s{sTMP}, {k}\ns_mov_b32 s{sTMP}, {d*4}\nv_writelane_b32 v21, s{sTMP}, {k}")
    A("ds_read_b32 v22, v20")
    A(f"s_load_dwordx2 s[{sM+2}:{sM+3}], s[0:1], 88\ns_waitcnt lgkmcnt(0)")
    srd(SR, sM + 2, 256)
    A("s_waitcnt lgkmcnt(0)")
    A(f"s_mov_b64 exec, {(1 << len(adds)) - 1}")
    A(f"buffer_atomic_add v22, v21, s[{SR}:{SR+3}], 0 offen")
    A(f"s_mov_b64 exec, {((1 << len(maxs)) - 1) << len(adds)}")
    A(f"buffer_atomic_umax v22, v21, s[{SR}:{SR+3}], 0 offen")
elif a.stamps:
    A("s_mov_b64 exec, -1")
    A("s_waitcnt vmcnt(0) lgkmcnt(0)")
    A(f"s_memrealtime s[{sST+16}:{sST+17}]\ns_waitcnt lgkmcnt(0)")
    A(f"s_lshl_b32 s{sTMP}, s2, 4\ns_add_u32 s{sTMP}, s{sTMP}, s{sWAVE}\ns_mul_i32 s{sTMP}, s{sTMP}, 80\ns_add_u32 s{sTMP}, s{sTMP}, {STAMP}")
    for k in range(18):
        A(f"v_mov_b32 v{8+k}, s{sST+k}")
    A("v_mov_b32 v30, 0\ns_mov_b64 exec, 1")
    for k in range(4):
        A(f"buffer_store_dwordx4 v[{8+4*k}:{11+4*k}], v30, s[{WS}:{WS+3}], s{sTMP} offen offset:{16*k}")
    A("s_getreg_b32 s3, hwreg(HW_REG_XCC_ID)\nv_mov_b32 v26, s3\nv_mov_b32 v27, 0")
    A(f"buffer_store_dwordx4 v[24:27], v30, s[{WS}:{WS+3}], s{sTMP} offen offset:64")
A("L_done:\ns_endpgm")
A.footer(168)
A.write(a.out)
```

```python
import sys, argparse
from asmlib import *
ap = argparse.ArgumentParser()
ap.add_argument("out")
ap.add_argument("--stamps", type=int, default=0)
ap.add_argument("--prio", type=int, default=1)
ap.add_argument("--lds", type=int, default=163840)
ap.add_argument("--nopoll", type=int, default=0)
ap.add_argument("--near", type=int, default=0)
ap.add_argument("--kfull", type=int, default=0)
ap.add_argument("--psleep", type=int, default=0)
ap.add_argument("--lat", type=int, default=0)
ap.add_argument("--thr", type=int, default=0)
ap.add_argument("--rot", type=int, default=0)
ap.add_argument("--pdepth", type=int, default=3)
ap.add_argument("--pgap", type=int, default=16)
ap.add_argument("--fgap", type=int, default=5)
ap.add_argument("--fdepth", type=int, default=3)
ap.add_argument("--g2", type=int, default=1)
ap.add_argument("--dbg", type=int, default=0)
ap.add_argument("--win", type=str, default="")
ap.add_argument("--gsleep", type=int, default=1)
ap.add_argument("--nt", type=int, default=12)
ap.add_argument("--nofin", type=int, default=0)
ap.add_argument("--lsleep", type=int, default=1)
ap.add_argument("--x1", type=int, default=0)
ap.add_argument("--fmask", type=int, default=0)
ap.add_argument("--fsl", type=int, default=0)
ap.add_argument("--pro", type=int, default=0)
ap.add_argument("--contig", type=str, default="")
ap.add_argument("--fp", type=int, default=0)
ap.add_argument("--xmap", type=int, default=0)
ap.add_argument("--dly", type=str, default="")
ap.add_argument("--pnt", type=int, default=3)
ap.add_argument("--emap", type=int, default=1)
ap.add_argument("--ost", type=int, default=1)
ap.add_argument("--fm", type=int, default=0)
ap.add_argument("--odepth", type=int, default=0)
ap.add_argument("--ogap", type=int, default=-1)
a = ap.parse_args()
assert a.fp
PN = " nt" if a.pnt & 1 else ""
FN = " nt" if a.pnt & 2 else ""
XN = " nt" if a.pnt & 4 else ""
WIN = [int(x) for x in a.win.split(",")] if a.win else None
if a.dbg: a.stamps = 1

A = Asm()
NW = 12 if a.lat else 11
A.header(256, 64 * NW, a.lds)

QBOX = 0x10000
OBOX = 0x40000
SBOX = 0x70000
FBOX = 0x80000
GBOX = 0x78000
STAMP = 0x8000000
L_PW, L_PK, L_PV = 0, 16, 32
L_QF = 48
L_MX = 64
L_LS = 96
L_FF = 128
L_FFLAG = 144
L_MODE = 148
L_OF = 160
L_PF = 176
L_KI = 192
L_M2 = 152
L_DN = 208
L_ST = 2048
L_Q = 256
L_P = 640
L_O = 1152
sH, sJ, sP, sHH = 4, 5, 6, 7
sX, sK, sV, sWQ, sWO = 12, 14, 16, 18, 20
sWSP = 22
sWAVE = 24
sT = 25
sSPIN = 26
sC = 27
WS = 28
SR = 32
sOFF = 36
sTMP, sTMP2, sTMP3 = 37, 38, 39
sSEL = 40
sSELA, sSELB = 44, 45
sFL = sT
SR2 = 48
sM = 52
sNEED, sHAVE = 56, 57
sMODE, sCNT = 58, 59
sXCC = 60
sJW, sHW, sG8 = 61, 62, 63
sST = 64
vL = 0
vOFF = 1
vAD = 2
vT = 3
vACC = 4
vA0, vA1 = 8, 12
vSEL = 16
vCO = 24
vD = 40

nstamp = [0]
def stamp(k):
    if a.stamps:
        A(f"s_memrealtime s[{sST+2*k}:{sST+2*k+1}]")

def thr(n):
    if a.thr and n >= a.thr:
        A(f"s_waitcnt vmcnt({a.thr-1})")

def prio(p):
    if a.prio:
        A(f"s_setprio {p}")

def spin_tail(loop, sleep=1):
    if sleep:
        A(f"s_sleep {sleep}")
    A(f"s_sub_u32 s{sSPIN}, s{sSPIN}, 1\ns_cbranch_scc0 {loop}\ns_branch L_end")

def lds_wait(off, positions, nread, vt):
    if a.nopoll >= 2: return
    lp = A.label("Lw"); dn = A.label("Lwd")
    vz = vt + nread + 1
    vx = vt + nread
    A(f"v_mov_b32 v{vz}, 0")
    A(f"{lp}:")
    k = 0
    while k < nread:
        n = min(4, nread - k)
        op = {1: "ds_read_b32", 2: "ds_read_b64", 4: "ds_read_b128"}[n]
        reg = f"v{vt+k}" if n == 1 else f"v[{vt+k}:{vt+k+n-1}]"
        A(f"{op} {reg}, v{vz} offset:{off+4*k}")
        k += n
    A("s_waitcnt lgkmcnt(0)")
    first = True
    for p in positions:
        if first:
            A(f"v_xor_b32 v{vx}, s{sFL}, v{vt+p}")
            first = False
        else:
            A(f"v_xor_b32 v{vz}, s{sFL}, v{vt+p}\nv_or_b32 v{vx}, v{vx}, v{vz}")
    A(f"v_mov_b32 v{vz}, 0")
    A(f"v_cmp_ne_u32 vcc, 0, v{vx}")
    A(f"s_cmp_eq_u64 vcc, 0\ns_cbranch_scc1 {dn}")
    spin_tail(lp, a.lsleep)
    A(f"{dn}:")

def gate_init(widx, NP, vz):
    A(f"s_add_u32 s{sNEED}, s{widx}, 1\ns_mul_i32 s{sNEED}, s{sNEED}, {NP}\ns_mov_b32 s{sHAVE}, 0\nv_mov_b32 v{vz}, 0")

def gate(loff, kS, NP, NS, vz, vt):
    lp = A.label("Lg"); go = A.label("Lgo")
    A(f"{lp}:\ns_cmp_ge_u32 s{sHAVE}, s{sNEED}\ns_cbranch_scc1 {go}")
    if a.x1: A("s_mov_b64 exec, 1")
    A(f"ds_read_b128 v[{vt}:{vt+3}], v{vz} offset:{loff}\ns_waitcnt lgkmcnt(0)")
    A(f"v_add3_u32 v{vt}, v{vt}, v{vt+1}, v{vt+2}\nv_add_u32 v{vt}, v{vt}, v{vt+3}\ns_nop 0\nv_readfirstlane_b32 s{sHAVE}, v{vt}")
    if a.x1: A("s_mov_b64 exec, -1")
    A(f"s_mul_i32 s{sHAVE}, s{sHAVE}, {NS}\ns_cmp_ge_u32 s{sHAVE}, s{sNEED}\ns_cbranch_scc1 {go}")
    spin_tail(lp, a.gsleep)
    A(f"{go}:\ns_add_u32 s{sNEED}, s{sNEED}, {kS*NP}")

def credit(loff, vaddr, vval, n):
    A(f"v_mov_b32 v{vval}, {n}\nds_write_b32 v{vaddr}, v{vval} offset:{loff}")

def lds_flag(off, vtmp):
    A(f"v_mov_b32 v{vtmp}, 0\nds_write_b32 v{vtmp}, v{vT} offset:{off}")

def get_T():
    A("s_waitcnt lgkmcnt(0)")
    A(f"s_mul_i32 s{sT}, s{sT}, 0x9E3779B1\ns_add_u32 s{sT}, s{sT}, 0x7F4A7C15\ns_andn2_b32 s{sT}, s{sT}, 15\ns_or_b32 s{sT}, s{sT}, 8\ns_or_b32 s{sT}, s{sT}, s{sXCC}")
    A(f"v_mov_b32 v{vT}, s{sT}")

def make_selectors():
    t0, t1, t2, t3 = vA0, vA0 + 1, vA0 + 2, vA0 + 3
    A(f"v_bfe_u32 v{t0}, v{vL}, 2, 2")
    A(f"v_bfe_u32 v{t1}, v{vL}, 1, 1")
    A(f"v_cmp_eq_u32 vcc, 1, v{t1}")
    A(f"v_mov_b32 v{t2}, 0x0c0c0100\nv_mov_b32 v{t3}, 0x01000c0c")
    A(f"v_cndmask_b32 v{t2}, v{t2}, v{t3}, vcc")
    A(f"v_mov_b32 v{t1}, 0x0c0c0302\nv_mov_b32 v{t3}, 0x03020c0c")
    A(f"v_cndmask_b32 v{t3}, v{t1}, v{t3}, vcc")
    A(f"v_mov_b32 v{t1}, 0x0c0c0c0c")
    for t in range(4):
        A(f"v_cmp_eq_u32 vcc, {t}, v{t0}\ns_nop 1")
        A(f"v_cndmask_b32 v{vSEL+2*t}, v{t1}, v{t2}, vcc\nv_cndmask_b32 v{vSEL+2*t+1}, v{t1}, v{t3}, vcc")

def build_A(b, buf):
    src = vCO + b // 2
    for t in range(4):
        A(f"v_perm_b32 v{buf+t}, v{src}, v{src}, v{vSEL+2*t+(b&1)}")

def diag_gemv(nb, extra_after=0, win=None, hook=None):
    build_A(0, vA0)
    for b in range(nb):
        if b + 1 < nb:
            build_A(b + 1, vA1 if (b & 1) == 0 else vA0)
        else:
            A("s_nop 1")
        A(f"s_waitcnt vmcnt({min(nb-1-b, (win or nb)-1)+extra_after})")
        if hook: hook(b)
        buf = vA0 if (b & 1) == 0 else vA1
        c = "0" if b == 0 else f"v[{vACC}:{vACC+3}]"
        A(f"v_mfma_f32_16x16x32_bf16 v[{vACC}:{vACC+3}], v[{buf}:{buf+3}], v[{vD+4*b}:{vD+4*b+3}], {c}")

def combine(g, scale=None):
    A("s_nop 7")
    A(f"v_add_f32_dpp v{g}, v{vACC+1}, v{vACC} row_ror:8 row_mask:0xf bank_mask:0xf")
    A(f"v_add_f32_dpp v{g+1}, v{vACC+3}, v{vACC+2} row_ror:8 row_mask:0xf bank_mask:0xf")
    A(f"v_mov_b32 v{g+2}, 0\nv_mov_b32 v{g+3}, 0")
    A("s_nop 1")
    A(f"v_permlane16_swap_b32 v{g}, v{g+2}\nv_permlane16_swap_b32 v{g+1}, v{g+3}")
    A("s_nop 1")
    if scale: scale()
    for k in range(4):
        A(f"v_perm_b32 v{g+k}, v{g+k}, v{vT}, s{sSEL+k}")

def poll(g, voff, soff, sleep=0, depth=None, gap=None, on_timeout=None, lfl=None):
    if a.nopoll >= 1: return
    depth = depth or a.pdepth
    gap = a.pgap if gap is None else gap
    lp = A.label("Lp"); dn = A.label("Lpd")
    sets = [g + 8 + 4 * k for k in range(depth)]
    def issue(r):
        A(f"buffer_load_dwordx4 v[{r}:{r+3}], v{voff}, s[{WS}:{WS+3}], s{soff} offen sc1{PN if lfl is None else lfl}")
    for k in range(depth - 1):
        issue(sets[k])
        if gap: A(f"s_sleep {gap}")
    if on_timeout: A(f"s_mov_b32 s{sCNT}, 0")
    A(f"{lp}:")
    fins = []
    for k in range(depth):
        issue(sets[(k + depth - 1) % depth])
        r = sets[k]
        A(f"s_waitcnt vmcnt({depth-1})")
        A(f"v_perm_b32 v{g+4}, v{r+1}, v{r}, s{sSELA}\nv_perm_b32 v{g+5}, v{r+3}, v{r+2}, s{sSELB}")
        A(f"v_or_b32 v{g+4}, v{g+4}, v{g+5}\nv_xor_b32 v{g+4}, s{sT}, v{g+4}")
        A(f"v_cmp_lt_u32 vcc, 7, v{g+4}")
        fl = A.label("Lpf"); fins.append((fl, r))
        A(f"s_cmp_eq_u64 vcc, 0\ns_cbranch_scc1 {fl}")
    if on_timeout:
        A(f"s_add_u32 s{sCNT}, s{sCNT}, 1\ns_cmp_lg_u32 s{sCNT}, {a.nt}\ns_cbranch_scc1 {lp}_t")
        on_timeout()
        A(f"{lp}_t:")
    spin_tail(lp, 0)
    for i, (fl, r) in enumerate(fins):
        A(f"{fl}:")
        for k in range(4):
            A(f"v_mov_b32 v{g+k}, v{r+k}")
        if i < len(fins) - 1: A(f"s_branch {dn}")
    A(f"{dn}:")
    A("s_nop 1")

def lds_mode(vz, vr):
    A(f"v_mov_b32 v{vz}, 0\nds_read_b32 v{vr}, v{vz} offset:{L_MODE}")

def publish_gather(box, ldsdst, ldsflag, fscale, g=vD, h=None):
    def oscale():
        l1 = A.label("Lf")
        A(f"s_waitcnt lgkmcnt(0)\nv_cmp_ne_u32 vcc, s{sT}, v25\ns_cmp_eq_u64 vcc, 0\ns_cbranch_scc1 {l1}")
        lds_wait(L_FF + 4, [0], 1, g + 16)
        A(f"v_mov_b32 v25, 0\nds_read_b32 v24, v25 offset:{L_FF}\ns_waitcnt lgkmcnt(0)")
        A(f"{l1}:")
        for k in range(4): A(f"v_mul_f32 v{g+k}, v{g+k}, v24")
    if fscale and a.nopoll < 2:
        A(f"v_mov_b32 v{vAD}, 0\nds_read_b64 v[24:25], v{vAD} offset:{L_FF}")
        combine(g, oscale)
    else:
        combine(g)
    A(f"v_and_b32 v{g+8}, 7, v{vL}\nv_lshrrev_b32 v{g+9}, 5, v{vL}\nv_lshl_add_u32 v{g+8}, v{g+8}, 1, v{g+9}\nv_lshlrev_b32 v{g+8}, 4, v{g+8}")
    A(f"s_mul_i32 s{sOFF}, s{sH}, 3072\ns_lshl_b32 s{sTMP}, s{sC}, 10\ns_add_u32 s{sOFF}, s{sOFF}, s{sTMP}\ns_add_u32 s{sOFF}, s{sOFF}, {box}")
    A(f"s_lshl_b32 s{sTMP3}, s{sJ}, 8\ns_add_u32 s{sTMP3}, s{sTMP3}, s{sOFF}")
    def store(fl):
        A("s_mov_b32 exec_lo, 0xff\ns_mov_b32 exec_hi, 0xff")
        A(f"buffer_store_dwordx4 v[{g}:{g+3}], v{g+8}, s[{WS}:{WS+3}], s{sTMP3} offen{fl}")
        A("s_mov_b64 exec, -1")
    if fscale and a.emap:
        store(" sc1" if a.ost else "")
        A(f"s_lshl_b32 s{sOFF}, s{sP}, 5\ns_add_u32 s{sOFF}, s{sOFF}, s{sHW}\ns_mul_i32 s{sOFF}, s{sOFF}, 3072\ns_add_u32 s{sOFF}, s{sOFF}, s{sTMP}\ns_add_u32 s{sOFF}, s{sOFF}, {box}")
    elif fscale:
        l1 = A.label("Ls"); l2 = A.label("Ls")
        A(f"s_cmp_lg_u32 s{sMODE}, 0\ns_cbranch_scc1 {l1}")
        store("")
        A(f"s_branch {l2}\n{l1}:")
        store(" sc1")
        A(f"{l2}:")
    else:
        store("")
    stamp(3)
    A(f"v_and_b32 v{g+10}, 3, v{vL}\nv_lshrrev_b32 v{g+11}, 2, v{vL}\nv_lshlrev_b32 v{g+12}, 4, v{g+11}\nv_lshl_add_u32 v{g+12}, v{g+10}, 8, v{g+12}")
    h = h or g + 20
    if fscale: poll(h, g + 12, sOFF, depth=a.odepth or None, gap=None if a.ogap < 0 else a.ogap)
    else: poll(h, g + 12, sOFF, on_timeout=(lambda: store(" sc1")))
    stamp(4)
    if not fscale:
        if a.nopoll: A(f"v_mov_b32 v{h+4}, 0")
        A(f"v_cmp_ne_u32 vcc, 0, v{h+4}\ns_cmp_lg_u64 vcc, 0\ns_cselect_b32 s{sMODE}, 1, 0\nv_mov_b32 v{g+13}, s{sMODE}\nv_mov_b32 v{g+14}, 0")
        l1 = A.label("Ls")
        A(f"s_cbranch_scc0 {l1}")
        store(" sc1")
        A(f"{l1}:")
    for k in range(4):
        A(f"v_add_f32_dpp v{h+4+k}, v{h+k}, v{h+k} quad_perm:[1,0,3,2] row_mask:0xf bank_mask:0xf")
    for k in range(4):
        A(f"v_add_f32_dpp v{h+k}, v{h+4+k}, v{h+4+k} quad_perm:[2,3,0,1] row_mask:0xf bank_mask:0xf")
    A(f"v_cvt_pk_bf16_f32 v{h+4}, v{h}, v{h+1}\nv_cvt_pk_bf16_f32 v{h+5}, v{h+2}, v{h+3}")
    A(f"s_lshl_b32 s{sTMP}, s{sC}, 7\nv_lshlrev_b32 v{g+11}, 3, v{g+11}\nv_add_u32 v{g+11}, s{sTMP}, v{g+11}")
    A(f"s_lshl_b32 s{sTMP}, s{sC}, 2\nv_mov_b32 v{g+10}, s{sTMP}")
    A("s_mov_b32 exec_lo, 0x11111111\ns_mov_b32 exec_hi, 0x11111111")
    A(f"ds_write_b64 v{g+11}, v[{h+4}:{h+5}] offset:{ldsdst}")
    if not fscale:
        A(f"ds_write_b32 v{g+14}, v{g+13} offset:{L_MODE}")
    A(f"ds_write_b32 v{g+10}, v{vT} offset:{ldsflag}")
    A("s_mov_b64 exec, -1")

def coef_addr(vdst, per):
    A(f"v_lshrrev_b32 v{vdst}, 4, v{vL}\nv_and_b32 v{vA0}, 1, v{vL}\nv_lshl_add_u32 v{vdst}, v{vdst}, 1, v{vA0}\nv_mul_u32_u24 v{vdst}, {per}, v{vdst}")

def data_voff(rowstep):
    A(f"v_lshrrev_b32 v{vOFF}, 3, v{vL}\nv_mul_u32_u24 v{vOFF}, {rowstep}, v{vOFF}\nv_and_b32 v{vA0}, 7, v{vL}\nv_lshl_add_u32 v{vOFF}, v{vA0}, 4, v{vOFF}")

def srd(d, lo, n):
    A.srd(d, lo, n)

A("s_cmp_ge_u32 s2, 256\ns_cbranch_scc1 L_done")
stamp(0)
if a.stamps:
    for k in range(2, 18):
        A(f"s_mov_b32 s{sST+k}, 0")
if a.dly:
    dl = a.dly
    if dl[0] == "w":
        dl = dl[1:]; A("s_and_b32 s3, s2, 7")
    else:
        A("s_getreg_b32 s3, hwreg(HW_REG_XCC_ID, 0, 3)")
    dl = [int(x) for x in dl.split(",")]
    lo = sum(v << (8 * i) for i, v in enumerate(dl[:4])); hi = sum(v << (8 * i) for i, v in enumerate(dl[4:]))
    A(f"s_mov_b32 s4, {lo}\ns_mov_b32 s5, {hi}\ns_lshl_b32 s3, s3, 3\ns_lshr_b64 s[4:5], s[4:5], s3\ns_and_b32 s4, s4, 0xff")
    A("L_dl:\ns_sub_u32 s4, s4, 1\ns_cbranch_scc1 L_nd\ns_sleep 2\ns_branch L_dl\nL_nd:")
A(f"s_load_dwordx2 s[{sWSP}:{sWSP+1}], s[0:1], 96")
if a.xmap == 1:
    A(f"s_and_b32 s{sJ}, s2, 3\ns_lshr_b32 s{sH}, s2, 2\ns_lshr_b32 s{sG8}, s2, 5\ns_and_b32 s{sHW}, s2, 31")
elif a.xmap == 2:
    A(f"s_lshr_b32 s{sH}, s2, 3\ns_and_b32 s{sJ}, s{sH}, 3\ns_cmp_eq_u32 s{sJ}, 3\ns_cselect_b32 s3, 1, 0\ns_add_u32 s3, s3, s2\ns_and_b32 s3, s3, 7\ns_mov_b32 s{sG8}, s3\ns_lshr_b32 s{sHW}, s2, 3\ns_lshr_b32 s{sH}, s{sH}, 2\ns_lshl_b32 s3, s3, 3\ns_add_u32 s{sH}, s{sH}, s3")
else:
    A(f"s_add_u32 s3, s2, {a.rot}\ns_and_b32 s3, s3, 7\ns_mov_b32 s{sG8}, s3\ns_lshr_b32 s{sHW}, s2, 3\ns_lshr_b32 s{sH}, s2, 3\ns_and_b32 s{sJ}, s{sH}, 3\ns_lshr_b32 s{sH}, s{sH}, 2\ns_lshl_b32 s3, s3, 3\ns_add_u32 s{sH}, s{sH}, s3")
A(f"s_lshr_b32 s{sP}, s{sH}, 5\ns_and_b32 s{sHH}, s{sH}, 31")
A(f"s_lshl_b32 s9, s{sP}, 7\ns_and_b32 s{sJW}, s{sG8}, 3")
if not a.emap: A(f"s_mov_b32 s{sJW}, s{sJ}\ns_mov_b32 s{sHW}, s{sHH}")
A(f"s_mul_i32 s8, s{sP}, 40\ns_add_u32 s10, s0, s8\ns_addc_u32 s11, s1, 0")
A(f"s_load_dwordx8 s[{sX}:{sX+7}], s[10:11], 0")
A(f"s_load_dwordx2 s[{sWO}:{sWO+1}], s[10:11], 32")
A(f"v_lshrrev_b32 v1, 6, v0\nv_and_b32 v0, 63, v0\nv_readfirstlane_b32 s{sWAVE}, v1")
A(f"s_mov_b32 s{sSPIN}, 200000\ns_getreg_b32 s{sXCC}, hwreg(HW_REG_XCC_ID, 0, 3)")
for k in range(4):
    A(f"s_mov_b32 s{sSEL+k}, {0x07060500 + k:#x}")
A(f"s_mov_b32 s{sSELA}, 0x0c0c0400\ns_mov_b32 s{sSELB}, 0x04000c0c")
A(f"""s_cmp_lt_u32 s{sWAVE}, 3
s_cbranch_scc1 L_w
s_cmp_eq_u32 s{sWAVE}, 3
s_cbranch_scc1 L_aux
s_cmp_lt_u32 s{sWAVE}, 8
s_cbranch_scc1 L_k
s_cmp_lt_u32 s{sWAVE}, 11
s_cbranch_scc1 L_v
s_branch L_aux""")

A("L_w:")
prio(3)
A(f"s_mov_b32 s{sC}, s{sWAVE}")
A(f"s_mul_i32 s{sOFF}, s{sJ}, {160*12288}\ns_mul_i32 s{sTMP3}, s{sHH}, 384\ns_add_u32 s{sOFF}, s{sOFF}, s{sTMP3}\ns_lshl_b32 s{sTMP3}, s{sC}, 7\ns_add_u32 s{sOFF}, s{sOFF}, s{sTMP3}")
A(f"s_mul_i32 s{sTMP2}, s{sJ}, 320")
for nb in (20,):
    data_voff(nb * 12288)
    if "q" in a.contig:
        A(f"v_lshlrev_b32 v{vOFF}, 4, v{vL}\ns_lshl_b32 s{sOFF}, s{sHH}, 2\ns_add_u32 s{sOFF}, s{sOFF}, s{sJ}\ns_mul_i32 s{sOFF}, s{sOFF}, 3\ns_add_u32 s{sOFF}, s{sOFF}, s{sC}\ns_mul_i32 s{sOFF}, s{sOFF}, 20480")
    coef_addr(vAD, 2 * nb)
    A("s_waitcnt lgkmcnt(0)")
    if a.pro: stamp(5)
    A(f"s_load_dword s{sT}, s[{sWSP}:{sWSP+1}], s9")
    srd(SR, sWQ, 640 * 12288)
    srd(SR2, sX, 1280)
    for k in range(nb // 8):
        A(f"buffer_load_dwordx4 v[{vCO+4*k}:{vCO+4*k+3}], v{vAD}, s[{SR2}:{SR2+3}], s{sTMP2} offen offset:{16*k}{XN}")
    A(f"buffer_load_dwordx2 v[{vCO+8}:{vCO+9}], v{vAD}, s[{SR2}:{SR2+3}], s{sTMP2} offen offset:32{XN}")
    nw = WIN[0] if WIN else nb
    def wq_load(b):
        A(f"buffer_load_dwordx4 v[{vD+4*b}:{vD+4*b+3}], v{vOFF}, s[{SR}:{SR+3}], s{sOFF} offen nt")
        if b < nb - 1: A(f"s_add_u32 s{sOFF}, s{sOFF}, {1024 if 'q' in a.contig else 12288}")
    for b in range(nw):
        thr(b)
        wq_load(b)
    stamp(1)
    A("s_barrier")
    srd(WS, sWSP, 0x10000000)
    make_selectors()
    get_T()
    A(f"s_waitcnt vmcnt({nw})")
    if a.pro:
        A(f"s_waitcnt vmcnt({nw-1})")
        stamp(6)
    if WIN:
        A(f"s_lshl_b32 s{sTMP}, s{sC}, 2\nv_mov_b32 v{vAD}, s{sTMP}")
        def hook(b):
            if b + nw < nb: wq_load(b + nw)
            else: credit(L_PW, vAD, vCO - 1 - 0 if False else 164, b + nw - nb + 1)
        diag_gemv(nb, win=nw, hook=hook)
    else:
        diag_gemv(nb)
stamp(2)
publish_gather(QBOX, L_Q, L_QF, False, g=vD, h=136)
if not a.pro: stamp(5)
vF = 160
A(f"s_lshl_b32 s{sTMP}, s{sC}, 2\nv_mov_b32 v{vF+1}, s{sTMP}")
A(f"s_and_b32 s{sTMP}, s{sJW}, 1\ns_add_u32 s{sTMP}, s{sTMP}, s{sC}\ns_cmp_eq_u32 s{sTMP}, 3\ns_cbranch_scc1 L_w_fin")
prio(0)
srd(SR, sWO, 6144 * 1280)
data_voff(24 * 1280)
A(f"s_mul_i32 s{sTMP}, s{sJW}, 5\ns_add_u32 s{sTMP}, s{sTMP}, 1\ns_lshr_b32 s{sTMP}, s{sTMP}, 1\ns_add_u32 s{sM}, s{sTMP}, s{sC}")
A(f"s_mul_i32 s{sOFF}, s{sHW}, {192*1280}\ns_lshl_b32 s{sTMP}, s{sM}, 7\ns_add_u32 s{sOFF}, s{sOFF}, s{sTMP}")
if "o" in a.contig:
    A(f"v_lshlrev_b32 v{vOFF}, 4, v{vL}\ns_mul_i32 s{sOFF}, s{sHH}, 10\ns_add_u32 s{sOFF}, s{sOFF}, s{sM}\ns_mul_i32 s{sOFF}, s{sOFF}, 24576")
if WIN: gate_init(sC, 3 * WIN[2], vCO)
for b in range(24):
    thr(b)
    if WIN:
        if b < WIN[3]: gate(L_PV, 3, 3 * WIN[2], 3 * WIN[3], vCO, vCO + 4)
        else: A(f"s_waitcnt vmcnt({WIN[3]-1})")
    A(f"buffer_load_dwordx4 v[{vD+4*b}:{vD+4*b+3}], v{vOFF}, s[{SR}:{SR+3}], s{sOFF} offen nt")
    if b < 23: A(f"s_add_u32 s{sOFF}, s{sOFF}, {1024 if 'o' in a.contig else 1280}")
prio(3)
if not a.pro: stamp(6)
coef_addr(vAD, 48)
if a.fp:
    gp = a.fp // 16; lg = gp.bit_length() - 1
    A(f"v_and_b32 v{vF}, 7, v{vL}\nv_lshrrev_b32 v{vF+2}, 5, v{vL}\nv_lshl_add_u32 v{vF}, v{vF}, 1, v{vF+2}")
    A(f"v_and_b32 v{vF+2}, {gp-1}, v{vF}\nv_lshrrev_b32 v{vF}, {lg}, v{vF}\nv_mul_u32_u24 v{vF}, {32*a.fp}, v{vF}\nv_lshl_add_u32 v{vF}, v{vF+2}, 4, v{vF}")
    A(f"s_mul_i32 s{sOFF}, s{sP}, 10\ns_add_u32 s{sOFF}, s{sOFF}, s{sM}\ns_lshl_b32 s{sOFF}, s{sOFF}, 13\ns_mul_i32 s{sTMP}, s{sHW}, {a.fp}\ns_add_u32 s{sOFF}, s{sOFF}, s{sTMP}\ns_add_u32 s{sOFF}, s{sOFF}, {FBOX}")
else:
    A(f"v_and_b32 v{vF}, 7, v{vL}\nv_lshrrev_b32 v{vF+2}, 5, v{vL}\nv_lshlrev_b32 v{vF}, 10, v{vF}\nv_lshl_add_u32 v{vF}, v{vF+2}, 9, v{vF}")
    A(f"s_lshl_b32 s{sTMP}, s{sP}, 2\ns_add_u32 s{sTMP}, s{sTMP}, s{sJ}\ns_mul_i32 s{sOFF}, s{sTMP}, 24576\ns_lshl_b32 s{sTMP}, s{sHH}, 4\ns_add_u32 s{sOFF}, s{sOFF}, s{sTMP}\ns_lshl_b32 s{sTMP}, s{sC}, 13\ns_add_u32 s{sOFF}, s{sOFF}, s{sTMP}\ns_add_u32 s{sOFF}, s{sOFF}, {FBOX}")
lds_wait(L_OF, [0, 1, 2], 4, vCO)
for k in range(3):
    A(f"ds_read_b128 v[{vCO+4*k}:{vCO+4*k+3}], v{vAD} offset:{L_O+16*k}")
A(f"v_mov_b32 v{vF+2}, 0\nds_read_b32 v{vF+3}, v{vF+2} offset:{L_M2}")
A(f"s_waitcnt lgkmcnt(0)\nv_readfirstlane_b32 s{sMODE}, v{vF+3}")
diag_gemv(24)
combine(vCO)
A("s_mov_b32 exec_lo, 0xff\ns_mov_b32 exec_hi, 0xff")
if a.nofin != 1:
    if a.emap and not a.fm:
        A(f"s_cmp_lg_u32 s{sMODE}, s{sT}\ns_cbranch_scc1 L_wf1")
        A(f"buffer_store_dwordx4 v[{vCO}:{vCO+3}], v{vF}, s[{WS}:{WS+3}], s{sOFF} offen\ns_branch L_wf2\nL_wf1:")
    A(f"buffer_store_dwordx4 v[{vCO}:{vCO+3}], v{vF}, s[{WS}:{WS+3}], s{sOFF} offen{'' if a.nofin == 3 else ' sc1'}\nL_wf2:")
A("s_mov_b64 exec, -1")
A("L_w_fin:")
A(f"ds_write_b32 v{vF+1}, v{vT} offset:{L_PF}")
stamp(7)
A("s_branch L_end")

A("L_k:")
prio(2)
A(f"s_sub_u32 s{sC}, s{sWAVE}, 4")
A(f"v_and_b32 v{vOFF}, 7, v{vL}\nv_mul_u32_u24 v{vOFF}, 384, v{vOFF}\nv_bfe_u32 v8, v{vL}, 3, 1\nv_lshl_add_u32 v{vOFF}, v8, 6, v{vOFF}\nv_lshrrev_b32 v8, 4, v{vL}\nv_lshl_add_u32 v{vOFF}, v8, 4, v{vOFF}")
A(f"v_and_b32 v{vAD}, 1, v{vL}\nv_lshlrev_b32 v{vAD}, 6, v{vAD}\nv_lshl_add_u32 v{vAD}, v8, 4, v{vAD}")
A(f"s_mul_i32 s{sOFF}, s{sHH}, 1572864\ns_mul_i32 s{sTMP}, s{sJ}, 98304\ns_add_u32 s{sOFF}, s{sOFF}, s{sTMP}\ns_mul_i32 s{sTMP}, s{sC}, 24576\ns_add_u32 s{sOFF}, s{sOFF}, s{sTMP}\ns_add_u32 s{sOFF}, s{sOFF}, {3072*384}")
A("s_waitcnt lgkmcnt(0)")
A(f"s_load_dword s{sT}, s[{sWSP}:{sWSP+1}], s9")
srd(SR, sK, 50331648)
srd(WS, sWSP, 0x10000000)
A("s_barrier")
get_T()
if WIN: gate_init(sC, 3 * WIN[0], 24)
for t in range(24):
    thr(t)
    if WIN:
        if t < WIN[1]: gate(L_PW, 4, 3 * WIN[0], 4 * WIN[1], 24, 28)
        else: A(f"s_waitcnt vmcnt({WIN[1]-1})")
    A(f"buffer_load_dwordx4 v[{vD+4*t}:{vD+4*t+3}], v{vOFF}, s[{SR}:{SR+3}], s{sOFF} offen offset:{128*(t%3)} nt")
    if t % 3 == 2 and t < 23: A(f"s_add_u32 s{sOFF}, s{sOFF}, 3072")
if WIN:
    prio(3)
    A(f"s_lshl_b32 s{sTMP}, s{sC}, 2\nv_mov_b32 v8, s{sTMP}")
    for i in range(WIN[1]):
        A(f"s_waitcnt vmcnt({WIN[1]-1-i})")
        credit(L_PK, 8, 9, i + 1)
elif a.g2:
    A(f"s_lshl_b32 s{sTMP}, s{sC}, 2\nv_mov_b32 v8, s{sTMP}\nds_write_b32 v8, v{vT} offset:{L_KI}")
prio(3)
stamp(1)
vQ = 8
vS = 136
lds_wait(L_QF, [0, 1, 2], 4, 24)
stamp(2)
for u in range(3):
    A(f"ds_read_b128 v[{vQ+4*u}:{vQ+4*u+3}], v{vAD} offset:{L_Q+128*u}")
A("s_waitcnt lgkmcnt(0)")
s_ = 24
for t in range(24):
    G, u = divmod(t, 3)
    A(f"s_waitcnt vmcnt({23-t})")
    c = "0" if u == 0 else f"v[{vS+4*G}:{vS+4*G+3}]"
    A(f"v_mfma_f32_16x16x32_bf16 v[{vS+4*G}:{vS+4*G+3}], v[{vQ+4*u}:{vQ+4*u+3}], v[{vD+4*t}:{vD+4*t+3}], {c}")
stamp(3)
A("s_nop 7")
for G in range(8):
    d0, d1 = vS + 4 * G, vS + 4 * G + 1
    if G & 1:
        A(f"v_add_f32_dpp v{s_}, v{d0}, v{d1} row_ror:8 row_mask:{1 << (G >> 1):#x} bank_mask:0xc")
    else:
        A(f"v_add_f32_dpp v{s_}, v{d1}, v{d0} row_ror:8 row_mask:{1 << (G >> 1):#x} bank_mask:0x3")
A(f"v_cvt_pk_bf16_f32 v{s_}, v{s_}, v{s_}\nv_lshlrev_b32 v{s_}, 16, v{s_}")
A(f"v_mul_f32 v{s_}, 0x3d93cd3a, v{s_}")
A(f"v_cvt_pk_bf16_f32 v{s_}, v{s_}, v{s_}\nv_lshlrev_b32 v{s_}, 16, v{s_}")
def wave_reduce(op, v):
    for d in ["row_shr:1", "row_shr:2", "row_shr:4", "row_shr:8"]:
        A(f"s_nop 1\n{op}_dpp v{v}, v{v}, v{v} {d} row_mask:0xf bank_mask:0xf")
    A(f"s_nop 1\n{op}_dpp v{v}, v{v}, v{v} row_bcast:15 row_mask:0xa bank_mask:0xf")
    A(f"s_nop 1\n{op}_dpp v{v}, v{v}, v{v} row_bcast:31 row_mask:0xc bank_mask:0xf")
A(f"v_mov_b32 v{s_+1}, v{s_}")
wave_reduce("v_max_f32", s_ + 1)
A(f"s_nop 0\nv_readlane_b32 s{sTMP}, v{s_+1}, 63")
A(f"s_lshl_b32 s{sTMP2}, s{sC}, 3\nv_mov_b32 v{s_+4}, s{sTMP2}\nv_mov_b32 v{s_+2}, s{sTMP}\nv_mov_b32 v{s_+3}, s{sT}")
A(f"ds_write_b64 v{s_+4}, v[{s_+2}:{s_+3}] offset:{L_MX}")
lds_wait(L_MX, [1, 3, 5, 7], 8, s_ + 8)
A(f"v_max_f32 v{s_+8}, v{s_+8}, v{s_+10}\nv_max3_f32 v{s_+8}, v{s_+8}, v{s_+12}, v{s_+14}")
A(f"v_sub_f32 v{s_}, v{s_}, v{s_+8}\nv_mul_f32 v{s_}, 0x3fb8aa3b, v{s_}\nv_exp_f32 v{s_}, v{s_}\ns_nop 0")
A(f"v_cvt_pk_bf16_f32 v{s_+1}, v{s_}, v{s_}")
A(f"s_lshl_b32 s{sTMP}, s{sC}, 7\nv_lshlrev_b32 v{s_+5}, 1, v{vL}\nv_add_u32 v{s_+5}, s{sTMP}, v{s_+5}")
A(f"ds_write_b16 v{s_+5}, v{s_+1} offset:{L_P}")
wave_reduce("v_add_f32", s_)
A(f"s_nop 0\nv_readlane_b32 s{sTMP}, v{s_}, 63\ns_nop 1\nv_mov_b32 v{s_+2}, s{sTMP}")
A(f"ds_write_b64 v{s_+4}, v[{s_+2}:{s_+3}] offset:{L_LS}")
stamp(4)
A("s_branch L_end")

A("L_v:")
prio(1)
A(f"s_sub_u32 s{sC}, s{sWAVE}, 8")
data_voff(384 if a.near else 32 * 384)
A(f"s_mul_i32 s{sOFF}, s{sHH}, 1572864\ns_mul_i32 s{sTMP}, s{sJ}, 98304\ns_add_u32 s{sOFF}, s{sOFF}, s{sTMP}\ns_lshl_b32 s{sTMP}, s{sC}, 7\ns_add_u32 s{sOFF}, s{sOFF}, s{sTMP}\ns_add_u32 s{sOFF}, s{sOFF}, {3072*384}")
if "k" in a.contig:
    data_voff(384)
    A(f"s_mul_i32 s{sTMP}, s{sC}, {30720-128}\ns_add_u32 s{sOFF}, s{sOFF}, s{sTMP}")
if "v" in a.contig:
    A(f"v_lshlrev_b32 v{vOFF}, 4, v{vL}\ns_mul_i32 s{sTMP}, s{sC}, {32768-128}\ns_add_u32 s{sOFF}, s{sOFF}, s{sTMP}")
A("s_waitcnt lgkmcnt(0)")
A(f"s_load_dword s{sT}, s[{sWSP}:{sWSP+1}], s9")
srd(SR, sV, 50331648)
srd(WS, sWSP, 0x10000000)
A("s_barrier")
get_T()
if WIN:
    gate_init(sC, 4 * WIN[1], vCO)
elif a.g2:
    lds_wait(L_KI, [0, 1, 2, 3], 4, vCO)
if WIN:
    make_selectors()
    coef_addr(vAD, 64)
for b in range(32):
    thr(b)
    if WIN:
        if b < WIN[2]: gate(L_PK, 3, 4 * WIN[1], 3 * WIN[2], vCO, vCO + 4)
        else: A(f"s_waitcnt vmcnt({WIN[2]-1})")
    if "k" in a.contig:
        A(f"buffer_load_dwordx4 v[{vD+4*b}:{vD+4*b+3}], v{vOFF}, s[{SR}:{SR+3}], s{sOFF} offen offset:{128*(b%3)} nt")
        if b % 3 == 2: A(f"s_add_u32 s{sOFF}, s{sOFF}, 3072")
        continue
    if a.near or "v" in a.contig:
        A(f"buffer_load_dwordx4 v[{vD+4*b}:{vD+4*b+3}], v{vOFF}, s[{SR}:{SR+3}], s{sOFF} offen nt\ns_add_u32 s{sOFF}, s{sOFF}, {3072 if a.near else 1024}")
        continue
    A(f"buffer_load_dwordx4 v[{vD+4*b}:{vD+4*b+3}], v{vOFF}, s[{SR}:{SR+3}], s{sOFF} offen offset:{384*(b%8)} nt")
    if b % 8 == 7 and b < 31: A(f"s_add_u32 s{sOFF}, s{sOFF}, 3072")
prio(3)
stamp(1)
if WIN:
    nv = WIN[2]
    A(f"s_lshl_b32 s{sTMP}, s{sC}, 2\nv_mov_b32 v{vOFF}, s{sTMP}")
    A(f"v_mov_b32 v{vCO+9}, 0\nds_read_b128 v[{vCO}:{vCO+3}], v{vCO+9} offset:{L_LS}\nds_read_b128 v[{vCO+4}:{vCO+7}], v{vCO+9} offset:{L_LS+16}\ns_waitcnt lgkmcnt(0)")
    A(f"v_xor_b32 v{vCO+1}, s{sFL}, v{vCO+1}\nv_xor_b32 v{vCO+3}, s{sFL}, v{vCO+3}\nv_xor_b32 v{vCO+5}, s{sFL}, v{vCO+5}\nv_xor_b32 v{vCO+7}, s{sFL}, v{vCO+7}")
    A(f"v_or3_b32 v{vCO+1}, v{vCO+1}, v{vCO+3}, v{vCO+5}\nv_or_b32 v{vCO+1}, v{vCO+1}, v{vCO+7}\nv_cmp_ne_u32 vcc, 0, v{vCO+1}\ns_cmp_eq_u64 vcc, 0\ns_cbranch_scc1 L_v_fast")
    for i in range(nv):
        A(f"s_waitcnt vmcnt({nv-1-i})")
        credit(L_PV, vOFF, vCO, i + 1)
    lds_wait(L_LS, [1, 3, 5, 7], 8, vCO)
    A(f"s_mov_b32 s{sNEED}, 1\ns_branch L_v_go\nL_v_fast:\ns_mov_b32 s{sNEED}, 0\nL_v_go:")
else:
    make_selectors()
    coef_addr(vAD, 64)
    lds_wait(L_LS, [1, 3, 5, 7], 8, vCO)
for k in range(4):
    A(f"ds_read_b128 v[{vCO+4*k}:{vCO+4*k+3}], v{vAD} offset:{L_P+16*k}")
lds_mode(vA0, vA0 + 1)
A(f"s_waitcnt lgkmcnt(0)\nv_readfirstlane_b32 s{sMODE}, v{vA0+1}")
stamp(2)
if WIN:
    def vhook(b):
        if b >= 32 - nv: credit(L_PV, vOFF, vAD, b - (32 - nv) + 1)
    diag_gemv(32, hook=vhook)
else:
    diag_gemv(32)
publish_gather(OBOX, L_O, L_OF, True)
stamp(5)
A("s_branch L_end")

A("L_aux:")
prio(3)
if a.dbg: A("s_memtime s[84:85]")
A(f"v_lshlrev_b32 v8, 2, v{vL}\nv_mov_b32 v9, 0\nds_write_b32 v8, v9")
A(f"s_load_dwordx4 s[{sM}:{sM+3}], s[0:1], 80")
A("s_waitcnt lgkmcnt(0)")
A(f"s_load_dword s{sT}, s[{sWSP}:{sWSP+1}], s9")
srd(WS, sWSP, 0x10000000)
srd(SR2, sM, 2560)
A("s_waitcnt lgkmcnt(0)\ns_barrier")
get_T()
if a.lat:
    A(f"v_lshlrev_b32 v37, 4, v{vL}")
    A(f"s_lshl_b32 s{sOFF}, s2, 10\ns_add_u32 s{sOFF}, s{sOFF}, 0x200000")
    A(f"s_cmp_eq_u32 s{sWAVE}, 11\ns_cbranch_scc1 L_lat2")
    for k in range(4):
        A(f"s_memrealtime s[{sST+4*k}:{sST+4*k+1}]\ns_waitcnt lgkmcnt(0)")
        A(f"buffer_load_dwordx4 v[40:43], v37, s[{WS}:{WS+3}], s{sOFF} offen sc1\ns_waitcnt vmcnt(0)")
        A(f"s_memrealtime s[{sST+4*k+2}:{sST+4*k+3}]\ns_waitcnt lgkmcnt(0)")
        A("s_sleep 40")
    A("s_branch L_end")
    A("L_lat2:")
    A(f"s_add_u32 s{sOFF}, s{sOFF}, 0x100000")
    A(f"buffer_load_dwordx4 v[40:43], v37, s[{WS}:{WS+3}], s{sOFF} offen {'nt' if a.lat == 1 else 'sc1'}\ns_waitcnt vmcnt(0)")
    for k in range(4):
        A(f"s_memrealtime s[{sST+4*k}:{sST+4*k+1}]\ns_waitcnt lgkmcnt(0)")
        A(f"buffer_load_dwordx4 v[40:43], v37, s[{WS}:{WS+3}], s{sOFF} offen {'nt' if a.lat == 1 else 'sc1'}\ns_waitcnt vmcnt(0)")
        A(f"s_memrealtime s[{sST+4*k+2}:{sST+4*k+3}]\ns_waitcnt lgkmcnt(0)")
        A("s_sleep 40")
    A("s_branch L_end")
if a.emap:
    A(f"s_lshl_b32 s{sNEED}, s{sG8}, 7\ns_add_u32 s{sNEED}, s{sNEED}, {GBOX}\ns_lshl_b32 s{sTMP}, s{sHW}, 2\ns_add_u32 s{sTMP}, s{sTMP}, s{sNEED}")
    A(f"v_mov_b32 v30, 0\ns_mov_b64 exec, 1\nbuffer_store_dword v{vT}, v30, s[{WS}:{WS+3}], s{sTMP} offen sc1\ns_mov_b64 exec, -1")
stamp(1)
lds_wait(L_LS, [1, 3, 5, 7], 8, 8)
A(f"v_mov_b32 v30, 0\nds_read_b128 v[20:23], v30 offset:{L_MX}\nds_read_b128 v[24:27], v30 offset:{L_MX+16}\nds_read_b32 v31, v30 offset:{L_MODE}\ns_waitcnt lgkmcnt(0)\nv_readfirstlane_b32 s{sMODE}, v31")
A("v_max_f32 v32, v20, v22\nv_max3_f32 v32, v32, v24, v26")
A("v_add_f32 v33, v8, v10\nv_add_f32 v34, v12, v14\nv_add_f32 v33, v33, v34\nv_mov_b32 v34, 0\nv_mov_b32 v35, 0")
for k in range(4):
    A(f"v_perm_b32 v{32+k}, v{32+k}, v{vT}, s{sSEL+k}")
A(f"s_lshl_b32 s{sOFF}, s{sH}, 7\ns_add_u32 s{sOFF}, s{sOFF}, {SBOX}\ns_lshl_b32 s{sTMP}, s{sJ}, 4\ns_add_u32 s{sTMP}, s{sTMP}, s{sOFF}")
A("s_mov_b64 exec, 1")
A(f"s_cmp_lg_u32 s{sMODE}, 0\ns_cbranch_scc1 L_ux1")
A(f"buffer_store_dwordx4 v[32:35], v30, s[{WS}:{WS+3}], s{sTMP} offen\ns_branch L_ux2\nL_ux1:")
A(f"buffer_store_dwordx4 v[32:35], v30, s[{WS}:{WS+3}], s{sTMP} offen sc1\nL_ux2:")
A("s_mov_b64 exec, -1")
stamp(2)
A(f"v_and_b32 v36, 3, v{vL}\nv_lshlrev_b32 v37, 4, v36")
poll(40, 37, sOFF)
stamp(3)
A("v_and_b32 v40, 0xffffff00, v40\ns_nop 1")
A("v_max_f32_dpp v44, v40, v40 quad_perm:[1,0,3,2] row_mask:0xf bank_mask:0xf\ns_nop 1")
A("v_max_f32_dpp v44, v44, v44 quad_perm:[2,3,0,1] row_mask:0xf bank_mask:0xf")
A("v_sub_f32 v40, v40, v44\nv_mul_f32 v40, 0x3fb8aa3b, v40\nv_exp_f32 v40, v40\ns_nop 0")
A("v_mul_f32 v41, v41, v40\ns_nop 1")
A("v_add_f32_dpp v44, v41, v41 quad_perm:[1,0,3,2] row_mask:0xf bank_mask:0xf\ns_nop 1")
A("v_add_f32_dpp v44, v44, v44 quad_perm:[2,3,0,1] row_mask:0xf bank_mask:0xf")
A("v_rcp_f32 v44, v44\ns_nop 0\nv_mul_f32 v40, v40, v44")
A(f"v_mov_b32 v41, v{vT}\ns_lshl_b64 exec, 1, s{sJ}")
A(f"ds_write_b64 v30, v[40:41] offset:{L_FF}")
A("s_mov_b64 exec, -1")
if a.emap and not a.nopoll:
    A(f"v_and_b32 v37, 31, v{vL}\nv_lshlrev_b32 v37, 2, v37")
    A(f"L_gp:\nbuffer_load_dword v8, v37, s[{WS}:{WS+3}], s{sNEED} offen sc1 nt\ns_waitcnt vmcnt(0)\nv_xor_b32 v8, s{sT}, v8\nv_cmp_lt_u32 vcc, 7, v8\ns_cmp_eq_u64 vcc, 0\ns_cbranch_scc1 L_gpd")
    spin_tail("L_gp", 8)
    A(f"L_gpd:\nv_cmp_ne_u32 vcc, 0, v8\ns_cmp_eq_u64 vcc, 0\ns_cbranch_scc0 L_gpe\nds_write_b32 v30, v{vT} offset:{L_M2}\nL_gpe:")
if a.fp:
    gp = a.fp // 16; lg = gp.bit_length() - 1; nx = 256 // a.fp; R = 10 * nx; nl = a.fp // 32
    if a.emap:
        A(f"s_and_b32 s{sTMP}, s{sJW}, 1\ns_sub_u32 s{sTMP}, 3, s{sTMP}\ns_mul_i32 s{sTMP}, s{sTMP}, {nx}\ns_cmp_ge_u32 s{sHW}, s{sTMP}\ns_cbranch_scc1 L_end")
        A(f"s_mul_i32 s{sTMP}, s{sJW}, 5\ns_add_u32 s{sTMP}, s{sTMP}, 1\ns_lshr_b32 s{sTMP}, s{sTMP}, 1\ns_mul_i32 s{sTMP}, s{sTMP}, {nx}\ns_add_u32 s{sCNT}, s{sTMP}, s{sHW}")
    else:
        A(f"s_and_b32 s{sTMP}, s{sHH}, 7\ns_lshl_b32 s{sTMP}, s{sTMP}, 2\ns_lshr_b32 s{sTMP2}, s{sHH}, 3\ns_add_u32 s{sTMP}, s{sTMP}, s{sTMP2}\ns_lshl_b32 s{sTMP}, s{sTMP}, 1\ns_lshr_b32 s{sTMP2}, s{sJ}, 1\ns_add_u32 s{sTMP}, s{sTMP}, s{sTMP2}")
        A(f"s_and_b32 s{sTMP2}, s{sJ}, 1\ns_xor_b32 s{sTMP2}, s{sTMP2}, 1\ns_lshl_b32 s{sTMP2}, s{sTMP2}, 6\ns_add_u32 s{sCNT}, s{sTMP}, s{sTMP2}\ns_cmp_ge_u32 s{sCNT}, {R}\ns_cbranch_scc1 L_end")
    A(f"s_mul_i32 s{sOFF}, s{sP}, {R}\ns_add_u32 s{sOFF}, s{sOFF}, s{sCNT}\ns_mul_i32 s{sTMP2}, s{sOFF}, {gp*8}\ns_mul_i32 s{sOFF}, s{sOFF}, {32*a.fp}\ns_add_u32 s{sOFF}, s{sOFF}, {FBOX}")
    A(f"v_lshlrev_b32 v37, 4, v{vL}\nv_lshlrev_b32 v38, 3, v{vL}")
    lds_wait(L_PF, [0, 1, 2], 4, 8)
    stamp(4)
    if a.nofin: A("s_branch L_end")
    A("L_fp:")
    for i in range(nl):
        A(f"buffer_load_dwordx4 v[{80+4*i}:{83+4*i}], v37, s[{WS}:{WS+3}], s{sOFF} offen offset:{1024*i} sc1{FN}")
    for i in range(nl):
        r = 80 + 4 * i
        A(f"s_waitcnt vmcnt({nl-1-i})")
        A(f"v_perm_b32 v44, v{r+1}, v{r}, s{sSELA}\nv_perm_b32 v45, v{r+3}, v{r+2}, s{sSELB}\nv_or_b32 v44, v44, v45\nv_xor_b32 v44, s{sT}, v44")
        A(f"v_or_b32 v46, v46, v44" if i else "v_mov_b32 v46, v44")
        for k in range(4):
            A(f"v_add_f32 v{40+k}, v{40+k}, v{r+k}" if i else f"v_mov_b32 v{40+k}, v{r+k}")
    A("v_cmp_lt_u32 vcc, 7, v46\ns_cmp_eq_u64 vcc, 0\ns_cbranch_scc1 L_fpd")
    spin_tail("L_fp", a.fsl)
    A("L_fpd:")
    stamp(5)
    d = gp
    while d < 16:
        for k in range(4):
            A(f"v_add_f32_dpp v{40+k}, v{40+k}, v{40+k} row_ror:{d} row_mask:0xf bank_mask:0xf")
        if d * 2 < 16: A("s_nop 0")
        d *= 2
    for op in ("v_permlane16_swap_b32", "v_permlane32_swap_b32"):
        for k in range(4): A(f"v_mov_b32 v{44+k}, v{40+k}")
        A("s_nop 1")
        for k in range(4): A(f"{op} v{40+k}, v{44+k}")
        A("s_nop 1")
        for k in range(4): A(f"v_add_f32 v{40+k}, v{40+k}, v{44+k}")
    A("v_cvt_pk_bf16_f32 v44, v40, v41\nv_cvt_pk_bf16_f32 v45, v42, v43")
    A(f"s_mov_b64 exec, {(1 << gp) - 1}")
    A(f"buffer_store_dwordx2 v[44:45], v38, s[{SR2}:{SR2+3}], s{sTMP2} offen")
    A(f"s_cmp_lg_u32 s{sCNT}, 0\ns_cbranch_scc1 L_aux2")
    A("s_mov_b64 exec, 1")
    A(f"buffer_store_dword v{vT}, v30, s[{WS}:{WS+3}], s9 offen")
    A("L_aux2:")
    A("s_mov_b64 exec, -1")
    stamp(6)
else:
    A(f"s_and_b32 s{sTMP}, s{sJ}, 1\ns_lshl_b32 s{sTMP}, s{sTMP}, 3\ns_add_u32 s{sTMP}, s{sTMP}, s{sHH}\ns_cmp_ge_u32 s{sTMP}, 24\ns_cbranch_scc1 L_end")
    A(f"s_lshl_b32 s{sTMP}, s{sP}, 2\ns_add_u32 s{sTMP}, s{sTMP}, s{sJ}\ns_mul_i32 s{sOFF}, s{sTMP}, 24\ns_add_u32 s{sOFF}, s{sOFF}, s{sHH}")
    A(f"s_lshl_b32 s{sOFF}, s{sOFF}, 10\ns_add_u32 s{sOFF}, s{sOFF}, {FBOX}")
    A(f"s_mul_i32 s{sTMP}, s{sJ}, 5\ns_add_u32 s{sTMP}, s{sTMP}, 1\ns_lshr_b32 s{sTMP}, s{sTMP}, 1\ns_lshl_b32 s{sTMP2}, s{sTMP}, 7")
    A(f"s_mul_i32 s{sTMP}, s{sP}, 1280\ns_add_u32 s{sTMP2}, s{sTMP2}, s{sTMP}\ns_lshl_b32 s{sTMP}, s{sHH}, 4\ns_add_u32 s{sTMP2}, s{sTMP2}, s{sTMP}")
    A(f"v_lshlrev_b32 v37, 4, v{vL}\nv_lshrrev_b32 v38, 5, v{vL}\nv_lshlrev_b32 v38, 3, v38")
    lds_wait(L_PF, [0, 1, 2], 4, 8)
    stamp(4)
    if a.nofin: A("s_branch L_end")
    if a.fmask:
        D = a.fdepth
        mk = sM + 4
        sets = [80 + 4 * k for k in range(D)]
        A(f"s_mov_b64 s[{mk}:{mk+1}], -1")
        for k in range(D):
            for q in range(4): A(f"v_mov_b32 v{sets[k]+q}, 0")
        A(f"v_not_b32 v{sets[0]}, v{vT}")
        for k in range(1, D): A(f"v_mov_b32 v{sets[k]}, v{sets[0]}")
        def issue(r):
            A(f"s_mov_b64 exec, s[{mk}:{mk+1}]\nbuffer_load_dwordx4 v[{r}:{r+3}], v37, s[{WS}:{WS+3}], s{sOFF} offen sc1\ns_mov_b64 exec, -1")
        for k in range(D - 1):
            issue(sets[k])
            if a.fgap: A(f"s_sleep {a.fgap}")
        A("L_fp:")
        for k in range(D):
            issue(sets[(k + D - 1) % D])
            r = sets[k]
            A(f"s_waitcnt vmcnt({D-1})")
            A(f"v_perm_b32 v44, v{r+1}, v{r}, s{sSELA}\nv_perm_b32 v45, v{r+3}, v{r+2}, s{sSELB}\nv_or_b32 v44, v44, v45\nv_xor_b32 v44, s{sT}, v44")
            A(f"v_cmp_ge_u32 vcc, 7, v44")
            A(f"s_and_b64 vcc, vcc, s[{mk}:{mk+1}]\ns_andn2_b64 s[{mk}:{mk+1}], s[{mk}:{mk+1}], vcc\ns_mov_b64 exec, vcc")
            for q in range(4): A(f"v_mov_b32 v{40+q}, v{r+q}")
            A(f"s_mov_b64 exec, -1\ns_cmp_eq_u64 s[{mk}:{mk+1}], 0\ns_cbranch_scc1 L_fpd")
            if a.fsl: A(f"s_sleep {a.fsl}")
        spin_tail("L_fp", 0)
        A("L_fpd:")
    else:
        poll(80, 37, sOFF, depth=a.fdepth, gap=a.fgap, lfl=FN)
        for k in range(4):
            A(f"v_mov_b32 v{40+k}, v{80+k}")
    A("s_nop 1")
    stamp(5)
    for d in ["row_shr:1", "row_shr:2", "row_shr:4", "row_shr:8"]:
        for k in range(4):
            A(f"v_add_f32_dpp v{40+k}, v{40+k}, v{40+k} {d} row_mask:0xf bank_mask:0xf")
    for k in range(4):
        A(f"v_add_f32_dpp v{40+k}, v{40+k}, v{40+k} row_bcast:15 row_mask:0xa bank_mask:0xf")
    A("v_cvt_pk_bf16_f32 v44, v40, v41\nv_cvt_pk_bf16_f32 v45, v42, v43")
    A("s_mov_b32 exec_lo, 0x80000000\ns_mov_b32 exec_hi, 0x80000000")
    A(f"buffer_store_dwordx2 v[44:45], v38, s[{SR2}:{SR2+3}], s{sTMP2} offen")
    A(f"s_or_b32 s{sTMP}, s{sJ}, s{sHH}\ns_cmp_lg_u32 s{sTMP}, 0\ns_cbranch_scc1 L_aux2")
    A("s_mov_b64 exec, 1")
    A(f"buffer_store_dword v{vT}, v30, s[{WS}:{WS+3}], s9 offen")
    A("L_aux2:")
    A("s_mov_b64 exec, -1")
    stamp(6)


A("L_end:")
if a.dbg:
    A("s_mov_b64 exec, -1")
    A("s_waitcnt vmcnt(0) lgkmcnt(0)")
    A(f"s_memrealtime s[{sST+16}:{sST+17}]\ns_memtime s[86:87]\ns_waitcnt lgkmcnt(0)")
    for k in range(9):
        A(f"v_mov_b32 v{8+k}, s{sST+2*k}")
    A(f"s_sub_u32 s86, s86, s84\ns_sub_u32 s87, s{sST+16}, s{sST}\nv_mov_b32 v17, s86\nv_mov_b32 v18, s87\nv_not_b32 v19, v8")
    A(f"s_lshl_b32 s{sTMP}, s{sWAVE}, 6\nv_mov_b32 v30, s{sTMP}\ns_lshl_b32 s{sTMP}, s{sWAVE}, 2\nv_mov_b32 v31, s{sTMP}\ns_mov_b64 exec, 1")
    for k in range(3):
        A(f"ds_write_b128 v30, v[{8+4*k}:{11+4*k}] offset:{L_ST+16*k}")
    A(f"ds_write_b32 v31, v{vT} offset:{L_DN}")
    A("s_mov_b64 exec, -1")
    A(f"s_cmp_lg_u32 s{sWAVE}, 3\ns_cbranch_scc1 L_done")
    A(f"L_dw:\nv_lshlrev_b32 v8, 2, v{vL}\nv_min_u32 v8, 40, v8\nds_read_b32 v9, v8 offset:{L_DN}\ns_waitcnt lgkmcnt(0)\nv_cmp_ne_u32 vcc, s{sT}, v9\ns_cmp_eq_u64 vcc, 0\ns_cbranch_scc1 L_dw2\ns_sleep 4\ns_sub_u32 s{sSPIN}, s{sSPIN}, 1\ns_cbranch_scc0 L_dw\ns_branch L_done\nL_dw2:")
    A("s_sleep 127\ns_sleep 127")
    adds = [(3,0,1),(0,2,2),(0,4,3),(4,4,4),(8,2,5),(8,3,6),(8,4,7),(0,7,8),(3,9,13),(3,10,14)]
    maxs = [(3,11,0),(0,7,9),(1,7,9),(2,7,9),(3,8,10),(8,3,11),(9,3,11),(10,3,11),(8,4,12),(9,4,12),(10,4,12),(3,0,15)]
    A("v_mov_b32 v20, 0\nv_mov_b32 v21, 0")
    for k, (w, st, d) in enumerate(adds + maxs):
        A(f"s_mov_b32 s{sTMP}, {L_ST + w*64 + st*4}\nv_writelane_b32 v20, s{sTMP}, {k}\ns_mov_b32 s{sTMP}, {d*4}\nv_writelane_b32 v21, s{sTMP}, {k}")
    A("ds_read_b32 v22, v20")
    A(f"s_load_dwordx2 s[{sM+2}:{sM+3}], s[0:1], 88\ns_waitcnt lgkmcnt(0)")
    srd(SR, sM + 2, 256)
    A("s_waitcnt lgkmcnt(0)")
    A(f"s_mov_b64 exec, {(1 << len(adds)) - 1}")
    A(f"buffer_atomic_add v22, v21, s[{SR}:{SR+3}], 0 offen")
    A(f"s_mov_b64 exec, {((1 << len(maxs)) - 1) << len(adds)}")
    A(f"buffer_atomic_umax v22, v21, s[{SR}:{SR+3}], 0 offen")
elif a.stamps:
    A("s_mov_b64 exec, -1")
    A("s_waitcnt vmcnt(0) lgkmcnt(0)")
    A(f"s_memrealtime s[{sST+16}:{sST+17}]\ns_waitcnt lgkmcnt(0)")
    A(f"s_lshl_b32 s{sTMP}, s2, 4\ns_add_u32 s{sTMP}, s{sTMP}, s{sWAVE}\ns_mul_i32 s{sTMP}, s{sTMP}, 80\ns_add_u32 s{sTMP}, s{sTMP}, {STAMP}")
    for k in range(18):
        A(f"v_mov_b32 v{8+k}, s{sST+k}")
    A("v_mov_b32 v30, 0\ns_mov_b64 exec, 1")
    for k in range(4):
        A(f"buffer_store_dwordx4 v[{8+4*k}:{11+4*k}], v30, s[{WS}:{WS+3}], s{sTMP} offen offset:{16*k}")
    A("s_getreg_b32 s3, hwreg(HW_REG_XCC_ID)\nv_mov_b32 v26, s3\nv_mov_b32 v27, 0")
    A(f"buffer_store_dwordx4 v[24:27], v30, s[{WS}:{WS+3}], s{sTMP} offen offset:64")
A("L_done:\ns_endpgm")
A.footer(168)
A.write(a.out)
```

```python
import sys, argparse
from asmlib import *
ap = argparse.ArgumentParser()
ap.add_argument("out")
ap.add_argument("--stamps", type=int, default=0)
ap.add_argument("--prio", type=int, default=1)
ap.add_argument("--lds", type=int, default=163840)
ap.add_argument("--nopoll", type=int, default=0)
ap.add_argument("--near", type=int, default=0)
ap.add_argument("--kfull", type=int, default=0)
ap.add_argument("--psleep", type=int, default=0)
ap.add_argument("--lat", type=int, default=0)
ap.add_argument("--thr", type=int, default=0)
ap.add_argument("--rot", type=int, default=0)
ap.add_argument("--pdepth", type=int, default=3)
ap.add_argument("--pgap", type=int, default=16)
ap.add_argument("--fgap", type=int, default=5)
ap.add_argument("--fdepth", type=int, default=3)
ap.add_argument("--g2", type=int, default=1)
ap.add_argument("--dbg", type=int, default=0)
ap.add_argument("--win", type=str, default="")
ap.add_argument("--gsleep", type=int, default=1)
ap.add_argument("--nt", type=int, default=12)
ap.add_argument("--nofin", type=int, default=0)
ap.add_argument("--lsleep", type=int, default=1)
ap.add_argument("--x1", type=int, default=0)
ap.add_argument("--fmask", type=int, default=0)
ap.add_argument("--fsl", type=int, default=0)
ap.add_argument("--pro", type=int, default=0)
ap.add_argument("--contig", type=str, default="")
ap.add_argument("--fp", type=int, default=0)
ap.add_argument("--xmap", type=int, default=0)
ap.add_argument("--dly", type=str, default="")
ap.add_argument("--pnt", type=int, default=3)
ap.add_argument("--slab", type=int, default=0)
ap.add_argument("--wsl", type=int, default=1)
ap.add_argument("--no2", type=int, default=0)
ap.add_argument("--ks2", type=int, default=2)
ap.add_argument("--lmap", type=int, default=0)
ap.add_argument("--boost", type=int, default=0)
ap.add_argument("--vboost", type=int, default=0)
ap.add_argument("--kboost", type=int, default=0)
a = ap.parse_args()
PN = " nt" if a.pnt & 1 else ""
FN = " nt" if a.pnt & 2 else ""
XN = " nt" if a.pnt & 4 else ""
WIN = [int(x) for x in a.win.split(",")] if a.win else None
if a.dbg: a.stamps = 1

A = Asm()
NW = 12 if a.lat else 11
A.header(256, 64 * NW, a.lds)

QBOX = 0x10000
OBOX = 0x40000
SBOX = 0x70000
FBOX = 0x80000
STAMP = 0x8000000
L_PW, L_PK, L_PV = 0, 16, 32
L_QF = 48
L_MX = 64
L_LS = 96
L_FF = 128
L_FFLAG = 144
L_MODE = 148
L_OF = 160
L_PF = 176
L_KI = 192
L_DN = 208
L_ST = 2048
L_Q = 256
L_P = 640
L_O = 1152
sH, sJ, sP, sHH = 4, 5, 6, 7
sX, sK, sV, sWQ, sWO = 12, 14, 16, 18, 20
sWSP = 22
sWAVE = 24
sT = 25
sSPIN = 26
sC = 27
WS = 28
SR = 32
sOFF = 36
sTMP, sTMP2, sTMP3 = 37, 38, 39
sSEL = 40
sSELA, sSELB = 44, 45
sFL = sT
SR2 = 48
sM = 52
sNEED, sHAVE = 56, 57
sMODE, sCNT = 58, 59
sXCC = 60
sST = 64
vL = 0
vOFF = 1
vAD = 2
vT = 3
vACC = 4
vA0, vA1 = 8, 12
vSEL = 16
vCO = 24
vD = 40

nstamp = [0]
def stamp(k):
    if a.stamps:
        A(f"s_memrealtime s[{sST+2*k}:{sST+2*k+1}]")

def thr(n):
    if a.thr and n >= a.thr:
        A(f"s_waitcnt vmcnt({a.thr-1})")

def prio(p):
    if a.prio:
        A(f"s_setprio {p}")

def spin_tail(loop, sleep=1):
    if sleep:
        A(f"s_sleep {sleep}")
    A(f"s_sub_u32 s{sSPIN}, s{sSPIN}, 1\ns_cbranch_scc0 {loop}\ns_branch L_end")

def lds_wait(off, positions, nread, vt):
    if a.nopoll >= 2: return
    lp = A.label("Lw"); dn = A.label("Lwd")
    vz = vt + nread + 1
    vx = vt + nread
    A(f"v_mov_b32 v{vz}, 0")
    A(f"{lp}:")
    k = 0
    while k < nread:
        n = min(4, nread - k)
        op = {1: "ds_read_b32", 2: "ds_read_b64", 4: "ds_read_b128"}[n]
        reg = f"v{vt+k}" if n == 1 else f"v[{vt+k}:{vt+k+n-1}]"
        A(f"{op} {reg}, v{vz} offset:{off+4*k}")
        k += n
    A("s_waitcnt lgkmcnt(0)")
    first = True
    for p in positions:
        if first:
            A(f"v_xor_b32 v{vx}, s{sFL}, v{vt+p}")
            first = False
        else:
            A(f"v_xor_b32 v{vz}, s{sFL}, v{vt+p}\nv_or_b32 v{vx}, v{vx}, v{vz}")
    A(f"v_mov_b32 v{vz}, 0")
    A(f"v_cmp_ne_u32 vcc, 0, v{vx}")
    A(f"s_cmp_eq_u64 vcc, 0\ns_cbranch_scc1 {dn}")
    spin_tail(lp, a.lsleep)
    A(f"{dn}:")

def gate_init(widx, NP, vz):
    A(f"s_add_u32 s{sNEED}, s{widx}, 1\ns_mul_i32 s{sNEED}, s{sNEED}, {NP}\ns_mov_b32 s{sHAVE}, 0\nv_mov_b32 v{vz}, 0")

def gate(loff, kS, NP, NS, vz, vt):
    lp = A.label("Lg"); go = A.label("Lgo")
    A(f"{lp}:\ns_cmp_ge_u32 s{sHAVE}, s{sNEED}\ns_cbranch_scc1 {go}")
    if a.x1: A("s_mov_b64 exec, 1")
    A(f"ds_read_b128 v[{vt}:{vt+3}], v{vz} offset:{loff}\ns_waitcnt lgkmcnt(0)")
    A(f"v_add3_u32 v{vt}, v{vt}, v{vt+1}, v{vt+2}\nv_add_u32 v{vt}, v{vt}, v{vt+3}\ns_nop 0\nv_readfirstlane_b32 s{sHAVE}, v{vt}")
    if a.x1: A("s_mov_b64 exec, -1")
    A(f"s_mul_i32 s{sHAVE}, s{sHAVE}, {NS}\ns_cmp_ge_u32 s{sHAVE}, s{sNEED}\ns_cbranch_scc1 {go}")
    spin_tail(lp, a.gsleep)
    A(f"{go}:\ns_add_u32 s{sNEED}, s{sNEED}, {kS*NP}")

def credit(loff, vaddr, vval, n):
    A(f"v_mov_b32 v{vval}, {n}\nds_write_b32 v{vaddr}, v{vval} offset:{loff}")

def lds_flag(off, vtmp):
    A(f"v_mov_b32 v{vtmp}, 0\nds_write_b32 v{vtmp}, v{vT} offset:{off}")

def get_T():
    A("s_waitcnt lgkmcnt(0)")
    A(f"s_mul_i32 s{sT}, s{sT}, 0x9E3779B1\ns_add_u32 s{sT}, s{sT}, 0x7F4A7C15\ns_andn2_b32 s{sT}, s{sT}, 15\ns_or_b32 s{sT}, s{sT}, 8\ns_or_b32 s{sT}, s{sT}, s{sXCC}")
    A(f"v_mov_b32 v{vT}, s{sT}")

def make_selectors():
    t0, t1, t2, t3 = vA0, vA0 + 1, vA0 + 2, vA0 + 3
    A(f"v_bfe_u32 v{t0}, v{vL}, 2, 2")
    A(f"v_bfe_u32 v{t1}, v{vL}, 1, 1")
    A(f"v_cmp_eq_u32 vcc, 1, v{t1}")
    A(f"v_mov_b32 v{t2}, 0x0c0c0100\nv_mov_b32 v{t3}, 0x01000c0c")
    A(f"v_cndmask_b32 v{t2}, v{t2}, v{t3}, vcc")
    A(f"v_mov_b32 v{t1}, 0x0c0c0302\nv_mov_b32 v{t3}, 0x03020c0c")
    A(f"v_cndmask_b32 v{t3}, v{t1}, v{t3}, vcc")
    A(f"v_mov_b32 v{t1}, 0x0c0c0c0c")
    for t in range(4):
        A(f"v_cmp_eq_u32 vcc, {t}, v{t0}\ns_nop 1")
        A(f"v_cndmask_b32 v{vSEL+2*t}, v{t1}, v{t2}, vcc\nv_cndmask_b32 v{vSEL+2*t+1}, v{t1}, v{t3}, vcc")

def build_A(b, buf):
    src = vCO + b // 2
    for t in range(4):
        A(f"v_perm_b32 v{buf+t}, v{src}, v{src}, v{vSEL+2*t+(b&1)}")

def diag_gemv(nb, extra_after=0, win=None, hook=None):
    build_A(0, vA0)
    for b in range(nb):
        if b + 1 < nb:
            build_A(b + 1, vA1 if (b & 1) == 0 else vA0)
        else:
            A("s_nop 1")
        A(f"s_waitcnt vmcnt({min(nb-1-b, (win or nb)-1)+extra_after})")
        if hook: hook(b)
        buf = vA0 if (b & 1) == 0 else vA1
        c = "0" if b == 0 else f"v[{vACC}:{vACC+3}]"
        A(f"v_mfma_f32_16x16x32_bf16 v[{vACC}:{vACC+3}], v[{buf}:{buf+3}], v[{vD+4*b}:{vD+4*b+3}], {c}")

def combine(g):
    A("s_nop 7")
    A(f"v_add_f32_dpp v{g}, v{vACC+1}, v{vACC} row_ror:8 row_mask:0xf bank_mask:0xf")
    A(f"v_add_f32_dpp v{g+1}, v{vACC+3}, v{vACC+2} row_ror:8 row_mask:0xf bank_mask:0xf")
    A(f"v_mov_b32 v{g+2}, 0\nv_mov_b32 v{g+3}, 0")
    A("s_nop 1")
    A(f"v_permlane16_swap_b32 v{g}, v{g+2}\nv_permlane16_swap_b32 v{g+1}, v{g+3}")
    A("s_nop 1")
    for k in range(4):
        A(f"v_perm_b32 v{g+k}, v{g+k}, v{vT}, s{sSEL+k}")

def poll(g, voff, soff, sleep=0, depth=None, gap=None, on_timeout=None, lfl=None):
    if a.nopoll >= 1: return
    depth = depth or a.pdepth
    gap = a.pgap if gap is None else gap
    lp = A.label("Lp"); dn = A.label("Lpd")
    sets = [g + 8 + 4 * k for k in range(depth)]
    def issue(r):
        A(f"buffer_load_dwordx4 v[{r}:{r+3}], v{voff}, s[{WS}:{WS+3}], s{soff} offen sc1{PN if lfl is None else lfl}")
    for k in range(depth - 1):
        issue(sets[k])
        if gap: A(f"s_sleep {gap}")
    if on_timeout: A(f"s_mov_b32 s{sCNT}, 0")
    A(f"{lp}:")
    fins = []
    for k in range(depth):
        issue(sets[(k + depth - 1) % depth])
        r = sets[k]
        A(f"s_waitcnt vmcnt({depth-1})")
        A(f"v_perm_b32 v{g+4}, v{r+1}, v{r}, s{sSELA}\nv_perm_b32 v{g+5}, v{r+3}, v{r+2}, s{sSELB}")
        A(f"v_or_b32 v{g+4}, v{g+4}, v{g+5}\nv_xor_b32 v{g+4}, s{sT}, v{g+4}")
        A(f"v_cmp_lt_u32 vcc, 7, v{g+4}")
        fl = A.label("Lpf"); fins.append((fl, r))
        A(f"s_cmp_eq_u64 vcc, 0\ns_cbranch_scc1 {fl}")
    if on_timeout:
        A(f"s_add_u32 s{sCNT}, s{sCNT}, 1\ns_cmp_lg_u32 s{sCNT}, {a.nt}\ns_cbranch_scc1 {lp}_t")
        on_timeout()
        A(f"{lp}_t:")
    spin_tail(lp, 0)
    for i, (fl, r) in enumerate(fins):
        A(f"{fl}:")
        for k in range(4):
            A(f"v_mov_b32 v{g+k}, v{r+k}")
        if i < len(fins) - 1: A(f"s_branch {dn}")
    A(f"{dn}:")
    A("s_nop 1")

def lds_mode(vz, vr):
    A(f"v_mov_b32 v{vz}, 0\nds_read_b32 v{vr}, v{vz} offset:{L_MODE}")

def publish_gather(box, ldsdst, ldsflag, fscale, g=vD, h=None):
    combine(g)
    A(f"v_and_b32 v{g+8}, 7, v{vL}\nv_lshrrev_b32 v{g+9}, 5, v{vL}\nv_lshl_add_u32 v{g+8}, v{g+8}, 1, v{g+9}\nv_lshlrev_b32 v{g+8}, 4, v{g+8}")
    A(f"s_mul_i32 s{sOFF}, s{sH}, 3072\ns_lshl_b32 s{sTMP}, s{sC}, 10\ns_add_u32 s{sOFF}, s{sOFF}, s{sTMP}\ns_add_u32 s{sOFF}, s{sOFF}, {box}")
    A(f"s_lshl_b32 s{sTMP3}, s{sJ}, 8\ns_add_u32 s{sTMP3}, s{sTMP3}, s{sOFF}")
    def store(fl):
        A("s_mov_b32 exec_lo, 0xff\ns_mov_b32 exec_hi, 0xff")
        A(f"buffer_store_dwordx4 v[{g}:{g+3}], v{g+8}, s[{WS}:{WS+3}], s{sTMP3} offen{fl}")
        A("s_mov_b64 exec, -1")
    if fscale:
        l1 = A.label("Ls"); l2 = A.label("Ls")
        A(f"s_cmp_lg_u32 s{sMODE}, 0\ns_cbranch_scc1 {l1}")
        store("")
        A(f"s_branch {l2}\n{l1}:")
        store(" sc1")
        A(f"{l2}:")
    else:
        store("")
    stamp(3)
    A(f"v_and_b32 v{g+10}, 3, v{vL}\nv_lshrrev_b32 v{g+11}, 2, v{vL}\nv_lshlrev_b32 v{g+12}, 4, v{g+11}\nv_lshl_add_u32 v{g+12}, v{g+10}, 8, v{g+12}")
    if fscale:
        lds_wait(L_FFLAG, [0], 1, g + 16)
        A(f"v_lshlrev_b32 v{g+13}, 2, v{g+10}\nds_read_b32 v{g+13}, v{g+13} offset:{L_FF}")
    h = h or g + 20
    poll(h, g + 12, sOFF, on_timeout=None if fscale else (lambda: store(" sc1")))
    stamp(4)
    if fscale:
        A("s_waitcnt lgkmcnt(0)")
        for k in range(4):
            A(f"v_mul_f32 v{h+k}, v{h+k}, v{g+13}")
    else:
        if a.nopoll: A(f"v_mov_b32 v{h+4}, 0")
        A(f"v_cmp_ne_u32 vcc, 0, v{h+4}\ns_cmp_lg_u64 vcc, 0\ns_cselect_b32 s{sMODE}, 1, 0\nv_mov_b32 v{g+13}, s{sMODE}\nv_mov_b32 v{g+14}, 0")
        l1 = A.label("Ls")
        A(f"s_cbranch_scc0 {l1}")
        store(" sc1")
        A(f"{l1}:")
    for k in range(4):
        A(f"v_add_f32_dpp v{h+4+k}, v{h+k}, v{h+k} quad_perm:[1,0,3,2] row_mask:0xf bank_mask:0xf")
    for k in range(4):
        A(f"v_add_f32_dpp v{h+k}, v{h+4+k}, v{h+4+k} quad_perm:[2,3,0,1] row_mask:0xf bank_mask:0xf")
    A(f"v_cvt_pk_bf16_f32 v{h+4}, v{h}, v{h+1}\nv_cvt_pk_bf16_f32 v{h+5}, v{h+2}, v{h+3}")
    A(f"s_lshl_b32 s{sTMP}, s{sC}, 7\nv_lshlrev_b32 v{g+11}, 3, v{g+11}\nv_add_u32 v{g+11}, s{sTMP}, v{g+11}")
    A(f"s_lshl_b32 s{sTMP}, s{sC}, 2\nv_mov_b32 v{g+10}, s{sTMP}")
    A("s_mov_b32 exec_lo, 0x11111111\ns_mov_b32 exec_hi, 0x11111111")
    A(f"ds_write_b64 v{g+11}, v[{h+4}:{h+5}] offset:{ldsdst}")
    if not fscale:
        A(f"ds_write_b32 v{g+14}, v{g+13} offset:{L_MODE}")
    A(f"ds_write_b32 v{g+10}, v{vT} offset:{ldsflag}")
    A("s_mov_b64 exec, -1")

def coef_addr(vdst, per):
    A(f"v_lshrrev_b32 v{vdst}, 4, v{vL}\nv_and_b32 v{vA0}, 1, v{vL}\nv_lshl_add_u32 v{vdst}, v{vdst}, 1, v{vA0}\nv_mul_u32_u24 v{vdst}, {per}, v{vdst}")

def data_voff(rowstep):
    A(f"v_lshrrev_b32 v{vOFF}, 3, v{vL}\nv_mul_u32_u24 v{vOFF}, {rowstep}, v{vOFF}\nv_and_b32 v{vA0}, 7, v{vL}\nv_lshl_add_u32 v{vOFF}, v{vA0}, 4, v{vOFF}")

def srd(d, lo, n):
    A.srd(d, lo, n)

A("s_cmp_ge_u32 s2, 256\ns_cbranch_scc1 L_done")
stamp(0)
if a.stamps:
    for k in range(2, 18):
        A(f"s_mov_b32 s{sST+k}, 0")
if a.dly:
    dl = a.dly
    if dl[0] == "w":
        dl = dl[1:]; A("s_and_b32 s3, s2, 7")
    else:
        A("s_getreg_b32 s3, hwreg(HW_REG_XCC_ID, 0, 3)")
    dl = [int(x) for x in dl.split(",")]
    lo = sum(v << (8 * i) for i, v in enumerate(dl[:4])); hi = sum(v << (8 * i) for i, v in enumerate(dl[4:]))
    A(f"s_mov_b32 s4, {lo}\ns_mov_b32 s5, {hi}\ns_lshl_b32 s3, s3, 3\ns_lshr_b64 s[4:5], s[4:5], s3\ns_and_b32 s4, s4, 0xff")
    A("L_dl:\ns_sub_u32 s4, s4, 1\ns_cbranch_scc1 L_nd\ns_sleep 2\ns_branch L_dl\nL_nd:")
A(f"s_load_dwordx2 s[{sWSP}:{sWSP+1}], s[0:1], 96")
if a.xmap == 1:
    A(f"s_and_b32 s{sJ}, s2, 3\ns_lshr_b32 s{sH}, s2, 2")
elif a.xmap == 2:
    A(f"s_lshr_b32 s{sH}, s2, 3\ns_and_b32 s{sJ}, s{sH}, 3\ns_cmp_eq_u32 s{sJ}, 3\ns_cselect_b32 s3, 1, 0\ns_add_u32 s3, s3, s2\ns_and_b32 s3, s3, 7\ns_lshr_b32 s{sH}, s{sH}, 2\ns_lshl_b32 s3, s3, 3\ns_add_u32 s{sH}, s{sH}, s3")
else:
    A(f"s_add_u32 s3, s2, {a.rot}\ns_and_b32 s3, s3, 7\ns_lshr_b32 s{sH}, s2, 3\ns_and_b32 s{sJ}, s{sH}, 3\ns_lshr_b32 s{sH}, s{sH}, 2\ns_lshl_b32 s3, s3, 3\ns_add_u32 s{sH}, s{sH}, s3")
A(f"s_lshr_b32 s{sP}, s{sH}, 5\ns_and_b32 s{sHH}, s{sH}, 31")
A(f"s_lshl_b32 s9, s{sP}, 7")
A(f"s_mul_i32 s8, s{sP}, 40\ns_add_u32 s10, s0, s8\ns_addc_u32 s11, s1, 0")
A(f"s_load_dwordx8 s[{sX}:{sX+7}], s[10:11], 0")
A(f"s_load_dwordx2 s[{sWO}:{sWO+1}], s[10:11], 32")
A(f"v_lshrrev_b32 v1, 6, v0\nv_and_b32 v0, 63, v0\nv_readfirstlane_b32 s{sWAVE}, v1")
A(f"s_mov_b32 s{sSPIN}, 200000\ns_getreg_b32 s{sXCC}, hwreg(HW_REG_XCC_ID, 0, 3)")
for k in range(4):
    A(f"s_mov_b32 s{sSEL+k}, {0x07060500 + k:#x}")
A(f"s_mov_b32 s{sSELA}, 0x0c0c0400\ns_mov_b32 s{sSELB}, 0x04000c0c")
A(f"""s_cmp_lt_u32 s{sWAVE}, 3
s_cbranch_scc1 L_w
s_cmp_eq_u32 s{sWAVE}, 3
s_cbranch_scc1 L_aux
s_cmp_lt_u32 s{sWAVE}, 8
s_cbranch_scc1 L_k
s_cmp_lt_u32 s{sWAVE}, 11
s_cbranch_scc1 L_v
s_branch L_aux""")

A("L_w:")
prio(3)
A(f"s_mov_b32 s{sC}, s{sWAVE}")
A(f"s_mul_i32 s{sOFF}, s{sJ}, {160*12288}\ns_mul_i32 s{sTMP3}, s{sHH}, 384\ns_add_u32 s{sOFF}, s{sOFF}, s{sTMP3}\ns_lshl_b32 s{sTMP3}, s{sC}, 7\ns_add_u32 s{sOFF}, s{sOFF}, s{sTMP3}")
A(f"s_mul_i32 s{sTMP2}, s{sJ}, 320")
for nb in (20,):
    data_voff(nb * 12288)
    if "q" in a.contig:
        A(f"v_lshlrev_b32 v{vOFF}, 4, v{vL}\ns_lshl_b32 s{sOFF}, s{sHH}, 2\ns_add_u32 s{sOFF}, s{sOFF}, s{sJ}\ns_mul_i32 s{sOFF}, s{sOFF}, 3\ns_add_u32 s{sOFF}, s{sOFF}, s{sC}\ns_mul_i32 s{sOFF}, s{sOFF}, 20480")
    coef_addr(vAD, 2 * nb)
    A("s_waitcnt lgkmcnt(0)")
    if a.pro: stamp(5)
    A(f"s_load_dword s{sT}, s[{sWSP}:{sWSP+1}], s9")
    srd(SR, sWQ, 640 * 12288)
    srd(SR2, sX, 1280)
    for k in range(nb // 8):
        A(f"buffer_load_dwordx4 v[{vCO+4*k}:{vCO+4*k+3}], v{vAD}, s[{SR2}:{SR2+3}], s{sTMP2} offen offset:{16*k}{XN}")
    A(f"buffer_load_dwordx2 v[{vCO+8}:{vCO+9}], v{vAD}, s[{SR2}:{SR2+3}], s{sTMP2} offen offset:32{XN}")
    nw = WIN[0] if WIN else nb
    def wq_load(b):
        A(f"buffer_load_dwordx4 v[{vD+4*b}:{vD+4*b+3}], v{vOFF}, s[{SR}:{SR+3}], s{sOFF} offen nt")
        if b < nb - 1: A(f"s_add_u32 s{sOFF}, s{sOFF}, {1024 if 'q' in a.contig else 12288}")
    for b in range(nw):
        thr(b)
        wq_load(b)
    stamp(1)
    A("s_barrier")
    srd(WS, sWSP, 0x10000000)
    make_selectors()
    get_T()
    A(f"s_waitcnt vmcnt({nw})")
    if a.pro:
        A(f"s_waitcnt vmcnt({nw-1})")
        stamp(6)
    if WIN:
        A(f"s_lshl_b32 s{sTMP}, s{sC}, 2\nv_mov_b32 v{vAD}, s{sTMP}")
        def hook(b):
            if b + nw < nb: wq_load(b + nw)
            else: credit(L_PW, vAD, vCO - 1 - 0 if False else 164, b + nw - nb + 1)
        diag_gemv(nb, win=nw, hook=hook)
    else:
        diag_gemv(nb)
stamp(2)
publish_gather(QBOX, L_Q, L_QF, False, g=vD, h=136)
if not a.pro: stamp(5)
vF = 160
A(f"s_lshl_b32 s{sTMP}, s{sC}, 2\nv_mov_b32 v{vF+1}, s{sTMP}")
A(f"{'s_lshr_b32' if a.lmap else 's_and_b32'} s{sTMP}, s{sJ}, 1\ns_add_u32 s{sTMP}, s{sTMP}, s{sC}\ns_cmp_eq_u32 s{sTMP}, 3\ns_cbranch_scc1 L_w_fin")
prio(0)
srd(SR, sWO, 6144 * 1280)
data_voff(8 * 1280 if a.slab else 24 * 1280)
if a.lmap: A(f"s_mul_i32 s{sTMP}, s{sJ}, 3\ns_add_u32 s{sM}, s{sJ}, 1\ns_lshr_b32 s{sM}, s{sM}, 2\ns_sub_u32 s{sTMP}, s{sTMP}, s{sM}\ns_add_u32 s{sM}, s{sTMP}, s{sC}")
else: A(f"s_mul_i32 s{sTMP}, s{sJ}, 5\ns_add_u32 s{sTMP}, s{sTMP}, 1\ns_lshr_b32 s{sTMP}, s{sTMP}, 1\ns_add_u32 s{sM}, s{sTMP}, s{sC}")
A(f"s_mul_i32 s{sOFF}, s{sHH}, {192*1280}\ns_lshl_b32 s{sTMP}, s{sM}, 7\ns_add_u32 s{sOFF}, s{sOFF}, s{sTMP}")
if "o" in a.contig:
    A(f"v_lshlrev_b32 v{vOFF}, 4, v{vL}\ns_mul_i32 s{sOFF}, s{sHH}, 10\ns_add_u32 s{sOFF}, s{sOFF}, s{sM}\ns_mul_i32 s{sOFF}, s{sOFF}, 24576")
if WIN: gate_init(sC, 3 * WIN[2], vCO)
def wo_issue(nO, kS):
    rest = [A.label("Lb") for b in range(24)]
    for b in range(24):
        thr(b)
        if WIN:
            if b < nO: gate(L_PV, kS, 3 * WIN[2], kS * nO, vCO, vCO + 4)
            else:
                if a.boost:
                    t = vCO + 4
                    A(f"ds_read_b128 v[{t}:{t+3}], v{vCO} offset:{L_OF}\ns_waitcnt lgkmcnt(0)")
                    op = "v_or3_b32" if a.boost == 2 else None
                    if a.boost == 1:
                        A(f"v_and_b32 v{t}, v{t}, v{t+1}\nv_and_b32 v{t}, v{t}, v{t+2}")
                    else:
                        A(f"v_or3_b32 v{t}, v{t}, v{t+1}, v{t+2}")
                    A(f"v_cmp_ne_u32 vcc, 0, v{t}\ns_cbranch_vccnz {rest[b]}")
                A(f"s_waitcnt vmcnt({nO-1})")
        A(f"buffer_load_dwordx4 v[{vD+4*b}:{vD+4*b+3}], v{vOFF}, s[{SR}:{SR+3}], s{sOFF} offen nt")
        if b < 23: A(f"s_add_u32 s{sOFF}, s{sOFF}, {1024 if 'o' in a.contig else (57 * 1280 if a.slab and b % 8 == 7 else 1280)}")
    if a.boost and WIN:
        A("s_branch L_wo_j")
        for b in range(nO, 24):
            A(f"{rest[b]}:")
            A(f"buffer_load_dwordx4 v[{vD+4*b}:{vD+4*b+3}], v{vOFF}, s[{SR}:{SR+3}], s{sOFF} offen nt")
            if b < 23: A(f"s_add_u32 s{sOFF}, s{sOFF}, {1024 if 'o' in a.contig else (57 * 1280 if a.slab and b % 8 == 7 else 1280)}")
        A("s_branch L_wo_j")
    return
    for b in range(24):
        A(f"buffer_load_dwordx4 v[{vD+4*b}:{vD+4*b+3}], v{vOFF}, s[{SR}:{SR+3}], s{sOFF} offen nt")
        if b < 23: A(f"s_add_u32 s{sOFF}, s{sOFF}, {1024 if 'o' in a.contig else (57 * 1280 if a.slab and b % 8 == 7 else 1280)}")
if a.no2:
    A(f"s_bitcmp1_b32 s{sJ}, {1 if a.lmap else 0}\ns_cbranch_scc0 L_wo_e")
    wo_issue(a.no2, a.ks2)
    A("s_branch L_wo_j\nL_wo_e:")
wo_issue(WIN[3] if WIN else 24, 3)
A("L_wo_j:")
prio(3)
if not a.pro: stamp(6)
coef_addr(vAD, 16 if a.slab else 48)
if a.fp:
    gp = a.fp // 16; lg = gp.bit_length() - 1
    A(f"v_and_b32 v{vF}, 7, v{vL}\nv_lshrrev_b32 v{vF+2}, 5, v{vL}\nv_lshl_add_u32 v{vF}, v{vF}, 1, v{vF+2}")
    A(f"v_and_b32 v{vF+2}, {gp-1}, v{vF}\nv_lshrrev_b32 v{vF}, {lg}, v{vF}\nv_mul_u32_u24 v{vF}, {32*a.fp}, v{vF}\nv_lshl_add_u32 v{vF}, v{vF+2}, 4, v{vF}")
    A(f"s_mul_i32 s{sOFF}, s{sP}, 10\ns_add_u32 s{sOFF}, s{sOFF}, s{sM}\ns_lshl_b32 s{sOFF}, s{sOFF}, 13\ns_mul_i32 s{sTMP}, s{sHH}, {a.fp}\ns_add_u32 s{sOFF}, s{sOFF}, s{sTMP}\ns_add_u32 s{sOFF}, s{sOFF}, {FBOX}")
else:
    A(f"v_and_b32 v{vF}, 7, v{vL}\nv_lshrrev_b32 v{vF+2}, 5, v{vL}\nv_lshlrev_b32 v{vF}, 10, v{vF}\nv_lshl_add_u32 v{vF}, v{vF+2}, 9, v{vF}")
    A(f"s_lshl_b32 s{sTMP}, s{sP}, 2\ns_add_u32 s{sTMP}, s{sTMP}, s{sJ}\ns_mul_i32 s{sOFF}, s{sTMP}, 24576\ns_lshl_b32 s{sTMP}, s{sHH}, 4\ns_add_u32 s{sOFF}, s{sOFF}, s{sTMP}\ns_lshl_b32 s{sTMP}, s{sC}, 13\ns_add_u32 s{sOFF}, s{sOFF}, s{sTMP}\ns_add_u32 s{sOFF}, s{sOFF}, {FBOX}")
if a.slab:
    vfl = vCO + 12
    A(f"v_mov_b32 v{vF+2}, 0\ns_mov_b32 s{sM}, 7")
    for k in range(4): A(f"v_mov_b32 v{vACC+k}, 0")
    A("L_kl:")
    A(f"ds_read_b128 v[{vfl}:{vfl+3}], v{vF+2} offset:{L_OF}")
    for c in range(3): A(f"ds_read_b128 v[{vCO+4*c}:{vCO+4*c+3}], v{vAD} offset:{L_O+128*c}")
    A("s_waitcnt lgkmcnt(0)")
    for c in range(3): A(f"v_readfirstlane_b32 s{sTMP+c}, v{vfl+c}")
    for c in range(3):
        A(f"s_bitcmp0_b32 s{sM}, {c}\ns_cbranch_scc1 L_kn{c}")
        if a.nopoll < 2: A(f"s_cmp_lg_u32 s{sTMP+c}, s{sT}\ns_cbranch_scc1 L_kn{c}")
        A(f"s_bitset0_b32 s{sM}, {c}")
        def bA(b, buf):
            for t in range(4): A(f"v_perm_b32 v{buf+t}, v{vCO+4*c+b//2}, v{vCO+4*c+b//2}, v{vSEL+2*t+(b&1)}")
        bA(0, vA0)
        for b in range(8):
            if b < 7: bA(b + 1, vA1 if (b & 1) == 0 else vA0)
            else: A("s_nop 1")
            buf = vA0 if (b & 1) == 0 else vA1
            n = 8 * c + b
            A(f"s_waitcnt vmcnt({23-n})")
            A(f"v_mfma_f32_16x16x32_bf16 v[{vACC}:{vACC+3}], v[{buf}:{buf+3}], v[{vD+4*n}:{vD+4*n+3}], v[{vACC}:{vACC+3}]")
        A(f"L_kn{c}:")
    A(f"s_cmp_eq_u32 s{sM}, 0\ns_cbranch_scc1 L_kd")
    spin_tail("L_kl", a.wsl)
    A("L_kd:")
else:
    lds_wait(L_OF, [0, 1, 2], 4, vCO)
    for k in range(3):
        A(f"ds_read_b128 v[{vCO+4*k}:{vCO+4*k+3}], v{vAD} offset:{L_O+16*k}")
    A("s_waitcnt lgkmcnt(0)")
    diag_gemv(24)
combine(vCO)
A("s_mov_b32 exec_lo, 0xff\ns_mov_b32 exec_hi, 0xff")
if a.nofin != 1: A(f"buffer_store_dwordx4 v[{vCO}:{vCO+3}], v{vF}, s[{WS}:{WS+3}], s{sOFF} offen{'' if a.nofin == 3 else ' sc1'}")
A("s_mov_b64 exec, -1")
A("L_w_fin:")
A(f"ds_write_b32 v{vF+1}, v{vT} offset:{L_PF}")
stamp(7)
A("s_branch L_end")

A("L_k:")
prio(2)
A(f"s_sub_u32 s{sC}, s{sWAVE}, 4")
A(f"v_and_b32 v{vOFF}, 7, v{vL}\nv_mul_u32_u24 v{vOFF}, 384, v{vOFF}\nv_bfe_u32 v8, v{vL}, 3, 1\nv_lshl_add_u32 v{vOFF}, v8, 6, v{vOFF}\nv_lshrrev_b32 v8, 4, v{vL}\nv_lshl_add_u32 v{vOFF}, v8, 4, v{vOFF}")
A(f"v_and_b32 v{vAD}, 1, v{vL}\nv_lshlrev_b32 v{vAD}, 6, v{vAD}\nv_lshl_add_u32 v{vAD}, v8, 4, v{vAD}")
A(f"s_mul_i32 s{sOFF}, s{sHH}, 1572864\ns_mul_i32 s{sTMP}, s{sJ}, 98304\ns_add_u32 s{sOFF}, s{sOFF}, s{sTMP}\ns_mul_i32 s{sTMP}, s{sC}, 24576\ns_add_u32 s{sOFF}, s{sOFF}, s{sTMP}\ns_add_u32 s{sOFF}, s{sOFF}, {3072*384}")
A("s_waitcnt lgkmcnt(0)")
A(f"s_load_dword s{sT}, s[{sWSP}:{sWSP+1}], s9")
srd(SR, sK, 50331648)
srd(WS, sWSP, 0x10000000)
A("s_barrier")
get_T()
if WIN: gate_init(sC, 3 * WIN[0], 24)
krest = [A.label("Lkb") for b in range(24)]
def k_load(t):
    A(f"buffer_load_dwordx4 v[{vD+4*t}:{vD+4*t+3}], v{vOFF}, s[{SR}:{SR+3}], s{sOFF} offen offset:{128*(t%3)} nt")
    if t % 3 == 2 and t < 23: A(f"s_add_u32 s{sOFF}, s{sOFF}, 3072")
for t in range(24):
    thr(t)
    if WIN:
        if t < WIN[1]: gate(L_PW, 4, 3 * WIN[0], 4 * WIN[1], 24, 28)
        else:
            if a.kboost:
                A(f"ds_read_b128 v[28:31], v24 offset:{L_QF}\ns_waitcnt lgkmcnt(0)\nv_and_b32 v28, v28, v29\nv_and_b32 v28, v28, v30\nv_cmp_ne_u32 vcc, 0, v28\ns_cbranch_vccnz {krest[t]}")
            A(f"s_waitcnt vmcnt({WIN[1]-1})")
    k_load(t)
if a.kboost:
    A("s_branch L_kb_j")
    for t in range(WIN[1], 24):
        if t >= a.kboost: A(f"s_waitcnt vmcnt({a.kboost-1})")
        A(f"{krest[t]}:")
        k_load(t)
    A("L_kb_j:")
if WIN:
    prio(3)
    A(f"s_lshl_b32 s{sTMP}, s{sC}, 2\nv_mov_b32 v8, s{sTMP}")
    for i in range(WIN[1]):
        A(f"s_waitcnt vmcnt({WIN[1]-1-i})")
        credit(L_PK, 8, 9, i + 1)
elif a.g2:
    A(f"s_lshl_b32 s{sTMP}, s{sC}, 2\nv_mov_b32 v8, s{sTMP}\nds_write_b32 v8, v{vT} offset:{L_KI}")
prio(3)
stamp(1)
vQ = 8
vS = 136
lds_wait(L_QF, [0, 1, 2], 4, 24)
stamp(2)
for u in range(3):
    A(f"ds_read_b128 v[{vQ+4*u}:{vQ+4*u+3}], v{vAD} offset:{L_Q+128*u}")
A("s_waitcnt lgkmcnt(0)")
s_ = 24
for t in range(24):
    G, u = divmod(t, 3)
    A(f"s_waitcnt vmcnt({23-t})")
    c = "0" if u == 0 else f"v[{vS+4*G}:{vS+4*G+3}]"
    A(f"v_mfma_f32_16x16x32_bf16 v[{vS+4*G}:{vS+4*G+3}], v[{vQ+4*u}:{vQ+4*u+3}], v[{vD+4*t}:{vD+4*t+3}], {c}")
stamp(3)
A("s_nop 7")
for G in range(8):
    d0, d1 = vS + 4 * G, vS + 4 * G + 1
    if G & 1:
        A(f"v_add_f32_dpp v{s_}, v{d0}, v{d1} row_ror:8 row_mask:{1 << (G >> 1):#x} bank_mask:0xc")
    else:
        A(f"v_add_f32_dpp v{s_}, v{d1}, v{d0} row_ror:8 row_mask:{1 << (G >> 1):#x} bank_mask:0x3")
A(f"v_cvt_pk_bf16_f32 v{s_}, v{s_}, v{s_}\nv_lshlrev_b32 v{s_}, 16, v{s_}")
A(f"v_mul_f32 v{s_}, 0x3d93cd3a, v{s_}")
A(f"v_cvt_pk_bf16_f32 v{s_}, v{s_}, v{s_}\nv_lshlrev_b32 v{s_}, 16, v{s_}")
def wave_reduce(op, v):
    for d in ["row_shr:1", "row_shr:2", "row_shr:4", "row_shr:8"]:
        A(f"s_nop 1\n{op}_dpp v{v}, v{v}, v{v} {d} row_mask:0xf bank_mask:0xf")
    A(f"s_nop 1\n{op}_dpp v{v}, v{v}, v{v} row_bcast:15 row_mask:0xa bank_mask:0xf")
    A(f"s_nop 1\n{op}_dpp v{v}, v{v}, v{v} row_bcast:31 row_mask:0xc bank_mask:0xf")
A(f"v_mov_b32 v{s_+1}, v{s_}")
wave_reduce("v_max_f32", s_ + 1)
A(f"s_nop 0\nv_readlane_b32 s{sTMP}, v{s_+1}, 63")
A(f"s_lshl_b32 s{sTMP2}, s{sC}, 3\nv_mov_b32 v{s_+4}, s{sTMP2}\nv_mov_b32 v{s_+2}, s{sTMP}\nv_mov_b32 v{s_+3}, s{sT}")
A(f"ds_write_b64 v{s_+4}, v[{s_+2}:{s_+3}] offset:{L_MX}")
lds_wait(L_MX, [1, 3, 5, 7], 8, s_ + 8)
A(f"v_max_f32 v{s_+8}, v{s_+8}, v{s_+10}\nv_max3_f32 v{s_+8}, v{s_+8}, v{s_+12}, v{s_+14}")
A(f"v_sub_f32 v{s_}, v{s_}, v{s_+8}\nv_mul_f32 v{s_}, 0x3fb8aa3b, v{s_}\nv_exp_f32 v{s_}, v{s_}\ns_nop 0")
A(f"v_cvt_pk_bf16_f32 v{s_+1}, v{s_}, v{s_}")
A(f"s_lshl_b32 s{sTMP}, s{sC}, 7\nv_lshlrev_b32 v{s_+5}, 1, v{vL}\nv_add_u32 v{s_+5}, s{sTMP}, v{s_+5}")
A(f"ds_write_b16 v{s_+5}, v{s_+1} offset:{L_P}")
wave_reduce("v_add_f32", s_)
A(f"s_nop 0\nv_readlane_b32 s{sTMP}, v{s_}, 63\ns_nop 1\nv_mov_b32 v{s_+2}, s{sTMP}")
A(f"ds_write_b64 v{s_+4}, v[{s_+2}:{s_+3}] offset:{L_LS}")
stamp(4)
A("s_branch L_end")

A("L_v:")
prio(1)
A(f"s_sub_u32 s{sC}, s{sWAVE}, 8")
data_voff(384 if a.near else 32 * 384)
A(f"s_mul_i32 s{sOFF}, s{sHH}, 1572864\ns_mul_i32 s{sTMP}, s{sJ}, 98304\ns_add_u32 s{sOFF}, s{sOFF}, s{sTMP}\ns_lshl_b32 s{sTMP}, s{sC}, 7\ns_add_u32 s{sOFF}, s{sOFF}, s{sTMP}\ns_add_u32 s{sOFF}, s{sOFF}, {3072*384}")
if "k" in a.contig:
    data_voff(384)
    A(f"s_mul_i32 s{sTMP}, s{sC}, {30720-128}\ns_add_u32 s{sOFF}, s{sOFF}, s{sTMP}")
if "v" in a.contig:
    A(f"v_lshlrev_b32 v{vOFF}, 4, v{vL}\ns_mul_i32 s{sTMP}, s{sC}, {32768-128}\ns_add_u32 s{sOFF}, s{sOFF}, s{sTMP}")
A("s_waitcnt lgkmcnt(0)")
A(f"s_load_dword s{sT}, s[{sWSP}:{sWSP+1}], s9")
srd(SR, sV, 50331648)
srd(WS, sWSP, 0x10000000)
A("s_barrier")
get_T()
if WIN:
    gate_init(sC, 4 * WIN[1], vCO)
elif a.g2:
    lds_wait(L_KI, [0, 1, 2, 3], 4, vCO)
if WIN:
    make_selectors()
    coef_addr(vAD, 64)
vrest = [A.label("Lvb") for b in range(32)]
def v_load(b):
    A(f"buffer_load_dwordx4 v[{vD+4*b}:{vD+4*b+3}], v{vOFF}, s[{SR}:{SR+3}], s{sOFF} offen offset:{384*(b%8)} nt")
    if b % 8 == 7 and b < 31: A(f"s_add_u32 s{sOFF}, s{sOFF}, 3072")
for b in range(32):
    thr(b)
    if WIN:
        if b < WIN[2]: gate(L_PK, 3, 4 * WIN[1], 3 * WIN[2], vCO, vCO + 4)
        else:
            if a.vboost:
                t = vCO + 4
                A(f"ds_read_b32 v{t}, v{vCO} offset:{L_FFLAG}\ns_waitcnt lgkmcnt(0)\nv_cmp_ne_u32 vcc, 0, v{t}\ns_cbranch_vccnz {vrest[b]}")
            A(f"s_waitcnt vmcnt({WIN[2]-1})")
    if "k" in a.contig:
        A(f"buffer_load_dwordx4 v[{vD+4*b}:{vD+4*b+3}], v{vOFF}, s[{SR}:{SR+3}], s{sOFF} offen offset:{128*(b%3)} nt")
        if b % 3 == 2: A(f"s_add_u32 s{sOFF}, s{sOFF}, 3072")
        continue
    if a.near or "v" in a.contig:
        A(f"buffer_load_dwordx4 v[{vD+4*b}:{vD+4*b+3}], v{vOFF}, s[{SR}:{SR+3}], s{sOFF} offen nt\ns_add_u32 s{sOFF}, s{sOFF}, {3072 if a.near else 1024}")
        continue
    A(f"buffer_load_dwordx4 v[{vD+4*b}:{vD+4*b+3}], v{vOFF}, s[{SR}:{SR+3}], s{sOFF} offen offset:{384*(b%8)} nt")
    if b % 8 == 7 and b < 31: A(f"s_add_u32 s{sOFF}, s{sOFF}, 3072")
if a.vboost:
    A("s_branch L_vb_j")
    for b in range(WIN[2], 32):
        if b >= a.vboost: A(f"s_waitcnt vmcnt({a.vboost-1})")
        A(f"{vrest[b]}:")
        v_load(b)
    A("L_vb_j:")
prio(3)
stamp(1)
if WIN:
    nv = WIN[2]
    A(f"s_lshl_b32 s{sTMP}, s{sC}, 2\nv_mov_b32 v{vOFF}, s{sTMP}")
    A(f"v_mov_b32 v{vCO+9}, 0\nds_read_b128 v[{vCO}:{vCO+3}], v{vCO+9} offset:{L_LS}\nds_read_b128 v[{vCO+4}:{vCO+7}], v{vCO+9} offset:{L_LS+16}\ns_waitcnt lgkmcnt(0)")
    A(f"v_xor_b32 v{vCO+1}, s{sFL}, v{vCO+1}\nv_xor_b32 v{vCO+3}, s{sFL}, v{vCO+3}\nv_xor_b32 v{vCO+5}, s{sFL}, v{vCO+5}\nv_xor_b32 v{vCO+7}, s{sFL}, v{vCO+7}")
    A(f"v_or3_b32 v{vCO+1}, v{vCO+1}, v{vCO+3}, v{vCO+5}\nv_or_b32 v{vCO+1}, v{vCO+1}, v{vCO+7}\nv_cmp_ne_u32 vcc, 0, v{vCO+1}\ns_cmp_eq_u64 vcc, 0\ns_cbranch_scc1 L_v_fast")
    for i in range(nv):
        A(f"s_waitcnt vmcnt({nv-1-i})")
        credit(L_PV, vOFF, vCO, i + 1)
    lds_wait(L_LS, [1, 3, 5, 7], 8, vCO)
    A(f"s_mov_b32 s{sNEED}, 1\ns_branch L_v_go\nL_v_fast:\ns_mov_b32 s{sNEED}, 0\nL_v_go:")
else:
    make_selectors()
    coef_addr(vAD, 64)
    lds_wait(L_LS, [1, 3, 5, 7], 8, vCO)
for k in range(4):
    A(f"ds_read_b128 v[{vCO+4*k}:{vCO+4*k+3}], v{vAD} offset:{L_P+16*k}")
lds_mode(vA0, vA0 + 1)
A(f"s_waitcnt lgkmcnt(0)\nv_readfirstlane_b32 s{sMODE}, v{vA0+1}")
stamp(2)
if WIN:
    def vhook(b):
        if b >= 32 - nv: credit(L_PV, vOFF, vAD, b - (32 - nv) + 1)
    diag_gemv(32, hook=vhook)
else:
    diag_gemv(32)
publish_gather(OBOX, L_O, L_OF, True)
stamp(5)
A("s_branch L_end")

A("L_aux:")
prio(3)
if a.dbg: A("s_memtime s[84:85]")
A(f"v_lshlrev_b32 v8, 2, v{vL}\nv_mov_b32 v9, 0\nds_write_b32 v8, v9")
A(f"s_load_dwordx4 s[{sM}:{sM+3}], s[0:1], 80")
A("s_waitcnt lgkmcnt(0)")
A(f"s_load_dword s{sT}, s[{sWSP}:{sWSP+1}], s9")
srd(WS, sWSP, 0x10000000)
srd(SR2, sM, 2560)
A("s_waitcnt lgkmcnt(0)\ns_barrier")
get_T()
if a.lat:
    A(f"v_lshlrev_b32 v37, 4, v{vL}")
    A(f"s_lshl_b32 s{sOFF}, s2, 10\ns_add_u32 s{sOFF}, s{sOFF}, 0x200000")
    A(f"s_cmp_eq_u32 s{sWAVE}, 11\ns_cbranch_scc1 L_lat2")
    for k in range(4):
        A(f"s_memrealtime s[{sST+4*k}:{sST+4*k+1}]\ns_waitcnt lgkmcnt(0)")
        A(f"buffer_load_dwordx4 v[40:43], v37, s[{WS}:{WS+3}], s{sOFF} offen sc1\ns_waitcnt vmcnt(0)")
        A(f"s_memrealtime s[{sST+4*k+2}:{sST+4*k+3}]\ns_waitcnt lgkmcnt(0)")
        A("s_sleep 40")
    A("s_branch L_end")
    A("L_lat2:")
    A(f"s_add_u32 s{sOFF}, s{sOFF}, 0x100000")
    A(f"buffer_load_dwordx4 v[40:43], v37, s[{WS}:{WS+3}], s{sOFF} offen {'nt' if a.lat == 1 else 'sc1'}\ns_waitcnt vmcnt(0)")
    for k in range(4):
        A(f"s_memrealtime s[{sST+4*k}:{sST+4*k+1}]\ns_waitcnt lgkmcnt(0)")
        A(f"buffer_load_dwordx4 v[40:43], v37, s[{WS}:{WS+3}], s{sOFF} offen {'nt' if a.lat == 1 else 'sc1'}\ns_waitcnt vmcnt(0)")
        A(f"s_memrealtime s[{sST+4*k+2}:{sST+4*k+3}]\ns_waitcnt lgkmcnt(0)")
        A("s_sleep 40")
    A("s_branch L_end")
stamp(1)
lds_wait(L_LS, [1, 3, 5, 7], 8, 8)
A(f"v_mov_b32 v30, 0\nds_read_b128 v[20:23], v30 offset:{L_MX}\nds_read_b128 v[24:27], v30 offset:{L_MX+16}\nds_read_b32 v31, v30 offset:{L_MODE}\ns_waitcnt lgkmcnt(0)\nv_readfirstlane_b32 s{sMODE}, v31")
A("v_max_f32 v32, v20, v22\nv_max3_f32 v32, v32, v24, v26")
A("v_add_f32 v33, v8, v10\nv_add_f32 v34, v12, v14\nv_add_f32 v33, v33, v34\nv_mov_b32 v34, 0\nv_mov_b32 v35, 0")
for k in range(4):
    A(f"v_perm_b32 v{32+k}, v{32+k}, v{vT}, s{sSEL+k}")
A(f"s_lshl_b32 s{sOFF}, s{sH}, 7\ns_add_u32 s{sOFF}, s{sOFF}, {SBOX}\ns_lshl_b32 s{sTMP}, s{sJ}, 4\ns_add_u32 s{sTMP}, s{sTMP}, s{sOFF}")
A("s_mov_b64 exec, 1")
A(f"s_cmp_lg_u32 s{sMODE}, 0\ns_cbranch_scc1 L_ux1")
A(f"buffer_store_dwordx4 v[32:35], v30, s[{WS}:{WS+3}], s{sTMP} offen\ns_branch L_ux2\nL_ux1:")
A(f"buffer_store_dwordx4 v[32:35], v30, s[{WS}:{WS+3}], s{sTMP} offen sc1\nL_ux2:")
A("s_mov_b64 exec, -1")
stamp(2)
A(f"v_and_b32 v36, 3, v{vL}\nv_lshlrev_b32 v37, 4, v36")
poll(40, 37, sOFF)
stamp(3)
A("v_and_b32 v40, 0xffffff00, v40\ns_nop 1")
A("v_max_f32_dpp v44, v40, v40 quad_perm:[1,0,3,2] row_mask:0xf bank_mask:0xf\ns_nop 1")
A("v_max_f32_dpp v44, v44, v44 quad_perm:[2,3,0,1] row_mask:0xf bank_mask:0xf")
A("v_sub_f32 v40, v40, v44\nv_mul_f32 v40, 0x3fb8aa3b, v40\nv_exp_f32 v40, v40\ns_nop 0")
A("v_mul_f32 v41, v41, v40\ns_nop 1")
A("v_add_f32_dpp v44, v41, v41 quad_perm:[1,0,3,2] row_mask:0xf bank_mask:0xf\ns_nop 1")
A("v_add_f32_dpp v44, v44, v44 quad_perm:[2,3,0,1] row_mask:0xf bank_mask:0xf")
A("v_rcp_f32 v44, v44\ns_nop 0\nv_mul_f32 v40, v40, v44")
A("v_lshlrev_b32 v36, 2, v36")
A("s_mov_b64 exec, 15")
A(f"ds_write_b32 v36, v40 offset:{L_FF}")
A(f"ds_write_b32 v30, v{vT} offset:{L_FFLAG}")
A("s_mov_b64 exec, -1")
if a.fp:
    gp = a.fp // 16; lg = gp.bit_length() - 1; nx = 256 // a.fp; R = 10 * nx; nl = a.fp // 32
    A(f"s_and_b32 s{sTMP}, s{sHH}, 7\ns_lshl_b32 s{sTMP}, s{sTMP}, 2\ns_lshr_b32 s{sTMP2}, s{sHH}, 3\ns_add_u32 s{sTMP}, s{sTMP}, s{sTMP2}\ns_lshl_b32 s{sTMP}, s{sTMP}, 1\n{'s_and_b32' if a.lmap else 's_lshr_b32'} s{sTMP2}, s{sJ}, 1\ns_add_u32 s{sTMP}, s{sTMP}, s{sTMP2}")
    A(f"{'s_lshr_b32' if a.lmap else 's_and_b32'} s{sTMP2}, s{sJ}, 1\ns_xor_b32 s{sTMP2}, s{sTMP2}, 1\ns_lshl_b32 s{sTMP2}, s{sTMP2}, 6\ns_add_u32 s{sCNT}, s{sTMP}, s{sTMP2}\ns_cmp_ge_u32 s{sCNT}, {R}\ns_cbranch_scc1 L_end")
    A(f"s_mul_i32 s{sOFF}, s{sP}, {R}\ns_add_u32 s{sOFF}, s{sOFF}, s{sCNT}\ns_mul_i32 s{sTMP2}, s{sOFF}, {gp*8}\ns_mul_i32 s{sOFF}, s{sOFF}, {32*a.fp}\ns_add_u32 s{sOFF}, s{sOFF}, {FBOX}")
    A(f"v_lshlrev_b32 v37, 4, v{vL}\nv_lshlrev_b32 v38, 3, v{vL}")
    lds_wait(L_PF, [0, 1, 2], 4, 8)
    stamp(4)
    if a.nofin: A("s_branch L_end")
    A("L_fp:")
    for i in range(nl):
        A(f"buffer_load_dwordx4 v[{80+4*i}:{83+4*i}], v37, s[{WS}:{WS+3}], s{sOFF} offen offset:{1024*i} sc1{FN}")
    for i in range(nl):
        r = 80 + 4 * i
        A(f"s_waitcnt vmcnt({nl-1-i})")
        A(f"v_perm_b32 v44, v{r+1}, v{r}, s{sSELA}\nv_perm_b32 v45, v{r+3}, v{r+2}, s{sSELB}\nv_or_b32 v44, v44, v45\nv_xor_b32 v44, s{sT}, v44")
        A(f"v_or_b32 v46, v46, v44" if i else "v_mov_b32 v46, v44")
        for k in range(4):
            A(f"v_add_f32 v{40+k}, v{40+k}, v{r+k}" if i else f"v_mov_b32 v{40+k}, v{r+k}")
    A("v_cmp_lt_u32 vcc, 7, v46\ns_cmp_eq_u64 vcc, 0\ns_cbranch_scc1 L_fpd")
    spin_tail("L_fp", a.fsl)
    A("L_fpd:")
    stamp(5)
    d = gp
    while d < 16:
        for k in range(4):
            A(f"v_add_f32_dpp v{40+k}, v{40+k}, v{40+k} row_ror:{d} row_mask:0xf bank_mask:0xf")
        if d * 2 < 16: A("s_nop 0")
        d *= 2
    for op in ("v_permlane16_swap_b32", "v_permlane32_swap_b32"):
        for k in range(4): A(f"v_mov_b32 v{44+k}, v{40+k}")
        A("s_nop 1")
        for k in range(4): A(f"{op} v{40+k}, v{44+k}")
        A("s_nop 1")
        for k in range(4): A(f"v_add_f32 v{40+k}, v{40+k}, v{44+k}")
    A("v_cvt_pk_bf16_f32 v44, v40, v41\nv_cvt_pk_bf16_f32 v45, v42, v43")
    A(f"s_mov_b64 exec, {(1 << gp) - 1}")
    A(f"buffer_store_dwordx2 v[44:45], v38, s[{SR2}:{SR2+3}], s{sTMP2} offen")
    A(f"s_cmp_lg_u32 s{sCNT}, 0\ns_cbranch_scc1 L_aux2")
    A("s_mov_b64 exec, 1")
    A(f"buffer_store_dword v{vT}, v30, s[{WS}:{WS+3}], s9 offen")
    A("L_aux2:")
    A("s_mov_b64 exec, -1")
    stamp(6)
else:
    A(f"s_and_b32 s{sTMP}, s{sJ}, 1\ns_lshl_b32 s{sTMP}, s{sTMP}, 3\ns_add_u32 s{sTMP}, s{sTMP}, s{sHH}\ns_cmp_ge_u32 s{sTMP}, 24\ns_cbranch_scc1 L_end")
    A(f"s_lshl_b32 s{sTMP}, s{sP}, 2\ns_add_u32 s{sTMP}, s{sTMP}, s{sJ}\ns_mul_i32 s{sOFF}, s{sTMP}, 24\ns_add_u32 s{sOFF}, s{sOFF}, s{sHH}")
    A(f"s_lshl_b32 s{sOFF}, s{sOFF}, 10\ns_add_u32 s{sOFF}, s{sOFF}, {FBOX}")
    A(f"s_mul_i32 s{sTMP}, s{sJ}, 5\ns_add_u32 s{sTMP}, s{sTMP}, 1\ns_lshr_b32 s{sTMP}, s{sTMP}, 1\ns_lshl_b32 s{sTMP2}, s{sTMP}, 7")
    A(f"s_mul_i32 s{sTMP}, s{sP}, 1280\ns_add_u32 s{sTMP2}, s{sTMP2}, s{sTMP}\ns_lshl_b32 s{sTMP}, s{sHH}, 4\ns_add_u32 s{sTMP2}, s{sTMP2}, s{sTMP}")
    A(f"v_lshlrev_b32 v37, 4, v{vL}\nv_lshrrev_b32 v38, 5, v{vL}\nv_lshlrev_b32 v38, 3, v38")
    lds_wait(L_PF, [0, 1, 2], 4, 8)
    stamp(4)
    if a.nofin: A("s_branch L_end")
    if a.fmask:
        D = a.fdepth
        mk = sM + 4
        sets = [80 + 4 * k for k in range(D)]
        A(f"s_mov_b64 s[{mk}:{mk+1}], -1")
        for k in range(D):
            for q in range(4): A(f"v_mov_b32 v{sets[k]+q}, 0")
        A(f"v_not_b32 v{sets[0]}, v{vT}")
        for k in range(1, D): A(f"v_mov_b32 v{sets[k]}, v{sets[0]}")
        def issue(r):
            A(f"s_mov_b64 exec, s[{mk}:{mk+1}]\nbuffer_load_dwordx4 v[{r}:{r+3}], v37, s[{WS}:{WS+3}], s{sOFF} offen sc1\ns_mov_b64 exec, -1")
        for k in range(D - 1):
            issue(sets[k])
            if a.fgap: A(f"s_sleep {a.fgap}")
        A("L_fp:")
        for k in range(D):
            issue(sets[(k + D - 1) % D])
            r = sets[k]
            A(f"s_waitcnt vmcnt({D-1})")
            A(f"v_perm_b32 v44, v{r+1}, v{r}, s{sSELA}\nv_perm_b32 v45, v{r+3}, v{r+2}, s{sSELB}\nv_or_b32 v44, v44, v45\nv_xor_b32 v44, s{sT}, v44")
            A(f"v_cmp_ge_u32 vcc, 7, v44")
            A(f"s_and_b64 vcc, vcc, s[{mk}:{mk+1}]\ns_andn2_b64 s[{mk}:{mk+1}], s[{mk}:{mk+1}], vcc\ns_mov_b64 exec, vcc")
            for q in range(4): A(f"v_mov_b32 v{40+q}, v{r+q}")
            A(f"s_mov_b64 exec, -1\ns_cmp_eq_u64 s[{mk}:{mk+1}], 0\ns_cbranch_scc1 L_fpd")
            if a.fsl: A(f"s_sleep {a.fsl}")
        spin_tail("L_fp", 0)
        A("L_fpd:")
    else:
        poll(80, 37, sOFF, depth=a.fdepth, gap=a.fgap, lfl=FN)
        for k in range(4):
            A(f"v_mov_b32 v{40+k}, v{80+k}")
    A("s_nop 1")
    stamp(5)
    for d in ["row_shr:1", "row_shr:2", "row_shr:4", "row_shr:8"]:
        for k in range(4):
            A(f"v_add_f32_dpp v{40+k}, v{40+k}, v{40+k} {d} row_mask:0xf bank_mask:0xf")
    for k in range(4):
        A(f"v_add_f32_dpp v{40+k}, v{40+k}, v{40+k} row_bcast:15 row_mask:0xa bank_mask:0xf")
    A("v_cvt_pk_bf16_f32 v44, v40, v41\nv_cvt_pk_bf16_f32 v45, v42, v43")
    A("s_mov_b32 exec_lo, 0x80000000\ns_mov_b32 exec_hi, 0x80000000")
    A(f"buffer_store_dwordx2 v[44:45], v38, s[{SR2}:{SR2+3}], s{sTMP2} offen")
    A(f"s_or_b32 s{sTMP}, s{sJ}, s{sHH}\ns_cmp_lg_u32 s{sTMP}, 0\ns_cbranch_scc1 L_aux2")
    A("s_mov_b64 exec, 1")
    A(f"buffer_store_dword v{vT}, v30, s[{WS}:{WS+3}], s9 offen")
    A("L_aux2:")
    A("s_mov_b64 exec, -1")
    stamp(6)


A("L_end:")
if a.dbg:
    A("s_mov_b64 exec, -1")
    A("s_waitcnt vmcnt(0) lgkmcnt(0)")
    A(f"s_memrealtime s[{sST+16}:{sST+17}]\ns_memtime s[86:87]\ns_waitcnt lgkmcnt(0)")
    for k in range(9):
        A(f"v_mov_b32 v{8+k}, s{sST+2*k}")
    A(f"s_sub_u32 s86, s86, s84\ns_sub_u32 s87, s{sST+16}, s{sST}\nv_mov_b32 v17, s86\nv_mov_b32 v18, s87\nv_not_b32 v19, v8")
    A(f"s_lshl_b32 s{sTMP}, s{sWAVE}, 6\nv_mov_b32 v30, s{sTMP}\ns_lshl_b32 s{sTMP}, s{sWAVE}, 2\nv_mov_b32 v31, s{sTMP}\ns_mov_b64 exec, 1")
    for k in range(3):
        A(f"ds_write_b128 v30, v[{8+4*k}:{11+4*k}] offset:{L_ST+16*k}")
    A(f"ds_write_b32 v31, v{vT} offset:{L_DN}")
    A("s_mov_b64 exec, -1")
    A(f"s_cmp_lg_u32 s{sWAVE}, 3\ns_cbranch_scc1 L_done")
    A(f"L_dw:\nv_lshlrev_b32 v8, 2, v{vL}\nv_min_u32 v8, 40, v8\nds_read_b32 v9, v8 offset:{L_DN}\ns_waitcnt lgkmcnt(0)\nv_cmp_ne_u32 vcc, s{sT}, v9\ns_cmp_eq_u64 vcc, 0\ns_cbranch_scc1 L_dw2\ns_sleep 4\ns_sub_u32 s{sSPIN}, s{sSPIN}, 1\ns_cbranch_scc0 L_dw\ns_branch L_done\nL_dw2:")
    A("s_sleep 127\ns_sleep 127")
    adds = [(3,0,1),(0,2,2),(0,4,3),(4,4,4),(8,2,5),(8,3,6),(8,4,7),(0,7,8),(3,9,13),(3,10,14)]
    maxs = [(3,11,0),(0,7,9),(1,7,9),(2,7,9),(3,8,10),(8,3,11),(9,3,11),(10,3,11),(8,4,12),(9,4,12),(10,4,12),(3,0,15)]
    A("v_mov_b32 v20, 0\nv_mov_b32 v21, 0")
    for k, (w, st, d) in enumerate(adds + maxs):
        A(f"s_mov_b32 s{sTMP}, {L_ST + w*64 + st*4}\nv_writelane_b32 v20, s{sTMP}, {k}\ns_mov_b32 s{sTMP}, {d*4}\nv_writelane_b32 v21, s{sTMP}, {k}")
    A("ds_read_b32 v22, v20")
    A(f"s_load_dwordx2 s[{sM+2}:{sM+3}], s[0:1], 88\ns_waitcnt lgkmcnt(0)")
    srd(SR, sM + 2, 256)
    A("s_waitcnt lgkmcnt(0)")
    A(f"s_mov_b64 exec, {(1 << len(adds)) - 1}")
    A(f"buffer_atomic_add v22, v21, s[{SR}:{SR+3}], 0 offen")
    A(f"s_mov_b64 exec, {((1 << len(maxs)) - 1) << len(adds)}")
    A(f"buffer_atomic_umax v22, v21, s[{SR}:{SR+3}], 0 offen")
elif a.stamps:
    A("s_mov_b64 exec, -1")
    A("s_waitcnt vmcnt(0) lgkmcnt(0)")
    A(f"s_memrealtime s[{sST+16}:{sST+17}]\ns_waitcnt lgkmcnt(0)")
    A(f"s_lshl_b32 s{sTMP}, s2, 4\ns_add_u32 s{sTMP}, s{sTMP}, s{sWAVE}\ns_mul_i32 s{sTMP}, s{sTMP}, 80\ns_add_u32 s{sTMP}, s{sTMP}, {STAMP}")
    for k in range(18):
        A(f"v_mov_b32 v{8+k}, s{sST+k}")
    A("v_mov_b32 v30, 0\ns_mov_b64 exec, 1")
    for k in range(4):
        A(f"buffer_store_dwordx4 v[{8+4*k}:{11+4*k}], v30, s[{WS}:{WS+3}], s{sTMP} offen offset:{16*k}")
    A("s_getreg_b32 s3, hwreg(HW_REG_XCC_ID)\nv_mov_b32 v26, s3\nv_mov_b32 v27, 0")
    A(f"buffer_store_dwordx4 v[24:27], v30, s[{WS}:{WS+3}], s{sTMP} offen offset:64")
A("L_done:\ns_endpgm")
A.footer(168)
A.write(a.out)
```

```python
import sys, argparse
from asmlib import *
ap = argparse.ArgumentParser()
ap.add_argument("out")
ap.add_argument("--stamps", type=int, default=0)
ap.add_argument("--prio", type=int, default=1)
ap.add_argument("--lds", type=int, default=163840)
ap.add_argument("--nopoll", type=int, default=0)
ap.add_argument("--near", type=int, default=0)
ap.add_argument("--kfull", type=int, default=0)
ap.add_argument("--psleep", type=int, default=0)
ap.add_argument("--lat", type=int, default=0)
ap.add_argument("--thr", type=int, default=0)
ap.add_argument("--rot", type=int, default=0)
ap.add_argument("--pdepth", type=int, default=3)
ap.add_argument("--pgap", type=int, default=16)
ap.add_argument("--fgap", type=int, default=5)
ap.add_argument("--fdepth", type=int, default=3)
ap.add_argument("--g2", type=int, default=1)
ap.add_argument("--dbg", type=int, default=0)
ap.add_argument("--win", type=str, default="")
ap.add_argument("--gsleep", type=int, default=1)
ap.add_argument("--nt", type=int, default=12)
ap.add_argument("--nofin", type=int, default=0)
ap.add_argument("--lsleep", type=int, default=1)
ap.add_argument("--x1", type=int, default=0)
ap.add_argument("--fmask", type=int, default=0)
ap.add_argument("--fsl", type=int, default=0)
ap.add_argument("--pro", type=int, default=0)
ap.add_argument("--contig", type=str, default="")
ap.add_argument("--fp", type=int, default=0)
ap.add_argument("--xmap", type=int, default=0)
ap.add_argument("--dly", type=str, default="")
ap.add_argument("--pnt", type=int, default=3)
ap.add_argument("--slab", type=int, default=0)
ap.add_argument("--wsl", type=int, default=1)
ap.add_argument("--no2", type=int, default=0)
ap.add_argument("--ks2", type=int, default=2)
ap.add_argument("--lmap", type=int, default=0)
ap.add_argument("--boost", type=int, default=0)
ap.add_argument("--vboost", type=int, default=0)
ap.add_argument("--kboost", type=int, default=0)
ap.add_argument("--vtrig", type=int, default=0)
ap.add_argument("--wj", type=str, default="")
ap.add_argument("--rank", type=int, default=0)
ap.add_argument("--vr", type=int, default=24)
ap.add_argument("--rop", type=int, default=1)
ap.add_argument("--dirty", type=int, default=0)
ap.add_argument("--nf", type=int, default=0)
ap.add_argument("--nft", type=int, default=110)
ap.add_argument("--nfi", type=int, default=0)
ap.add_argument("--nfs", type=int, default=1)
ap.add_argument("--nfd", type=int, default=0)
ap.add_argument("--nfv", type=int, default=0)
ap.add_argument("--dbgv", type=int, default=0)
ap.add_argument("--eb", type=int, default=0)
ap.add_argument("--nfp", default="sc1")
ap.add_argument("--nfx", type=int, default=0)
ap.add_argument("--nfj", type=int, default=-1)
ap.add_argument("--dry", type=int, default=0)
ap.add_argument("--nfr", type=int, default=0)
ap.add_argument("--nfdl", type=int, default=32)
ap.add_argument("--nfo", type=int, default=0)
ap.add_argument("--nfw", type=int, default=0)
a = ap.parse_args()
PN = " nt" if a.pnt & 1 else ""
FN = " nt" if a.pnt & 2 else ""
XN = " nt" if a.pnt & 4 else ""
WIN = [int(x) for x in a.win.split(",")] if a.win else None
if a.dbg: a.stamps = 1

A = Asm()
NW = 12 if a.lat else 11
A.header(256, 64 * NW, a.lds)

QBOX = 0x10000
OBOX = 0x40000
SBOX = 0x70000
FBOX = 0x80000
RBOX = 0x78000
VBOX = 0x7a000
STAMP = 0x8000000
L_PW, L_PK, L_PV = 0, 16, 32
L_QF = 48
L_MX = 64
L_LS = 96
L_FF = 128
L_FFLAG = 144
L_MODE = 148
L_OF = 160
L_PF = 176
L_KI = 192
L_VT = 192
L_DN = 208
L_ST = 2048
L_Q = 256
L_P = 640
L_O = 1152
sH, sJ, sP, sHH = 4, 5, 6, 7
sX, sK, sV, sWQ, sWO = 12, 14, 16, 18, 20
sWSP = 22
sWAVE = 24
sT = 25
sSPIN = 26
sC = 27
WS = 28
SR = 32
sOFF = 36
sTMP, sTMP2, sTMP3 = 37, 38, 39
sSEL = 40
sSELA, sSELB = 44, 45
sFL = sT
SR2 = 48
sM = 52
sNEED, sHAVE = 56, 57
sMODE, sCNT = 58, 59
sXCC = 60
sRB, sRI = 62, 63
sDRY = 61
sST = 64
vL = 0
vOFF = 1
vAD = 2
vT = 3
vACC = 4
vA0, vA1 = 8, 12
vSEL = 16
vCO = 24
vD = 40

nstamp = [0]
def stamp(k):
    if a.stamps:
        A(f"s_memrealtime s[{sST+2*k}:{sST+2*k+1}]")

def thr(n):
    if a.thr and n >= a.thr:
        A(f"s_waitcnt vmcnt({a.thr-1})")

def prio(p):
    if a.prio:
        A(f"s_setprio {p}")

def spin_tail(loop, sleep=1):
    if sleep:
        A(f"s_sleep {sleep}")
    A(f"s_sub_u32 s{sSPIN}, s{sSPIN}, 1\ns_cbranch_scc0 {loop}\ns_branch L_end")

def lds_wait(off, positions, nread, vt):
    if a.nopoll >= 2: return
    lp = A.label("Lw"); dn = A.label("Lwd")
    vz = vt + nread + 1
    vx = vt + nread
    A(f"v_mov_b32 v{vz}, 0")
    A(f"{lp}:")
    k = 0
    while k < nread:
        n = min(4, nread - k)
        op = {1: "ds_read_b32", 2: "ds_read_b64", 4: "ds_read_b128"}[n]
        reg = f"v{vt+k}" if n == 1 else f"v[{vt+k}:{vt+k+n-1}]"
        A(f"{op} {reg}, v{vz} offset:{off+4*k}")
        k += n
    A("s_waitcnt lgkmcnt(0)")
    first = True
    for p in positions:
        if first:
            A(f"v_xor_b32 v{vx}, s{sFL}, v{vt+p}")
            first = False
        else:
            A(f"v_xor_b32 v{vz}, s{sFL}, v{vt+p}\nv_or_b32 v{vx}, v{vx}, v{vz}")
    A(f"v_mov_b32 v{vz}, 0")
    A(f"v_cmp_ne_u32 vcc, 0, v{vx}")
    A(f"s_cmp_eq_u64 vcc, 0\ns_cbranch_scc1 {dn}")
    spin_tail(lp, a.lsleep)
    A(f"{dn}:")

def gate_init(widx, NP, vz):
    A(f"s_add_u32 s{sNEED}, s{widx}, 1\ns_mul_i32 s{sNEED}, s{sNEED}, {NP}\ns_mov_b32 s{sHAVE}, 0\nv_mov_b32 v{vz}, 0")

def gate(loff, kS, NP, NS, vz, vt):
    lp = A.label("Lg"); go = A.label("Lgo")
    A(f"{lp}:\ns_cmp_ge_u32 s{sHAVE}, s{sNEED}\ns_cbranch_scc1 {go}")
    if a.x1: A("s_mov_b64 exec, 1")
    A(f"ds_read_b128 v[{vt}:{vt+3}], v{vz} offset:{loff}\ns_waitcnt lgkmcnt(0)")
    A(f"v_add3_u32 v{vt}, v{vt}, v{vt+1}, v{vt+2}\nv_add_u32 v{vt}, v{vt}, v{vt+3}\ns_nop 0\nv_readfirstlane_b32 s{sHAVE}, v{vt}")
    if a.x1: A("s_mov_b64 exec, -1")
    A(f"s_mul_i32 s{sHAVE}, s{sHAVE}, {NS}\ns_cmp_ge_u32 s{sHAVE}, s{sNEED}\ns_cbranch_scc1 {go}")
    spin_tail(lp, a.gsleep)
    A(f"{go}:\ns_add_u32 s{sNEED}, s{sNEED}, {kS*NP}")

def credit(loff, vaddr, vval, n):
    A(f"v_mov_b32 v{vval}, {n}\nds_write_b32 v{vaddr}, v{vval} offset:{loff}")

def lds_flag(off, vtmp):
    A(f"v_mov_b32 v{vtmp}, 0\nds_write_b32 v{vtmp}, v{vT} offset:{off}")

def get_T():
    A("s_waitcnt lgkmcnt(0)")
    A(f"s_mul_i32 s{sT}, s{sT}, 0x9E3779B1\ns_add_u32 s{sT}, s{sT}, 0x7F4A7C15\ns_andn2_b32 s{sT}, s{sT}, 15\ns_or_b32 s{sT}, s{sT}, 8\ns_or_b32 s{sT}, s{sT}, s{sXCC}")
    A(f"v_mov_b32 v{vT}, s{sT}")

def make_selectors():
    t0, t1, t2, t3 = vA0, vA0 + 1, vA0 + 2, vA0 + 3
    A(f"v_bfe_u32 v{t0}, v{vL}, 2, 2")
    A(f"v_bfe_u32 v{t1}, v{vL}, 1, 1")
    A(f"v_cmp_eq_u32 vcc, 1, v{t1}")
    A(f"v_mov_b32 v{t2}, 0x0c0c0100\nv_mov_b32 v{t3}, 0x01000c0c")
    A(f"v_cndmask_b32 v{t2}, v{t2}, v{t3}, vcc")
    A(f"v_mov_b32 v{t1}, 0x0c0c0302\nv_mov_b32 v{t3}, 0x03020c0c")
    A(f"v_cndmask_b32 v{t3}, v{t1}, v{t3}, vcc")
    A(f"v_mov_b32 v{t1}, 0x0c0c0c0c")
    for t in range(4):
        A(f"v_cmp_eq_u32 vcc, {t}, v{t0}\ns_nop 1")
        A(f"v_cndmask_b32 v{vSEL+2*t}, v{t1}, v{t2}, vcc\nv_cndmask_b32 v{vSEL+2*t+1}, v{t1}, v{t3}, vcc")

def build_A(b, buf):
    src = vCO + b // 2
    for t in range(4):
        A(f"v_perm_b32 v{buf+t}, v{src}, v{src}, v{vSEL+2*t+(b&1)}")

def diag_gemv(nb, extra_after=0, win=None, hook=None):
    build_A(0, vA0)
    for b in range(nb):
        if b + 1 < nb:
            build_A(b + 1, vA1 if (b & 1) == 0 else vA0)
        else:
            A("s_nop 1")
        A(f"s_waitcnt vmcnt({min(nb-1-b, (win or nb)-1)+extra_after})")
        if hook: hook(b)
        buf = vA0 if (b & 1) == 0 else vA1
        c = "0" if b == 0 else f"v[{vACC}:{vACC+3}]"
        A(f"v_mfma_f32_16x16x32_bf16 v[{vACC}:{vACC+3}], v[{buf}:{buf+3}], v[{vD+4*b}:{vD+4*b+3}], {c}")

def combine(g):
    A("s_nop 7")
    A(f"v_add_f32_dpp v{g}, v{vACC+1}, v{vACC} row_ror:8 row_mask:0xf bank_mask:0xf")
    A(f"v_add_f32_dpp v{g+1}, v{vACC+3}, v{vACC+2} row_ror:8 row_mask:0xf bank_mask:0xf")
    A(f"v_mov_b32 v{g+2}, 0\nv_mov_b32 v{g+3}, 0")
    A("s_nop 1")
    A(f"v_permlane16_swap_b32 v{g}, v{g+2}\nv_permlane16_swap_b32 v{g+1}, v{g+3}")
    A("s_nop 1")
    for k in range(4):
        A(f"v_perm_b32 v{g+k}, v{g+k}, v{vT}, s{sSEL+k}")

def poll(g, voff, soff, sleep=0, depth=None, gap=None, on_timeout=None, lfl=None, after_first=None):
    if a.nopoll >= 1: return
    depth = depth or a.pdepth
    gap = a.pgap if gap is None else gap
    lp = A.label("Lp"); dn = A.label("Lpd")
    sets = [g + 8 + 4 * k for k in range(depth)]
    def issue(r):
        A(f"buffer_load_dwordx4 v[{r}:{r+3}], v{voff}, s[{WS}:{WS+3}], s{soff} offen sc1{PN if lfl is None else lfl}")
    for k in range(depth - 1):
        issue(sets[k])
        if k == 0 and after_first: after_first()
        if gap: A(f"s_sleep {gap}")
    if on_timeout: A(f"s_mov_b32 s{sCNT}, 0")
    A(f"{lp}:")
    fins = []
    for k in range(depth):
        issue(sets[(k + depth - 1) % depth])
        r = sets[k]
        A(f"s_waitcnt vmcnt({depth-1})")
        A(f"v_perm_b32 v{g+4}, v{r+1}, v{r}, s{sSELA}\nv_perm_b32 v{g+5}, v{r+3}, v{r+2}, s{sSELB}")
        A(f"v_or_b32 v{g+4}, v{g+4}, v{g+5}\nv_xor_b32 v{g+4}, s{sT}, v{g+4}")
        A(f"v_cmp_lt_u32 vcc, 7, v{g+4}")
        fl = A.label("Lpf"); fins.append((fl, r))
        A(f"s_cmp_eq_u64 vcc, 0\ns_cbranch_scc1 {fl}")
    if on_timeout:
        A(f"s_add_u32 s{sCNT}, s{sCNT}, 1\ns_cmp_lg_u32 s{sCNT}, {a.nt}\ns_cbranch_scc1 {lp}_t")
        on_timeout()
        A(f"{lp}_t:")
    spin_tail(lp, 0)
    for i, (fl, r) in enumerate(fins):
        A(f"{fl}:")
        for k in range(4):
            A(f"v_mov_b32 v{g+k}, v{r+k}")
        if i < len(fins) - 1: A(f"s_branch {dn}")
    A(f"{dn}:")
    A("s_nop 1")

def lds_mode(vz, vr):
    A(f"v_mov_b32 v{vz}, 0\nds_read_b32 v{vr}, v{vz} offset:{L_MODE}")

def publish_gather(box, ldsdst, ldsflag, fscale, g=vD, h=None):
    combine(g)
    A(f"v_and_b32 v{g+8}, 7, v{vL}\nv_lshrrev_b32 v{g+9}, 5, v{vL}\nv_lshl_add_u32 v{g+8}, v{g+8}, 1, v{g+9}\nv_lshlrev_b32 v{g+8}, 4, v{g+8}")
    A(f"s_mul_i32 s{sOFF}, s{sH}, 3072\ns_lshl_b32 s{sTMP}, s{sC}, 10\ns_add_u32 s{sOFF}, s{sOFF}, s{sTMP}\ns_add_u32 s{sOFF}, s{sOFF}, {box}")
    A(f"s_lshl_b32 s{sTMP3}, s{sJ}, 8\ns_add_u32 s{sTMP3}, s{sTMP3}, s{sOFF}")
    def store(fl):
        A("s_mov_b32 exec_lo, 0xff\ns_mov_b32 exec_hi, 0xff")
        A(f"buffer_store_dwordx4 v[{g}:{g+3}], v{g+8}, s[{WS}:{WS+3}], s{sTMP3} offen{fl}")
        A("s_mov_b64 exec, -1")
    if fscale:
        l1 = A.label("Ls"); l2 = A.label("Ls")
        A(f"s_cmp_lg_u32 s{sMODE}, 0\ns_cbranch_scc1 {l1}")
        store("")
        A(f"s_branch {l2}\n{l1}:")
        store(" sc1")
        A(f"{l2}:")
    else:
        store("")
    stamp(3)
    A(f"v_and_b32 v{g+10}, 3, v{vL}\nv_lshrrev_b32 v{g+11}, 2, v{vL}\nv_lshlrev_b32 v{g+12}, 4, v{g+11}\nv_lshl_add_u32 v{g+12}, v{g+10}, 8, v{g+12}")
    if fscale:
        lds_wait(L_FFLAG, [0], 1, g + 16)
        A(f"v_lshlrev_b32 v{g+13}, 2, v{g+10}\nds_read_b32 v{g+13}, v{g+13} offset:{L_FF}")
    h = h or g + 20
    def opf(): A(f"s_lshl_b32 s{sTMP}, s{sC}, 2\nv_mov_b32 v{g+14}, s{sTMP}\nds_write_b32 v{g+14}, v{vT} offset:{L_VT+4}")
    poll(h, g + 12, sOFF, on_timeout=None if fscale else (lambda: store(" sc1")), after_first=opf if fscale and a.rank else None)
    stamp(4)
    if fscale:
        A("s_waitcnt lgkmcnt(0)")
        for k in range(4):
            A(f"v_mul_f32 v{h+k}, v{h+k}, v{g+13}")
    else:
        if a.nopoll: A(f"v_mov_b32 v{h+4}, 0")
        A(f"v_cmp_ne_u32 vcc, 0, v{h+4}\ns_cmp_lg_u64 vcc, 0\ns_cselect_b32 s{sMODE}, 1, 0\nv_mov_b32 v{g+13}, s{sMODE}\nv_mov_b32 v{g+14}, 0")
        l1 = A.label("Ls")
        A(f"s_cbranch_scc0 {l1}")
        store(" sc1")
        A(f"{l1}:")
    for k in range(4):
        A(f"v_add_f32_dpp v{h+4+k}, v{h+k}, v{h+k} quad_perm:[1,0,3,2] row_mask:0xf bank_mask:0xf")
    for k in range(4):
        A(f"v_add_f32_dpp v{h+k}, v{h+4+k}, v{h+4+k} quad_perm:[2,3,0,1] row_mask:0xf bank_mask:0xf")
    A(f"v_cvt_pk_bf16_f32 v{h+4}, v{h}, v{h+1}\nv_cvt_pk_bf16_f32 v{h+5}, v{h+2}, v{h+3}")
    A(f"s_lshl_b32 s{sTMP}, s{sC}, 7\nv_lshlrev_b32 v{g+11}, 3, v{g+11}\nv_add_u32 v{g+11}, s{sTMP}, v{g+11}")
    A(f"s_lshl_b32 s{sTMP}, s{sC}, 2\nv_mov_b32 v{g+10}, s{sTMP}")
    A("s_mov_b32 exec_lo, 0x11111111\ns_mov_b32 exec_hi, 0x11111111")
    A(f"ds_write_b64 v{g+11}, v[{h+4}:{h+5}] offset:{ldsdst}")
    if not fscale:
        A(f"ds_write_b32 v{g+14}, v{g+13} offset:{L_MODE}")
    A(f"ds_write_b32 v{g+10}, v{vT} offset:{ldsflag}")
    A("s_mov_b64 exec, -1")

def coef_addr(vdst, per):
    A(f"v_lshrrev_b32 v{vdst}, 4, v{vL}\nv_and_b32 v{vA0}, 1, v{vL}\nv_lshl_add_u32 v{vdst}, v{vdst}, 1, v{vA0}\nv_mul_u32_u24 v{vdst}, {per}, v{vdst}")

def data_voff(rowstep):
    A(f"v_lshrrev_b32 v{vOFF}, 3, v{vL}\nv_mul_u32_u24 v{vOFF}, {rowstep}, v{vOFF}\nv_and_b32 v{vA0}, 7, v{vL}\nv_lshl_add_u32 v{vOFF}, v{vA0}, 4, v{vOFF}")

def srd(d, lo, n):
    A.srd(d, lo, n)

A("s_cmp_ge_u32 s2, 256\ns_cbranch_scc1 L_done")
stamp(0)
if a.stamps:
    for k in range(2, 18):
        A(f"s_mov_b32 s{sST+k}, 0")
if a.dly:
    dl = a.dly
    if dl[0] == "w":
        dl = dl[1:]; A("s_and_b32 s3, s2, 7")
    else:
        A("s_getreg_b32 s3, hwreg(HW_REG_XCC_ID, 0, 3)")
    dl = [int(x) for x in dl.split(",")]
    lo = sum(v << (8 * i) for i, v in enumerate(dl[:4])); hi = sum(v << (8 * i) for i, v in enumerate(dl[4:]))
    A(f"s_mov_b32 s4, {lo}\ns_mov_b32 s5, {hi}\ns_lshl_b32 s3, s3, 3\ns_lshr_b64 s[4:5], s[4:5], s3\ns_and_b32 s4, s4, 0xff")
    A("L_dl:\ns_sub_u32 s4, s4, 1\ns_cbranch_scc1 L_nd\ns_sleep 2\ns_branch L_dl\nL_nd:")
A(f"s_load_dwordx2 s[{sWSP}:{sWSP+1}], s[0:1], 96")
if a.xmap == 1:
    A(f"s_and_b32 s{sJ}, s2, 3\ns_lshr_b32 s{sH}, s2, 2")
elif a.xmap == 2:
    A(f"s_lshr_b32 s{sH}, s2, 3\ns_and_b32 s{sJ}, s{sH}, 3\ns_cmp_eq_u32 s{sJ}, 3\ns_cselect_b32 s3, 1, 0\ns_add_u32 s3, s3, s2\ns_and_b32 s3, s3, 7\ns_lshr_b32 s{sH}, s{sH}, 2\ns_lshl_b32 s3, s3, 3\ns_add_u32 s{sH}, s{sH}, s3")
else:
    A(f"s_add_u32 s3, s2, {a.rot}\ns_and_b32 s3, s3, 7\ns_lshr_b32 s{sH}, s2, 3\ns_and_b32 s{sJ}, s{sH}, 3\ns_lshr_b32 s{sH}, s{sH}, 2\ns_lshl_b32 s3, s3, 3\ns_add_u32 s{sH}, s{sH}, s3")
A(f"s_lshr_b32 s{sP}, s{sH}, 5\ns_and_b32 s{sHH}, s{sH}, 31")
A(f"s_lshl_b32 s9, s{sP}, 7")
A(f"s_mul_i32 s8, s{sP}, 40\ns_add_u32 s10, s0, s8\ns_addc_u32 s11, s1, 0")
A(f"s_load_dwordx8 s[{sX}:{sX+7}], s[10:11], 0")
A(f"s_load_dwordx2 s[{sWO}:{sWO+1}], s[10:11], 32")
A(f"v_lshrrev_b32 v1, 6, v0\nv_and_b32 v0, 63, v0\nv_readfirstlane_b32 s{sWAVE}, v1")
A(f"s_mov_b32 s{sSPIN}, 200000\ns_getreg_b32 s{sXCC}, hwreg(HW_REG_XCC_ID, 0, 3)")
for k in range(4):
    A(f"s_mov_b32 s{sSEL+k}, {0x07060500 + k:#x}")
A(f"s_mov_b32 s{sSELA}, 0x0c0c0400\ns_mov_b32 s{sSELB}, 0x04000c0c")
A(f"""s_cmp_lt_u32 s{sWAVE}, 3
s_cbranch_scc1 L_w
s_cmp_eq_u32 s{sWAVE}, 3
s_cbranch_scc1 L_aux
s_cmp_lt_u32 s{sWAVE}, 8
s_cbranch_scc1 L_k
s_cmp_lt_u32 s{sWAVE}, 11
s_cbranch_scc1 L_v
s_branch L_aux""")

A("L_w:")
prio(3)
A(f"s_mov_b32 s{sC}, s{sWAVE}")
A(f"s_mul_i32 s{sOFF}, s{sJ}, {160*12288}\ns_mul_i32 s{sTMP3}, s{sHH}, 384\ns_add_u32 s{sOFF}, s{sOFF}, s{sTMP3}\ns_lshl_b32 s{sTMP3}, s{sC}, 7\ns_add_u32 s{sOFF}, s{sOFF}, s{sTMP3}")
A(f"s_mul_i32 s{sTMP2}, s{sJ}, 320")
for nb in (20,):
    data_voff(nb * 12288)
    if "q" in a.contig:
        A(f"v_lshlrev_b32 v{vOFF}, 4, v{vL}\ns_lshl_b32 s{sOFF}, s{sHH}, 2\ns_add_u32 s{sOFF}, s{sOFF}, s{sJ}\ns_mul_i32 s{sOFF}, s{sOFF}, 3\ns_add_u32 s{sOFF}, s{sOFF}, s{sC}\ns_mul_i32 s{sOFF}, s{sOFF}, 20480")
    coef_addr(vAD, 2 * nb)
    if a.nf == 10:
        A(f"s_lshr_b32 s{sRB}, s2, 4\ns_lshl_b32 s{sRB}, s{sRB}, 14\ns_and_b32 s{sRI}, s2, 15\ns_lshl_b32 s{sRI}, s{sRI}, 9\ns_add_u32 s{sRB}, s{sRB}, s{sRI}\ns_add_u32 s{sRB}, s{sRB}, {FBOX + 20*16384}")
        A(f"s_and_b32 s{sRI}, s{sJ}, 1\ns_lshl_b32 s{sRI}, s{sRI}, 13\ns_add_u32 s{sRB}, s{sRB}, s{sRI}\ns_xor_b32 s{sRI}, s{sRB}, 8192\nv_mov_b32 v165, 0\ns_mov_b32 s{WS+2}, 0x10000000\ns_mov_b32 s{WS+3}, 0x00020000\ns_cmp_lg_u32 s{sC}, 0")
    A("s_waitcnt lgkmcnt(0)")
    if a.nf == 10:
        A(f"s_mov_b32 s{WS}, s{sWSP}\ns_cbranch_scc1 L_wnp\ns_and_b32 s{WS+1}, s{sWSP+1}, 0xffff\ns_mov_b64 exec, 1")
        A(f"buffer_load_dword v166, v165, s[{WS}:{WS+3}], s{sRB} offen {a.nfp}\nbuffer_load_dword v167, v165, s[{WS}:{WS+3}], s{sRI} offen {a.nfp}\ns_mov_b64 exec, -1\nL_wnp:")
    if a.pro: stamp(5)
    A(f"s_load_dword s{sT}, s[{sWSP}:{sWSP+1}], s9")
    srd(SR, sWQ, 640 * 12288)
    srd(SR2, sX, 1280)
    for k in range(nb // 8):
        A(f"buffer_load_dwordx4 v[{vCO+4*k}:{vCO+4*k+3}], v{vAD}, s[{SR2}:{SR2+3}], s{sTMP2} offen offset:{16*k}{XN}")
    A(f"buffer_load_dwordx2 v[{vCO+8}:{vCO+9}], v{vAD}, s[{SR2}:{SR2+3}], s{sTMP2} offen offset:32{XN}")
    nw = WIN[0] if WIN else nb
    def wq_load(b):
        A(f"buffer_load_dwordx4 v[{vD+4*b}:{vD+4*b+3}], v{vOFF}, s[{SR}:{SR+3}], s{sOFF} offen nt")
        if b < nb - 1: A(f"s_add_u32 s{sOFF}, s{sOFF}, {1024 if 'q' in a.contig else 12288}")
    for b in range(nw):
        thr(b)
        wq_load(b)
    stamp(1)
    A("s_barrier")
    srd(WS, sWSP, 0x10000000)
    make_selectors()
    if a.nf == 10:
        A(f"s_cmp_lg_u32 s{sC}, 0\ns_cbranch_scc1 L_wnq\ns_waitcnt vmcnt({nw+4})")
        A(f"s_sleep {a.nfs}" if a.nfs > 0 else f"s_nop {-a.nfs}")
        A(f"s_getreg_b32 s{sRI}, hwreg(HW_REG_IB_STS, 0, 4)\ns_bitcmp1_b32 s{sJ}, 0\ns_cselect_b32 s{sRB}, 0, 16\ns_cmp_eq_u32 s{sRI}, {nw+4}\ns_cselect_b32 s{sRB}, s{sRB}, 32\nL_wnq:")
    get_T()
    A(f"s_waitcnt vmcnt({nw})")
    if a.pro:
        A(f"s_waitcnt vmcnt({nw-1})")
        stamp(6)
    if WIN:
        A(f"s_lshl_b32 s{sTMP}, s{sC}, 2\nv_mov_b32 v{vAD}, s{sTMP}")
        def hook(b):
            if b + nw < nb: wq_load(b + nw)
            else: credit(L_PW, vAD, vCO - 1 - 0 if False else 164, b + nw - nb + 1)
        diag_gemv(nb, win=nw, hook=hook)
    else:
        diag_gemv(nb)
stamp(2)
publish_gather(QBOX, L_Q, L_QF, False, g=vD, h=136)
if not a.pro: stamp(5)
if a.nf == 10:
    A(f"s_cmp_lg_u32 s{sC}, 0\ns_cbranch_scc1 L_wnv\ns_xor_b32 s{sRB}, s{sRB}, s{sT}\nv_mov_b32 v166, s{sRB}\ns_lshl_b32 s{sRI}, s{sXCC}, 10\ns_add_u32 s{sRI}, s{sRI}, {VBOX}\ns_lshl_b32 s{sTMP}, s2, 2\nv_mov_b32 v165, s{sTMP}")
    A(f"s_mov_b64 exec, 1\nbuffer_store_dword v166, v165, s[{WS}:{WS+3}], s{sRI} offen\ns_mov_b64 exec, -1\nL_wnv:")
vF = 160
A(f"s_lshl_b32 s{sTMP}, s{sC}, 2\nv_mov_b32 v{vF+1}, s{sTMP}")
A(f"{'s_lshr_b32' if a.lmap else 's_and_b32'} s{sTMP}, s{sJ}, 1\ns_add_u32 s{sTMP}, s{sTMP}, s{sC}\ns_cmp_eq_u32 s{sTMP}, 3\ns_cbranch_scc1 L_w_fin")
prio(0)
if a.dry & 1: A(f"s_mov_b32 s{sDRY}, 1\ns_branch L_fc\nL_fcb:\ns_mov_b32 s{sDRY}, 0")
srd(SR, sWO, 6144 * 1280)
data_voff(8 * 1280 if a.slab else 24 * 1280)
if a.lmap: A(f"s_mul_i32 s{sTMP}, s{sJ}, 3\ns_add_u32 s{sM}, s{sJ}, 1\ns_lshr_b32 s{sM}, s{sM}, 2\ns_sub_u32 s{sTMP}, s{sTMP}, s{sM}\ns_add_u32 s{sM}, s{sTMP}, s{sC}")
else: A(f"s_mul_i32 s{sTMP}, s{sJ}, 5\ns_add_u32 s{sTMP}, s{sTMP}, 1\ns_lshr_b32 s{sTMP}, s{sTMP}, 1\ns_add_u32 s{sM}, s{sTMP}, s{sC}")
A(f"s_mul_i32 s{sOFF}, s{sHH}, {192*1280}\ns_lshl_b32 s{sTMP}, s{sM}, 7\ns_add_u32 s{sOFF}, s{sOFF}, s{sTMP}")
if "o" in a.contig:
    A(f"v_lshlrev_b32 v{vOFF}, 4, v{vL}\ns_mul_i32 s{sOFF}, s{sHH}, 10\ns_add_u32 s{sOFF}, s{sOFF}, s{sM}\ns_mul_i32 s{sOFF}, s{sOFF}, 24576")
if WIN: gate_init(sC, 3 * WIN[2], vCO)
def wo_issue(nO, kS):
    rest = [A.label("Lb") for b in range(24)]
    for b in range(24):
        thr(b)
        if WIN:
            if b < nO: gate(L_PV, kS, 3 * WIN[2], kS * nO, vCO, vCO + 4)
            else:
                if a.boost:
                    t = vCO + 4
                    A(f"ds_read_b128 v[{t}:{t+3}], v{vCO} offset:{L_OF}\ns_waitcnt lgkmcnt(0)")
                    op = "v_or3_b32" if a.boost == 2 else None
                    if a.boost == 1:
                        A(f"v_and_b32 v{t}, v{t}, v{t+1}\nv_and_or_b32 v{t}, v{t}, v{t+2}, v{t+3}")
                    else:
                        A(f"v_or3_b32 v{t}, v{t}, v{t+1}, v{t+2}")
                    A(f"v_cmp_ne_u32 vcc, 0, v{t}\ns_cbranch_vccnz {rest[b]}")
                A(f"s_waitcnt vmcnt({nO-1})")
        A(f"buffer_load_dwordx4 v[{vD+4*b}:{vD+4*b+3}], v{vOFF}, s[{SR}:{SR+3}], s{sOFF} offen nt")
        if b < 23: A(f"s_add_u32 s{sOFF}, s{sOFF}, {1024 if 'o' in a.contig else (57 * 1280 if a.slab and b % 8 == 7 else 1280)}")
    if a.boost and WIN:
        A("s_branch L_wo_j")
        for b in range(nO, 24):
            A(f"{rest[b]}:")
            A(f"buffer_load_dwordx4 v[{vD+4*b}:{vD+4*b+3}], v{vOFF}, s[{SR}:{SR+3}], s{sOFF} offen nt")
            if b < 23: A(f"s_add_u32 s{sOFF}, s{sOFF}, {1024 if 'o' in a.contig else (57 * 1280 if a.slab and b % 8 == 7 else 1280)}")
        A("s_branch L_wo_j")
    return
    for b in range(24):
        A(f"buffer_load_dwordx4 v[{vD+4*b}:{vD+4*b+3}], v{vOFF}, s[{SR}:{SR+3}], s{sOFF} offen nt")
        if b < 23: A(f"s_add_u32 s{sOFF}, s{sOFF}, {1024 if 'o' in a.contig else (57 * 1280 if a.slab and b % 8 == 7 else 1280)}")
if a.wj:
    assert a.boost
    wj = [int(x) for x in a.wj.split(",")]
    for jj in range(4):
        heavy = (jj < 2) if a.lmap else (jj % 2 == 0)
        if jj < 3: A(f"s_cmp_lg_u32 s{sJ}, {jj}\ns_cbranch_scc1 L_wj{jj}")
        wo_issue(wj[jj], 3 if heavy else 2)
        A(f"L_wj{jj}:")
elif a.no2:
    A(f"s_bitcmp1_b32 s{sJ}, {1 if a.lmap else 0}\ns_cbranch_scc0 L_wo_e")
    wo_issue(a.no2, a.ks2)
    A("s_branch L_wo_j\nL_wo_e:")
if not a.wj: wo_issue(WIN[3] if WIN else 24, 3)
A("L_wo_j:")
prio(3)
if not a.pro: stamp(6)
coef_addr(vAD, 16 if a.slab else 48)
if a.fp:
    gp = a.fp // 16; lg = gp.bit_length() - 1
    A(f"v_and_b32 v{vF}, 7, v{vL}\nv_lshrrev_b32 v{vF+2}, 5, v{vL}\nv_lshl_add_u32 v{vF}, v{vF}, 1, v{vF+2}")
    A(f"v_and_b32 v{vF+2}, {gp-1}, v{vF}\nv_lshrrev_b32 v{vF}, {lg}, v{vF}\nv_mul_u32_u24 v{vF}, {32*a.fp}, v{vF}\nv_lshl_add_u32 v{vF}, v{vF+2}, 4, v{vF}")
    A(f"s_mul_i32 s{sOFF}, s{sP}, 10\ns_add_u32 s{sOFF}, s{sOFF}, s{sM}\ns_lshl_b32 s{sOFF}, s{sOFF}, {14 if a.nf else 13}\ns_mul_i32 s{sTMP}, s{sHH}, {a.fp}\ns_add_u32 s{sOFF}, s{sOFF}, s{sTMP}\ns_add_u32 s{sOFF}, s{sOFF}, {FBOX}")
else:
    A(f"v_and_b32 v{vF}, 7, v{vL}\nv_lshrrev_b32 v{vF+2}, 5, v{vL}\nv_lshlrev_b32 v{vF}, 10, v{vF}\nv_lshl_add_u32 v{vF}, v{vF+2}, 9, v{vF}")
    A(f"s_lshl_b32 s{sTMP}, s{sP}, 2\ns_add_u32 s{sTMP}, s{sTMP}, s{sJ}\ns_mul_i32 s{sOFF}, s{sTMP}, 24576\ns_lshl_b32 s{sTMP}, s{sHH}, 4\ns_add_u32 s{sOFF}, s{sOFF}, s{sTMP}\ns_lshl_b32 s{sTMP}, s{sC}, 13\ns_add_u32 s{sOFF}, s{sOFF}, s{sTMP}\ns_add_u32 s{sOFF}, s{sOFF}, {FBOX}")
if a.slab:
    vfl = vCO + 12
    A(f"v_mov_b32 v{vF+2}, 0\ns_mov_b32 s{sM}, 7")
    for k in range(4): A(f"v_mov_b32 v{vACC+k}, 0")
    A("L_kl:")
    A(f"ds_read_b128 v[{vfl}:{vfl+3}], v{vF+2} offset:{L_OF}")
    for c in range(3): A(f"ds_read_b128 v[{vCO+4*c}:{vCO+4*c+3}], v{vAD} offset:{L_O+128*c}")
    A("s_waitcnt lgkmcnt(0)")
    for c in range(3): A(f"v_readfirstlane_b32 s{sTMP+c}, v{vfl+c}")
    for c in range(3):
        A(f"s_bitcmp0_b32 s{sM}, {c}\ns_cbranch_scc1 L_kn{c}")
        if a.nopoll < 2: A(f"s_cmp_lg_u32 s{sTMP+c}, s{sT}\ns_cbranch_scc1 L_kn{c}")
        A(f"s_bitset0_b32 s{sM}, {c}")
        def bA(b, buf):
            for t in range(4): A(f"v_perm_b32 v{buf+t}, v{vCO+4*c+b//2}, v{vCO+4*c+b//2}, v{vSEL+2*t+(b&1)}")
        bA(0, vA0)
        for b in range(8):
            if b < 7: bA(b + 1, vA1 if (b & 1) == 0 else vA0)
            else: A("s_nop 1")
            buf = vA0 if (b & 1) == 0 else vA1
            n = 8 * c + b
            A(f"s_waitcnt vmcnt({23-n})")
            A(f"v_mfma_f32_16x16x32_bf16 v[{vACC}:{vACC+3}], v[{buf}:{buf+3}], v[{vD+4*n}:{vD+4*n+3}], v[{vACC}:{vACC+3}]")
        A(f"L_kn{c}:")
    A(f"s_cmp_eq_u32 s{sM}, 0\ns_cbranch_scc1 L_kd")
    spin_tail("L_kl", a.wsl)
    A("L_kd:")
else:
    lds_wait(L_OF, [0, 1, 2], 4, vCO)
    for k in range(3):
        A(f"ds_read_b128 v[{vCO+4*k}:{vCO+4*k+3}], v{vAD} offset:{L_O+16*k}")
    A("s_waitcnt lgkmcnt(0)")
    A("L_fc:")
    diag_gemv(24)
combine(vCO)
if a.dry & 1: A(f"s_cmp_lg_u32 s{sDRY}, 0\ns_cbranch_scc1 L_fcb")
A("s_mov_b32 exec_lo, 0xff\ns_mov_b32 exec_hi, 0xff")
if a.nofin != 1: A(f"buffer_store_dwordx4 v[{vCO}:{vCO+3}], v{vF}, s[{WS}:{WS+3}], s{sOFF} offen{'' if a.nofin == 3 else ' sc1'}")
if a.nf and a.nofin != 1: A(f"s_add_u32 s{sOFF}, s{sOFF}, 8192\nbuffer_store_dwordx4 v[{vCO}:{vCO+3}], v{vF}, s[{WS}:{WS+3}], s{sOFF} offen sc1")
A("s_mov_b64 exec, -1")
A("L_w_fin:")
A(f"ds_write_b32 v{vF+1}, v{vT} offset:{L_PF}")
stamp(7)
A("s_branch L_end")

A("L_k:")
prio(2)
A(f"s_sub_u32 s{sC}, s{sWAVE}, 4")
A(f"v_and_b32 v{vOFF}, 7, v{vL}\nv_mul_u32_u24 v{vOFF}, 384, v{vOFF}\nv_bfe_u32 v8, v{vL}, 3, 1\nv_lshl_add_u32 v{vOFF}, v8, 6, v{vOFF}\nv_lshrrev_b32 v8, 4, v{vL}\nv_lshl_add_u32 v{vOFF}, v8, 4, v{vOFF}")
A(f"v_and_b32 v{vAD}, 1, v{vL}\nv_lshlrev_b32 v{vAD}, 6, v{vAD}\nv_lshl_add_u32 v{vAD}, v8, 4, v{vAD}")
A(f"s_mul_i32 s{sOFF}, s{sHH}, 1572864\ns_mul_i32 s{sTMP}, s{sJ}, 98304\ns_add_u32 s{sOFF}, s{sOFF}, s{sTMP}\ns_mul_i32 s{sTMP}, s{sC}, 24576\ns_add_u32 s{sOFF}, s{sOFF}, s{sTMP}\ns_add_u32 s{sOFF}, s{sOFF}, {3072*384}")
A("s_waitcnt lgkmcnt(0)")
A(f"s_load_dword s{sT}, s[{sWSP}:{sWSP+1}], s9")
srd(SR, sK, 50331648)
srd(WS, sWSP, 0x10000000)
A("s_barrier")
get_T()
if WIN: gate_init(sC, 3 * WIN[0], 24)
krest = [A.label("Lkb") for b in range(24)]
def k_load(t):
    A(f"buffer_load_dwordx4 v[{vD+4*t}:{vD+4*t+3}], v{vOFF}, s[{SR}:{SR+3}], s{sOFF} offen offset:{128*(t%3)} nt")
    if t % 3 == 2 and t < 23: A(f"s_add_u32 s{sOFF}, s{sOFF}, 3072")
for t in range(24):
    thr(t)
    if WIN:
        if t < WIN[1]: gate(L_PW, 4, 3 * WIN[0], 4 * WIN[1], 24, 28)
        else:
            if a.kboost:
                A(f"ds_read_b128 v[28:31], v24 offset:{L_QF}\ns_waitcnt lgkmcnt(0)\nv_and_b32 v28, v28, v29\nv_and_b32 v28, v28, v30\nv_cmp_ne_u32 vcc, 0, v28\ns_cbranch_vccnz {krest[t]}")
            A(f"s_waitcnt vmcnt({WIN[1]-1})")
    k_load(t)
if a.kboost:
    A("s_branch L_kb_j")
    for t in range(WIN[1], 24):
        if t >= a.kboost: A(f"s_waitcnt vmcnt({a.kboost-1})")
        A(f"{krest[t]}:")
        k_load(t)
    A("L_kb_j:")
if WIN:
    prio(3)
    A(f"s_lshl_b32 s{sTMP}, s{sC}, 2\nv_mov_b32 v8, s{sTMP}")
    for i in range(WIN[1]):
        A(f"s_waitcnt vmcnt({WIN[1]-1-i})")
        credit(L_PK, 8, 9, i + 1)
elif a.g2:
    A(f"s_lshl_b32 s{sTMP}, s{sC}, 2\nv_mov_b32 v8, s{sTMP}\nds_write_b32 v8, v{vT} offset:{L_KI}")
prio(3)
stamp(1)
vQ = 8
vS = 136
lds_wait(L_QF, [0, 1, 2], 4, 24)
stamp(2)
for u in range(3):
    A(f"ds_read_b128 v[{vQ+4*u}:{vQ+4*u+3}], v{vAD} offset:{L_Q+128*u}")
A("s_waitcnt lgkmcnt(0)")
s_ = 24
for t in range(24):
    G, u = divmod(t, 3)
    A(f"s_waitcnt vmcnt({23-t})")
    c = "0" if u == 0 else f"v[{vS+4*G}:{vS+4*G+3}]"
    A(f"v_mfma_f32_16x16x32_bf16 v[{vS+4*G}:{vS+4*G+3}], v[{vQ+4*u}:{vQ+4*u+3}], v[{vD+4*t}:{vD+4*t+3}], {c}")
stamp(3)
A("s_nop 7")
for G in range(8):
    d0, d1 = vS + 4 * G, vS + 4 * G + 1
    if G & 1:
        A(f"v_add_f32_dpp v{s_}, v{d0}, v{d1} row_ror:8 row_mask:{1 << (G >> 1):#x} bank_mask:0xc")
    else:
        A(f"v_add_f32_dpp v{s_}, v{d1}, v{d0} row_ror:8 row_mask:{1 << (G >> 1):#x} bank_mask:0x3")
A(f"v_cvt_pk_bf16_f32 v{s_}, v{s_}, v{s_}\nv_lshlrev_b32 v{s_}, 16, v{s_}")
A(f"v_mul_f32 v{s_}, 0x3d93cd3a, v{s_}")
A(f"v_cvt_pk_bf16_f32 v{s_}, v{s_}, v{s_}\nv_lshlrev_b32 v{s_}, 16, v{s_}")
def wave_reduce(op, v):
    for d in ["row_shr:1", "row_shr:2", "row_shr:4", "row_shr:8"]:
        A(f"s_nop 1\n{op}_dpp v{v}, v{v}, v{v} {d} row_mask:0xf bank_mask:0xf")
    A(f"s_nop 1\n{op}_dpp v{v}, v{v}, v{v} row_bcast:15 row_mask:0xa bank_mask:0xf")
    A(f"s_nop 1\n{op}_dpp v{v}, v{v}, v{v} row_bcast:31 row_mask:0xc bank_mask:0xf")
A(f"v_mov_b32 v{s_+1}, v{s_}")
wave_reduce("v_max_f32", s_ + 1)
A(f"s_nop 0\nv_readlane_b32 s{sTMP}, v{s_+1}, 63")
A(f"s_lshl_b32 s{sTMP2}, s{sC}, 3\nv_mov_b32 v{s_+4}, s{sTMP2}\nv_mov_b32 v{s_+2}, s{sTMP}\nv_mov_b32 v{s_+3}, s{sT}")
A(f"ds_write_b64 v{s_+4}, v[{s_+2}:{s_+3}] offset:{L_MX}")
lds_wait(L_MX, [1, 3, 5, 7], 8, s_ + 8)
A(f"v_max_f32 v{s_+8}, v{s_+8}, v{s_+10}\nv_max3_f32 v{s_+8}, v{s_+8}, v{s_+12}, v{s_+14}")
A(f"v_sub_f32 v{s_}, v{s_}, v{s_+8}\nv_mul_f32 v{s_}, 0x3fb8aa3b, v{s_}\nv_exp_f32 v{s_}, v{s_}\ns_nop 0")
A(f"v_cvt_pk_bf16_f32 v{s_+1}, v{s_}, v{s_}")
A(f"s_lshl_b32 s{sTMP}, s{sC}, 7\nv_lshlrev_b32 v{s_+5}, 1, v{vL}\nv_add_u32 v{s_+5}, s{sTMP}, v{s_+5}")
A(f"ds_write_b16 v{s_+5}, v{s_+1} offset:{L_P}")
wave_reduce("v_add_f32", s_)
A(f"s_nop 0\nv_readlane_b32 s{sTMP}, v{s_}, 63\ns_nop 1\nv_mov_b32 v{s_+2}, s{sTMP}")
A(f"ds_write_b64 v{s_+4}, v[{s_+2}:{s_+3}] offset:{L_LS}")
stamp(4)
A("s_branch L_end")

A("L_v:")
prio(1)
A(f"s_sub_u32 s{sC}, s{sWAVE}, 8")
data_voff(384 if a.near else 32 * 384)
A(f"s_mul_i32 s{sOFF}, s{sHH}, 1572864\ns_mul_i32 s{sTMP}, s{sJ}, 98304\ns_add_u32 s{sOFF}, s{sOFF}, s{sTMP}\ns_lshl_b32 s{sTMP}, s{sC}, 7\ns_add_u32 s{sOFF}, s{sOFF}, s{sTMP}\ns_add_u32 s{sOFF}, s{sOFF}, {3072*384}")
if "k" in a.contig:
    data_voff(384)
    A(f"s_mul_i32 s{sTMP}, s{sC}, {30720-128}\ns_add_u32 s{sOFF}, s{sOFF}, s{sTMP}")
if "v" in a.contig:
    A(f"v_lshlrev_b32 v{vOFF}, 4, v{vL}\ns_mul_i32 s{sTMP}, s{sC}, {32768-128}\ns_add_u32 s{sOFF}, s{sOFF}, s{sTMP}")
A("s_waitcnt lgkmcnt(0)")
A(f"s_load_dword s{sT}, s[{sWSP}:{sWSP+1}], s9")
srd(SR, sV, 50331648)
srd(WS, sWSP, 0x10000000)
A("s_barrier")
get_T()
if WIN:
    gate_init(sC, 4 * WIN[1], vCO)
elif a.g2:
    lds_wait(L_KI, [0, 1, 2, 3], 4, vCO)
if WIN:
    make_selectors()
    coef_addr(vAD, 64)
vrest = [A.label("Lvb") for b in range(32)]
def v_load(b):
    A(f"buffer_load_dwordx4 v[{vD+4*b}:{vD+4*b+3}], v{vOFF}, s[{SR}:{SR+3}], s{sOFF} offen offset:{384*(b%8)} nt")
    if b % 8 == 7 and b < 31: A(f"s_add_u32 s{sOFF}, s{sOFF}, 3072")
    if a.rank and b == a.vr: A(f"ds_write_b32 v{vCO}, v{vT} offset:{L_VT}")
for b in range(32):
    thr(b)
    if WIN:
        if b < WIN[2]: gate(L_PK, 3, 4 * WIN[1], 3 * WIN[2], vCO, vCO + 4)
        else:
            if a.vboost:
                t = vCO + 4
                if a.vtrig == 0:
                    A(f"ds_read_b32 v{t}, v{vCO} offset:{L_FFLAG}\ns_waitcnt lgkmcnt(0)\nv_cmp_ne_u32 vcc, 0, v{t}\ns_cbranch_vccnz {vrest[b]}")
                elif a.vtrig == 1:
                    A(f"ds_read_b32 v{t}, v{vCO} offset:{L_LS+4}\ns_waitcnt lgkmcnt(0)\nv_cmp_ne_u32 vcc, 0, v{t}\ns_cbranch_vccnz {vrest[b]}")
                elif b == a.vtrig:
                    A(f"s_branch {vrest[b]}")
            A(f"s_waitcnt vmcnt({WIN[2]-1})")
    if "k" in a.contig:
        A(f"buffer_load_dwordx4 v[{vD+4*b}:{vD+4*b+3}], v{vOFF}, s[{SR}:{SR+3}], s{sOFF} offen offset:{128*(b%3)} nt")
        if b % 3 == 2: A(f"s_add_u32 s{sOFF}, s{sOFF}, 3072")
        continue
    if a.near or "v" in a.contig:
        A(f"buffer_load_dwordx4 v[{vD+4*b}:{vD+4*b+3}], v{vOFF}, s[{SR}:{SR+3}], s{sOFF} offen nt\ns_add_u32 s{sOFF}, s{sOFF}, {3072 if a.near else 1024}")
        continue
    v_load(b)
if a.vboost:
    A("s_branch L_vb_j")
    for b in range(WIN[2], 32):
        if b >= a.vboost: A(f"s_waitcnt vmcnt({a.vboost-1})")
        A(f"{vrest[b]}:")
        v_load(b)
    A("L_vb_j:")
prio(3)
stamp(1)
if WIN:
    nv = WIN[2]
    A(f"s_lshl_b32 s{sTMP}, s{sC}, 2\nv_mov_b32 v{vOFF}, s{sTMP}")
    A(f"v_mov_b32 v{vCO+9}, 0\nds_read_b128 v[{vCO}:{vCO+3}], v{vCO+9} offset:{L_LS}\nds_read_b128 v[{vCO+4}:{vCO+7}], v{vCO+9} offset:{L_LS+16}\ns_waitcnt lgkmcnt(0)")
    A(f"v_xor_b32 v{vCO+1}, s{sFL}, v{vCO+1}\nv_xor_b32 v{vCO+3}, s{sFL}, v{vCO+3}\nv_xor_b32 v{vCO+5}, s{sFL}, v{vCO+5}\nv_xor_b32 v{vCO+7}, s{sFL}, v{vCO+7}")
    A(f"v_or3_b32 v{vCO+1}, v{vCO+1}, v{vCO+3}, v{vCO+5}\nv_or_b32 v{vCO+1}, v{vCO+1}, v{vCO+7}\nv_cmp_ne_u32 vcc, 0, v{vCO+1}\ns_cmp_eq_u64 vcc, 0\ns_cbranch_scc1 L_v_fast")
    for i in range(nv):
        A(f"s_waitcnt vmcnt({nv-1-i})")
        credit(L_PV, vOFF, vCO, i + 1)
    lds_wait(L_LS, [1, 3, 5, 7], 8, vCO)
    A(f"s_mov_b32 s{sNEED}, 1\ns_branch L_v_go\nL_v_fast:\ns_mov_b32 s{sNEED}, 0\nL_v_go:")
else:
    make_selectors()
    coef_addr(vAD, 64)
    lds_wait(L_LS, [1, 3, 5, 7], 8, vCO)
for k in range(4):
    A(f"ds_read_b128 v[{vCO+4*k}:{vCO+4*k+3}], v{vAD} offset:{L_P+16*k}")
lds_mode(vA0, vA0 + 1)
A(f"s_waitcnt lgkmcnt(0)\nv_readfirstlane_b32 s{sMODE}, v{vA0+1}")
stamp(2)
if WIN:
    def vhook(b):
        if b >= 32 - nv: credit(L_PV, vOFF, vAD, b - (32 - nv) + 1)
    diag_gemv(32, hook=vhook)
else:
    diag_gemv(32)
publish_gather(OBOX, L_O, L_OF, True)
stamp(5)
A("s_branch L_end")

A("L_aux:")
prio(3)
if a.dbg: A("s_memtime s[84:85]")
A(f"v_lshlrev_b32 v8, 2, v{vL}\nv_mov_b32 v9, 0\nds_write_b32 v8, v9")
A(f"s_load_dwordx4 s[{sM}:{sM+3}], s[0:1], 80")
if a.nf:
    assert a.fp == 128
    A(f"s_and_b32 s{sTMP}, s{sHH}, 7\ns_lshl_b32 s{sTMP}, s{sTMP}, 2\ns_lshr_b32 s{sTMP2}, s{sHH}, 3\ns_add_u32 s{sTMP}, s{sTMP}, s{sTMP2}\ns_lshl_b32 s{sTMP}, s{sTMP}, 1\n{'s_and_b32' if a.lmap else 's_lshr_b32'} s{sTMP2}, s{sJ}, 1\ns_add_u32 s{sTMP}, s{sTMP}, s{sTMP2}")
    A(f"{'s_lshr_b32' if a.lmap else 's_and_b32'} s{sTMP2}, s{sJ}, 1\ns_xor_b32 s{sTMP2}, s{sTMP2}, 1\ns_lshl_b32 s{sTMP2}, s{sTMP2}, 6\ns_add_u32 s{sRI}, s{sTMP}, s{sTMP2}")
    A(f"s_mul_i32 s{sRB}, s{sP}, 20\ns_add_u32 s{sRB}, s{sRB}, s{sRI}\ns_and_b32 s{sTMP}, s{sRB}, 1\ns_lshr_b32 s{sRB}, s{sRB}, 1\ns_lshl_b32 s{sRB}, s{sRB}, 14\ns_lshl_b32 s{sTMP}, s{sTMP}, 12\ns_add_u32 s{sRB}, s{sRB}, s{sTMP}\ns_add_u32 s{sRB}, s{sRB}, {FBOX}\ns_add_u32 s{sTMP3}, s{sRB}, 8192\nv_mov_b32 v30, 0")
if a.nf == 8:
    A(f"s_mul_i32 s{sTMP}, s{sP}, 20\ns_add_u32 s{sTMP}, s{sTMP}, s{sRI}\ns_lshl_b32 s{sTMP}, s{sTMP}, 14\ns_add_u32 s{sTMP}, s{sTMP}, {FBOX + 20*16384}\ns_add_u32 s{sTMP2}, s{sTMP}, 8192")
if a.nf == 9:
    A(f"s_lshr_b32 s{sTMP}, s2, 4\ns_lshl_b32 s{sTMP}, s{sTMP}, 14\ns_and_b32 s{sTMP2}, s2, 15\ns_lshl_b32 s{sTMP2}, s{sTMP2}, 9\ns_add_u32 s{sTMP}, s{sTMP}, s{sTMP2}\ns_add_u32 s{sTMP}, s{sTMP}, {FBOX + 20*16384}\ns_add_u32 s{sTMP2}, s{sTMP}, 8192")
A("s_waitcnt lgkmcnt(0)")
if a.nf not in (8, 9): srd(WS, sWSP, 0x10000000)
if a.nf == 9:
    sPA, sPB = sM + 4, sM + 5
    if a.nfr:
        A(f"s_load_dword s{sT}, s[{sWSP}:{sWSP+1}], s9")
    elif a.nfo:
        A(f"s_load_dword s{sT}, s[{sWSP}:{sWSP+1}], s9")
        A("s_barrier")
        A(f"s_load_dword s{sPA}, s[{sWSP}:{sWSP+1}], s{sTMP}\ns_load_dword s{sPB}, s[{sWSP}:{sWSP+1}], s{sTMP2}")
    else:
        A(f"s_load_dword s{sPA}, s[{sWSP}:{sWSP+1}], s{sTMP}\ns_load_dword s{sPB}, s[{sWSP}:{sWSP+1}], s{sTMP2}")
        A(f"s_load_dword s{sT}, s[{sWSP}:{sWSP+1}], s9")
        A("s_barrier")
    srd(WS, sWSP, 0x10000000)
    srd(SR2, sM, 2560)
    A(f"s_lshl_b32 s{SR}, s{sXCC}, 10\ns_add_u32 s{SR}, s{SR}, {VBOX}\ns_lshl_b32 s{sTMP2}, s2, 2\nv_mov_b32 v60, s{sTMP2}")
    if a.nfr:
        A(f"s_mov_b32 s{SR+2}, s{sTMP}\ns_add_u32 s{SR+3}, s{sTMP}, 8192")
        A("s_waitcnt lgkmcnt(0)\ns_barrier")
        d = a.nfdl
        while d > 0:
            A(f"s_sleep {min(d, 127)}"); d -= 127
        A(f"s_mov_b32 s{SR+1}, 0")
        if a.nfx: A(f"s_mov_b32 s{SR}, {VBOX}\ns_bitcmp1_b32 s{sXCC}, 0\ns_cbranch_scc0 L_npr")
        if a.nfj >= 0: A(f"s_cmp_lg_u32 s{sJ}, {a.nfj}\ns_cbranch_scc1 L_npr")
        for r in range(a.nfr):
            f1, f2 = (SR + 2, SR + 3) if r % 2 == 0 else (SR + 3, SR + 2)
            A(f"s_load_dword s{sPA}, s[{sWSP}:{sWSP+1}], s{f1}\ns_load_dword s{sPB}, s[{sWSP}:{sWSP+1}], s{f2}")
            if r + 1 < a.nfr: A(f"s_add_u32 s{SR+2}, s{SR+2}, 128\ns_add_u32 s{SR+3}, s{SR+3}, 128")
            A("s_waitcnt lgkmcnt(1)")
            A(f"s_sleep {a.nfs}" if a.nfs > 0 else f"s_nop {-a.nfs}")
            A(f"s_getreg_b32 s{sTMP}, hwreg(HW_REG_IB_STS, 8, 4)\n{'s_add_u32' if r % 2 == 0 else 's_sub_u32'} s{SR+1}, s{SR+1}, s{sTMP}\ns_waitcnt lgkmcnt(0)")
        A("L_npr:")
        A(f"s_cmp_gt_i32 s{SR+1}, 0\ns_cselect_b32 s{sTMP}, 16, 32\ns_cmp_lt_i32 s{SR+1}, 0\ns_cselect_b32 s{SR+1}, 0, s{sTMP}")
    else:
        A(f"s_waitcnt lgkmcnt({2 - a.nfo})")
        A(f"s_sleep {a.nfs}" if a.nfs > 0 else f"s_nop {-a.nfs}")
        A(f"s_getreg_b32 s{sTMP}, hwreg(HW_REG_IB_STS, 8, 4)\ns_cmp_eq_u32 s{sTMP}, {2 - a.nfo}\ns_cselect_b32 s{SR+1}, 16, 0")
def vote_store():
    A(f"s_xor_b32 s{SR+1}, s{SR+1}, s{sT}\nv_mov_b32 v61, s{SR+1}")
    if a.nfx: A(f"s_bitcmp1_b32 s{sXCC}, 0\ns_cbranch_scc0 L_nvs")
    A(f"s_mov_b64 exec, 1\nbuffer_store_dword v61, v60, s[{WS}:{WS+3}], s{SR} offen{' sc1' if a.nfx else ''}\ns_mov_b64 exec, -1")
    if a.nfx: A("L_nvs:")
if a.nf == 1:
    A(f"s_cmp_ge_u32 s{sRI}, 20\ns_cbranch_scc1 L_nc1\ns_mov_b64 exec, 1")
    A(f"buffer_load_dword v10, v30, s[{WS}:{WS+3}], s{sRB} offen sc1\nbuffer_load_dword v11, v30, s[{WS}:{WS+3}], s{sTMP3} offen sc1\ns_mov_b64 exec, -1\nL_nc1:")
if a.nf == 8:
    sPA, sPB = sM + 4, sM + 5
    A(f"s_cmp_ge_u32 s{sRI}, 20\ns_cbranch_scc1 L_nc1")
    A(f"s_load_dword s{sPA}, s[{sWSP}:{sWSP+1}], s{sTMP}\ns_load_dword s{sPB}, s[{sWSP}:{sWSP+1}], s{sTMP2}")
    A(f"s_load_dword s{sT}, s[{sWSP}:{sWSP+1}], s9")
    if a.nfd:
        A(f"s_mov_b32 s{sST+14}, 0")
        for k, inc in ((3, 1), (2, 1 << 12), (1, 1 << 22)):
            A(f"L_nd{k}:\ns_add_u32 s{sST+14}, s{sST+14}, {inc}\ns_getreg_b32 s{sTMP}, hwreg(HW_REG_IB_STS, 8, 4)\ns_cmp_ge_u32 s{sTMP}, {k}\ns_cbranch_scc1 L_nd{k}")
        A(f"s_bfe_u32 s{sTMP}, s{sST+14}, {12 | (10 << 16)}\ns_cmp_gt_u32 s{sTMP}, {a.nfd}\ns_cselect_b32 s{sRB}, s{sRB}, s{sTMP3}")
    else:
        A("s_waitcnt lgkmcnt(2)")
        A(f"s_sleep {a.nfs}" if a.nfs > 0 else f"s_nop {-a.nfs}")
        A(f"s_getreg_b32 s{sTMP}, hwreg(HW_REG_IB_STS, 8, 4)\ns_cmp_eq_u32 s{sTMP}, 2\ns_cselect_b32 s{sRB}, s{sRB}, s{sTMP3}")
        if a.stamps: A(f"s_sub_u32 s{sST+14}, 3, s{sTMP}")
    A("s_branch L_nc2\nL_nc1:")
    A(f"s_load_dword s{sT}, s[{sWSP}:{sWSP+1}], s9")
    A("L_nc2:")
    srd(WS, sWSP, 0x10000000)
    srd(SR2, sM, 2560)
    A("s_barrier")
elif a.nf != 9: A(f"s_load_dword s{sT}, s[{sWSP}:{sWSP+1}], s9")
if a.nf in (8, 9): pass
elif a.nf == 7:
    sPA, sPB = sM + 4, sM + 5
    A(f"s_cmp_ge_u32 s{sRI}, 20\ns_cbranch_scc1 L_nc1")
    A(f"s_mul_i32 s{sTMP}, s{sP}, 20\ns_add_u32 s{sTMP}, s{sTMP}, s{sRI}\ns_lshl_b32 s{sTMP}, s{sTMP}, 14\ns_add_u32 s{sTMP}, s{sTMP}, {FBOX + 20*16384}\ns_add_u32 s{sTMP2}, s{sTMP}, 8192")
    A(f"s_load_dword s{sPA}, s[{sWSP}:{sWSP+1}], s{sTMP}\ns_load_dword s{sPB}, s[{sWSP}:{sWSP+1}], s{sTMP2}")
    A("s_waitcnt lgkmcnt(1)")
    A(f"s_sleep {a.nfs}" if a.nfs else "s_nop 15\ns_nop 15")
    A(f"s_getreg_b32 s{sTMP}, hwreg(HW_REG_IB_STS, 8, 4)\ns_cmp_lg_u32 s{sTMP}, 0\ns_cselect_b32 s{sRB}, s{sRB}, s{sTMP3}")
    if a.stamps: A(f"s_sub_u32 s{sST+14}, 2, s{sTMP}")
    A("L_nc1:")
    srd(SR2, sM, 2560)
    A("s_barrier")
elif a.nf == 6:
    SENT = 0x5a17c3e9
    sPA, sPB = sM + 4, sM + 5
    A(f"s_cmp_ge_u32 s{sRI}, 20\ns_cbranch_scc1 L_nc1")
    A(f"s_mul_i32 s{sTMP}, s{sP}, 20\ns_add_u32 s{sTMP}, s{sTMP}, s{sRI}\ns_lshl_b32 s{sTMP}, s{sTMP}, 14\ns_add_u32 s{sTMP}, s{sTMP}, {FBOX + 20*16384}\ns_add_u32 s{sTMP2}, s{sTMP}, 8192")
    A(f"s_mov_b32 s{sPA}, {SENT:#x}\ns_mov_b32 s{sPB}, {SENT:#x}")
    A(f"s_load_dword s{sPA}, s[{sWSP}:{sWSP+1}], s{sTMP}\ns_load_dword s{sPB}, s[{sWSP}:{sWSP+1}], s{sTMP2}\nL_nc1:")
    srd(SR2, sM, 2560)
    A(f"s_cmp_ge_u32 s{sRI}, 20\ns_cbranch_scc1 L_prA")
    A(f"L_pr:\ns_cmp_lg_u32 s{sPA}, {SENT:#x}\ns_cbranch_scc1 L_prA\ns_cmp_lg_u32 s{sPB}, {SENT:#x}\ns_cbranch_scc1 L_prB")
    A(f"s_getreg_b32 s{sTMP}, hwreg(HW_REG_IB_STS, 8, 4)\ns_cmp_lg_u32 s{sTMP}, 0\ns_cbranch_scc1 L_pr")
    A(f"L_prB:\ns_mov_b32 s{sRB}, s{sTMP3}")
    if a.stamps: A(f"s_mov_b32 s{sST+14}, 1")
    A("L_prA:")
    if a.stamps: A(f"s_add_u32 s{sST+14}, s{sST+14}, 1")
    A("s_barrier")
else:
    srd(SR2, sM, 2560)
    A("s_barrier" if a.nf == 10 or a.eb else "s_waitcnt lgkmcnt(0)\ns_barrier")
get_T()
if a.nf == 9 and a.nfv == 0: vote_store()
if a.nf == 1:
    A(f"s_waitcnt vmcnt(1)\ns_memtime s[{sM+4}:{sM+5}]\ns_waitcnt vmcnt(0)\ns_memtime s[{sM+6}:{sM+7}]\ns_waitcnt lgkmcnt(0)")
    A(f"s_sub_u32 s{sM+4}, s{sM+6}, s{sM+4}\ns_cmp_gt_u32 s{sM+4}, {a.nft}\ns_cselect_b32 s{sRB}, s{sRB}, s{sTMP3}")
    if a.stamps: A(f"s_add_u32 s{sST+14}, s{sM+4}, 1\ns_mov_b32 s{sST+15}, 0")
elif a.nf == 3:
    A(f"s_mov_b32 s{sRB}, s{sTMP3}")
if a.lat:
    A(f"v_lshlrev_b32 v37, 4, v{vL}")
    A(f"s_lshl_b32 s{sOFF}, s2, 10\ns_add_u32 s{sOFF}, s{sOFF}, 0x200000")
    A(f"s_cmp_eq_u32 s{sWAVE}, 11\ns_cbranch_scc1 L_lat2")
    for k in range(4):
        A(f"s_memrealtime s[{sST+4*k}:{sST+4*k+1}]\ns_waitcnt lgkmcnt(0)")
        A(f"buffer_load_dwordx4 v[40:43], v37, s[{WS}:{WS+3}], s{sOFF} offen sc1\ns_waitcnt vmcnt(0)")
        A(f"s_memrealtime s[{sST+4*k+2}:{sST+4*k+3}]\ns_waitcnt lgkmcnt(0)")
        A("s_sleep 40")
    A("s_branch L_end")
    A("L_lat2:")
    A(f"s_add_u32 s{sOFF}, s{sOFF}, 0x100000")
    A(f"buffer_load_dwordx4 v[40:43], v37, s[{WS}:{WS+3}], s{sOFF} offen {'nt' if a.lat == 1 else 'sc1'}\ns_waitcnt vmcnt(0)")
    for k in range(4):
        A(f"s_memrealtime s[{sST+4*k}:{sST+4*k+1}]\ns_waitcnt lgkmcnt(0)")
        A(f"buffer_load_dwordx4 v[40:43], v37, s[{WS}:{WS+3}], s{sOFF} offen {'nt' if a.lat == 1 else 'sc1'}\ns_waitcnt vmcnt(0)")
        A(f"s_memrealtime s[{sST+4*k+2}:{sST+4*k+3}]\ns_waitcnt lgkmcnt(0)")
        A("s_sleep 40")
    A("s_branch L_end")
if a.rank:
    A(f"s_lshl_b32 s{sNEED}, s{sJ}, 7\ns_add_u32 s{sNEED}, s{sNEED}, {RBOX}\nv_mov_b32 v30, 0\nbuffer_load_dword v60, v30, s[{WS}:{WS+3}], s{sNEED} offen sc1 nt")
stamp(1)
lds_wait(L_LS, [1, 3, 5, 7], 8, 8)
A(f"v_mov_b32 v30, 0\nds_read_b128 v[20:23], v30 offset:{L_MX}\nds_read_b128 v[24:27], v30 offset:{L_MX+16}\nds_read_b32 v31, v30 offset:{L_MODE}\ns_waitcnt lgkmcnt(0)\nv_readfirstlane_b32 s{sMODE}, v31")
A("v_max_f32 v32, v20, v22\nv_max3_f32 v32, v32, v24, v26")
A("v_add_f32 v33, v8, v10\nv_add_f32 v34, v12, v14\nv_add_f32 v33, v33, v34\nv_mov_b32 v34, 0\nv_mov_b32 v35, 0")
for k in range(4):
    A(f"v_perm_b32 v{32+k}, v{32+k}, v{vT}, s{sSEL+k}")
A(f"s_lshl_b32 s{sOFF}, s{sH}, 7\ns_add_u32 s{sOFF}, s{sOFF}, {SBOX}\ns_lshl_b32 s{sTMP}, s{sJ}, 4\ns_add_u32 s{sTMP}, s{sTMP}, s{sOFF}")
A("s_mov_b64 exec, 1")
A(f"s_cmp_lg_u32 s{sMODE}, 0\ns_cbranch_scc1 L_ux1")
A(f"buffer_store_dwordx4 v[32:35], v30, s[{WS}:{WS+3}], s{sTMP} offen\ns_branch L_ux2\nL_ux1:")
A(f"buffer_store_dwordx4 v[32:35], v30, s[{WS}:{WS+3}], s{sTMP} offen sc1\nL_ux2:")
A("s_mov_b64 exec, -1")
if a.nf == 9 and a.nfv == 1: vote_store()
stamp(2)
A(f"v_and_b32 v36, 3, v{vL}\nv_lshlrev_b32 v37, 4, v36")
poll(40, 37, sOFF)
stamp(3)
A("v_and_b32 v40, 0xffffff00, v40\ns_nop 1")
A("v_max_f32_dpp v44, v40, v40 quad_perm:[1,0,3,2] row_mask:0xf bank_mask:0xf\ns_nop 1")
A("v_max_f32_dpp v44, v44, v44 quad_perm:[2,3,0,1] row_mask:0xf bank_mask:0xf")
A("v_sub_f32 v40, v40, v44\nv_mul_f32 v40, 0x3fb8aa3b, v40\nv_exp_f32 v40, v40\ns_nop 0")
A("v_mul_f32 v41, v41, v40\ns_nop 1")
A("v_add_f32_dpp v44, v41, v41 quad_perm:[1,0,3,2] row_mask:0xf bank_mask:0xf\ns_nop 1")
A("v_add_f32_dpp v44, v44, v44 quad_perm:[2,3,0,1] row_mask:0xf bank_mask:0xf")
A("v_rcp_f32 v44, v44\ns_nop 0\nv_mul_f32 v40, v40, v44")
A("v_lshlrev_b32 v36, 2, v36")
A("s_mov_b64 exec, 15")
A(f"ds_write_b32 v36, v40 offset:{L_FF}")
A(f"ds_write_b32 v30, v{vT} offset:{L_FFLAG}")
A("s_mov_b64 exec, -1")
if a.dirty:
    A(f"v_lshlrev_b32 v37, 4, v{vL}\ns_lshl_b32 s{sTMP}, s2, 14\ns_add_u32 s{sTMP}, s{sTMP}, 0x1000000")
    for k in range(a.dirty):
        A(f"buffer_store_dwordx4 v[40:43], v37, s[{WS}:{WS+3}], s{sTMP} offen\ns_add_u32 s{sTMP}, s{sTMP}, 1024")
if a.rank:
    lds_wait(L_VT, [0], 1, 8)
    A(f"v_mov_b32 v61, 1\ns_mov_b64 exec, 1\nbuffer_atomic_add v61, v30, s[{WS}:{WS+3}], s{sNEED} offen sc0 sc1\ns_mov_b64 exec, -1\ns_waitcnt vmcnt(0)")
    A(f"v_sub_u32 v61, v61, v60\ns_nop 0\nv_readfirstlane_b32 s{sTMP}, v61\ns_cmp_lt_u32 s{sTMP}, {a.rank}\ns_cbranch_scc1 L_rk")
    if a.stamps: A(f"s_mov_b32 s{sST+14}, s{sTMP}\ns_mov_b32 s{sST+15}, 0")
    if a.rop: lds_wait(L_VT, [1, 2, 3], 4, 8)
    A(f"ds_write_b32 v30, v{vT} offset:{L_OF+12}")
    A("L_rk:")
if a.fp:
    gp = a.fp // 16; lg = gp.bit_length() - 1; nx = 256 // a.fp; R = 10 * nx; nl = a.fp // 32
    if a.nf:
        A(f"s_mov_b32 s{sCNT}, s{sRI}\ns_cmp_ge_u32 s{sCNT}, {R}\ns_cbranch_scc1 L_end")
    else:
        A(f"s_and_b32 s{sTMP}, s{sHH}, 7\ns_lshl_b32 s{sTMP}, s{sTMP}, 2\ns_lshr_b32 s{sTMP2}, s{sHH}, 3\ns_add_u32 s{sTMP}, s{sTMP}, s{sTMP2}\ns_lshl_b32 s{sTMP}, s{sTMP}, 1\n{'s_and_b32' if a.lmap else 's_lshr_b32'} s{sTMP2}, s{sJ}, 1\ns_add_u32 s{sTMP}, s{sTMP}, s{sTMP2}")
        A(f"{'s_lshr_b32' if a.lmap else 's_and_b32'} s{sTMP2}, s{sJ}, 1\ns_xor_b32 s{sTMP2}, s{sTMP2}, 1\ns_lshl_b32 s{sTMP2}, s{sTMP2}, 6\ns_add_u32 s{sCNT}, s{sTMP}, s{sTMP2}\ns_cmp_ge_u32 s{sCNT}, {R}\ns_cbranch_scc1 L_end")
    A(f"s_mul_i32 s{sOFF}, s{sP}, {R}\ns_add_u32 s{sOFF}, s{sOFF}, s{sCNT}\ns_mul_i32 s{sTMP2}, s{sOFF}, {gp*8}\ns_mul_i32 s{sOFF}, s{sOFF}, {32*a.fp}\ns_add_u32 s{sOFF}, s{sOFF}, {FBOX}")
    if a.nf == 10: A(f"s_lshl_b32 s{SR}, s{sXCC}, 10\ns_add_u32 s{SR}, s{SR}, {VBOX}")
    if a.nf in (9, 10):
        A(f"v_lshlrev_b32 v37, 4, v{vL}\nbuffer_load_dwordx4 v[60:63], v37, s[{WS}:{WS+3}], s{SR} offen sc1{'' if a.nfx else ' nt'}\ns_waitcnt vmcnt(0)")
        A(f"s_mov_b32 s{sTMP}, 0\ns_mov_b32 s{sTMP3}, 0\ns_xor_b32 s{SR+1}, s{sT}, 16")
        for k in range(4):
            if a.nfx:
                A(f"v_xor_b32 v{60+k}, s{sT}, v{60+k}\nv_and_b32 v{60+k}, -4, v{60+k}")
                for c, d in ((0, sTMP), (20, sTMP), (16, sTMP3), (4, sTMP3)):
                    A(f"v_cmp_eq_u32 vcc, {c}, v{60+k}\ns_bcnt1_i32_b64 s{SR+2}, vcc\ns_add_u32 s{d}, s{d}, s{SR+2}")
            else:
                A(f"v_cmp_eq_u32 vcc, s{sT}, v{60+k}\ns_bcnt1_i32_b64 s{SR+2}, vcc\ns_add_u32 s{sTMP}, s{sTMP}, s{SR+2}")
                A(f"v_cmp_eq_u32 vcc, s{SR+1}, v{60+k}\ns_bcnt1_i32_b64 s{SR+2}, vcc\ns_add_u32 s{sTMP3}, s{sTMP3}, s{SR+2}")
        if a.stamps: A(f"s_add_u32 s{sST+14}, s{sTMP}, s{sTMP3}\ns_lshl_b32 s{sST+14}, s{sST+14}, 16\ns_add_u32 s{sST+14}, s{sST+14}, s{sTMP3}")
        if a.dbgv:
            A(f"s_lshl_b32 s{SR+2}, s{sTMP}, 8\ns_add_u32 s{SR+2}, s{SR+2}, s{sTMP3}\nv_mov_b32 v60, s{SR+2}\ns_lshl_b32 s{SR+2}, s{sXCC}, 2\nv_mov_b32 v61, s{SR+2}")
            srd(SR, sM + 2, 256)
            A(f"s_mov_b64 exec, 1\nbuffer_store_dword v60, v61, s[{SR}:{SR+3}], 0 offen sc1\ns_mov_b64 exec, -1")
        if not a.nfr and a.nf == 9: A(f"s_lshl_b32 s{sTMP3}, s{sTMP3}, 1")
        A(f"s_cmp_gt_u32 s{sTMP3}, s{sTMP}\ns_cselect_b32 s{sTMP}, 0, 8192\ns_add_u32 s{sRB}, s{sRB}, s{sTMP}")
    if a.nf: A(f"s_mov_b32 s{sOFF}, s{sRB}")
    A(f"v_lshlrev_b32 v37, 4, v{vL}\nv_lshlrev_b32 v38, 3, v{vL}")
    lds_wait(L_PF, [0, 1, 2], 4, 8)
    stamp(4)
    if a.nofin: A("s_branch L_end")
    if a.nf == 5:
        A(f"s_add_u32 s{sTMP3}, s{sOFF}, 8192")
        for cp in range(2):
            for i in range(nl):
                A(f"buffer_load_dwordx4 v[{80+16*cp+4*i}:{83+16*cp+4*i}], v37, s[{WS}:{WS+3}], s{sTMP3 if cp else sOFF} offen offset:{1024*i} sc1{FN}")
        for cp in range(2):
            for i in range(nl):
                r = 80 + 16 * cp + 4 * i
                if cp == 0:
                    if i == 0: A(f"s_waitcnt vmcnt({nl})")
                else: A(f"s_waitcnt vmcnt({nl-1-i})")
                A(f"v_perm_b32 v44, v{r+1}, v{r}, s{sSELA}\nv_perm_b32 v45, v{r+3}, v{r+2}, s{sSELB}\nv_or_b32 v44, v44, v45\nv_xor_b32 v44, s{sT}, v44")
                A(f"v_or_b32 v46, v46, v44" if i else "v_mov_b32 v46, v44")
                for k in range(4):
                    A(f"v_add_f32 v{40+k}, v{40+k}, v{r+k}" if i else f"v_mov_b32 v{40+k}, v{r+k}")
                if cp == 0 and i == a.nfi:
                    A(f"s_getreg_b32 s{sTMP}, hwreg(HW_REG_IB_STS, 0, 4)")
                    if a.stamps: A(f"s_add_u32 s{sST+14}, s{sTMP}, 1\ns_mov_b32 s{sST+15}, 0")
            A("v_cmp_lt_u32 vcc, 7, v46\ns_cmp_eq_u64 vcc, 0\ns_cbranch_scc1 L_fpd")
        A(f"s_cmp_eq_u32 s{sTMP}, {nl}\ns_cselect_b32 s{sOFF}, s{sOFF}, s{sTMP3}")
    if a.fdepth > 1:
        D = a.fdepth
        def fissue(k):
            for i in range(nl):
                A(f"buffer_load_dwordx4 v[{80+16*k+4*i}:{83+16*k+4*i}], v37, s[{WS}:{WS+3}], s{sOFF} offen offset:{1024*i} sc1{FN}")
        for k in range(D - 1):
            fissue(k)
            A(f"s_sleep {a.fgap}")
        A("L_fq:")
        for k in range(D):
            fissue((k + D - 1) % D)
            for i in range(nl):
                r = 80 + 16 * k + 4 * i
                A(f"s_waitcnt vmcnt({nl*(D-1)+nl-1-i})")
                A(f"v_perm_b32 v44, v{r+1}, v{r}, s{sSELA}\nv_perm_b32 v45, v{r+3}, v{r+2}, s{sSELB}\nv_or_b32 v44, v44, v45\nv_xor_b32 v44, s{sT}, v44")
                A(f"v_or_b32 v46, v46, v44" if i else "v_mov_b32 v46, v44")
                for q in range(4):
                    A(f"v_add_f32 v{40+q}, v{40+q}, v{r+q}" if i else f"v_mov_b32 v{40+q}, v{r+q}")
            A("v_cmp_lt_u32 vcc, 7, v46\ns_cmp_eq_u64 vcc, 0\ns_cbranch_scc1 L_fpd")
        spin_tail("L_fq", 0)
    A("L_fp:")
    for i in range(nl):
        A(f"buffer_load_dwordx4 v[{80+4*i}:{83+4*i}], v37, s[{WS}:{WS+3}], s{sOFF} offen offset:{1024*i} sc1{FN}")
    for i in range(nl):
        r = 80 + 4 * i
        A(f"s_waitcnt vmcnt({nl-1-i})")
        A(f"v_perm_b32 v44, v{r+1}, v{r}, s{sSELA}\nv_perm_b32 v45, v{r+3}, v{r+2}, s{sSELB}\nv_or_b32 v44, v44, v45\nv_xor_b32 v44, s{sT}, v44")
        A(f"v_or_b32 v46, v46, v44" if i else "v_mov_b32 v46, v44")
        for k in range(4):
            A(f"v_add_f32 v{40+k}, v{40+k}, v{r+k}" if i else f"v_mov_b32 v{40+k}, v{r+k}")
    A("v_cmp_lt_u32 vcc, 7, v46\ns_cmp_eq_u64 vcc, 0\ns_cbranch_scc1 L_fpd")
    spin_tail("L_fp", a.fsl)
    A("L_fpd:")
    stamp(5)
    d = gp
    while d < 16:
        for k in range(4):
            A(f"v_add_f32_dpp v{40+k}, v{40+k}, v{40+k} row_ror:{d} row_mask:0xf bank_mask:0xf")
        if d * 2 < 16: A("s_nop 0")
        d *= 2
    for op in ("v_permlane16_swap_b32", "v_permlane32_swap_b32"):
        for k in range(4): A(f"v_mov_b32 v{44+k}, v{40+k}")
        A("s_nop 1")
        for k in range(4): A(f"{op} v{40+k}, v{44+k}")
        A("s_nop 1")
        for k in range(4): A(f"v_add_f32 v{40+k}, v{40+k}, v{44+k}")
    A("v_cvt_pk_bf16_f32 v44, v40, v41\nv_cvt_pk_bf16_f32 v45, v42, v43")
    A(f"s_mov_b64 exec, {(1 << gp) - 1}")
    A(f"buffer_store_dwordx2 v[44:45], v38, s[{SR2}:{SR2+3}], s{sTMP2} offen")
    A(f"s_cmp_lg_u32 s{sCNT}, 0\ns_cbranch_scc1 L_aux2")
    A("s_mov_b64 exec, 1")
    A(f"buffer_store_dword v{vT}, v30, s[{WS}:{WS+3}], s9 offen")
    A("L_aux2:")
    A("s_mov_b64 exec, -1")
    stamp(6)
else:
    A(f"s_and_b32 s{sTMP}, s{sJ}, 1\ns_lshl_b32 s{sTMP}, s{sTMP}, 3\ns_add_u32 s{sTMP}, s{sTMP}, s{sHH}\ns_cmp_ge_u32 s{sTMP}, 24\ns_cbranch_scc1 L_end")
    A(f"s_lshl_b32 s{sTMP}, s{sP}, 2\ns_add_u32 s{sTMP}, s{sTMP}, s{sJ}\ns_mul_i32 s{sOFF}, s{sTMP}, 24\ns_add_u32 s{sOFF}, s{sOFF}, s{sHH}")
    A(f"s_lshl_b32 s{sOFF}, s{sOFF}, 10\ns_add_u32 s{sOFF}, s{sOFF}, {FBOX}")
    A(f"s_mul_i32 s{sTMP}, s{sJ}, 5\ns_add_u32 s{sTMP}, s{sTMP}, 1\ns_lshr_b32 s{sTMP}, s{sTMP}, 1\ns_lshl_b32 s{sTMP2}, s{sTMP}, 7")
    A(f"s_mul_i32 s{sTMP}, s{sP}, 1280\ns_add_u32 s{sTMP2}, s{sTMP2}, s{sTMP}\ns_lshl_b32 s{sTMP}, s{sHH}, 4\ns_add_u32 s{sTMP2}, s{sTMP2}, s{sTMP}")
    A(f"v_lshlrev_b32 v37, 4, v{vL}\nv_lshrrev_b32 v38, 5, v{vL}\nv_lshlrev_b32 v38, 3, v38")
    lds_wait(L_PF, [0, 1, 2], 4, 8)
    stamp(4)
    if a.nofin: A("s_branch L_end")
    if a.fmask:
        D = a.fdepth
        mk = sM + 4
        sets = [80 + 4 * k for k in range(D)]
        A(f"s_mov_b64 s[{mk}:{mk+1}], -1")
        for k in range(D):
            for q in range(4): A(f"v_mov_b32 v{sets[k]+q}, 0")
        A(f"v_not_b32 v{sets[0]}, v{vT}")
        for k in range(1, D): A(f"v_mov_b32 v{sets[k]}, v{sets[0]}")
        def issue(r):
            A(f"s_mov_b64 exec, s[{mk}:{mk+1}]\nbuffer_load_dwordx4 v[{r}:{r+3}], v37, s[{WS}:{WS+3}], s{sOFF} offen sc1\ns_mov_b64 exec, -1")
        for k in range(D - 1):
            issue(sets[k])
            if a.fgap: A(f"s_sleep {a.fgap}")
        A("L_fp:")
        for k in range(D):
            issue(sets[(k + D - 1) % D])
            r = sets[k]
            A(f"s_waitcnt vmcnt({D-1})")
            A(f"v_perm_b32 v44, v{r+1}, v{r}, s{sSELA}\nv_perm_b32 v45, v{r+3}, v{r+2}, s{sSELB}\nv_or_b32 v44, v44, v45\nv_xor_b32 v44, s{sT}, v44")
            A(f"v_cmp_ge_u32 vcc, 7, v44")
            A(f"s_and_b64 vcc, vcc, s[{mk}:{mk+1}]\ns_andn2_b64 s[{mk}:{mk+1}], s[{mk}:{mk+1}], vcc\ns_mov_b64 exec, vcc")
            for q in range(4): A(f"v_mov_b32 v{40+q}, v{r+q}")
            A(f"s_mov_b64 exec, -1\ns_cmp_eq_u64 s[{mk}:{mk+1}], 0\ns_cbranch_scc1 L_fpd")
            if a.fsl: A(f"s_sleep {a.fsl}")
        spin_tail("L_fp", 0)
        A("L_fpd:")
    else:
        poll(80, 37, sOFF, depth=a.fdepth, gap=a.fgap, lfl=FN)
        for k in range(4):
            A(f"v_mov_b32 v{40+k}, v{80+k}")
    A("s_nop 1")
    stamp(5)
    for d in ["row_shr:1", "row_shr:2", "row_shr:4", "row_shr:8"]:
        for k in range(4):
            A(f"v_add_f32_dpp v{40+k}, v{40+k}, v{40+k} {d} row_mask:0xf bank_mask:0xf")
    for k in range(4):
        A(f"v_add_f32_dpp v{40+k}, v{40+k}, v{40+k} row_bcast:15 row_mask:0xa bank_mask:0xf")
    A("v_cvt_pk_bf16_f32 v44, v40, v41\nv_cvt_pk_bf16_f32 v45, v42, v43")
    A("s_mov_b32 exec_lo, 0x80000000\ns_mov_b32 exec_hi, 0x80000000")
    A(f"buffer_store_dwordx2 v[44:45], v38, s[{SR2}:{SR2+3}], s{sTMP2} offen")
    A(f"s_or_b32 s{sTMP}, s{sJ}, s{sHH}\ns_cmp_lg_u32 s{sTMP}, 0\ns_cbranch_scc1 L_aux2")
    A("s_mov_b64 exec, 1")
    A(f"buffer_store_dword v{vT}, v30, s[{WS}:{WS+3}], s9 offen")
    A("L_aux2:")
    A("s_mov_b64 exec, -1")
    stamp(6)


A("L_end:")
if a.dbg:
    A("s_mov_b64 exec, -1")
    A("s_waitcnt vmcnt(0) lgkmcnt(0)")
    A(f"s_memrealtime s[{sST+16}:{sST+17}]\ns_memtime s[86:87]\ns_waitcnt lgkmcnt(0)")
    for k in range(9):
        A(f"v_mov_b32 v{8+k}, s{sST+2*k}")
    A(f"s_sub_u32 s86, s86, s84\ns_sub_u32 s87, s{sST+16}, s{sST}\nv_mov_b32 v17, s86\nv_mov_b32 v18, s87\nv_not_b32 v19, v8")
    A(f"s_lshl_b32 s{sTMP}, s{sWAVE}, 6\nv_mov_b32 v30, s{sTMP}\ns_lshl_b32 s{sTMP}, s{sWAVE}, 2\nv_mov_b32 v31, s{sTMP}\ns_mov_b64 exec, 1")
    for k in range(3):
        A(f"ds_write_b128 v30, v[{8+4*k}:{11+4*k}] offset:{L_ST+16*k}")
    A(f"ds_write_b32 v31, v{vT} offset:{L_DN}")
    A("s_mov_b64 exec, -1")
    A(f"s_cmp_lg_u32 s{sWAVE}, 3\ns_cbranch_scc1 L_done")
    A(f"L_dw:\nv_lshlrev_b32 v8, 2, v{vL}\nv_min_u32 v8, 40, v8\nds_read_b32 v9, v8 offset:{L_DN}\ns_waitcnt lgkmcnt(0)\nv_cmp_ne_u32 vcc, s{sT}, v9\ns_cmp_eq_u64 vcc, 0\ns_cbranch_scc1 L_dw2\ns_sleep 4\ns_sub_u32 s{sSPIN}, s{sSPIN}, 1\ns_cbranch_scc0 L_dw\ns_branch L_done\nL_dw2:")
    A("s_sleep 127\ns_sleep 127")
    adds = [(3,0,1),(0,2,2),(0,4,3),(4,4,4),(8,2,5),(8,3,6),(8,4,7),(0,7,8),(3,9,13),(3,10,14)]
    maxs = [(3,11,0),(0,7,9),(1,7,9),(2,7,9),(3,8,10),(8,3,11),(9,3,11),(10,3,11),(8,4,12),(9,4,12),(10,4,12),(3,0,15)]
    A("v_mov_b32 v20, 0\nv_mov_b32 v21, 0")
    for k, (w, st, d) in enumerate(adds + maxs):
        A(f"s_mov_b32 s{sTMP}, {L_ST + w*64 + st*4}\nv_writelane_b32 v20, s{sTMP}, {k}\ns_mov_b32 s{sTMP}, {d*4}\nv_writelane_b32 v21, s{sTMP}, {k}")
    A("ds_read_b32 v22, v20")
    A(f"s_load_dwordx2 s[{sM+2}:{sM+3}], s[0:1], 88\ns_waitcnt lgkmcnt(0)")
    srd(SR, sM + 2, 256)
    A("s_waitcnt lgkmcnt(0)")
    A(f"s_mov_b64 exec, {(1 << len(adds)) - 1}")
    A(f"buffer_atomic_add v22, v21, s[{SR}:{SR+3}], 0 offen")
    A(f"s_mov_b64 exec, {((1 << len(maxs)) - 1) << len(adds)}")
    A(f"buffer_atomic_umax v22, v21, s[{SR}:{SR+3}], 0 offen")
elif a.stamps:
    A("s_mov_b64 exec, -1")
    A("s_waitcnt vmcnt(0) lgkmcnt(0)")
    A(f"s_memrealtime s[{sST+16}:{sST+17}]\ns_waitcnt lgkmcnt(0)")
    A(f"s_lshl_b32 s{sTMP}, s2, 4\ns_add_u32 s{sTMP}, s{sTMP}, s{sWAVE}\ns_mul_i32 s{sTMP}, s{sTMP}, 80\ns_add_u32 s{sTMP}, s{sTMP}, {STAMP}")
    for k in range(18):
        A(f"v_mov_b32 v{8+k}, s{sST+k}")
    A("v_mov_b32 v30, 0\ns_mov_b64 exec, 1")
    for k in range(4):
        A(f"buffer_store_dwordx4 v[{8+4*k}:{11+4*k}], v30, s[{WS}:{WS+3}], s{sTMP} offen offset:{16*k}")
    A("s_getreg_b32 s3, hwreg(HW_REG_XCC_ID)\nv_mov_b32 v26, s3\nv_mov_b32 v27, 0")
    A(f"buffer_store_dwordx4 v[24:27], v30, s[{WS}:{WS+3}], s{sTMP} offen offset:64")
A("L_done:\ns_endpgm")
A.footer(168)
A.write(a.out)
```

```python
import sys, argparse
from asmlib import *
ap = argparse.ArgumentParser()
ap.add_argument("out")
ap.add_argument("--stamps", type=int, default=0)
ap.add_argument("--prio", type=int, default=1)
ap.add_argument("--lds", type=int, default=163840)
ap.add_argument("--nopoll", type=int, default=0)
ap.add_argument("--near", type=int, default=0)
ap.add_argument("--kfull", type=int, default=0)
ap.add_argument("--psleep", type=int, default=0)
ap.add_argument("--lat", type=int, default=0)
ap.add_argument("--thr", type=int, default=0)
ap.add_argument("--rot", type=int, default=0)
ap.add_argument("--pdepth", type=int, default=3)
ap.add_argument("--pgap", type=int, default=16)
ap.add_argument("--fgap", type=int, default=5)
ap.add_argument("--fdepth", type=int, default=3)
ap.add_argument("--g2", type=int, default=1)
ap.add_argument("--dbg", type=int, default=0)
ap.add_argument("--win", type=str, default="")
ap.add_argument("--gsleep", type=int, default=1)
ap.add_argument("--nt", type=int, default=12)
ap.add_argument("--nofin", type=int, default=0)
ap.add_argument("--lsleep", type=int, default=1)
ap.add_argument("--x1", type=int, default=0)
ap.add_argument("--fmask", type=int, default=0)
ap.add_argument("--fsl", type=int, default=0)
ap.add_argument("--pro", type=int, default=0)
ap.add_argument("--contig", type=str, default="")
ap.add_argument("--fp", type=int, default=0)
ap.add_argument("--xmap", type=int, default=0)
ap.add_argument("--dly", type=str, default="")
ap.add_argument("--pnt", type=int, default=3)
ap.add_argument("--slab", type=int, default=0)
ap.add_argument("--wsl", type=int, default=1)
ap.add_argument("--no2", type=int, default=0)
ap.add_argument("--ks2", type=int, default=2)
ap.add_argument("--lmap", type=int, default=0)
ap.add_argument("--boost", type=int, default=0)
ap.add_argument("--vboost", type=int, default=0)
ap.add_argument("--kboost", type=int, default=0)
ap.add_argument("--vtrig", type=int, default=0)
ap.add_argument("--wj", type=str, default="")
ap.add_argument("--rank", type=int, default=0)
ap.add_argument("--vr", type=int, default=24)
ap.add_argument("--rop", type=int, default=1)
ap.add_argument("--dirty", type=int, default=0)
ap.add_argument("--nf", type=int, default=0)
ap.add_argument("--nft", type=int, default=110)
ap.add_argument("--nfi", type=int, default=0)
ap.add_argument("--nfs", type=int, default=1)
ap.add_argument("--nfd", type=int, default=0)
ap.add_argument("--nfv", type=int, default=0)
ap.add_argument("--eb", type=int, default=0)
ap.add_argument("--nfp", default="sc1")
ap.add_argument("--nfx", type=int, default=0)
ap.add_argument("--nfj", type=int, default=-1)
ap.add_argument("--dry", type=int, default=0)
ap.add_argument("--nfr", type=int, default=0)
ap.add_argument("--nfdl", type=int, default=32)
ap.add_argument("--nfo", type=int, default=0)
ap.add_argument("--nfw", type=int, default=0)
a = ap.parse_args()
PN = " nt" if a.pnt & 1 else ""
FN = " nt" if a.pnt & 2 else ""
XN = " nt" if a.pnt & 4 else ""
WIN = [int(x) for x in a.win.split(",")] if a.win else None
if a.dbg: a.stamps = 1

A = Asm()
NW = 12 if a.lat else 11
A.header(256, 64 * NW, a.lds)

QBOX = 0x10000
OBOX = 0x40000
SBOX = 0x70000
FBOX = 0x80000
RBOX = 0x78000
VBOX = 0x7a000
STAMP = 0x8000000
L_PW, L_PK, L_PV = 0, 16, 32
L_QF = 48
L_MX = 64
L_LS = 96
L_FF = 128
L_FFLAG = 144
L_MODE = 148
L_OF = 160
L_PF = 176
L_KI = 192
L_VT = 192
L_DN = 208
L_ST = 2048
L_Q = 256
L_P = 640
L_O = 1152
sH, sJ, sP, sHH = 4, 5, 6, 7
sX, sK, sV, sWQ, sWO = 12, 14, 16, 18, 20
sWSP = 22
sWAVE = 24
sT = 25
sSPIN = 26
sC = 27
WS = 28
SR = 32
sOFF = 36
sTMP, sTMP2, sTMP3 = 37, 38, 39
sSEL = 40
sSELA, sSELB = 44, 45
sFL = sT
SR2 = 48
sM = 52
sNEED, sHAVE = 56, 57
sMODE, sCNT = 58, 59
sXCC = 60
sRB, sRI = 62, 63
sDRY = 61
sST = 64
vL = 0
vOFF = 1
vAD = 2
vT = 3
vACC = 4
vA0, vA1 = 8, 12
vSEL = 16
vCO = 24
vD = 40

nstamp = [0]
def stamp(k):
    if a.stamps:
        A(f"s_memrealtime s[{sST+2*k}:{sST+2*k+1}]")

def thr(n):
    if a.thr and n >= a.thr:
        A(f"s_waitcnt vmcnt({a.thr-1})")

def prio(p):
    if a.prio:
        A(f"s_setprio {p}")

def spin_tail(loop, sleep=1):
    if sleep:
        A(f"s_sleep {sleep}")
    A(f"s_sub_u32 s{sSPIN}, s{sSPIN}, 1\ns_cbranch_scc0 {loop}\ns_branch L_end")

def lds_wait(off, positions, nread, vt):
    if a.nopoll >= 2: return
    lp = A.label("Lw"); dn = A.label("Lwd")
    vz = vt + nread + 1
    vx = vt + nread
    A(f"v_mov_b32 v{vz}, 0")
    A(f"{lp}:")
    k = 0
    while k < nread:
        n = min(4, nread - k)
        op = {1: "ds_read_b32", 2: "ds_read_b64", 4: "ds_read_b128"}[n]
        reg = f"v{vt+k}" if n == 1 else f"v[{vt+k}:{vt+k+n-1}]"
        A(f"{op} {reg}, v{vz} offset:{off+4*k}")
        k += n
    A("s_waitcnt lgkmcnt(0)")
    first = True
    for p in positions:
        if first:
            A(f"v_xor_b32 v{vx}, s{sFL}, v{vt+p}")
            first = False
        else:
            A(f"v_xor_b32 v{vz}, s{sFL}, v{vt+p}\nv_or_b32 v{vx}, v{vx}, v{vz}")
    A(f"v_mov_b32 v{vz}, 0")
    A(f"v_cmp_ne_u32 vcc, 0, v{vx}")
    A(f"s_cmp_eq_u64 vcc, 0\ns_cbranch_scc1 {dn}")
    spin_tail(lp, a.lsleep)
    A(f"{dn}:")

def gate_init(widx, NP, vz):
    A(f"s_add_u32 s{sNEED}, s{widx}, 1\ns_mul_i32 s{sNEED}, s{sNEED}, {NP}\ns_mov_b32 s{sHAVE}, 0\nv_mov_b32 v{vz}, 0")

def gate(loff, kS, NP, NS, vz, vt):
    lp = A.label("Lg"); go = A.label("Lgo")
    A(f"{lp}:\ns_cmp_ge_u32 s{sHAVE}, s{sNEED}\ns_cbranch_scc1 {go}")
    if a.x1: A("s_mov_b64 exec, 1")
    A(f"ds_read_b128 v[{vt}:{vt+3}], v{vz} offset:{loff}\ns_waitcnt lgkmcnt(0)")
    A(f"v_add3_u32 v{vt}, v{vt}, v{vt+1}, v{vt+2}\nv_add_u32 v{vt}, v{vt}, v{vt+3}\ns_nop 0\nv_readfirstlane_b32 s{sHAVE}, v{vt}")
    if a.x1: A("s_mov_b64 exec, -1")
    A(f"s_mul_i32 s{sHAVE}, s{sHAVE}, {NS}\ns_cmp_ge_u32 s{sHAVE}, s{sNEED}\ns_cbranch_scc1 {go}")
    spin_tail(lp, a.gsleep)
    A(f"{go}:\ns_add_u32 s{sNEED}, s{sNEED}, {kS*NP}")

def credit(loff, vaddr, vval, n):
    A(f"v_mov_b32 v{vval}, {n}\nds_write_b32 v{vaddr}, v{vval} offset:{loff}")

def lds_flag(off, vtmp):
    A(f"v_mov_b32 v{vtmp}, 0\nds_write_b32 v{vtmp}, v{vT} offset:{off}")

def get_T():
    A("s_waitcnt lgkmcnt(0)")
    A(f"s_mul_i32 s{sT}, s{sT}, 0x9E3779B1\ns_add_u32 s{sT}, s{sT}, 0x7F4A7C15\ns_andn2_b32 s{sT}, s{sT}, 15\ns_or_b32 s{sT}, s{sT}, 8\ns_or_b32 s{sT}, s{sT}, s{sXCC}")
    A(f"v_mov_b32 v{vT}, s{sT}")

def make_selectors():
    t0, t1, t2, t3 = vA0, vA0 + 1, vA0 + 2, vA0 + 3
    A(f"v_bfe_u32 v{t0}, v{vL}, 2, 2")
    A(f"v_bfe_u32 v{t1}, v{vL}, 1, 1")
    A(f"v_cmp_eq_u32 vcc, 1, v{t1}")
    A(f"v_mov_b32 v{t2}, 0x0c0c0100\nv_mov_b32 v{t3}, 0x01000c0c")
    A(f"v_cndmask_b32 v{t2}, v{t2}, v{t3}, vcc")
    A(f"v_mov_b32 v{t1}, 0x0c0c0302\nv_mov_b32 v{t3}, 0x03020c0c")
    A(f"v_cndmask_b32 v{t3}, v{t1}, v{t3}, vcc")
    A(f"v_mov_b32 v{t1}, 0x0c0c0c0c")
    for t in range(4):
        A(f"v_cmp_eq_u32 vcc, {t}, v{t0}\ns_nop 1")
        A(f"v_cndmask_b32 v{vSEL+2*t}, v{t1}, v{t2}, vcc\nv_cndmask_b32 v{vSEL+2*t+1}, v{t1}, v{t3}, vcc")

def build_A(b, buf):
    src = vCO + b // 2
    for t in range(4):
        A(f"v_perm_b32 v{buf+t}, v{src}, v{src}, v{vSEL+2*t+(b&1)}")

def diag_gemv(nb, extra_after=0, win=None, hook=None):
    build_A(0, vA0)
    for b in range(nb):
        if b + 1 < nb:
            build_A(b + 1, vA1 if (b & 1) == 0 else vA0)
        else:
            A("s_nop 1")
        A(f"s_waitcnt vmcnt({min(nb-1-b, (win or nb)-1)+extra_after})")
        if hook: hook(b)
        buf = vA0 if (b & 1) == 0 else vA1
        c = "0" if b == 0 else f"v[{vACC}:{vACC+3}]"
        A(f"v_mfma_f32_16x16x32_bf16 v[{vACC}:{vACC+3}], v[{buf}:{buf+3}], v[{vD+4*b}:{vD+4*b+3}], {c}")

def combine(g):
    A("s_nop 7")
    A(f"v_add_f32_dpp v{g}, v{vACC+1}, v{vACC} row_ror:8 row_mask:0xf bank_mask:0xf")
    A(f"v_add_f32_dpp v{g+1}, v{vACC+3}, v{vACC+2} row_ror:8 row_mask:0xf bank_mask:0xf")
    A(f"v_mov_b32 v{g+2}, 0\nv_mov_b32 v{g+3}, 0")
    A("s_nop 1")
    A(f"v_permlane16_swap_b32 v{g}, v{g+2}\nv_permlane16_swap_b32 v{g+1}, v{g+3}")
    A("s_nop 1")
    for k in range(4):
        A(f"v_perm_b32 v{g+k}, v{g+k}, v{vT}, s{sSEL+k}")

def poll(g, voff, soff, sleep=0, depth=None, gap=None, on_timeout=None, lfl=None, after_first=None):
    if a.nopoll >= 1: return
    depth = depth or a.pdepth
    gap = a.pgap if gap is None else gap
    lp = A.label("Lp"); dn = A.label("Lpd")
    sets = [g + 8 + 4 * k for k in range(depth)]
    def issue(r):
        A(f"buffer_load_dwordx4 v[{r}:{r+3}], v{voff}, s[{WS}:{WS+3}], s{soff} offen sc1{PN if lfl is None else lfl}")
    for k in range(depth - 1):
        issue(sets[k])
        if k == 0 and after_first: after_first()
        if gap: A(f"s_sleep {gap}")
    if on_timeout: A(f"s_mov_b32 s{sCNT}, 0")
    A(f"{lp}:")
    fins = []
    for k in range(depth):
        issue(sets[(k + depth - 1) % depth])
        r = sets[k]
        A(f"s_waitcnt vmcnt({depth-1})")
        A(f"v_perm_b32 v{g+4}, v{r+1}, v{r}, s{sSELA}\nv_perm_b32 v{g+5}, v{r+3}, v{r+2}, s{sSELB}")
        A(f"v_or_b32 v{g+4}, v{g+4}, v{g+5}\nv_xor_b32 v{g+4}, s{sT}, v{g+4}")
        A(f"v_cmp_lt_u32 vcc, 7, v{g+4}")
        fl = A.label("Lpf"); fins.append((fl, r))
        A(f"s_cmp_eq_u64 vcc, 0\ns_cbranch_scc1 {fl}")
    if on_timeout:
        A(f"s_add_u32 s{sCNT}, s{sCNT}, 1\ns_cmp_lg_u32 s{sCNT}, {a.nt}\ns_cbranch_scc1 {lp}_t")
        on_timeout()
        A(f"{lp}_t:")
    spin_tail(lp, 0)
    for i, (fl, r) in enumerate(fins):
        A(f"{fl}:")
        for k in range(4):
            A(f"v_mov_b32 v{g+k}, v{r+k}")
        if i < len(fins) - 1: A(f"s_branch {dn}")
    A(f"{dn}:")
    A("s_nop 1")

def lds_mode(vz, vr):
    A(f"v_mov_b32 v{vz}, 0\nds_read_b32 v{vr}, v{vz} offset:{L_MODE}")

def publish_gather(box, ldsdst, ldsflag, fscale, g=vD, h=None):
    combine(g)
    A(f"v_and_b32 v{g+8}, 7, v{vL}\nv_lshrrev_b32 v{g+9}, 5, v{vL}\nv_lshl_add_u32 v{g+8}, v{g+8}, 1, v{g+9}\nv_lshlrev_b32 v{g+8}, 4, v{g+8}")
    A(f"s_mul_i32 s{sOFF}, s{sH}, 3072\ns_lshl_b32 s{sTMP}, s{sC}, 10\ns_add_u32 s{sOFF}, s{sOFF}, s{sTMP}\ns_add_u32 s{sOFF}, s{sOFF}, {box}")
    A(f"s_lshl_b32 s{sTMP3}, s{sJ}, 8\ns_add_u32 s{sTMP3}, s{sTMP3}, s{sOFF}")
    def store(fl):
        A("s_mov_b32 exec_lo, 0xff\ns_mov_b32 exec_hi, 0xff")
        A(f"buffer_store_dwordx4 v[{g}:{g+3}], v{g+8}, s[{WS}:{WS+3}], s{sTMP3} offen{fl}")
        A("s_mov_b64 exec, -1")
    if fscale:
        l1 = A.label("Ls"); l2 = A.label("Ls")
        A(f"s_cmp_lg_u32 s{sMODE}, 0\ns_cbranch_scc1 {l1}")
        store("")
        A(f"s_branch {l2}\n{l1}:")
        store(" sc1")
        A(f"{l2}:")
    else:
        store("")
    stamp(3)
    A(f"v_and_b32 v{g+10}, 3, v{vL}\nv_lshrrev_b32 v{g+11}, 2, v{vL}\nv_lshlrev_b32 v{g+12}, 4, v{g+11}\nv_lshl_add_u32 v{g+12}, v{g+10}, 8, v{g+12}")
    if fscale:
        lds_wait(L_FFLAG, [0], 1, g + 16)
        A(f"v_lshlrev_b32 v{g+13}, 2, v{g+10}\nds_read_b32 v{g+13}, v{g+13} offset:{L_FF}")
    h = h or g + 20
    def opf(): A(f"s_lshl_b32 s{sTMP}, s{sC}, 2\nv_mov_b32 v{g+14}, s{sTMP}\nds_write_b32 v{g+14}, v{vT} offset:{L_VT+4}")
    poll(h, g + 12, sOFF, on_timeout=None if fscale else (lambda: store(" sc1")), after_first=opf if fscale and a.rank else None)
    stamp(4)
    if fscale:
        A("s_waitcnt lgkmcnt(0)")
        for k in range(4):
            A(f"v_mul_f32 v{h+k}, v{h+k}, v{g+13}")
    else:
        if a.nopoll: A(f"v_mov_b32 v{h+4}, 0")
        A(f"v_cmp_ne_u32 vcc, 0, v{h+4}\ns_cmp_lg_u64 vcc, 0\ns_cselect_b32 s{sMODE}, 1, 0\nv_mov_b32 v{g+13}, s{sMODE}\nv_mov_b32 v{g+14}, 0")
        l1 = A.label("Ls")
        A(f"s_cbranch_scc0 {l1}")
        store(" sc1")
        A(f"{l1}:")
    for k in range(4):
        A(f"v_add_f32_dpp v{h+4+k}, v{h+k}, v{h+k} quad_perm:[1,0,3,2] row_mask:0xf bank_mask:0xf")
    for k in range(4):
        A(f"v_add_f32_dpp v{h+k}, v{h+4+k}, v{h+4+k} quad_perm:[2,3,0,1] row_mask:0xf bank_mask:0xf")
    A(f"v_cvt_pk_bf16_f32 v{h+4}, v{h}, v{h+1}\nv_cvt_pk_bf16_f32 v{h+5}, v{h+2}, v{h+3}")
    A(f"s_lshl_b32 s{sTMP}, s{sC}, 7\nv_lshlrev_b32 v{g+11}, 3, v{g+11}\nv_add_u32 v{g+11}, s{sTMP}, v{g+11}")
    A(f"s_lshl_b32 s{sTMP}, s{sC}, 2\nv_mov_b32 v{g+10}, s{sTMP}")
    A("s_mov_b32 exec_lo, 0x11111111\ns_mov_b32 exec_hi, 0x11111111")
    A(f"ds_write_b64 v{g+11}, v[{h+4}:{h+5}] offset:{ldsdst}")
    if not fscale:
        A(f"ds_write_b32 v{g+14}, v{g+13} offset:{L_MODE}")
    A(f"ds_write_b32 v{g+10}, v{vT} offset:{ldsflag}")
    A("s_mov_b64 exec, -1")

def coef_addr(vdst, per):
    A(f"v_lshrrev_b32 v{vdst}, 4, v{vL}\nv_and_b32 v{vA0}, 1, v{vL}\nv_lshl_add_u32 v{vdst}, v{vdst}, 1, v{vA0}\nv_mul_u32_u24 v{vdst}, {per}, v{vdst}")

def data_voff(rowstep):
    A(f"v_lshrrev_b32 v{vOFF}, 3, v{vL}\nv_mul_u32_u24 v{vOFF}, {rowstep}, v{vOFF}\nv_and_b32 v{vA0}, 7, v{vL}\nv_lshl_add_u32 v{vOFF}, v{vA0}, 4, v{vOFF}")

def srd(d, lo, n):
    A.srd(d, lo, n)

A("s_cmp_ge_u32 s2, 256\ns_cbranch_scc1 L_done")
stamp(0)
if a.stamps:
    for k in range(2, 18):
        A(f"s_mov_b32 s{sST+k}, 0")
if a.dly:
    dl = a.dly
    if dl[0] == "w":
        dl = dl[1:]; A("s_and_b32 s3, s2, 7")
    else:
        A("s_getreg_b32 s3, hwreg(HW_REG_XCC_ID, 0, 3)")
    dl = [int(x) for x in dl.split(",")]
    lo = sum(v << (8 * i) for i, v in enumerate(dl[:4])); hi = sum(v << (8 * i) for i, v in enumerate(dl[4:]))
    A(f"s_mov_b32 s4, {lo}\ns_mov_b32 s5, {hi}\ns_lshl_b32 s3, s3, 3\ns_lshr_b64 s[4:5], s[4:5], s3\ns_and_b32 s4, s4, 0xff")
    A("L_dl:\ns_sub_u32 s4, s4, 1\ns_cbranch_scc1 L_nd\ns_sleep 2\ns_branch L_dl\nL_nd:")
A(f"s_load_dwordx2 s[{sWSP}:{sWSP+1}], s[0:1], 96")
if a.xmap == 1:
    A(f"s_and_b32 s{sJ}, s2, 3\ns_lshr_b32 s{sH}, s2, 2")
elif a.xmap == 2:
    A(f"s_lshr_b32 s{sH}, s2, 3\ns_and_b32 s{sJ}, s{sH}, 3\ns_cmp_eq_u32 s{sJ}, 3\ns_cselect_b32 s3, 1, 0\ns_add_u32 s3, s3, s2\ns_and_b32 s3, s3, 7\ns_lshr_b32 s{sH}, s{sH}, 2\ns_lshl_b32 s3, s3, 3\ns_add_u32 s{sH}, s{sH}, s3")
else:
    A(f"s_add_u32 s3, s2, {a.rot}\ns_and_b32 s3, s3, 7\ns_lshr_b32 s{sH}, s2, 3\ns_and_b32 s{sJ}, s{sH}, 3\ns_lshr_b32 s{sH}, s{sH}, 2\ns_lshl_b32 s3, s3, 3\ns_add_u32 s{sH}, s{sH}, s3")
A(f"s_lshr_b32 s{sP}, s{sH}, 5\ns_and_b32 s{sHH}, s{sH}, 31")
A(f"s_lshl_b32 s9, s{sP}, 7")
A(f"s_mul_i32 s8, s{sP}, 40\ns_add_u32 s10, s0, s8\ns_addc_u32 s11, s1, 0")
A(f"s_load_dwordx8 s[{sX}:{sX+7}], s[10:11], 0")
A(f"s_load_dwordx2 s[{sWO}:{sWO+1}], s[10:11], 32")
A(f"v_lshrrev_b32 v1, 6, v0\nv_and_b32 v0, 63, v0\nv_readfirstlane_b32 s{sWAVE}, v1")
A(f"s_mov_b32 s{sSPIN}, 200000\ns_getreg_b32 s{sXCC}, hwreg(HW_REG_XCC_ID, 0, 3)")
for k in range(4):
    A(f"s_mov_b32 s{sSEL+k}, {0x07060500 + k:#x}")
A(f"s_mov_b32 s{sSELA}, 0x0c0c0400\ns_mov_b32 s{sSELB}, 0x04000c0c")
A(f"""s_cmp_lt_u32 s{sWAVE}, 3
s_cbranch_scc1 L_w
s_cmp_eq_u32 s{sWAVE}, 3
s_cbranch_scc1 L_aux
s_cmp_lt_u32 s{sWAVE}, 8
s_cbranch_scc1 L_k
s_cmp_lt_u32 s{sWAVE}, 11
s_cbranch_scc1 L_v
s_branch L_aux""")

A("L_w:")
prio(3)
A(f"s_mov_b32 s{sC}, s{sWAVE}")
A(f"s_mul_i32 s{sOFF}, s{sJ}, {160*12288}\ns_mul_i32 s{sTMP3}, s{sHH}, 384\ns_add_u32 s{sOFF}, s{sOFF}, s{sTMP3}\ns_lshl_b32 s{sTMP3}, s{sC}, 7\ns_add_u32 s{sOFF}, s{sOFF}, s{sTMP3}")
A(f"s_mul_i32 s{sTMP2}, s{sJ}, 320")
for nb in (20,):
    data_voff(nb * 12288)
    if "q" in a.contig:
        A(f"v_lshlrev_b32 v{vOFF}, 4, v{vL}\ns_lshl_b32 s{sOFF}, s{sHH}, 2\ns_add_u32 s{sOFF}, s{sOFF}, s{sJ}\ns_mul_i32 s{sOFF}, s{sOFF}, 3\ns_add_u32 s{sOFF}, s{sOFF}, s{sC}\ns_mul_i32 s{sOFF}, s{sOFF}, 20480")
    coef_addr(vAD, 2 * nb)
    if a.nf == 10:
        A(f"s_lshr_b32 s{sRB}, s2, 4\ns_lshl_b32 s{sRB}, s{sRB}, 14\ns_and_b32 s{sRI}, s2, 15\ns_lshl_b32 s{sRI}, s{sRI}, 9\ns_add_u32 s{sRB}, s{sRB}, s{sRI}\ns_add_u32 s{sRB}, s{sRB}, {FBOX + 20*16384}")
        A(f"s_and_b32 s{sRI}, s{sJ}, 1\ns_lshl_b32 s{sRI}, s{sRI}, 13\ns_add_u32 s{sRB}, s{sRB}, s{sRI}\ns_xor_b32 s{sRI}, s{sRB}, 8192\nv_mov_b32 v165, 0\ns_mov_b32 s{WS+2}, 0x10000000\ns_mov_b32 s{WS+3}, 0x00020000\ns_cmp_lg_u32 s{sC}, 0")
    A("s_waitcnt lgkmcnt(0)")
    if a.nf == 10:
        A(f"s_mov_b32 s{WS}, s{sWSP}\ns_cbranch_scc1 L_wnp\ns_and_b32 s{WS+1}, s{sWSP+1}, 0xffff\ns_mov_b64 exec, 1")
        A(f"buffer_load_dword v166, v165, s[{WS}:{WS+3}], s{sRB} offen {a.nfp}\nbuffer_load_dword v167, v165, s[{WS}:{WS+3}], s{sRI} offen {a.nfp}\ns_mov_b64 exec, -1\nL_wnp:")
    if a.pro: stamp(5)
    A(f"s_load_dword s{sT}, s[{sWSP}:{sWSP+1}], s9")
    srd(SR, sWQ, 640 * 12288)
    srd(SR2, sX, 1280)
    for k in range(nb // 8):
        A(f"buffer_load_dwordx4 v[{vCO+4*k}:{vCO+4*k+3}], v{vAD}, s[{SR2}:{SR2+3}], s{sTMP2} offen offset:{16*k}{XN}")
    A(f"buffer_load_dwordx2 v[{vCO+8}:{vCO+9}], v{vAD}, s[{SR2}:{SR2+3}], s{sTMP2} offen offset:32{XN}")
    nw = WIN[0] if WIN else nb
    def wq_load(b):
        A(f"buffer_load_dwordx4 v[{vD+4*b}:{vD+4*b+3}], v{vOFF}, s[{SR}:{SR+3}], s{sOFF} offen nt")
        if b < nb - 1: A(f"s_add_u32 s{sOFF}, s{sOFF}, {1024 if 'q' in a.contig else 12288}")
    for b in range(nw):
        thr(b)
        wq_load(b)
    stamp(1)
    A("s_barrier")
    srd(WS, sWSP, 0x10000000)
    make_selectors()
    if a.nf == 10:
        A(f"s_cmp_lg_u32 s{sC}, 0\ns_cbranch_scc1 L_wnq\ns_waitcnt vmcnt({nw+4})")
        A(f"s_sleep {a.nfs}" if a.nfs > 0 else f"s_nop {-a.nfs}")
        A(f"s_getreg_b32 s{sRI}, hwreg(HW_REG_IB_STS, 0, 4)\ns_bitcmp1_b32 s{sJ}, 0\ns_cselect_b32 s{sRB}, 0, 16\ns_cmp_eq_u32 s{sRI}, {nw+4}\ns_cselect_b32 s{sRB}, s{sRB}, 32\nL_wnq:")
    get_T()
    A(f"s_waitcnt vmcnt({nw})")
    if a.pro:
        A(f"s_waitcnt vmcnt({nw-1})")
        stamp(6)
    if WIN:
        A(f"s_lshl_b32 s{sTMP}, s{sC}, 2\nv_mov_b32 v{vAD}, s{sTMP}")
        def hook(b):
            if b + nw < nb: wq_load(b + nw)
            else: credit(L_PW, vAD, vCO - 1 - 0 if False else 164, b + nw - nb + 1)
        diag_gemv(nb, win=nw, hook=hook)
    else:
        diag_gemv(nb)
stamp(2)
publish_gather(QBOX, L_Q, L_QF, False, g=vD, h=136)
if not a.pro: stamp(5)
if a.nf == 10:
    A(f"s_cmp_lg_u32 s{sC}, 0\ns_cbranch_scc1 L_wnv\ns_xor_b32 s{sRB}, s{sRB}, s{sT}\nv_mov_b32 v166, s{sRB}\ns_lshl_b32 s{sRI}, s{sXCC}, 10\ns_add_u32 s{sRI}, s{sRI}, {VBOX}\ns_lshl_b32 s{sTMP}, s2, 2\nv_mov_b32 v165, s{sTMP}")
    A(f"s_mov_b64 exec, 1\nbuffer_store_dword v166, v165, s[{WS}:{WS+3}], s{sRI} offen\ns_mov_b64 exec, -1\nL_wnv:")
vF = 160
A(f"s_lshl_b32 s{sTMP}, s{sC}, 2\nv_mov_b32 v{vF+1}, s{sTMP}")
A(f"{'s_lshr_b32' if a.lmap else 's_and_b32'} s{sTMP}, s{sJ}, 1\ns_add_u32 s{sTMP}, s{sTMP}, s{sC}\ns_cmp_eq_u32 s{sTMP}, 3\ns_cbranch_scc1 L_w_fin")
prio(0)
if a.dry & 1: A(f"s_mov_b32 s{sDRY}, 1\ns_branch L_fc\nL_fcb:\ns_mov_b32 s{sDRY}, 0")
srd(SR, sWO, 6144 * 1280)
data_voff(8 * 1280 if a.slab else 24 * 1280)
if a.lmap: A(f"s_mul_i32 s{sTMP}, s{sJ}, 3\ns_add_u32 s{sM}, s{sJ}, 1\ns_lshr_b32 s{sM}, s{sM}, 2\ns_sub_u32 s{sTMP}, s{sTMP}, s{sM}\ns_add_u32 s{sM}, s{sTMP}, s{sC}")
else: A(f"s_mul_i32 s{sTMP}, s{sJ}, 5\ns_add_u32 s{sTMP}, s{sTMP}, 1\ns_lshr_b32 s{sTMP}, s{sTMP}, 1\ns_add_u32 s{sM}, s{sTMP}, s{sC}")
A(f"s_mul_i32 s{sOFF}, s{sHH}, {192*1280}\ns_lshl_b32 s{sTMP}, s{sM}, 7\ns_add_u32 s{sOFF}, s{sOFF}, s{sTMP}")
if "o" in a.contig:
    A(f"v_lshlrev_b32 v{vOFF}, 4, v{vL}\ns_mul_i32 s{sOFF}, s{sHH}, 10\ns_add_u32 s{sOFF}, s{sOFF}, s{sM}\ns_mul_i32 s{sOFF}, s{sOFF}, 24576")
if WIN: gate_init(sC, 3 * WIN[2], vCO)
def wo_issue(nO, kS):
    rest = [A.label("Lb") for b in range(24)]
    for b in range(24):
        thr(b)
        if WIN:
            if b < nO: gate(L_PV, kS, 3 * WIN[2], kS * nO, vCO, vCO + 4)
            else:
                if a.boost:
                    t = vCO + 4
                    A(f"ds_read_b128 v[{t}:{t+3}], v{vCO} offset:{L_OF}\ns_waitcnt lgkmcnt(0)")
                    op = "v_or3_b32" if a.boost == 2 else None
                    if a.boost == 1:
                        A(f"v_and_b32 v{t}, v{t}, v{t+1}\nv_and_or_b32 v{t}, v{t}, v{t+2}, v{t+3}")
                    else:
                        A(f"v_or3_b32 v{t}, v{t}, v{t+1}, v{t+2}")
                    A(f"v_cmp_ne_u32 vcc, 0, v{t}\ns_cbranch_vccnz {rest[b]}")
                A(f"s_waitcnt vmcnt({nO-1})")
        A(f"buffer_load_dwordx4 v[{vD+4*b}:{vD+4*b+3}], v{vOFF}, s[{SR}:{SR+3}], s{sOFF} offen nt")
        if b < 23: A(f"s_add_u32 s{sOFF}, s{sOFF}, {1024 if 'o' in a.contig else (57 * 1280 if a.slab and b % 8 == 7 else 1280)}")
    if a.boost and WIN:
        A("s_branch L_wo_j")
        for b in range(nO, 24):
            A(f"{rest[b]}:")
            A(f"buffer_load_dwordx4 v[{vD+4*b}:{vD+4*b+3}], v{vOFF}, s[{SR}:{SR+3}], s{sOFF} offen nt")
            if b < 23: A(f"s_add_u32 s{sOFF}, s{sOFF}, {1024 if 'o' in a.contig else (57 * 1280 if a.slab and b % 8 == 7 else 1280)}")
        A("s_branch L_wo_j")
    return
    for b in range(24):
        A(f"buffer_load_dwordx4 v[{vD+4*b}:{vD+4*b+3}], v{vOFF}, s[{SR}:{SR+3}], s{sOFF} offen nt")
        if b < 23: A(f"s_add_u32 s{sOFF}, s{sOFF}, {1024 if 'o' in a.contig else (57 * 1280 if a.slab and b % 8 == 7 else 1280)}")
if a.wj:
    assert a.boost
    wj = [int(x) for x in a.wj.split(",")]
    for jj in range(4):
        heavy = (jj < 2) if a.lmap else (jj % 2 == 0)
        if jj < 3: A(f"s_cmp_lg_u32 s{sJ}, {jj}\ns_cbranch_scc1 L_wj{jj}")
        wo_issue(wj[jj], 3 if heavy else 2)
        A(f"L_wj{jj}:")
elif a.no2:
    A(f"s_bitcmp1_b32 s{sJ}, {1 if a.lmap else 0}\ns_cbranch_scc0 L_wo_e")
    wo_issue(a.no2, a.ks2)
    A("s_branch L_wo_j\nL_wo_e:")
if not a.wj: wo_issue(WIN[3] if WIN else 24, 3)
A("L_wo_j:")
prio(3)
if not a.pro: stamp(6)
coef_addr(vAD, 16 if a.slab else 48)
if a.fp:
    gp = a.fp // 16; lg = gp.bit_length() - 1
    A(f"v_and_b32 v{vF}, 7, v{vL}\nv_lshrrev_b32 v{vF+2}, 5, v{vL}\nv_lshl_add_u32 v{vF}, v{vF}, 1, v{vF+2}")
    A(f"v_and_b32 v{vF+2}, {gp-1}, v{vF}\nv_lshrrev_b32 v{vF}, {lg}, v{vF}\nv_mul_u32_u24 v{vF}, {32*a.fp}, v{vF}\nv_lshl_add_u32 v{vF}, v{vF+2}, 4, v{vF}")
    A(f"s_mul_i32 s{sOFF}, s{sP}, 10\ns_add_u32 s{sOFF}, s{sOFF}, s{sM}\ns_lshl_b32 s{sOFF}, s{sOFF}, {14 if a.nf else 13}\ns_mul_i32 s{sTMP}, s{sHH}, {a.fp}\ns_add_u32 s{sOFF}, s{sOFF}, s{sTMP}\ns_add_u32 s{sOFF}, s{sOFF}, {FBOX}")
else:
    A(f"v_and_b32 v{vF}, 7, v{vL}\nv_lshrrev_b32 v{vF+2}, 5, v{vL}\nv_lshlrev_b32 v{vF}, 10, v{vF}\nv_lshl_add_u32 v{vF}, v{vF+2}, 9, v{vF}")
    A(f"s_lshl_b32 s{sTMP}, s{sP}, 2\ns_add_u32 s{sTMP}, s{sTMP}, s{sJ}\ns_mul_i32 s{sOFF}, s{sTMP}, 24576\ns_lshl_b32 s{sTMP}, s{sHH}, 4\ns_add_u32 s{sOFF}, s{sOFF}, s{sTMP}\ns_lshl_b32 s{sTMP}, s{sC}, 13\ns_add_u32 s{sOFF}, s{sOFF}, s{sTMP}\ns_add_u32 s{sOFF}, s{sOFF}, {FBOX}")
if a.slab:
    vfl = vCO + 12
    A(f"v_mov_b32 v{vF+2}, 0\ns_mov_b32 s{sM}, 7")
    for k in range(4): A(f"v_mov_b32 v{vACC+k}, 0")
    A("L_kl:")
    A(f"ds_read_b128 v[{vfl}:{vfl+3}], v{vF+2} offset:{L_OF}")
    for c in range(3): A(f"ds_read_b128 v[{vCO+4*c}:{vCO+4*c+3}], v{vAD} offset:{L_O+128*c}")
    A("s_waitcnt lgkmcnt(0)")
    for c in range(3): A(f"v_readfirstlane_b32 s{sTMP+c}, v{vfl+c}")
    for c in range(3):
        A(f"s_bitcmp0_b32 s{sM}, {c}\ns_cbranch_scc1 L_kn{c}")
        if a.nopoll < 2: A(f"s_cmp_lg_u32 s{sTMP+c}, s{sT}\ns_cbranch_scc1 L_kn{c}")
        A(f"s_bitset0_b32 s{sM}, {c}")
        def bA(b, buf):
            for t in range(4): A(f"v_perm_b32 v{buf+t}, v{vCO+4*c+b//2}, v{vCO+4*c+b//2}, v{vSEL+2*t+(b&1)}")
        bA(0, vA0)
        for b in range(8):
            if b < 7: bA(b + 1, vA1 if (b & 1) == 0 else vA0)
            else: A("s_nop 1")
            buf = vA0 if (b & 1) == 0 else vA1
            n = 8 * c + b
            A(f"s_waitcnt vmcnt({23-n})")
            A(f"v_mfma_f32_16x16x32_bf16 v[{vACC}:{vACC+3}], v[{buf}:{buf+3}], v[{vD+4*n}:{vD+4*n+3}], v[{vACC}:{vACC+3}]")
        A(f"L_kn{c}:")
    A(f"s_cmp_eq_u32 s{sM}, 0\ns_cbranch_scc1 L_kd")
    spin_tail("L_kl", a.wsl)
    A("L_kd:")
else:
    lds_wait(L_OF, [0, 1, 2], 4, vCO)
    for k in range(3):
        A(f"ds_read_b128 v[{vCO+4*k}:{vCO+4*k+3}], v{vAD} offset:{L_O+16*k}")
    A("s_waitcnt lgkmcnt(0)")
    A("L_fc:")
    diag_gemv(24)
combine(vCO)
if a.dry & 1: A(f"s_cmp_lg_u32 s{sDRY}, 0\ns_cbranch_scc1 L_fcb")
A("s_mov_b32 exec_lo, 0xff\ns_mov_b32 exec_hi, 0xff")
if a.nofin != 1: A(f"buffer_store_dwordx4 v[{vCO}:{vCO+3}], v{vF}, s[{WS}:{WS+3}], s{sOFF} offen{'' if a.nofin == 3 else ' sc1'}")
if a.nf and a.nofin != 1: A(f"s_add_u32 s{sOFF}, s{sOFF}, 8192\nbuffer_store_dwordx4 v[{vCO}:{vCO+3}], v{vF}, s[{WS}:{WS+3}], s{sOFF} offen sc1")
A("s_mov_b64 exec, -1")
A("L_w_fin:")
A(f"ds_write_b32 v{vF+1}, v{vT} offset:{L_PF}")
stamp(7)
A("s_branch L_end")

A("L_k:")
prio(2)
A(f"s_sub_u32 s{sC}, s{sWAVE}, 4")
A(f"v_and_b32 v{vOFF}, 7, v{vL}\nv_mul_u32_u24 v{vOFF}, 384, v{vOFF}\nv_bfe_u32 v8, v{vL}, 3, 1\nv_lshl_add_u32 v{vOFF}, v8, 6, v{vOFF}\nv_lshrrev_b32 v8, 4, v{vL}\nv_lshl_add_u32 v{vOFF}, v8, 4, v{vOFF}")
A(f"v_and_b32 v{vAD}, 1, v{vL}\nv_lshlrev_b32 v{vAD}, 6, v{vAD}\nv_lshl_add_u32 v{vAD}, v8, 4, v{vAD}")
A(f"s_mul_i32 s{sOFF}, s{sHH}, 1572864\ns_mul_i32 s{sTMP}, s{sJ}, 98304\ns_add_u32 s{sOFF}, s{sOFF}, s{sTMP}\ns_mul_i32 s{sTMP}, s{sC}, 24576\ns_add_u32 s{sOFF}, s{sOFF}, s{sTMP}\ns_add_u32 s{sOFF}, s{sOFF}, {3072*384}")
A("s_waitcnt lgkmcnt(0)")
A(f"s_load_dword s{sT}, s[{sWSP}:{sWSP+1}], s9")
srd(SR, sK, 50331648)
srd(WS, sWSP, 0x10000000)
A("s_barrier")
get_T()
if WIN: gate_init(sC, 3 * WIN[0], 24)
krest = [A.label("Lkb") for b in range(24)]
def k_load(t):
    A(f"buffer_load_dwordx4 v[{vD+4*t}:{vD+4*t+3}], v{vOFF}, s[{SR}:{SR+3}], s{sOFF} offen offset:{128*(t%3)} nt")
    if t % 3 == 2 and t < 23: A(f"s_add_u32 s{sOFF}, s{sOFF}, 3072")
for t in range(24):
    thr(t)
    if WIN:
        if t < WIN[1]: gate(L_PW, 4, 3 * WIN[0], 4 * WIN[1], 24, 28)
        else:
            if a.kboost:
                A(f"ds_read_b128 v[28:31], v24 offset:{L_QF}\ns_waitcnt lgkmcnt(0)\nv_and_b32 v28, v28, v29\nv_and_b32 v28, v28, v30\nv_cmp_ne_u32 vcc, 0, v28\ns_cbranch_vccnz {krest[t]}")
            A(f"s_waitcnt vmcnt({WIN[1]-1})")
    k_load(t)
if a.kboost:
    A("s_branch L_kb_j")
    for t in range(WIN[1], 24):
        if t >= a.kboost: A(f"s_waitcnt vmcnt({a.kboost-1})")
        A(f"{krest[t]}:")
        k_load(t)
    A("L_kb_j:")
if WIN:
    prio(3)
    A(f"s_lshl_b32 s{sTMP}, s{sC}, 2\nv_mov_b32 v8, s{sTMP}")
    for i in range(WIN[1]):
        A(f"s_waitcnt vmcnt({WIN[1]-1-i})")
        credit(L_PK, 8, 9, i + 1)
elif a.g2:
    A(f"s_lshl_b32 s{sTMP}, s{sC}, 2\nv_mov_b32 v8, s{sTMP}\nds_write_b32 v8, v{vT} offset:{L_KI}")
prio(3)
stamp(1)
vQ = 8
vS = 136
lds_wait(L_QF, [0, 1, 2], 4, 24)
stamp(2)
for u in range(3):
    A(f"ds_read_b128 v[{vQ+4*u}:{vQ+4*u+3}], v{vAD} offset:{L_Q+128*u}")
A("s_waitcnt lgkmcnt(0)")
s_ = 24
for t in range(24):
    G, u = divmod(t, 3)
    A(f"s_waitcnt vmcnt({23-t})")
    c = "0" if u == 0 else f"v[{vS+4*G}:{vS+4*G+3}]"
    A(f"v_mfma_f32_16x16x32_bf16 v[{vS+4*G}:{vS+4*G+3}], v[{vQ+4*u}:{vQ+4*u+3}], v[{vD+4*t}:{vD+4*t+3}], {c}")
stamp(3)
A("s_nop 7")
for G in range(8):
    d0, d1 = vS + 4 * G, vS + 4 * G + 1
    if G & 1:
        A(f"v_add_f32_dpp v{s_}, v{d0}, v{d1} row_ror:8 row_mask:{1 << (G >> 1):#x} bank_mask:0xc")
    else:
        A(f"v_add_f32_dpp v{s_}, v{d1}, v{d0} row_ror:8 row_mask:{1 << (G >> 1):#x} bank_mask:0x3")
A(f"v_cvt_pk_bf16_f32 v{s_}, v{s_}, v{s_}\nv_lshlrev_b32 v{s_}, 16, v{s_}")
A(f"v_mul_f32 v{s_}, 0x3d93cd3a, v{s_}")
A(f"v_cvt_pk_bf16_f32 v{s_}, v{s_}, v{s_}\nv_lshlrev_b32 v{s_}, 16, v{s_}")
def wave_reduce(op, v):
    for d in ["row_shr:1", "row_shr:2", "row_shr:4", "row_shr:8"]:
        A(f"s_nop 1\n{op}_dpp v{v}, v{v}, v{v} {d} row_mask:0xf bank_mask:0xf")
    A(f"s_nop 1\n{op}_dpp v{v}, v{v}, v{v} row_bcast:15 row_mask:0xa bank_mask:0xf")
    A(f"s_nop 1\n{op}_dpp v{v}, v{v}, v{v} row_bcast:31 row_mask:0xc bank_mask:0xf")
A(f"v_mov_b32 v{s_+1}, v{s_}")
wave_reduce("v_max_f32", s_ + 1)
A(f"s_nop 0\nv_readlane_b32 s{sTMP}, v{s_+1}, 63")
A(f"s_lshl_b32 s{sTMP2}, s{sC}, 3\nv_mov_b32 v{s_+4}, s{sTMP2}\nv_mov_b32 v{s_+2}, s{sTMP}\nv_mov_b32 v{s_+3}, s{sT}")
A(f"ds_write_b64 v{s_+4}, v[{s_+2}:{s_+3}] offset:{L_MX}")
lds_wait(L_MX, [1, 3, 5, 7], 8, s_ + 8)
A(f"v_max_f32 v{s_+8}, v{s_+8}, v{s_+10}\nv_max3_f32 v{s_+8}, v{s_+8}, v{s_+12}, v{s_+14}")
A(f"v_sub_f32 v{s_}, v{s_}, v{s_+8}\nv_mul_f32 v{s_}, 0x3fb8aa3b, v{s_}\nv_exp_f32 v{s_}, v{s_}\ns_nop 0")
A(f"v_cvt_pk_bf16_f32 v{s_+1}, v{s_}, v{s_}")
A(f"s_lshl_b32 s{sTMP}, s{sC}, 7\nv_lshlrev_b32 v{s_+5}, 1, v{vL}\nv_add_u32 v{s_+5}, s{sTMP}, v{s_+5}")
A(f"ds_write_b16 v{s_+5}, v{s_+1} offset:{L_P}")
wave_reduce("v_add_f32", s_)
A(f"s_nop 0\nv_readlane_b32 s{sTMP}, v{s_}, 63\ns_nop 1\nv_mov_b32 v{s_+2}, s{sTMP}")
A(f"ds_write_b64 v{s_+4}, v[{s_+2}:{s_+3}] offset:{L_LS}")
stamp(4)
A("s_branch L_end")

A("L_v:")
prio(1)
A(f"s_sub_u32 s{sC}, s{sWAVE}, 8")
data_voff(384 if a.near else 32 * 384)
A(f"s_mul_i32 s{sOFF}, s{sHH}, 1572864\ns_mul_i32 s{sTMP}, s{sJ}, 98304\ns_add_u32 s{sOFF}, s{sOFF}, s{sTMP}\ns_lshl_b32 s{sTMP}, s{sC}, 7\ns_add_u32 s{sOFF}, s{sOFF}, s{sTMP}\ns_add_u32 s{sOFF}, s{sOFF}, {3072*384}")
if "k" in a.contig:
    data_voff(384)
    A(f"s_mul_i32 s{sTMP}, s{sC}, {30720-128}\ns_add_u32 s{sOFF}, s{sOFF}, s{sTMP}")
if "v" in a.contig:
    A(f"v_lshlrev_b32 v{vOFF}, 4, v{vL}\ns_mul_i32 s{sTMP}, s{sC}, {32768-128}\ns_add_u32 s{sOFF}, s{sOFF}, s{sTMP}")
A("s_waitcnt lgkmcnt(0)")
A(f"s_load_dword s{sT}, s[{sWSP}:{sWSP+1}], s9")
srd(SR, sV, 50331648)
srd(WS, sWSP, 0x10000000)
A("s_barrier")
get_T()
if WIN:
    gate_init(sC, 4 * WIN[1], vCO)
elif a.g2:
    lds_wait(L_KI, [0, 1, 2, 3], 4, vCO)
if WIN:
    make_selectors()
    coef_addr(vAD, 64)
vrest = [A.label("Lvb") for b in range(32)]
def v_load(b):
    A(f"buffer_load_dwordx4 v[{vD+4*b}:{vD+4*b+3}], v{vOFF}, s[{SR}:{SR+3}], s{sOFF} offen offset:{384*(b%8)} nt")
    if b % 8 == 7 and b < 31: A(f"s_add_u32 s{sOFF}, s{sOFF}, 3072")
    if a.rank and b == a.vr: A(f"ds_write_b32 v{vCO}, v{vT} offset:{L_VT}")
for b in range(32):
    thr(b)
    if WIN:
        if b < WIN[2]: gate(L_PK, 3, 4 * WIN[1], 3 * WIN[2], vCO, vCO + 4)
        else:
            if a.vboost:
                t = vCO + 4
                if a.vtrig == 0:
                    A(f"ds_read_b32 v{t}, v{vCO} offset:{L_FFLAG}\ns_waitcnt lgkmcnt(0)\nv_cmp_ne_u32 vcc, 0, v{t}\ns_cbranch_vccnz {vrest[b]}")
                elif a.vtrig == 1:
                    A(f"ds_read_b32 v{t}, v{vCO} offset:{L_LS+4}\ns_waitcnt lgkmcnt(0)\nv_cmp_ne_u32 vcc, 0, v{t}\ns_cbranch_vccnz {vrest[b]}")
                elif b == a.vtrig:
                    A(f"s_branch {vrest[b]}")
            A(f"s_waitcnt vmcnt({WIN[2]-1})")
    if "k" in a.contig:
        A(f"buffer_load_dwordx4 v[{vD+4*b}:{vD+4*b+3}], v{vOFF}, s[{SR}:{SR+3}], s{sOFF} offen offset:{128*(b%3)} nt")
        if b % 3 == 2: A(f"s_add_u32 s{sOFF}, s{sOFF}, 3072")
        continue
    if a.near or "v" in a.contig:
        A(f"buffer_load_dwordx4 v[{vD+4*b}:{vD+4*b+3}], v{vOFF}, s[{SR}:{SR+3}], s{sOFF} offen nt\ns_add_u32 s{sOFF}, s{sOFF}, {3072 if a.near else 1024}")
        continue
    v_load(b)
if a.vboost:
    A("s_branch L_vb_j")
    for b in range(WIN[2], 32):
        if b >= a.vboost: A(f"s_waitcnt vmcnt({a.vboost-1})")
        A(f"{vrest[b]}:")
        v_load(b)
    A("L_vb_j:")
prio(3)
stamp(1)
if WIN:
    nv = WIN[2]
    A(f"s_lshl_b32 s{sTMP}, s{sC}, 2\nv_mov_b32 v{vOFF}, s{sTMP}")
    A(f"v_mov_b32 v{vCO+9}, 0\nds_read_b128 v[{vCO}:{vCO+3}], v{vCO+9} offset:{L_LS}\nds_read_b128 v[{vCO+4}:{vCO+7}], v{vCO+9} offset:{L_LS+16}\ns_waitcnt lgkmcnt(0)")
    A(f"v_xor_b32 v{vCO+1}, s{sFL}, v{vCO+1}\nv_xor_b32 v{vCO+3}, s{sFL}, v{vCO+3}\nv_xor_b32 v{vCO+5}, s{sFL}, v{vCO+5}\nv_xor_b32 v{vCO+7}, s{sFL}, v{vCO+7}")
    A(f"v_or3_b32 v{vCO+1}, v{vCO+1}, v{vCO+3}, v{vCO+5}\nv_or_b32 v{vCO+1}, v{vCO+1}, v{vCO+7}\nv_cmp_ne_u32 vcc, 0, v{vCO+1}\ns_cmp_eq_u64 vcc, 0\ns_cbranch_scc1 L_v_fast")
    for i in range(nv):
        A(f"s_waitcnt vmcnt({nv-1-i})")
        credit(L_PV, vOFF, vCO, i + 1)
    lds_wait(L_LS, [1, 3, 5, 7], 8, vCO)
    A(f"s_mov_b32 s{sNEED}, 1\ns_branch L_v_go\nL_v_fast:\ns_mov_b32 s{sNEED}, 0\nL_v_go:")
else:
    make_selectors()
    coef_addr(vAD, 64)
    lds_wait(L_LS, [1, 3, 5, 7], 8, vCO)
for k in range(4):
    A(f"ds_read_b128 v[{vCO+4*k}:{vCO+4*k+3}], v{vAD} offset:{L_P+16*k}")
lds_mode(vA0, vA0 + 1)
A(f"s_waitcnt lgkmcnt(0)\nv_readfirstlane_b32 s{sMODE}, v{vA0+1}")
stamp(2)
if WIN:
    def vhook(b):
        if b >= 32 - nv: credit(L_PV, vOFF, vAD, b - (32 - nv) + 1)
    diag_gemv(32, hook=vhook)
else:
    diag_gemv(32)
publish_gather(OBOX, L_O, L_OF, True)
stamp(5)
A("s_branch L_end")

A("L_aux:")
prio(3)
if a.dbg: A("s_memtime s[84:85]")
A(f"v_lshlrev_b32 v8, 2, v{vL}\nv_mov_b32 v9, 0\nds_write_b32 v8, v9")
A(f"s_load_dwordx4 s[{sM}:{sM+3}], s[0:1], 80")
if a.nf:
    assert a.fp == 128
    A(f"s_and_b32 s{sTMP}, s{sHH}, 7\ns_lshl_b32 s{sTMP}, s{sTMP}, 2\ns_lshr_b32 s{sTMP2}, s{sHH}, 3\ns_add_u32 s{sTMP}, s{sTMP}, s{sTMP2}\ns_lshl_b32 s{sTMP}, s{sTMP}, 1\n{'s_and_b32' if a.lmap else 's_lshr_b32'} s{sTMP2}, s{sJ}, 1\ns_add_u32 s{sTMP}, s{sTMP}, s{sTMP2}")
    A(f"{'s_lshr_b32' if a.lmap else 's_and_b32'} s{sTMP2}, s{sJ}, 1\ns_xor_b32 s{sTMP2}, s{sTMP2}, 1\ns_lshl_b32 s{sTMP2}, s{sTMP2}, 6\ns_add_u32 s{sRI}, s{sTMP}, s{sTMP2}")
    A(f"s_mul_i32 s{sRB}, s{sP}, 20\ns_add_u32 s{sRB}, s{sRB}, s{sRI}\ns_and_b32 s{sTMP}, s{sRB}, 1\ns_lshr_b32 s{sRB}, s{sRB}, 1\ns_lshl_b32 s{sRB}, s{sRB}, 14\ns_lshl_b32 s{sTMP}, s{sTMP}, 12\ns_add_u32 s{sRB}, s{sRB}, s{sTMP}\ns_add_u32 s{sRB}, s{sRB}, {FBOX}\ns_add_u32 s{sTMP3}, s{sRB}, 8192\nv_mov_b32 v30, 0")
if a.nf == 8:
    A(f"s_mul_i32 s{sTMP}, s{sP}, 20\ns_add_u32 s{sTMP}, s{sTMP}, s{sRI}\ns_lshl_b32 s{sTMP}, s{sTMP}, 14\ns_add_u32 s{sTMP}, s{sTMP}, {FBOX + 20*16384}\ns_add_u32 s{sTMP2}, s{sTMP}, 8192")
if a.nf == 9:
    A(f"s_lshr_b32 s{sTMP}, s2, 4\ns_lshl_b32 s{sTMP}, s{sTMP}, 14\ns_and_b32 s{sTMP2}, s2, 15\ns_lshl_b32 s{sTMP2}, s{sTMP2}, 9\ns_add_u32 s{sTMP}, s{sTMP}, s{sTMP2}\ns_add_u32 s{sTMP}, s{sTMP}, {FBOX + 20*16384}\ns_add_u32 s{sTMP2}, s{sTMP}, 8192")
A("s_waitcnt lgkmcnt(0)")
if a.nf not in (8, 9): srd(WS, sWSP, 0x10000000)
if a.nf == 9:
    sPA, sPB = sM + 4, sM + 5
    if a.nfr:
        A(f"s_load_dword s{sT}, s[{sWSP}:{sWSP+1}], s9")
    elif a.nfo:
        A(f"s_load_dword s{sT}, s[{sWSP}:{sWSP+1}], s9")
        A("s_barrier")
        A(f"s_load_dword s{sPA}, s[{sWSP}:{sWSP+1}], s{sTMP}\ns_load_dword s{sPB}, s[{sWSP}:{sWSP+1}], s{sTMP2}")
    else:
        A(f"s_load_dword s{sPA}, s[{sWSP}:{sWSP+1}], s{sTMP}\ns_load_dword s{sPB}, s[{sWSP}:{sWSP+1}], s{sTMP2}")
        A(f"s_load_dword s{sT}, s[{sWSP}:{sWSP+1}], s9")
        A("s_barrier")
    srd(WS, sWSP, 0x10000000)
    srd(SR2, sM, 2560)
    A(f"s_lshl_b32 s{SR}, s{sXCC}, 10\ns_add_u32 s{SR}, s{SR}, {VBOX}\ns_lshl_b32 s{sTMP2}, s2, 2\nv_mov_b32 v60, s{sTMP2}")
    if a.nfr:
        A(f"s_mov_b32 s{SR+2}, s{sTMP}\ns_add_u32 s{SR+3}, s{sTMP}, 8192")
        A("s_waitcnt lgkmcnt(0)\ns_barrier")
        d = a.nfdl
        while d > 0:
            A(f"s_sleep {min(d, 127)}"); d -= 127
        A(f"s_mov_b32 s{SR+1}, 0")
        if a.nfx: A(f"s_mov_b32 s{SR}, {VBOX}\ns_bitcmp1_b32 s{sXCC}, 0\ns_cbranch_scc0 L_npr")
        if a.nfj >= 0: A(f"s_cmp_lg_u32 s{sJ}, {a.nfj}\ns_cbranch_scc1 L_npr")
        for r in range(a.nfr):
            f1, f2 = (SR + 2, SR + 3) if r % 2 == 0 else (SR + 3, SR + 2)
            A(f"s_load_dword s{sPA}, s[{sWSP}:{sWSP+1}], s{f1}\ns_load_dword s{sPB}, s[{sWSP}:{sWSP+1}], s{f2}")
            if r + 1 < a.nfr: A(f"s_add_u32 s{SR+2}, s{SR+2}, 128\ns_add_u32 s{SR+3}, s{SR+3}, 128")
            A("s_waitcnt lgkmcnt(1)")
            A(f"s_sleep {a.nfs}" if a.nfs > 0 else f"s_nop {-a.nfs}")
            A(f"s_getreg_b32 s{sTMP}, hwreg(HW_REG_IB_STS, 8, 4)\n{'s_add_u32' if r % 2 == 0 else 's_sub_u32'} s{SR+1}, s{SR+1}, s{sTMP}\ns_waitcnt lgkmcnt(0)")
        A("L_npr:")
        A(f"s_cmp_gt_i32 s{SR+1}, 0\ns_cselect_b32 s{sTMP}, 16, 32\ns_cmp_lt_i32 s{SR+1}, 0\ns_cselect_b32 s{SR+1}, 0, s{sTMP}")
    else:
        A(f"s_waitcnt lgkmcnt({2 - a.nfo})")
        A(f"s_sleep {a.nfs}" if a.nfs > 0 else f"s_nop {-a.nfs}")
        A(f"s_getreg_b32 s{sTMP}, hwreg(HW_REG_IB_STS, 8, 4)\ns_cmp_eq_u32 s{sTMP}, {2 - a.nfo}\ns_cselect_b32 s{SR+1}, 16, 0")
def vote_store():
    A(f"s_xor_b32 s{SR+1}, s{SR+1}, s{sT}\nv_mov_b32 v61, s{SR+1}")
    if a.nfx: A(f"s_bitcmp1_b32 s{sXCC}, 0\ns_cbranch_scc0 L_nvs")
    A(f"s_mov_b64 exec, 1\nbuffer_store_dword v61, v60, s[{WS}:{WS+3}], s{SR} offen{' sc1' if a.nfx else ''}\ns_mov_b64 exec, -1")
    if a.nfx: A("L_nvs:")
if a.nf == 1:
    A(f"s_cmp_ge_u32 s{sRI}, 20\ns_cbranch_scc1 L_nc1\ns_mov_b64 exec, 1")
    A(f"buffer_load_dword v10, v30, s[{WS}:{WS+3}], s{sRB} offen sc1\nbuffer_load_dword v11, v30, s[{WS}:{WS+3}], s{sTMP3} offen sc1\ns_mov_b64 exec, -1\nL_nc1:")
if a.nf == 8:
    sPA, sPB = sM + 4, sM + 5
    A(f"s_cmp_ge_u32 s{sRI}, 20\ns_cbranch_scc1 L_nc1")
    A(f"s_load_dword s{sPA}, s[{sWSP}:{sWSP+1}], s{sTMP}\ns_load_dword s{sPB}, s[{sWSP}:{sWSP+1}], s{sTMP2}")
    A(f"s_load_dword s{sT}, s[{sWSP}:{sWSP+1}], s9")
    if a.nfd:
        A(f"s_mov_b32 s{sST+14}, 0")
        for k, inc in ((3, 1), (2, 1 << 12), (1, 1 << 22)):
            A(f"L_nd{k}:\ns_add_u32 s{sST+14}, s{sST+14}, {inc}\ns_getreg_b32 s{sTMP}, hwreg(HW_REG_IB_STS, 8, 4)\ns_cmp_ge_u32 s{sTMP}, {k}\ns_cbranch_scc1 L_nd{k}")
        A(f"s_bfe_u32 s{sTMP}, s{sST+14}, {12 | (10 << 16)}\ns_cmp_gt_u32 s{sTMP}, {a.nfd}\ns_cselect_b32 s{sRB}, s{sRB}, s{sTMP3}")
    else:
        A("s_waitcnt lgkmcnt(2)")
        A(f"s_sleep {a.nfs}" if a.nfs > 0 else f"s_nop {-a.nfs}")
        A(f"s_getreg_b32 s{sTMP}, hwreg(HW_REG_IB_STS, 8, 4)\ns_cmp_eq_u32 s{sTMP}, 2\ns_cselect_b32 s{sRB}, s{sRB}, s{sTMP3}")
        if a.stamps: A(f"s_sub_u32 s{sST+14}, 3, s{sTMP}")
    A("s_branch L_nc2\nL_nc1:")
    A(f"s_load_dword s{sT}, s[{sWSP}:{sWSP+1}], s9")
    A("L_nc2:")
    srd(WS, sWSP, 0x10000000)
    srd(SR2, sM, 2560)
    A("s_barrier")
elif a.nf != 9: A(f"s_load_dword s{sT}, s[{sWSP}:{sWSP+1}], s9")
if a.nf in (8, 9): pass
elif a.nf == 7:
    sPA, sPB = sM + 4, sM + 5
    A(f"s_cmp_ge_u32 s{sRI}, 20\ns_cbranch_scc1 L_nc1")
    A(f"s_mul_i32 s{sTMP}, s{sP}, 20\ns_add_u32 s{sTMP}, s{sTMP}, s{sRI}\ns_lshl_b32 s{sTMP}, s{sTMP}, 14\ns_add_u32 s{sTMP}, s{sTMP}, {FBOX + 20*16384}\ns_add_u32 s{sTMP2}, s{sTMP}, 8192")
    A(f"s_load_dword s{sPA}, s[{sWSP}:{sWSP+1}], s{sTMP}\ns_load_dword s{sPB}, s[{sWSP}:{sWSP+1}], s{sTMP2}")
    A("s_waitcnt lgkmcnt(1)")
    A(f"s_sleep {a.nfs}" if a.nfs else "s_nop 15\ns_nop 15")
    A(f"s_getreg_b32 s{sTMP}, hwreg(HW_REG_IB_STS, 8, 4)\ns_cmp_lg_u32 s{sTMP}, 0\ns_cselect_b32 s{sRB}, s{sRB}, s{sTMP3}")
    if a.stamps: A(f"s_sub_u32 s{sST+14}, 2, s{sTMP}")
    A("L_nc1:")
    srd(SR2, sM, 2560)
    A("s_barrier")
elif a.nf == 6:
    SENT = 0x5a17c3e9
    sPA, sPB = sM + 4, sM + 5
    A(f"s_cmp_ge_u32 s{sRI}, 20\ns_cbranch_scc1 L_nc1")
    A(f"s_mul_i32 s{sTMP}, s{sP}, 20\ns_add_u32 s{sTMP}, s{sTMP}, s{sRI}\ns_lshl_b32 s{sTMP}, s{sTMP}, 14\ns_add_u32 s{sTMP}, s{sTMP}, {FBOX + 20*16384}\ns_add_u32 s{sTMP2}, s{sTMP}, 8192")
    A(f"s_mov_b32 s{sPA}, {SENT:#x}\ns_mov_b32 s{sPB}, {SENT:#x}")
    A(f"s_load_dword s{sPA}, s[{sWSP}:{sWSP+1}], s{sTMP}\ns_load_dword s{sPB}, s[{sWSP}:{sWSP+1}], s{sTMP2}\nL_nc1:")
    srd(SR2, sM, 2560)
    A(f"s_cmp_ge_u32 s{sRI}, 20\ns_cbranch_scc1 L_prA")
    A(f"L_pr:\ns_cmp_lg_u32 s{sPA}, {SENT:#x}\ns_cbranch_scc1 L_prA\ns_cmp_lg_u32 s{sPB}, {SENT:#x}\ns_cbranch_scc1 L_prB")
    A(f"s_getreg_b32 s{sTMP}, hwreg(HW_REG_IB_STS, 8, 4)\ns_cmp_lg_u32 s{sTMP}, 0\ns_cbranch_scc1 L_pr")
    A(f"L_prB:\ns_mov_b32 s{sRB}, s{sTMP3}")
    if a.stamps: A(f"s_mov_b32 s{sST+14}, 1")
    A("L_prA:")
    if a.stamps: A(f"s_add_u32 s{sST+14}, s{sST+14}, 1")
    A("s_barrier")
else:
    srd(SR2, sM, 2560)
    A("s_barrier" if a.nf == 10 or a.eb else "s_waitcnt lgkmcnt(0)\ns_barrier")
get_T()
if a.nf == 9 and a.nfv == 0: vote_store()
if a.nf == 1:
    A(f"s_waitcnt vmcnt(1)\ns_memtime s[{sM+4}:{sM+5}]\ns_waitcnt vmcnt(0)\ns_memtime s[{sM+6}:{sM+7}]\ns_waitcnt lgkmcnt(0)")
    A(f"s_sub_u32 s{sM+4}, s{sM+6}, s{sM+4}\ns_cmp_gt_u32 s{sM+4}, {a.nft}\ns_cselect_b32 s{sRB}, s{sRB}, s{sTMP3}")
    if a.stamps: A(f"s_add_u32 s{sST+14}, s{sM+4}, 1\ns_mov_b32 s{sST+15}, 0")
elif a.nf == 3:
    A(f"s_mov_b32 s{sRB}, s{sTMP3}")
if a.lat:
    A(f"v_lshlrev_b32 v37, 4, v{vL}")
    A(f"s_lshl_b32 s{sOFF}, s2, 10\ns_add_u32 s{sOFF}, s{sOFF}, 0x200000")
    A(f"s_cmp_eq_u32 s{sWAVE}, 11\ns_cbranch_scc1 L_lat2")
    for k in range(4):
        A(f"s_memrealtime s[{sST+4*k}:{sST+4*k+1}]\ns_waitcnt lgkmcnt(0)")
        A(f"buffer_load_dwordx4 v[40:43], v37, s[{WS}:{WS+3}], s{sOFF} offen sc1\ns_waitcnt vmcnt(0)")
        A(f"s_memrealtime s[{sST+4*k+2}:{sST+4*k+3}]\ns_waitcnt lgkmcnt(0)")
        A("s_sleep 40")
    A("s_branch L_end")
    A("L_lat2:")
    A(f"s_add_u32 s{sOFF}, s{sOFF}, 0x100000")
    A(f"buffer_load_dwordx4 v[40:43], v37, s[{WS}:{WS+3}], s{sOFF} offen {'nt' if a.lat == 1 else 'sc1'}\ns_waitcnt vmcnt(0)")
    for k in range(4):
        A(f"s_memrealtime s[{sST+4*k}:{sST+4*k+1}]\ns_waitcnt lgkmcnt(0)")
        A(f"buffer_load_dwordx4 v[40:43], v37, s[{WS}:{WS+3}], s{sOFF} offen {'nt' if a.lat == 1 else 'sc1'}\ns_waitcnt vmcnt(0)")
        A(f"s_memrealtime s[{sST+4*k+2}:{sST+4*k+3}]\ns_waitcnt lgkmcnt(0)")
        A("s_sleep 40")
    A("s_branch L_end")
if a.rank:
    A(f"s_lshl_b32 s{sNEED}, s{sJ}, 7\ns_add_u32 s{sNEED}, s{sNEED}, {RBOX}\nv_mov_b32 v30, 0\nbuffer_load_dword v60, v30, s[{WS}:{WS+3}], s{sNEED} offen sc1 nt")
stamp(1)
lds_wait(L_LS, [1, 3, 5, 7], 8, 8)
A(f"v_mov_b32 v30, 0\nds_read_b128 v[20:23], v30 offset:{L_MX}\nds_read_b128 v[24:27], v30 offset:{L_MX+16}\nds_read_b32 v31, v30 offset:{L_MODE}\ns_waitcnt lgkmcnt(0)\nv_readfirstlane_b32 s{sMODE}, v31")
A("v_max_f32 v32, v20, v22\nv_max3_f32 v32, v32, v24, v26")
A("v_add_f32 v33, v8, v10\nv_add_f32 v34, v12, v14\nv_add_f32 v33, v33, v34\nv_mov_b32 v34, 0\nv_mov_b32 v35, 0")
for k in range(4):
    A(f"v_perm_b32 v{32+k}, v{32+k}, v{vT}, s{sSEL+k}")
A(f"s_lshl_b32 s{sOFF}, s{sH}, 7\ns_add_u32 s{sOFF}, s{sOFF}, {SBOX}\ns_lshl_b32 s{sTMP}, s{sJ}, 4\ns_add_u32 s{sTMP}, s{sTMP}, s{sOFF}")
A("s_mov_b64 exec, 1")
A(f"s_cmp_lg_u32 s{sMODE}, 0\ns_cbranch_scc1 L_ux1")
A(f"buffer_store_dwordx4 v[32:35], v30, s[{WS}:{WS+3}], s{sTMP} offen\ns_branch L_ux2\nL_ux1:")
A(f"buffer_store_dwordx4 v[32:35], v30, s[{WS}:{WS+3}], s{sTMP} offen sc1\nL_ux2:")
A("s_mov_b64 exec, -1")
if a.nf == 9 and a.nfv == 1: vote_store()
stamp(2)
A(f"v_and_b32 v36, 3, v{vL}\nv_lshlrev_b32 v37, 4, v36")
poll(40, 37, sOFF)
stamp(3)
A("v_and_b32 v40, 0xffffff00, v40\ns_nop 1")
A("v_max_f32_dpp v44, v40, v40 quad_perm:[1,0,3,2] row_mask:0xf bank_mask:0xf\ns_nop 1")
A("v_max_f32_dpp v44, v44, v44 quad_perm:[2,3,0,1] row_mask:0xf bank_mask:0xf")
A("v_sub_f32 v40, v40, v44\nv_mul_f32 v40, 0x3fb8aa3b, v40\nv_exp_f32 v40, v40\ns_nop 0")
A("v_mul_f32 v41, v41, v40\ns_nop 1")
A("v_add_f32_dpp v44, v41, v41 quad_perm:[1,0,3,2] row_mask:0xf bank_mask:0xf\ns_nop 1")
A("v_add_f32_dpp v44, v44, v44 quad_perm:[2,3,0,1] row_mask:0xf bank_mask:0xf")
A("v_rcp_f32 v44, v44\ns_nop 0\nv_mul_f32 v40, v40, v44")
A("v_lshlrev_b32 v36, 2, v36")
A("s_mov_b64 exec, 15")
A(f"ds_write_b32 v36, v40 offset:{L_FF}")
A(f"ds_write_b32 v30, v{vT} offset:{L_FFLAG}")
A("s_mov_b64 exec, -1")
if a.dirty:
    A(f"v_lshlrev_b32 v37, 4, v{vL}\ns_lshl_b32 s{sTMP}, s2, 14\ns_add_u32 s{sTMP}, s{sTMP}, 0x1000000")
    for k in range(a.dirty):
        A(f"buffer_store_dwordx4 v[40:43], v37, s[{WS}:{WS+3}], s{sTMP} offen\ns_add_u32 s{sTMP}, s{sTMP}, 1024")
if a.rank:
    lds_wait(L_VT, [0], 1, 8)
    A(f"v_mov_b32 v61, 1\ns_mov_b64 exec, 1\nbuffer_atomic_add v61, v30, s[{WS}:{WS+3}], s{sNEED} offen sc0 sc1\ns_mov_b64 exec, -1\ns_waitcnt vmcnt(0)")
    A(f"v_sub_u32 v61, v61, v60\ns_nop 0\nv_readfirstlane_b32 s{sTMP}, v61\ns_cmp_lt_u32 s{sTMP}, {a.rank}\ns_cbranch_scc1 L_rk")
    if a.stamps: A(f"s_mov_b32 s{sST+14}, s{sTMP}\ns_mov_b32 s{sST+15}, 0")
    if a.rop: lds_wait(L_VT, [1, 2, 3], 4, 8)
    A(f"ds_write_b32 v30, v{vT} offset:{L_OF+12}")
    A("L_rk:")
if a.fp:
    gp = a.fp // 16; lg = gp.bit_length() - 1; nx = 256 // a.fp; R = 10 * nx; nl = a.fp // 32
    if a.nf:
        A(f"s_mov_b32 s{sCNT}, s{sRI}\ns_cmp_ge_u32 s{sCNT}, {R}\ns_cbranch_scc1 L_end")
    else:
        A(f"s_and_b32 s{sTMP}, s{sHH}, 7\ns_lshl_b32 s{sTMP}, s{sTMP}, 2\ns_lshr_b32 s{sTMP2}, s{sHH}, 3\ns_add_u32 s{sTMP}, s{sTMP}, s{sTMP2}\ns_lshl_b32 s{sTMP}, s{sTMP}, 1\n{'s_and_b32' if a.lmap else 's_lshr_b32'} s{sTMP2}, s{sJ}, 1\ns_add_u32 s{sTMP}, s{sTMP}, s{sTMP2}")
        A(f"{'s_lshr_b32' if a.lmap else 's_and_b32'} s{sTMP2}, s{sJ}, 1\ns_xor_b32 s{sTMP2}, s{sTMP2}, 1\ns_lshl_b32 s{sTMP2}, s{sTMP2}, 6\ns_add_u32 s{sCNT}, s{sTMP}, s{sTMP2}\ns_cmp_ge_u32 s{sCNT}, {R}\ns_cbranch_scc1 L_end")
    A(f"s_mul_i32 s{sOFF}, s{sP}, {R}\ns_add_u32 s{sOFF}, s{sOFF}, s{sCNT}\ns_mul_i32 s{sTMP2}, s{sOFF}, {gp*8}\ns_mul_i32 s{sOFF}, s{sOFF}, {32*a.fp}\ns_add_u32 s{sOFF}, s{sOFF}, {FBOX}")
    if a.nf == 10: A(f"s_lshl_b32 s{SR}, s{sXCC}, 10\ns_add_u32 s{SR}, s{SR}, {VBOX}")
    if a.nf in (9, 10):
        A(f"v_lshlrev_b32 v37, 4, v{vL}\nbuffer_load_dwordx4 v[60:63], v37, s[{WS}:{WS+3}], s{SR} offen sc1{'' if a.nfx else ' nt'}\ns_waitcnt vmcnt(0)")
        A(f"s_mov_b32 s{sTMP}, 0\ns_mov_b32 s{sTMP3}, 0\ns_xor_b32 s{SR+1}, s{sT}, 16")
        for k in range(4):
            if a.nfx:
                A(f"v_xor_b32 v{60+k}, s{sT}, v{60+k}\nv_and_b32 v{60+k}, -4, v{60+k}")
                for c, d in ((0, sTMP), (20, sTMP), (16, sTMP3), (4, sTMP3)):
                    A(f"v_cmp_eq_u32 vcc, {c}, v{60+k}\ns_bcnt1_i32_b64 s{SR+2}, vcc\ns_add_u32 s{d}, s{d}, s{SR+2}")
            else:
                A(f"v_cmp_eq_u32 vcc, s{sT}, v{60+k}\ns_bcnt1_i32_b64 s{SR+2}, vcc\ns_add_u32 s{sTMP}, s{sTMP}, s{SR+2}")
                A(f"v_cmp_eq_u32 vcc, s{SR+1}, v{60+k}\ns_bcnt1_i32_b64 s{SR+2}, vcc\ns_add_u32 s{sTMP3}, s{sTMP3}, s{SR+2}")
        if a.stamps: A(f"s_add_u32 s{sST+14}, s{sTMP}, s{sTMP3}\ns_lshl_b32 s{sST+14}, s{sST+14}, 16\ns_add_u32 s{sST+14}, s{sST+14}, s{sTMP3}")
        if not a.nfr and a.nf == 9: A(f"s_lshl_b32 s{sTMP3}, s{sTMP3}, 1")
        A(f"s_cmp_gt_u32 s{sTMP3}, s{sTMP}\ns_cselect_b32 s{sTMP}, 0, 8192\ns_add_u32 s{sRB}, s{sRB}, s{sTMP}")
    if a.nf: A(f"s_mov_b32 s{sOFF}, s{sRB}")
    A(f"v_lshlrev_b32 v37, 4, v{vL}\nv_lshlrev_b32 v38, 3, v{vL}")
    lds_wait(L_PF, [0, 1, 2], 4, 8)
    stamp(4)
    if a.nofin: A("s_branch L_end")
    if a.nf == 5:
        A(f"s_add_u32 s{sTMP3}, s{sOFF}, 8192")
        for cp in range(2):
            for i in range(nl):
                A(f"buffer_load_dwordx4 v[{80+16*cp+4*i}:{83+16*cp+4*i}], v37, s[{WS}:{WS+3}], s{sTMP3 if cp else sOFF} offen offset:{1024*i} sc1{FN}")
        for cp in range(2):
            for i in range(nl):
                r = 80 + 16 * cp + 4 * i
                if cp == 0:
                    if i == 0: A(f"s_waitcnt vmcnt({nl})")
                else: A(f"s_waitcnt vmcnt({nl-1-i})")
                A(f"v_perm_b32 v44, v{r+1}, v{r}, s{sSELA}\nv_perm_b32 v45, v{r+3}, v{r+2}, s{sSELB}\nv_or_b32 v44, v44, v45\nv_xor_b32 v44, s{sT}, v44")
                A(f"v_or_b32 v46, v46, v44" if i else "v_mov_b32 v46, v44")
                for k in range(4):
                    A(f"v_add_f32 v{40+k}, v{40+k}, v{r+k}" if i else f"v_mov_b32 v{40+k}, v{r+k}")
                if cp == 0 and i == a.nfi:
                    A(f"s_getreg_b32 s{sTMP}, hwreg(HW_REG_IB_STS, 0, 4)")
                    if a.stamps: A(f"s_add_u32 s{sST+14}, s{sTMP}, 1\ns_mov_b32 s{sST+15}, 0")
            A("v_cmp_lt_u32 vcc, 7, v46\ns_cmp_eq_u64 vcc, 0\ns_cbranch_scc1 L_fpd")
        A(f"s_cmp_eq_u32 s{sTMP}, {nl}\ns_cselect_b32 s{sOFF}, s{sOFF}, s{sTMP3}")
    if a.fdepth > 1:
        D = a.fdepth
        def fissue(k):
            for i in range(nl):
                A(f"buffer_load_dwordx4 v[{80+16*k+4*i}:{83+16*k+4*i}], v37, s[{WS}:{WS+3}], s{sOFF} offen offset:{1024*i} sc1{FN}")
        for k in range(D - 1):
            fissue(k)
            A(f"s_sleep {a.fgap}")
        A("L_fq:")
        for k in range(D):
            fissue((k + D - 1) % D)
            for i in range(nl):
                r = 80 + 16 * k + 4 * i
                A(f"s_waitcnt vmcnt({nl*(D-1)+nl-1-i})")
                A(f"v_perm_b32 v44, v{r+1}, v{r}, s{sSELA}\nv_perm_b32 v45, v{r+3}, v{r+2}, s{sSELB}\nv_or_b32 v44, v44, v45\nv_xor_b32 v44, s{sT}, v44")
                A(f"v_or_b32 v46, v46, v44" if i else "v_mov_b32 v46, v44")
                for q in range(4):
                    A(f"v_add_f32 v{40+q}, v{40+q}, v{r+q}" if i else f"v_mov_b32 v{40+q}, v{r+q}")
            A("v_cmp_lt_u32 vcc, 7, v46\ns_cmp_eq_u64 vcc, 0\ns_cbranch_scc1 L_fpd")
        spin_tail("L_fq", 0)
    A("L_fp:")
    for i in range(nl):
        A(f"buffer_load_dwordx4 v[{80+4*i}:{83+4*i}], v37, s[{WS}:{WS+3}], s{sOFF} offen offset:{1024*i} sc1{FN}")
    for i in range(nl):
        r = 80 + 4 * i
        A(f"s_waitcnt vmcnt({nl-1-i})")
        A(f"v_perm_b32 v44, v{r+1}, v{r}, s{sSELA}\nv_perm_b32 v45, v{r+3}, v{r+2}, s{sSELB}\nv_or_b32 v44, v44, v45\nv_xor_b32 v44, s{sT}, v44")
        A(f"v_or_b32 v46, v46, v44" if i else "v_mov_b32 v46, v44")
        for k in range(4):
            A(f"v_add_f32 v{40+k}, v{40+k}, v{r+k}" if i else f"v_mov_b32 v{40+k}, v{r+k}")
    A("v_cmp_lt_u32 vcc, 7, v46\ns_cmp_eq_u64 vcc, 0\ns_cbranch_scc1 L_fpd")
    spin_tail("L_fp", a.fsl)
    A("L_fpd:")
    stamp(5)
    d = gp
    while d < 16:
        for k in range(4):
            A(f"v_add_f32_dpp v{40+k}, v{40+k}, v{40+k} row_ror:{d} row_mask:0xf bank_mask:0xf")
        if d * 2 < 16: A("s_nop 0")
        d *= 2
    for op in ("v_permlane16_swap_b32", "v_permlane32_swap_b32"):
        for k in range(4): A(f"v_mov_b32 v{44+k}, v{40+k}")
        A("s_nop 1")
        for k in range(4): A(f"{op} v{40+k}, v{44+k}")
        A("s_nop 1")
        for k in range(4): A(f"v_add_f32 v{40+k}, v{40+k}, v{44+k}")
    A("v_cvt_pk_bf16_f32 v44, v40, v41\nv_cvt_pk_bf16_f32 v45, v42, v43")
    A(f"s_mov_b64 exec, {(1 << gp) - 1}")
    A(f"buffer_store_dwordx2 v[44:45], v38, s[{SR2}:{SR2+3}], s{sTMP2} offen")
    A(f"s_cmp_lg_u32 s{sCNT}, 0\ns_cbranch_scc1 L_aux2")
    A("s_mov_b64 exec, 1")
    A(f"buffer_store_dword v{vT}, v30, s[{WS}:{WS+3}], s9 offen")
    A("L_aux2:")
    A("s_mov_b64 exec, -1")
    stamp(6)
else:
    A(f"s_and_b32 s{sTMP}, s{sJ}, 1\ns_lshl_b32 s{sTMP}, s{sTMP}, 3\ns_add_u32 s{sTMP}, s{sTMP}, s{sHH}\ns_cmp_ge_u32 s{sTMP}, 24\ns_cbranch_scc1 L_end")
    A(f"s_lshl_b32 s{sTMP}, s{sP}, 2\ns_add_u32 s{sTMP}, s{sTMP}, s{sJ}\ns_mul_i32 s{sOFF}, s{sTMP}, 24\ns_add_u32 s{sOFF}, s{sOFF}, s{sHH}")
    A(f"s_lshl_b32 s{sOFF}, s{sOFF}, 10\ns_add_u32 s{sOFF}, s{sOFF}, {FBOX}")
    A(f"s_mul_i32 s{sTMP}, s{sJ}, 5\ns_add_u32 s{sTMP}, s{sTMP}, 1\ns_lshr_b32 s{sTMP}, s{sTMP}, 1\ns_lshl_b32 s{sTMP2}, s{sTMP}, 7")
    A(f"s_mul_i32 s{sTMP}, s{sP}, 1280\ns_add_u32 s{sTMP2}, s{sTMP2}, s{sTMP}\ns_lshl_b32 s{sTMP}, s{sHH}, 4\ns_add_u32 s{sTMP2}, s{sTMP2}, s{sTMP}")
    A(f"v_lshlrev_b32 v37, 4, v{vL}\nv_lshrrev_b32 v38, 5, v{vL}\nv_lshlrev_b32 v38, 3, v38")
    lds_wait(L_PF, [0, 1, 2], 4, 8)
    stamp(4)
    if a.nofin: A("s_branch L_end")
    if a.fmask:
        D = a.fdepth
        mk = sM + 4
        sets = [80 + 4 * k for k in range(D)]
        A(f"s_mov_b64 s[{mk}:{mk+1}], -1")
        for k in range(D):
            for q in range(4): A(f"v_mov_b32 v{sets[k]+q}, 0")
        A(f"v_not_b32 v{sets[0]}, v{vT}")
        for k in range(1, D): A(f"v_mov_b32 v{sets[k]}, v{sets[0]}")
        def issue(r):
            A(f"s_mov_b64 exec, s[{mk}:{mk+1}]\nbuffer_load_dwordx4 v[{r}:{r+3}], v37, s[{WS}:{WS+3}], s{sOFF} offen sc1\ns_mov_b64 exec, -1")
        for k in range(D - 1):
            issue(sets[k])
            if a.fgap: A(f"s_sleep {a.fgap}")
        A("L_fp:")
        for k in range(D):
            issue(sets[(k + D - 1) % D])
            r = sets[k]
            A(f"s_waitcnt vmcnt({D-1})")
            A(f"v_perm_b32 v44, v{r+1}, v{r}, s{sSELA}\nv_perm_b32 v45, v{r+3}, v{r+2}, s{sSELB}\nv_or_b32 v44, v44, v45\nv_xor_b32 v44, s{sT}, v44")
            A(f"v_cmp_ge_u32 vcc, 7, v44")
            A(f"s_and_b64 vcc, vcc, s[{mk}:{mk+1}]\ns_andn2_b64 s[{mk}:{mk+1}], s[{mk}:{mk+1}], vcc\ns_mov_b64 exec, vcc")
            for q in range(4): A(f"v_mov_b32 v{40+q}, v{r+q}")
            A(f"s_mov_b64 exec, -1\ns_cmp_eq_u64 s[{mk}:{mk+1}], 0\ns_cbranch_scc1 L_fpd")
            if a.fsl: A(f"s_sleep {a.fsl}")
        spin_tail("L_fp", 0)
        A("L_fpd:")
    else:
        poll(80, 37, sOFF, depth=a.fdepth, gap=a.fgap, lfl=FN)
        for k in range(4):
            A(f"v_mov_b32 v{40+k}, v{80+k}")
    A("s_nop 1")
    stamp(5)
    for d in ["row_shr:1", "row_shr:2", "row_shr:4", "row_shr:8"]:
        for k in range(4):
            A(f"v_add_f32_dpp v{40+k}, v{40+k}, v{40+k} {d} row_mask:0xf bank_mask:0xf")
    for k in range(4):
        A(f"v_add_f32_dpp v{40+k}, v{40+k}, v{40+k} row_bcast:15 row_mask:0xa bank_mask:0xf")
    A("v_cvt_pk_bf16_f32 v44, v40, v41\nv_cvt_pk_bf16_f32 v45, v42, v43")
    A("s_mov_b32 exec_lo, 0x80000000\ns_mov_b32 exec_hi, 0x80000000")
    A(f"buffer_store_dwordx2 v[44:45], v38, s[{SR2}:{SR2+3}], s{sTMP2} offen")
    A(f"s_or_b32 s{sTMP}, s{sJ}, s{sHH}\ns_cmp_lg_u32 s{sTMP}, 0\ns_cbranch_scc1 L_aux2")
    A("s_mov_b64 exec, 1")
    A(f"buffer_store_dword v{vT}, v30, s[{WS}:{WS+3}], s9 offen")
    A("L_aux2:")
    A("s_mov_b64 exec, -1")
    stamp(6)


A("L_end:")
if a.dbg:
    A("s_mov_b64 exec, -1")
    A("s_waitcnt vmcnt(0) lgkmcnt(0)")
    A(f"s_memrealtime s[{sST+16}:{sST+17}]\ns_memtime s[86:87]\ns_waitcnt lgkmcnt(0)")
    for k in range(9):
        A(f"v_mov_b32 v{8+k}, s{sST+2*k}")
    A(f"s_sub_u32 s86, s86, s84\ns_sub_u32 s87, s{sST+16}, s{sST}\nv_mov_b32 v17, s86\nv_mov_b32 v18, s87\nv_not_b32 v19, v8")
    A(f"s_lshl_b32 s{sTMP}, s{sWAVE}, 6\nv_mov_b32 v30, s{sTMP}\ns_lshl_b32 s{sTMP}, s{sWAVE}, 2\nv_mov_b32 v31, s{sTMP}\ns_mov_b64 exec, 1")
    for k in range(3):
        A(f"ds_write_b128 v30, v[{8+4*k}:{11+4*k}] offset:{L_ST+16*k}")
    A(f"ds_write_b32 v31, v{vT} offset:{L_DN}")
    A("s_mov_b64 exec, -1")
    A(f"s_cmp_lg_u32 s{sWAVE}, 3\ns_cbranch_scc1 L_done")
    A(f"L_dw:\nv_lshlrev_b32 v8, 2, v{vL}\nv_min_u32 v8, 40, v8\nds_read_b32 v9, v8 offset:{L_DN}\ns_waitcnt lgkmcnt(0)\nv_cmp_ne_u32 vcc, s{sT}, v9\ns_cmp_eq_u64 vcc, 0\ns_cbranch_scc1 L_dw2\ns_sleep 4\ns_sub_u32 s{sSPIN}, s{sSPIN}, 1\ns_cbranch_scc0 L_dw\ns_branch L_done\nL_dw2:")
    A("s_sleep 127\ns_sleep 127")
    adds = [(3,0,1),(0,2,2),(0,4,3),(4,4,4),(8,2,5),(8,3,6),(8,4,7),(0,7,8),(3,9,13),(3,10,14)]
    maxs = [(3,11,0),(0,7,9),(1,7,9),(2,7,9),(3,8,10),(8,3,11),(9,3,11),(10,3,11),(8,4,12),(9,4,12),(10,4,12),(3,0,15)]
    A("v_mov_b32 v20, 0\nv_mov_b32 v21, 0")
    for k, (w, st, d) in enumerate(adds + maxs):
        A(f"s_mov_b32 s{sTMP}, {L_ST + w*64 + st*4}\nv_writelane_b32 v20, s{sTMP}, {k}\ns_mov_b32 s{sTMP}, {d*4}\nv_writelane_b32 v21, s{sTMP}, {k}")
    A("ds_read_b32 v22, v20")
    A(f"s_load_dwordx2 s[{sM+2}:{sM+3}], s[0:1], 88\ns_waitcnt lgkmcnt(0)")
    srd(SR, sM + 2, 256)
    A("s_waitcnt lgkmcnt(0)")
    A(f"s_mov_b64 exec, {(1 << len(adds)) - 1}")
    A(f"buffer_atomic_add v22, v21, s[{SR}:{SR+3}], 0 offen")
    A(f"s_mov_b64 exec, {((1 << len(maxs)) - 1) << len(adds)}")
    A(f"buffer_atomic_umax v22, v21, s[{SR}:{SR+3}], 0 offen")
elif a.stamps:
    A("s_mov_b64 exec, -1")
    A("s_waitcnt vmcnt(0) lgkmcnt(0)")
    A(f"s_memrealtime s[{sST+16}:{sST+17}]\ns_waitcnt lgkmcnt(0)")
    A(f"s_lshl_b32 s{sTMP}, s2, 4\ns_add_u32 s{sTMP}, s{sTMP}, s{sWAVE}\ns_mul_i32 s{sTMP}, s{sTMP}, 80\ns_add_u32 s{sTMP}, s{sTMP}, {STAMP}")
    for k in range(18):
        A(f"v_mov_b32 v{8+k}, s{sST+k}")
    A("v_mov_b32 v30, 0\ns_mov_b64 exec, 1")
    for k in range(4):
        A(f"buffer_store_dwordx4 v[{8+4*k}:{11+4*k}], v30, s[{WS}:{WS+3}], s{sTMP} offen offset:{16*k}")
    A("s_getreg_b32 s3, hwreg(HW_REG_XCC_ID)\nv_mov_b32 v26, s3\nv_mov_b32 v27, 0")
    A(f"buffer_store_dwordx4 v[24:27], v30, s[{WS}:{WS+3}], s{sTMP} offen offset:64")
A("L_done:\ns_endpgm")
A.footer(168)
A.write(a.out)
```

```python
import sys, argparse
from asmlib import *
ap = argparse.ArgumentParser()
ap.add_argument("out")
ap.add_argument("--stamps", type=int, default=0)
ap.add_argument("--prio", type=int, default=1)
ap.add_argument("--lds", type=int, default=163840)
ap.add_argument("--nopoll", type=int, default=0)
ap.add_argument("--near", type=int, default=0)
ap.add_argument("--kfull", type=int, default=0)
ap.add_argument("--psleep", type=int, default=0)
ap.add_argument("--lat", type=int, default=0)
ap.add_argument("--thr", type=int, default=0)
ap.add_argument("--rot", type=int, default=0)
ap.add_argument("--pdepth", type=int, default=3)
ap.add_argument("--pgap", type=int, default=16)
ap.add_argument("--fgap", type=int, default=5)
ap.add_argument("--fdepth", type=int, default=3)
ap.add_argument("--g2", type=int, default=1)
ap.add_argument("--dbg", type=int, default=0)
ap.add_argument("--win", type=str, default="")
ap.add_argument("--gsleep", type=int, default=1)
ap.add_argument("--nt", type=int, default=12)
ap.add_argument("--nofin", type=int, default=0)
ap.add_argument("--lsleep", type=int, default=1)
ap.add_argument("--x1", type=int, default=0)
ap.add_argument("--fmask", type=int, default=0)
ap.add_argument("--fsl", type=int, default=0)
ap.add_argument("--pro", type=int, default=0)
ap.add_argument("--contig", type=str, default="")
ap.add_argument("--fp", type=int, default=0)
ap.add_argument("--xmap", type=int, default=0)
ap.add_argument("--dly", type=str, default="")
ap.add_argument("--pnt", type=int, default=3)
ap.add_argument("--slab", type=int, default=0)
ap.add_argument("--wsl", type=int, default=1)
ap.add_argument("--no2", type=int, default=0)
ap.add_argument("--ks2", type=int, default=2)
ap.add_argument("--lmap", type=int, default=0)
ap.add_argument("--boost", type=int, default=0)
ap.add_argument("--vboost", type=int, default=0)
ap.add_argument("--kboost", type=int, default=0)
ap.add_argument("--vtrig", type=int, default=0)
ap.add_argument("--wj", type=str, default="")
ap.add_argument("--rank", type=int, default=0)
ap.add_argument("--vr", type=int, default=24)
ap.add_argument("--rop", type=int, default=1)
ap.add_argument("--dirty", type=int, default=0)
ap.add_argument("--nf", type=int, default=0)
ap.add_argument("--nft", type=int, default=110)
ap.add_argument("--nfi", type=int, default=0)
ap.add_argument("--nfs", type=int, default=1)
ap.add_argument("--nfd", type=int, default=0)
ap.add_argument("--nfv", type=int, default=0)
ap.add_argument("--pads", type=int, default=0)
ap.add_argument("--dbgv", type=int, default=0)
ap.add_argument("--eb", type=int, default=0)
ap.add_argument("--nfp", default="sc1")
ap.add_argument("--nfx", type=int, default=0)
ap.add_argument("--nfj", type=int, default=-1)
ap.add_argument("--dry", type=int, default=0)
ap.add_argument("--nfr", type=int, default=0)
ap.add_argument("--nfdl", type=int, default=32)
ap.add_argument("--nfo", type=int, default=0)
ap.add_argument("--nfw", type=int, default=0)
a = ap.parse_args()
PN = " nt" if a.pnt & 1 else ""
FN = " nt" if a.pnt & 2 else ""
XN = " nt" if a.pnt & 4 else ""
WIN = [int(x) for x in a.win.split(",")] if a.win else None
if a.dbg: a.stamps = 1

A = Asm()
NW = 12 if a.lat else 11
A.header(256, 64 * NW, a.lds)

QBOX = 0x10000
OBOX = 0x40000
SBOX = 0x70000
FBOX = 0x80000
RBOX = 0x78000
VBOX = 0x7a000
STAMP = 0x8000000
L_PW, L_PK, L_PV = 0, 16, 32
L_QF = 48
L_MX = 64
L_LS = 96
L_FF = 128
L_FFLAG = 144
L_MODE = 148
L_OF = 160
L_PF = 176
L_KI = 192
L_VT = 192
L_DN = 208
L_ST = 2048
L_Q = 256
L_P = 640
L_O = 1152
sH, sJ, sP, sHH = 4, 5, 6, 7
sX, sK, sV, sWQ, sWO = 12, 14, 16, 18, 20
sWSP = 22
sWAVE = 24
sT = 25
sSPIN = 26
sC = 27
WS = 28
SR = 32
sOFF = 36
sTMP, sTMP2, sTMP3 = 37, 38, 39
sSEL = 40
sSELA, sSELB = 44, 45
sFL = sT
SR2 = 48
sM = 52
sNEED, sHAVE = 56, 57
sMODE, sCNT = 58, 59
sXCC = 60
sRB, sRI = 62, 63
sDRY = 61
sST = 64
vL = 0
vOFF = 1
vAD = 2
vT = 3
vACC = 4
vA0, vA1 = 8, 12
vSEL = 16
vCO = 24
vD = 40

nstamp = [0]
def stamp(k):
    if a.stamps:
        A(f"s_memrealtime s[{sST+2*k}:{sST+2*k+1}]")

def thr(n):
    if a.thr and n >= a.thr:
        A(f"s_waitcnt vmcnt({a.thr-1})")

def prio(p):
    if a.prio:
        A(f"s_setprio {p}")

def spin_tail(loop, sleep=1):
    if sleep:
        A(f"s_sleep {sleep}")
    A(f"s_sub_u32 s{sSPIN}, s{sSPIN}, 1\ns_cbranch_scc0 {loop}\ns_branch L_end")

def lds_wait(off, positions, nread, vt):
    if a.nopoll >= 2: return
    lp = A.label("Lw"); dn = A.label("Lwd")
    vz = vt + nread + 1
    vx = vt + nread
    A(f"v_mov_b32 v{vz}, 0")
    A(f"{lp}:")
    k = 0
    while k < nread:
        n = min(4, nread - k)
        op = {1: "ds_read_b32", 2: "ds_read_b64", 4: "ds_read_b128"}[n]
        reg = f"v{vt+k}" if n == 1 else f"v[{vt+k}:{vt+k+n-1}]"
        A(f"{op} {reg}, v{vz} offset:{off+4*k}")
        k += n
    A("s_waitcnt lgkmcnt(0)")
    first = True
    for p in positions:
        if first:
            A(f"v_xor_b32 v{vx}, s{sFL}, v{vt+p}")
            first = False
        else:
            A(f"v_xor_b32 v{vz}, s{sFL}, v{vt+p}\nv_or_b32 v{vx}, v{vx}, v{vz}")
    A(f"v_mov_b32 v{vz}, 0")
    A(f"v_cmp_ne_u32 vcc, 0, v{vx}")
    A(f"s_cmp_eq_u64 vcc, 0\ns_cbranch_scc1 {dn}")
    spin_tail(lp, a.lsleep)
    A(f"{dn}:")

def gate_init(widx, NP, vz):
    A(f"s_add_u32 s{sNEED}, s{widx}, 1\ns_mul_i32 s{sNEED}, s{sNEED}, {NP}\ns_mov_b32 s{sHAVE}, 0\nv_mov_b32 v{vz}, 0")

def gate(loff, kS, NP, NS, vz, vt):
    lp = A.label("Lg"); go = A.label("Lgo")
    A(f"{lp}:\ns_cmp_ge_u32 s{sHAVE}, s{sNEED}\ns_cbranch_scc1 {go}")
    if a.x1: A("s_mov_b64 exec, 1")
    A(f"ds_read_b128 v[{vt}:{vt+3}], v{vz} offset:{loff}\ns_waitcnt lgkmcnt(0)")
    A(f"v_add3_u32 v{vt}, v{vt}, v{vt+1}, v{vt+2}\nv_add_u32 v{vt}, v{vt}, v{vt+3}\ns_nop 0\nv_readfirstlane_b32 s{sHAVE}, v{vt}")
    if a.x1: A("s_mov_b64 exec, -1")
    A(f"s_mul_i32 s{sHAVE}, s{sHAVE}, {NS}\ns_cmp_ge_u32 s{sHAVE}, s{sNEED}\ns_cbranch_scc1 {go}")
    spin_tail(lp, a.gsleep)
    A(f"{go}:\ns_add_u32 s{sNEED}, s{sNEED}, {kS*NP}")

def credit(loff, vaddr, vval, n):
    A(f"v_mov_b32 v{vval}, {n}\nds_write_b32 v{vaddr}, v{vval} offset:{loff}")

def lds_flag(off, vtmp):
    A(f"v_mov_b32 v{vtmp}, 0\nds_write_b32 v{vtmp}, v{vT} offset:{off}")

def get_T():
    A("s_waitcnt lgkmcnt(0)")
    A(f"s_mul_i32 s{sT}, s{sT}, 0x9E3779B1\ns_add_u32 s{sT}, s{sT}, 0x7F4A7C15\ns_andn2_b32 s{sT}, s{sT}, 15\ns_or_b32 s{sT}, s{sT}, 8\ns_or_b32 s{sT}, s{sT}, s{sXCC}")
    A(f"v_mov_b32 v{vT}, s{sT}")

def make_selectors():
    t0, t1, t2, t3 = vA0, vA0 + 1, vA0 + 2, vA0 + 3
    A(f"v_bfe_u32 v{t0}, v{vL}, 2, 2")
    A(f"v_bfe_u32 v{t1}, v{vL}, 1, 1")
    A(f"v_cmp_eq_u32 vcc, 1, v{t1}")
    A(f"v_mov_b32 v{t2}, 0x0c0c0100\nv_mov_b32 v{t3}, 0x01000c0c")
    A(f"v_cndmask_b32 v{t2}, v{t2}, v{t3}, vcc")
    A(f"v_mov_b32 v{t1}, 0x0c0c0302\nv_mov_b32 v{t3}, 0x03020c0c")
    A(f"v_cndmask_b32 v{t3}, v{t1}, v{t3}, vcc")
    A(f"v_mov_b32 v{t1}, 0x0c0c0c0c")
    for t in range(4):
        A(f"v_cmp_eq_u32 vcc, {t}, v{t0}\ns_nop 1")
        A(f"v_cndmask_b32 v{vSEL+2*t}, v{t1}, v{t2}, vcc\nv_cndmask_b32 v{vSEL+2*t+1}, v{t1}, v{t3}, vcc")

def build_A(b, buf):
    src = vCO + b // 2
    for t in range(4):
        A(f"v_perm_b32 v{buf+t}, v{src}, v{src}, v{vSEL+2*t+(b&1)}")

def diag_gemv(nb, extra_after=0, win=None, hook=None):
    build_A(0, vA0)
    for b in range(nb):
        if b + 1 < nb:
            build_A(b + 1, vA1 if (b & 1) == 0 else vA0)
        else:
            A("s_nop 1")
        A(f"s_waitcnt vmcnt({min(nb-1-b, (win or nb)-1)+extra_after})")
        if hook: hook(b)
        buf = vA0 if (b & 1) == 0 else vA1
        c = "0" if b == 0 else f"v[{vACC}:{vACC+3}]"
        A(f"v_mfma_f32_16x16x32_bf16 v[{vACC}:{vACC+3}], v[{buf}:{buf+3}], v[{vD+4*b}:{vD+4*b+3}], {c}")

def combine(g):
    A("s_nop 7")
    A(f"v_add_f32_dpp v{g}, v{vACC+1}, v{vACC} row_ror:8 row_mask:0xf bank_mask:0xf")
    A(f"v_add_f32_dpp v{g+1}, v{vACC+3}, v{vACC+2} row_ror:8 row_mask:0xf bank_mask:0xf")
    A(f"v_mov_b32 v{g+2}, 0\nv_mov_b32 v{g+3}, 0")
    A("s_nop 1")
    A(f"v_permlane16_swap_b32 v{g}, v{g+2}\nv_permlane16_swap_b32 v{g+1}, v{g+3}")
    A("s_nop 1")
    for k in range(4):
        A(f"v_perm_b32 v{g+k}, v{g+k}, v{vT}, s{sSEL+k}")

def poll(g, voff, soff, sleep=0, depth=None, gap=None, on_timeout=None, lfl=None, after_first=None):
    if a.nopoll >= 1: return
    depth = depth or a.pdepth
    gap = a.pgap if gap is None else gap
    lp = A.label("Lp"); dn = A.label("Lpd")
    sets = [g + 8 + 4 * k for k in range(depth)]
    def issue(r):
        A(f"buffer_load_dwordx4 v[{r}:{r+3}], v{voff}, s[{WS}:{WS+3}], s{soff} offen sc1{PN if lfl is None else lfl}")
    for k in range(depth - 1):
        issue(sets[k])
        if k == 0 and after_first: after_first()
        if gap: A(f"s_sleep {gap}")
    if on_timeout: A(f"s_mov_b32 s{sCNT}, 0")
    A(f"{lp}:")
    fins = []
    for k in range(depth):
        issue(sets[(k + depth - 1) % depth])
        r = sets[k]
        A(f"s_waitcnt vmcnt({depth-1})")
        A(f"v_perm_b32 v{g+4}, v{r+1}, v{r}, s{sSELA}\nv_perm_b32 v{g+5}, v{r+3}, v{r+2}, s{sSELB}")
        A(f"v_or_b32 v{g+4}, v{g+4}, v{g+5}\nv_xor_b32 v{g+4}, s{sT}, v{g+4}")
        A(f"v_cmp_lt_u32 vcc, 7, v{g+4}")
        fl = A.label("Lpf"); fins.append((fl, r))
        A(f"s_cmp_eq_u64 vcc, 0\ns_cbranch_scc1 {fl}")
    if on_timeout:
        A(f"s_add_u32 s{sCNT}, s{sCNT}, 1\ns_cmp_lg_u32 s{sCNT}, {a.nt}\ns_cbranch_scc1 {lp}_t")
        on_timeout()
        A(f"{lp}_t:")
    spin_tail(lp, 0)
    for i, (fl, r) in enumerate(fins):
        A(f"{fl}:")
        for k in range(4):
            A(f"v_mov_b32 v{g+k}, v{r+k}")
        if i < len(fins) - 1: A(f"s_branch {dn}")
    A(f"{dn}:")
    A("s_nop 1")

def lds_mode(vz, vr):
    A(f"v_mov_b32 v{vz}, 0\nds_read_b32 v{vr}, v{vz} offset:{L_MODE}")

def publish_gather(box, ldsdst, ldsflag, fscale, g=vD, h=None):
    combine(g)
    A(f"v_and_b32 v{g+8}, 7, v{vL}\nv_lshrrev_b32 v{g+9}, 5, v{vL}\nv_lshl_add_u32 v{g+8}, v{g+8}, 1, v{g+9}\nv_lshlrev_b32 v{g+8}, 4, v{g+8}")
    A(f"s_mul_i32 s{sOFF}, s{sH}, 3072\ns_lshl_b32 s{sTMP}, s{sC}, 10\ns_add_u32 s{sOFF}, s{sOFF}, s{sTMP}\ns_add_u32 s{sOFF}, s{sOFF}, {box}")
    A(f"s_lshl_b32 s{sTMP3}, s{sJ}, 8\ns_add_u32 s{sTMP3}, s{sTMP3}, s{sOFF}")
    def store(fl):
        A("s_mov_b32 exec_lo, 0xff\ns_mov_b32 exec_hi, 0xff")
        A(f"buffer_store_dwordx4 v[{g}:{g+3}], v{g+8}, s[{WS}:{WS+3}], s{sTMP3} offen{fl}")
        A("s_mov_b64 exec, -1")
    if fscale:
        l1 = A.label("Ls"); l2 = A.label("Ls")
        A(f"s_cmp_lg_u32 s{sMODE}, 0\ns_cbranch_scc1 {l1}")
        store("")
        A(f"s_branch {l2}\n{l1}:")
        store(" sc1")
        A(f"{l2}:")
    else:
        store("")
    stamp(3)
    A(f"v_and_b32 v{g+10}, 3, v{vL}\nv_lshrrev_b32 v{g+11}, 2, v{vL}\nv_lshlrev_b32 v{g+12}, 4, v{g+11}\nv_lshl_add_u32 v{g+12}, v{g+10}, 8, v{g+12}")
    if fscale:
        lds_wait(L_FFLAG, [0], 1, g + 16)
        A(f"v_lshlrev_b32 v{g+13}, 2, v{g+10}\nds_read_b32 v{g+13}, v{g+13} offset:{L_FF}")
    h = h or g + 20
    def opf(): A(f"s_lshl_b32 s{sTMP}, s{sC}, 2\nv_mov_b32 v{g+14}, s{sTMP}\nds_write_b32 v{g+14}, v{vT} offset:{L_VT+4}")
    poll(h, g + 12, sOFF, on_timeout=None if fscale else (lambda: store(" sc1")), after_first=opf if fscale and a.rank else None)
    stamp(4)
    if fscale:
        A("s_waitcnt lgkmcnt(0)")
        for k in range(4):
            A(f"v_mul_f32 v{h+k}, v{h+k}, v{g+13}")
    else:
        if a.nopoll: A(f"v_mov_b32 v{h+4}, 0")
        A(f"v_cmp_ne_u32 vcc, 0, v{h+4}\ns_cmp_lg_u64 vcc, 0\ns_cselect_b32 s{sMODE}, 1, 0\nv_mov_b32 v{g+13}, s{sMODE}\nv_mov_b32 v{g+14}, 0")
        l1 = A.label("Ls")
        A(f"s_cbranch_scc0 {l1}")
        store(" sc1")
        A(f"{l1}:")
    for k in range(4):
        A(f"v_add_f32_dpp v{h+4+k}, v{h+k}, v{h+k} quad_perm:[1,0,3,2] row_mask:0xf bank_mask:0xf")
    for k in range(4):
        A(f"v_add_f32_dpp v{h+k}, v{h+4+k}, v{h+4+k} quad_perm:[2,3,0,1] row_mask:0xf bank_mask:0xf")
    A(f"v_cvt_pk_bf16_f32 v{h+4}, v{h}, v{h+1}\nv_cvt_pk_bf16_f32 v{h+5}, v{h+2}, v{h+3}")
    A(f"s_lshl_b32 s{sTMP}, s{sC}, 7\nv_lshlrev_b32 v{g+11}, 3, v{g+11}\nv_add_u32 v{g+11}, s{sTMP}, v{g+11}")
    A(f"s_lshl_b32 s{sTMP}, s{sC}, 2\nv_mov_b32 v{g+10}, s{sTMP}")
    A("s_mov_b32 exec_lo, 0x11111111\ns_mov_b32 exec_hi, 0x11111111")
    A(f"ds_write_b64 v{g+11}, v[{h+4}:{h+5}] offset:{ldsdst}")
    if not fscale:
        A(f"ds_write_b32 v{g+14}, v{g+13} offset:{L_MODE}")
    A(f"ds_write_b32 v{g+10}, v{vT} offset:{ldsflag}")
    A("s_mov_b64 exec, -1")

def coef_addr(vdst, per):
    A(f"v_lshrrev_b32 v{vdst}, 4, v{vL}\nv_and_b32 v{vA0}, 1, v{vL}\nv_lshl_add_u32 v{vdst}, v{vdst}, 1, v{vA0}\nv_mul_u32_u24 v{vdst}, {per}, v{vdst}")

def data_voff(rowstep):
    A(f"v_lshrrev_b32 v{vOFF}, 3, v{vL}\nv_mul_u32_u24 v{vOFF}, {rowstep}, v{vOFF}\nv_and_b32 v{vA0}, 7, v{vL}\nv_lshl_add_u32 v{vOFF}, v{vA0}, 4, v{vOFF}")

def srd(d, lo, n):
    A.srd(d, lo, n)

A("s_cmp_ge_u32 s2, 256\ns_cbranch_scc1 L_done")
stamp(0)
if a.stamps:
    for k in range(2, 18):
        A(f"s_mov_b32 s{sST+k}, 0")
if a.dly:
    dl = a.dly
    if dl[0] == "w":
        dl = dl[1:]; A("s_and_b32 s3, s2, 7")
    else:
        A("s_getreg_b32 s3, hwreg(HW_REG_XCC_ID, 0, 3)")
    dl = [int(x) for x in dl.split(",")]
    lo = sum(v << (8 * i) for i, v in enumerate(dl[:4])); hi = sum(v << (8 * i) for i, v in enumerate(dl[4:]))
    A(f"s_mov_b32 s4, {lo}\ns_mov_b32 s5, {hi}\ns_lshl_b32 s3, s3, 3\ns_lshr_b64 s[4:5], s[4:5], s3\ns_and_b32 s4, s4, 0xff")
    A("L_dl:\ns_sub_u32 s4, s4, 1\ns_cbranch_scc1 L_nd\ns_sleep 2\ns_branch L_dl\nL_nd:")
A(f"s_load_dwordx2 s[{sWSP}:{sWSP+1}], s[0:1], 96")
if a.xmap == 1:
    A(f"s_and_b32 s{sJ}, s2, 3\ns_lshr_b32 s{sH}, s2, 2")
elif a.xmap == 2:
    A(f"s_lshr_b32 s{sH}, s2, 3\ns_and_b32 s{sJ}, s{sH}, 3\ns_cmp_eq_u32 s{sJ}, 3\ns_cselect_b32 s3, 1, 0\ns_add_u32 s3, s3, s2\ns_and_b32 s3, s3, 7\ns_lshr_b32 s{sH}, s{sH}, 2\ns_lshl_b32 s3, s3, 3\ns_add_u32 s{sH}, s{sH}, s3")
else:
    A(f"s_add_u32 s3, s2, {a.rot}\ns_and_b32 s3, s3, 7\ns_lshr_b32 s{sH}, s2, 3\ns_and_b32 s{sJ}, s{sH}, 3\ns_lshr_b32 s{sH}, s{sH}, 2\ns_lshl_b32 s3, s3, 3\ns_add_u32 s{sH}, s{sH}, s3")
A(f"s_lshr_b32 s{sP}, s{sH}, 5\ns_and_b32 s{sHH}, s{sH}, 31")
A(f"s_lshl_b32 s9, s{sP}, 7")
A(f"s_mul_i32 s8, s{sP}, 40\ns_add_u32 s10, s0, s8\ns_addc_u32 s11, s1, 0")
A(f"s_load_dwordx8 s[{sX}:{sX+7}], s[10:11], 0")
A(f"s_load_dwordx2 s[{sWO}:{sWO+1}], s[10:11], 32")
A(f"v_lshrrev_b32 v1, 6, v0\nv_and_b32 v0, 63, v0\nv_readfirstlane_b32 s{sWAVE}, v1")
A(f"s_mov_b32 s{sSPIN}, 200000\ns_getreg_b32 s{sXCC}, hwreg(HW_REG_XCC_ID, 0, 3)")
for k in range(4):
    A(f"s_mov_b32 s{sSEL+k}, {0x07060500 + k:#x}")
A(f"s_mov_b32 s{sSELA}, 0x0c0c0400\ns_mov_b32 s{sSELB}, 0x04000c0c")
if a.pads:
    A(f"s_cmp_lt_u32 s{sWAVE}, 3\ns_cbranch_scc1 L_w")
    A(f"v_lshlrev_b32 v8, 2, v{vL}\nv_mov_b32 v9, 0\ns_cmp_lg_u32 s{sWAVE}, 3\ns_cbranch_scc1 L_nz\nds_write_b32 v8, v9\nL_nz:")
    A(f"s_waitcnt lgkmcnt(0)\ns_load_dword s{sT}, s[{sWSP}:{sWSP+1}], s9\ns_barrier")
    if a.pads == 1:
        for w in range(7): A(f"s_cmp_eq_u32 s{sWAVE}, {3+w}\ns_cbranch_scc1 @PAD{w}@")
        A("s_branch @PAD7@")
    A("L_pdone:")
    A(f"""s_cmp_eq_u32 s{sWAVE}, 3
s_cbranch_scc1 L_aux
s_cmp_lt_u32 s{sWAVE}, 8
s_cbranch_scc1 L_k
s_branch L_v""")
else:
    A(f"""s_cmp_lt_u32 s{sWAVE}, 3
s_cbranch_scc1 L_w
s_cmp_eq_u32 s{sWAVE}, 3
s_cbranch_scc1 L_aux
s_cmp_lt_u32 s{sWAVE}, 8
s_cbranch_scc1 L_k
s_cmp_lt_u32 s{sWAVE}, 11
s_cbranch_scc1 L_v
s_branch L_aux""")

A("L_w:")
prio(3)
A(f"s_mov_b32 s{sC}, s{sWAVE}")
A(f"s_mul_i32 s{sOFF}, s{sJ}, {160*12288}\ns_mul_i32 s{sTMP3}, s{sHH}, 384\ns_add_u32 s{sOFF}, s{sOFF}, s{sTMP3}\ns_lshl_b32 s{sTMP3}, s{sC}, 7\ns_add_u32 s{sOFF}, s{sOFF}, s{sTMP3}")
A(f"s_mul_i32 s{sTMP2}, s{sJ}, 320")
for nb in (20,):
    data_voff(nb * 12288)
    if "q" in a.contig:
        A(f"v_lshlrev_b32 v{vOFF}, 4, v{vL}\ns_lshl_b32 s{sOFF}, s{sHH}, 2\ns_add_u32 s{sOFF}, s{sOFF}, s{sJ}\ns_mul_i32 s{sOFF}, s{sOFF}, 3\ns_add_u32 s{sOFF}, s{sOFF}, s{sC}\ns_mul_i32 s{sOFF}, s{sOFF}, 20480")
    coef_addr(vAD, 2 * nb)
    if a.nf == 10:
        A(f"s_lshr_b32 s{sRB}, s2, 4\ns_lshl_b32 s{sRB}, s{sRB}, 14\ns_and_b32 s{sRI}, s2, 15\ns_lshl_b32 s{sRI}, s{sRI}, 9\ns_add_u32 s{sRB}, s{sRB}, s{sRI}\ns_add_u32 s{sRB}, s{sRB}, {FBOX + 20*16384}")
        A(f"s_and_b32 s{sRI}, s{sJ}, 1\ns_lshl_b32 s{sRI}, s{sRI}, 13\ns_add_u32 s{sRB}, s{sRB}, s{sRI}\ns_xor_b32 s{sRI}, s{sRB}, 8192\nv_mov_b32 v165, 0\ns_mov_b32 s{WS+2}, 0x10000000\ns_mov_b32 s{WS+3}, 0x00020000\ns_cmp_lg_u32 s{sC}, 0")
    A("s_waitcnt lgkmcnt(0)")
    if a.nf == 10:
        A(f"s_mov_b32 s{WS}, s{sWSP}\ns_cbranch_scc1 L_wnp\ns_and_b32 s{WS+1}, s{sWSP+1}, 0xffff\ns_mov_b64 exec, 1")
        A(f"buffer_load_dword v166, v165, s[{WS}:{WS+3}], s{sRB} offen {a.nfp}\nbuffer_load_dword v167, v165, s[{WS}:{WS+3}], s{sRI} offen {a.nfp}\ns_mov_b64 exec, -1\nL_wnp:")
    if a.pro: stamp(5)
    A(f"s_load_dword s{sT}, s[{sWSP}:{sWSP+1}], s9")
    srd(SR, sWQ, 640 * 12288)
    srd(SR2, sX, 1280)
    for k in range(nb // 8):
        A(f"buffer_load_dwordx4 v[{vCO+4*k}:{vCO+4*k+3}], v{vAD}, s[{SR2}:{SR2+3}], s{sTMP2} offen offset:{16*k}{XN}")
    A(f"buffer_load_dwordx2 v[{vCO+8}:{vCO+9}], v{vAD}, s[{SR2}:{SR2+3}], s{sTMP2} offen offset:32{XN}")
    nw = WIN[0] if WIN else nb
    def wq_load(b):
        A(f"buffer_load_dwordx4 v[{vD+4*b}:{vD+4*b+3}], v{vOFF}, s[{SR}:{SR+3}], s{sOFF} offen nt")
        if b < nb - 1: A(f"s_add_u32 s{sOFF}, s{sOFF}, {1024 if 'q' in a.contig else 12288}")
    for b in range(nw):
        thr(b)
        wq_load(b)
    stamp(1)
    A("s_barrier")
    srd(WS, sWSP, 0x10000000)
    make_selectors()
    if a.nf == 10:
        A(f"s_cmp_lg_u32 s{sC}, 0\ns_cbranch_scc1 L_wnq\ns_waitcnt vmcnt({nw+4})")
        A(f"s_sleep {a.nfs}" if a.nfs > 0 else f"s_nop {-a.nfs}")
        A(f"s_getreg_b32 s{sRI}, hwreg(HW_REG_IB_STS, 0, 4)\ns_bitcmp1_b32 s{sJ}, 0\ns_cselect_b32 s{sRB}, 0, 16\ns_cmp_eq_u32 s{sRI}, {nw+4}\ns_cselect_b32 s{sRB}, s{sRB}, 32\nL_wnq:")
    get_T()
    A(f"s_waitcnt vmcnt({nw})")
    if a.pro:
        A(f"s_waitcnt vmcnt({nw-1})")
        stamp(6)
    if WIN:
        A(f"s_lshl_b32 s{sTMP}, s{sC}, 2\nv_mov_b32 v{vAD}, s{sTMP}")
        def hook(b):
            if b + nw < nb: wq_load(b + nw)
            else: credit(L_PW, vAD, vCO - 1 - 0 if False else 164, b + nw - nb + 1)
        diag_gemv(nb, win=nw, hook=hook)
    else:
        diag_gemv(nb)
stamp(2)
publish_gather(QBOX, L_Q, L_QF, False, g=vD, h=136)
if not a.pro: stamp(5)
if a.nf == 10:
    A(f"s_cmp_lg_u32 s{sC}, 0\ns_cbranch_scc1 L_wnv\ns_xor_b32 s{sRB}, s{sRB}, s{sT}\nv_mov_b32 v166, s{sRB}\ns_lshl_b32 s{sRI}, s{sXCC}, 10\ns_add_u32 s{sRI}, s{sRI}, {VBOX}\ns_lshl_b32 s{sTMP}, s2, 2\nv_mov_b32 v165, s{sTMP}")
    A(f"s_mov_b64 exec, 1\nbuffer_store_dword v166, v165, s[{WS}:{WS+3}], s{sRI} offen\ns_mov_b64 exec, -1\nL_wnv:")
vF = 160
A(f"s_lshl_b32 s{sTMP}, s{sC}, 2\nv_mov_b32 v{vF+1}, s{sTMP}")
A(f"{'s_lshr_b32' if a.lmap else 's_and_b32'} s{sTMP}, s{sJ}, 1\ns_add_u32 s{sTMP}, s{sTMP}, s{sC}\ns_cmp_eq_u32 s{sTMP}, 3\ns_cbranch_scc1 L_w_fin")
prio(0)
if a.dry & 1: A(f"s_mov_b32 s{sDRY}, 1\ns_branch L_fc\nL_fcb:\ns_mov_b32 s{sDRY}, 0")
srd(SR, sWO, 6144 * 1280)
data_voff(8 * 1280 if a.slab else 24 * 1280)
if a.lmap: A(f"s_mul_i32 s{sTMP}, s{sJ}, 3\ns_add_u32 s{sM}, s{sJ}, 1\ns_lshr_b32 s{sM}, s{sM}, 2\ns_sub_u32 s{sTMP}, s{sTMP}, s{sM}\ns_add_u32 s{sM}, s{sTMP}, s{sC}")
else: A(f"s_mul_i32 s{sTMP}, s{sJ}, 5\ns_add_u32 s{sTMP}, s{sTMP}, 1\ns_lshr_b32 s{sTMP}, s{sTMP}, 1\ns_add_u32 s{sM}, s{sTMP}, s{sC}")
A(f"s_mul_i32 s{sOFF}, s{sHH}, {192*1280}\ns_lshl_b32 s{sTMP}, s{sM}, 7\ns_add_u32 s{sOFF}, s{sOFF}, s{sTMP}")
if "o" in a.contig:
    A(f"v_lshlrev_b32 v{vOFF}, 4, v{vL}\ns_mul_i32 s{sOFF}, s{sHH}, 10\ns_add_u32 s{sOFF}, s{sOFF}, s{sM}\ns_mul_i32 s{sOFF}, s{sOFF}, 24576")
if WIN: gate_init(sC, 3 * WIN[2], vCO)
def wo_issue(nO, kS):
    rest = [A.label("Lb") for b in range(24)]
    for b in range(24):
        thr(b)
        if WIN:
            if b < nO: gate(L_PV, kS, 3 * WIN[2], kS * nO, vCO, vCO + 4)
            else:
                if a.boost:
                    t = vCO + 4
                    A(f"ds_read_b128 v[{t}:{t+3}], v{vCO} offset:{L_OF}\ns_waitcnt lgkmcnt(0)")
                    op = "v_or3_b32" if a.boost == 2 else None
                    if a.boost == 1:
                        A(f"v_and_b32 v{t}, v{t}, v{t+1}\nv_and_or_b32 v{t}, v{t}, v{t+2}, v{t+3}")
                    else:
                        A(f"v_or3_b32 v{t}, v{t}, v{t+1}, v{t+2}")
                    A(f"v_cmp_ne_u32 vcc, 0, v{t}\ns_cbranch_vccnz {rest[b]}")
                A(f"s_waitcnt vmcnt({nO-1})")
        A(f"buffer_load_dwordx4 v[{vD+4*b}:{vD+4*b+3}], v{vOFF}, s[{SR}:{SR+3}], s{sOFF} offen nt")
        if b < 23: A(f"s_add_u32 s{sOFF}, s{sOFF}, {1024 if 'o' in a.contig else (57 * 1280 if a.slab and b % 8 == 7 else 1280)}")
    if a.boost and WIN:
        A("s_branch L_wo_j")
        for b in range(nO, 24):
            A(f"{rest[b]}:")
            A(f"buffer_load_dwordx4 v[{vD+4*b}:{vD+4*b+3}], v{vOFF}, s[{SR}:{SR+3}], s{sOFF} offen nt")
            if b < 23: A(f"s_add_u32 s{sOFF}, s{sOFF}, {1024 if 'o' in a.contig else (57 * 1280 if a.slab and b % 8 == 7 else 1280)}")
        A("s_branch L_wo_j")
    return
    for b in range(24):
        A(f"buffer_load_dwordx4 v[{vD+4*b}:{vD+4*b+3}], v{vOFF}, s[{SR}:{SR+3}], s{sOFF} offen nt")
        if b < 23: A(f"s_add_u32 s{sOFF}, s{sOFF}, {1024 if 'o' in a.contig else (57 * 1280 if a.slab and b % 8 == 7 else 1280)}")
if a.wj:
    assert a.boost
    wj = [int(x) for x in a.wj.split(",")]
    for jj in range(4):
        heavy = (jj < 2) if a.lmap else (jj % 2 == 0)
        if jj < 3: A(f"s_cmp_lg_u32 s{sJ}, {jj}\ns_cbranch_scc1 L_wj{jj}")
        wo_issue(wj[jj], 3 if heavy else 2)
        A(f"L_wj{jj}:")
elif a.no2:
    A(f"s_bitcmp1_b32 s{sJ}, {1 if a.lmap else 0}\ns_cbranch_scc0 L_wo_e")
    wo_issue(a.no2, a.ks2)
    A("s_branch L_wo_j\nL_wo_e:")
if not a.wj: wo_issue(WIN[3] if WIN else 24, 3)
A("L_wo_j:")
prio(3)
if not a.pro: stamp(6)
coef_addr(vAD, 16 if a.slab else 48)
if a.fp:
    gp = a.fp // 16; lg = gp.bit_length() - 1
    A(f"v_and_b32 v{vF}, 7, v{vL}\nv_lshrrev_b32 v{vF+2}, 5, v{vL}\nv_lshl_add_u32 v{vF}, v{vF}, 1, v{vF+2}")
    A(f"v_and_b32 v{vF+2}, {gp-1}, v{vF}\nv_lshrrev_b32 v{vF}, {lg}, v{vF}\nv_mul_u32_u24 v{vF}, {32*a.fp}, v{vF}\nv_lshl_add_u32 v{vF}, v{vF+2}, 4, v{vF}")
    A(f"s_mul_i32 s{sOFF}, s{sP}, 10\ns_add_u32 s{sOFF}, s{sOFF}, s{sM}\ns_lshl_b32 s{sOFF}, s{sOFF}, {14 if a.nf else 13}\ns_mul_i32 s{sTMP}, s{sHH}, {a.fp}\ns_add_u32 s{sOFF}, s{sOFF}, s{sTMP}\ns_add_u32 s{sOFF}, s{sOFF}, {FBOX}")
else:
    A(f"v_and_b32 v{vF}, 7, v{vL}\nv_lshrrev_b32 v{vF+2}, 5, v{vL}\nv_lshlrev_b32 v{vF}, 10, v{vF}\nv_lshl_add_u32 v{vF}, v{vF+2}, 9, v{vF}")
    A(f"s_lshl_b32 s{sTMP}, s{sP}, 2\ns_add_u32 s{sTMP}, s{sTMP}, s{sJ}\ns_mul_i32 s{sOFF}, s{sTMP}, 24576\ns_lshl_b32 s{sTMP}, s{sHH}, 4\ns_add_u32 s{sOFF}, s{sOFF}, s{sTMP}\ns_lshl_b32 s{sTMP}, s{sC}, 13\ns_add_u32 s{sOFF}, s{sOFF}, s{sTMP}\ns_add_u32 s{sOFF}, s{sOFF}, {FBOX}")
if a.slab:
    vfl = vCO + 12
    A(f"v_mov_b32 v{vF+2}, 0\ns_mov_b32 s{sM}, 7")
    for k in range(4): A(f"v_mov_b32 v{vACC+k}, 0")
    A("L_kl:")
    A(f"ds_read_b128 v[{vfl}:{vfl+3}], v{vF+2} offset:{L_OF}")
    for c in range(3): A(f"ds_read_b128 v[{vCO+4*c}:{vCO+4*c+3}], v{vAD} offset:{L_O+128*c}")
    A("s_waitcnt lgkmcnt(0)")
    for c in range(3): A(f"v_readfirstlane_b32 s{sTMP+c}, v{vfl+c}")
    for c in range(3):
        A(f"s_bitcmp0_b32 s{sM}, {c}\ns_cbranch_scc1 L_kn{c}")
        if a.nopoll < 2: A(f"s_cmp_lg_u32 s{sTMP+c}, s{sT}\ns_cbranch_scc1 L_kn{c}")
        A(f"s_bitset0_b32 s{sM}, {c}")
        def bA(b, buf):
            for t in range(4): A(f"v_perm_b32 v{buf+t}, v{vCO+4*c+b//2}, v{vCO+4*c+b//2}, v{vSEL+2*t+(b&1)}")
        bA(0, vA0)
        for b in range(8):
            if b < 7: bA(b + 1, vA1 if (b & 1) == 0 else vA0)
            else: A("s_nop 1")
            buf = vA0 if (b & 1) == 0 else vA1
            n = 8 * c + b
            A(f"s_waitcnt vmcnt({23-n})")
            A(f"v_mfma_f32_16x16x32_bf16 v[{vACC}:{vACC+3}], v[{buf}:{buf+3}], v[{vD+4*n}:{vD+4*n+3}], v[{vACC}:{vACC+3}]")
        A(f"L_kn{c}:")
    A(f"s_cmp_eq_u32 s{sM}, 0\ns_cbranch_scc1 L_kd")
    spin_tail("L_kl", a.wsl)
    A("L_kd:")
else:
    lds_wait(L_OF, [0, 1, 2], 4, vCO)
    for k in range(3):
        A(f"ds_read_b128 v[{vCO+4*k}:{vCO+4*k+3}], v{vAD} offset:{L_O+16*k}")
    A("s_waitcnt lgkmcnt(0)")
    A("L_fc:")
    diag_gemv(24)
combine(vCO)
if a.dry & 1: A(f"s_cmp_lg_u32 s{sDRY}, 0\ns_cbranch_scc1 L_fcb")
A("s_mov_b32 exec_lo, 0xff\ns_mov_b32 exec_hi, 0xff")
if a.nofin != 1: A(f"buffer_store_dwordx4 v[{vCO}:{vCO+3}], v{vF}, s[{WS}:{WS+3}], s{sOFF} offen{'' if a.nofin == 3 else ' sc1'}")
if a.nf and a.nofin != 1: A(f"s_add_u32 s{sOFF}, s{sOFF}, 8192\nbuffer_store_dwordx4 v[{vCO}:{vCO+3}], v{vF}, s[{WS}:{WS+3}], s{sOFF} offen sc1")
A("s_mov_b64 exec, -1")
A("L_w_fin:")
A(f"ds_write_b32 v{vF+1}, v{vT} offset:{L_PF}")
stamp(7)
A("s_branch L_end")

A("L_k:")
prio(2)
A(f"s_sub_u32 s{sC}, s{sWAVE}, 4")
A(f"v_and_b32 v{vOFF}, 7, v{vL}\nv_mul_u32_u24 v{vOFF}, 384, v{vOFF}\nv_bfe_u32 v8, v{vL}, 3, 1\nv_lshl_add_u32 v{vOFF}, v8, 6, v{vOFF}\nv_lshrrev_b32 v8, 4, v{vL}\nv_lshl_add_u32 v{vOFF}, v8, 4, v{vOFF}")
A(f"v_and_b32 v{vAD}, 1, v{vL}\nv_lshlrev_b32 v{vAD}, 6, v{vAD}\nv_lshl_add_u32 v{vAD}, v8, 4, v{vAD}")
A(f"s_mul_i32 s{sOFF}, s{sHH}, 1572864\ns_mul_i32 s{sTMP}, s{sJ}, 98304\ns_add_u32 s{sOFF}, s{sOFF}, s{sTMP}\ns_mul_i32 s{sTMP}, s{sC}, 24576\ns_add_u32 s{sOFF}, s{sOFF}, s{sTMP}\ns_add_u32 s{sOFF}, s{sOFF}, {3072*384}")
if not a.pads:
    A("s_waitcnt lgkmcnt(0)")
    A(f"s_load_dword s{sT}, s[{sWSP}:{sWSP+1}], s9")
srd(SR, sK, 50331648)
srd(WS, sWSP, 0x10000000)
if not a.pads: A("s_barrier")
get_T()
if WIN: gate_init(sC, 3 * WIN[0], 24)
krest = [A.label("Lkb") for b in range(24)]
def k_load(t):
    A(f"buffer_load_dwordx4 v[{vD+4*t}:{vD+4*t+3}], v{vOFF}, s[{SR}:{SR+3}], s{sOFF} offen offset:{128*(t%3)} nt")
    if t % 3 == 2 and t < 23: A(f"s_add_u32 s{sOFF}, s{sOFF}, 3072")
for t in range(24):
    thr(t)
    if WIN:
        if t < WIN[1]: gate(L_PW, 4, 3 * WIN[0], 4 * WIN[1], 24, 28)
        else:
            if a.kboost:
                A(f"ds_read_b128 v[28:31], v24 offset:{L_QF}\ns_waitcnt lgkmcnt(0)\nv_and_b32 v28, v28, v29\nv_and_b32 v28, v28, v30\nv_cmp_ne_u32 vcc, 0, v28\ns_cbranch_vccnz {krest[t]}")
            A(f"s_waitcnt vmcnt({WIN[1]-1})")
    k_load(t)
if a.kboost:
    A("s_branch L_kb_j")
    for t in range(WIN[1], 24):
        if t >= a.kboost: A(f"s_waitcnt vmcnt({a.kboost-1})")
        A(f"{krest[t]}:")
        k_load(t)
    A("L_kb_j:")
if WIN:
    prio(3)
    A(f"s_lshl_b32 s{sTMP}, s{sC}, 2\nv_mov_b32 v8, s{sTMP}")
    for i in range(WIN[1]):
        A(f"s_waitcnt vmcnt({WIN[1]-1-i})")
        credit(L_PK, 8, 9, i + 1)
elif a.g2:
    A(f"s_lshl_b32 s{sTMP}, s{sC}, 2\nv_mov_b32 v8, s{sTMP}\nds_write_b32 v8, v{vT} offset:{L_KI}")
prio(3)
stamp(1)
vQ = 8
vS = 136
lds_wait(L_QF, [0, 1, 2], 4, 24)
stamp(2)
for u in range(3):
    A(f"ds_read_b128 v[{vQ+4*u}:{vQ+4*u+3}], v{vAD} offset:{L_Q+128*u}")
A("s_waitcnt lgkmcnt(0)")
s_ = 24
for t in range(24):
    G, u = divmod(t, 3)
    A(f"s_waitcnt vmcnt({23-t})")
    c = "0" if u == 0 else f"v[{vS+4*G}:{vS+4*G+3}]"
    A(f"v_mfma_f32_16x16x32_bf16 v[{vS+4*G}:{vS+4*G+3}], v[{vQ+4*u}:{vQ+4*u+3}], v[{vD+4*t}:{vD+4*t+3}], {c}")
stamp(3)
A("s_nop 7")
for G in range(8):
    d0, d1 = vS + 4 * G, vS + 4 * G + 1
    if G & 1:
        A(f"v_add_f32_dpp v{s_}, v{d0}, v{d1} row_ror:8 row_mask:{1 << (G >> 1):#x} bank_mask:0xc")
    else:
        A(f"v_add_f32_dpp v{s_}, v{d1}, v{d0} row_ror:8 row_mask:{1 << (G >> 1):#x} bank_mask:0x3")
A(f"v_cvt_pk_bf16_f32 v{s_}, v{s_}, v{s_}\nv_lshlrev_b32 v{s_}, 16, v{s_}")
A(f"v_mul_f32 v{s_}, 0x3d93cd3a, v{s_}")
A(f"v_cvt_pk_bf16_f32 v{s_}, v{s_}, v{s_}\nv_lshlrev_b32 v{s_}, 16, v{s_}")
def wave_reduce(op, v):
    for d in ["row_shr:1", "row_shr:2", "row_shr:4", "row_shr:8"]:
        A(f"s_nop 1\n{op}_dpp v{v}, v{v}, v{v} {d} row_mask:0xf bank_mask:0xf")
    A(f"s_nop 1\n{op}_dpp v{v}, v{v}, v{v} row_bcast:15 row_mask:0xa bank_mask:0xf")
    A(f"s_nop 1\n{op}_dpp v{v}, v{v}, v{v} row_bcast:31 row_mask:0xc bank_mask:0xf")
A(f"v_mov_b32 v{s_+1}, v{s_}")
wave_reduce("v_max_f32", s_ + 1)
A(f"s_nop 0\nv_readlane_b32 s{sTMP}, v{s_+1}, 63")
A(f"s_lshl_b32 s{sTMP2}, s{sC}, 3\nv_mov_b32 v{s_+4}, s{sTMP2}\nv_mov_b32 v{s_+2}, s{sTMP}\nv_mov_b32 v{s_+3}, s{sT}")
A(f"ds_write_b64 v{s_+4}, v[{s_+2}:{s_+3}] offset:{L_MX}")
lds_wait(L_MX, [1, 3, 5, 7], 8, s_ + 8)
A(f"v_max_f32 v{s_+8}, v{s_+8}, v{s_+10}\nv_max3_f32 v{s_+8}, v{s_+8}, v{s_+12}, v{s_+14}")
A(f"v_sub_f32 v{s_}, v{s_}, v{s_+8}\nv_mul_f32 v{s_}, 0x3fb8aa3b, v{s_}\nv_exp_f32 v{s_}, v{s_}\ns_nop 0")
A(f"v_cvt_pk_bf16_f32 v{s_+1}, v{s_}, v{s_}")
A(f"s_lshl_b32 s{sTMP}, s{sC}, 7\nv_lshlrev_b32 v{s_+5}, 1, v{vL}\nv_add_u32 v{s_+5}, s{sTMP}, v{s_+5}")
A(f"ds_write_b16 v{s_+5}, v{s_+1} offset:{L_P}")
wave_reduce("v_add_f32", s_)
A(f"s_nop 0\nv_readlane_b32 s{sTMP}, v{s_}, 63\ns_nop 1\nv_mov_b32 v{s_+2}, s{sTMP}")
A(f"ds_write_b64 v{s_+4}, v[{s_+2}:{s_+3}] offset:{L_LS}")
stamp(4)
A("s_branch L_end")

A("L_v:")
prio(1)
A(f"s_sub_u32 s{sC}, s{sWAVE}, 8")
data_voff(384 if a.near else 32 * 384)
A(f"s_mul_i32 s{sOFF}, s{sHH}, 1572864\ns_mul_i32 s{sTMP}, s{sJ}, 98304\ns_add_u32 s{sOFF}, s{sOFF}, s{sTMP}\ns_lshl_b32 s{sTMP}, s{sC}, 7\ns_add_u32 s{sOFF}, s{sOFF}, s{sTMP}\ns_add_u32 s{sOFF}, s{sOFF}, {3072*384}")
if "k" in a.contig:
    data_voff(384)
    A(f"s_mul_i32 s{sTMP}, s{sC}, {30720-128}\ns_add_u32 s{sOFF}, s{sOFF}, s{sTMP}")
if "v" in a.contig:
    A(f"v_lshlrev_b32 v{vOFF}, 4, v{vL}\ns_mul_i32 s{sTMP}, s{sC}, {32768-128}\ns_add_u32 s{sOFF}, s{sOFF}, s{sTMP}")
if not a.pads:
    A("s_waitcnt lgkmcnt(0)")
    A(f"s_load_dword s{sT}, s[{sWSP}:{sWSP+1}], s9")
srd(SR, sV, 50331648)
srd(WS, sWSP, 0x10000000)
if not a.pads: A("s_barrier")
get_T()
if WIN:
    gate_init(sC, 4 * WIN[1], vCO)
elif a.g2:
    lds_wait(L_KI, [0, 1, 2, 3], 4, vCO)
if WIN:
    make_selectors()
    coef_addr(vAD, 64)
vrest = [A.label("Lvb") for b in range(32)]
def v_load(b):
    A(f"buffer_load_dwordx4 v[{vD+4*b}:{vD+4*b+3}], v{vOFF}, s[{SR}:{SR+3}], s{sOFF} offen offset:{384*(b%8)} nt")
    if b % 8 == 7 and b < 31: A(f"s_add_u32 s{sOFF}, s{sOFF}, 3072")
    if a.rank and b == a.vr: A(f"ds_write_b32 v{vCO}, v{vT} offset:{L_VT}")
for b in range(32):
    thr(b)
    if WIN:
        if b < WIN[2]: gate(L_PK, 3, 4 * WIN[1], 3 * WIN[2], vCO, vCO + 4)
        else:
            if a.vboost:
                t = vCO + 4
                if a.vtrig == 0:
                    A(f"ds_read_b32 v{t}, v{vCO} offset:{L_FFLAG}\ns_waitcnt lgkmcnt(0)\nv_cmp_ne_u32 vcc, 0, v{t}\ns_cbranch_vccnz {vrest[b]}")
                elif a.vtrig == 1:
                    A(f"ds_read_b32 v{t}, v{vCO} offset:{L_LS+4}\ns_waitcnt lgkmcnt(0)\nv_cmp_ne_u32 vcc, 0, v{t}\ns_cbranch_vccnz {vrest[b]}")
                elif b == a.vtrig:
                    A(f"s_branch {vrest[b]}")
            A(f"s_waitcnt vmcnt({WIN[2]-1})")
    if "k" in a.contig:
        A(f"buffer_load_dwordx4 v[{vD+4*b}:{vD+4*b+3}], v{vOFF}, s[{SR}:{SR+3}], s{sOFF} offen offset:{128*(b%3)} nt")
        if b % 3 == 2: A(f"s_add_u32 s{sOFF}, s{sOFF}, 3072")
        continue
    if a.near or "v" in a.contig:
        A(f"buffer_load_dwordx4 v[{vD+4*b}:{vD+4*b+3}], v{vOFF}, s[{SR}:{SR+3}], s{sOFF} offen nt\ns_add_u32 s{sOFF}, s{sOFF}, {3072 if a.near else 1024}")
        continue
    v_load(b)
if a.vboost:
    A("s_branch L_vb_j")
    for b in range(WIN[2], 32):
        if b >= a.vboost: A(f"s_waitcnt vmcnt({a.vboost-1})")
        A(f"{vrest[b]}:")
        v_load(b)
    A("L_vb_j:")
prio(3)
stamp(1)
if WIN:
    nv = WIN[2]
    A(f"s_lshl_b32 s{sTMP}, s{sC}, 2\nv_mov_b32 v{vOFF}, s{sTMP}")
    A(f"v_mov_b32 v{vCO+9}, 0\nds_read_b128 v[{vCO}:{vCO+3}], v{vCO+9} offset:{L_LS}\nds_read_b128 v[{vCO+4}:{vCO+7}], v{vCO+9} offset:{L_LS+16}\ns_waitcnt lgkmcnt(0)")
    A(f"v_xor_b32 v{vCO+1}, s{sFL}, v{vCO+1}\nv_xor_b32 v{vCO+3}, s{sFL}, v{vCO+3}\nv_xor_b32 v{vCO+5}, s{sFL}, v{vCO+5}\nv_xor_b32 v{vCO+7}, s{sFL}, v{vCO+7}")
    A(f"v_or3_b32 v{vCO+1}, v{vCO+1}, v{vCO+3}, v{vCO+5}\nv_or_b32 v{vCO+1}, v{vCO+1}, v{vCO+7}\nv_cmp_ne_u32 vcc, 0, v{vCO+1}\ns_cmp_eq_u64 vcc, 0\ns_cbranch_scc1 L_v_fast")
    for i in range(nv):
        A(f"s_waitcnt vmcnt({nv-1-i})")
        credit(L_PV, vOFF, vCO, i + 1)
    lds_wait(L_LS, [1, 3, 5, 7], 8, vCO)
    A(f"s_mov_b32 s{sNEED}, 1\ns_branch L_v_go\nL_v_fast:\ns_mov_b32 s{sNEED}, 0\nL_v_go:")
else:
    make_selectors()
    coef_addr(vAD, 64)
    lds_wait(L_LS, [1, 3, 5, 7], 8, vCO)
for k in range(4):
    A(f"ds_read_b128 v[{vCO+4*k}:{vCO+4*k+3}], v{vAD} offset:{L_P+16*k}")
lds_mode(vA0, vA0 + 1)
A(f"s_waitcnt lgkmcnt(0)\nv_readfirstlane_b32 s{sMODE}, v{vA0+1}")
stamp(2)
if WIN:
    def vhook(b):
        if b >= 32 - nv: credit(L_PV, vOFF, vAD, b - (32 - nv) + 1)
    diag_gemv(32, hook=vhook)
else:
    diag_gemv(32)
publish_gather(OBOX, L_O, L_OF, True)
stamp(5)
A("s_branch L_end")

A("L_aux:")
prio(3)
if a.dbg: A("s_memtime s[84:85]")
if not a.pads: A(f"v_lshlrev_b32 v8, 2, v{vL}\nv_mov_b32 v9, 0\nds_write_b32 v8, v9")
A(f"s_load_dwordx4 s[{sM}:{sM+3}], s[0:1], 80")
if a.nf:
    assert a.fp == 128
    A(f"s_and_b32 s{sTMP}, s{sHH}, 7\ns_lshl_b32 s{sTMP}, s{sTMP}, 2\ns_lshr_b32 s{sTMP2}, s{sHH}, 3\ns_add_u32 s{sTMP}, s{sTMP}, s{sTMP2}\ns_lshl_b32 s{sTMP}, s{sTMP}, 1\n{'s_and_b32' if a.lmap else 's_lshr_b32'} s{sTMP2}, s{sJ}, 1\ns_add_u32 s{sTMP}, s{sTMP}, s{sTMP2}")
    A(f"{'s_lshr_b32' if a.lmap else 's_and_b32'} s{sTMP2}, s{sJ}, 1\ns_xor_b32 s{sTMP2}, s{sTMP2}, 1\ns_lshl_b32 s{sTMP2}, s{sTMP2}, 6\ns_add_u32 s{sRI}, s{sTMP}, s{sTMP2}")
    A(f"s_mul_i32 s{sRB}, s{sP}, 20\ns_add_u32 s{sRB}, s{sRB}, s{sRI}\ns_and_b32 s{sTMP}, s{sRB}, 1\ns_lshr_b32 s{sRB}, s{sRB}, 1\ns_lshl_b32 s{sRB}, s{sRB}, 14\ns_lshl_b32 s{sTMP}, s{sTMP}, 12\ns_add_u32 s{sRB}, s{sRB}, s{sTMP}\ns_add_u32 s{sRB}, s{sRB}, {FBOX}\ns_add_u32 s{sTMP3}, s{sRB}, 8192\nv_mov_b32 v30, 0")
if a.nf == 8:
    A(f"s_mul_i32 s{sTMP}, s{sP}, 20\ns_add_u32 s{sTMP}, s{sTMP}, s{sRI}\ns_lshl_b32 s{sTMP}, s{sTMP}, 14\ns_add_u32 s{sTMP}, s{sTMP}, {FBOX + 20*16384}\ns_add_u32 s{sTMP2}, s{sTMP}, 8192")
if a.nf == 9:
    A(f"s_lshr_b32 s{sTMP}, s2, 4\ns_lshl_b32 s{sTMP}, s{sTMP}, 14\ns_and_b32 s{sTMP2}, s2, 15\ns_lshl_b32 s{sTMP2}, s{sTMP2}, 9\ns_add_u32 s{sTMP}, s{sTMP}, s{sTMP2}\ns_add_u32 s{sTMP}, s{sTMP}, {FBOX + 20*16384}\ns_add_u32 s{sTMP2}, s{sTMP}, 8192")
A("s_waitcnt lgkmcnt(0)")
if a.nf not in (8, 9): srd(WS, sWSP, 0x10000000)
if a.nf == 9:
    sPA, sPB = sM + 4, sM + 5
    if a.nfr:
        A(f"s_load_dword s{sT}, s[{sWSP}:{sWSP+1}], s9")
    elif a.nfo:
        A(f"s_load_dword s{sT}, s[{sWSP}:{sWSP+1}], s9")
        A("s_barrier")
        A(f"s_load_dword s{sPA}, s[{sWSP}:{sWSP+1}], s{sTMP}\ns_load_dword s{sPB}, s[{sWSP}:{sWSP+1}], s{sTMP2}")
    else:
        A(f"s_load_dword s{sPA}, s[{sWSP}:{sWSP+1}], s{sTMP}\ns_load_dword s{sPB}, s[{sWSP}:{sWSP+1}], s{sTMP2}")
        A(f"s_load_dword s{sT}, s[{sWSP}:{sWSP+1}], s9")
        A("s_barrier")
    srd(WS, sWSP, 0x10000000)
    srd(SR2, sM, 2560)
    A(f"s_lshl_b32 s{SR}, s{sXCC}, 10\ns_add_u32 s{SR}, s{SR}, {VBOX}\ns_lshl_b32 s{sTMP2}, s2, 2\nv_mov_b32 v60, s{sTMP2}")
    if a.nfr:
        A(f"s_mov_b32 s{SR+2}, s{sTMP}\ns_add_u32 s{SR+3}, s{sTMP}, 8192")
        A("s_waitcnt lgkmcnt(0)\ns_barrier")
        d = a.nfdl
        while d > 0:
            A(f"s_sleep {min(d, 127)}"); d -= 127
        A(f"s_mov_b32 s{SR+1}, 0")
        if a.nfx: A(f"s_mov_b32 s{SR}, {VBOX}\ns_bitcmp1_b32 s{sXCC}, 0\ns_cbranch_scc0 L_npr")
        if a.nfj >= 0: A(f"s_cmp_lg_u32 s{sJ}, {a.nfj}\ns_cbranch_scc1 L_npr")
        for r in range(a.nfr):
            f1, f2 = (SR + 2, SR + 3) if r % 2 == 0 else (SR + 3, SR + 2)
            A(f"s_load_dword s{sPA}, s[{sWSP}:{sWSP+1}], s{f1}\ns_load_dword s{sPB}, s[{sWSP}:{sWSP+1}], s{f2}")
            if r + 1 < a.nfr: A(f"s_add_u32 s{SR+2}, s{SR+2}, 128\ns_add_u32 s{SR+3}, s{SR+3}, 128")
            A("s_waitcnt lgkmcnt(1)")
            A(f"s_sleep {a.nfs}" if a.nfs > 0 else f"s_nop {-a.nfs}")
            A(f"s_getreg_b32 s{sTMP}, hwreg(HW_REG_IB_STS, 8, 4)\n{'s_add_u32' if r % 2 == 0 else 's_sub_u32'} s{SR+1}, s{SR+1}, s{sTMP}\ns_waitcnt lgkmcnt(0)")
        A("L_npr:")
        A(f"s_cmp_gt_i32 s{SR+1}, 0\ns_cselect_b32 s{sTMP}, 16, 32\ns_cmp_lt_i32 s{SR+1}, 0\ns_cselect_b32 s{SR+1}, 0, s{sTMP}")
    else:
        A(f"s_waitcnt lgkmcnt({2 - a.nfo})")
        A(f"s_sleep {a.nfs}" if a.nfs > 0 else f"s_nop {-a.nfs}")
        A(f"s_getreg_b32 s{sTMP}, hwreg(HW_REG_IB_STS, 8, 4)\ns_cmp_eq_u32 s{sTMP}, {2 - a.nfo}\ns_cselect_b32 s{SR+1}, 16, 0")
def vote_store():
    A(f"s_xor_b32 s{SR+1}, s{SR+1}, s{sT}\nv_mov_b32 v61, s{SR+1}")
    if a.nfx: A(f"s_bitcmp1_b32 s{sXCC}, 0\ns_cbranch_scc0 L_nvs")
    A(f"s_mov_b64 exec, 1\nbuffer_store_dword v61, v60, s[{WS}:{WS+3}], s{SR} offen{' sc1' if a.nfx else ''}\ns_mov_b64 exec, -1")
    if a.nfx: A("L_nvs:")
if a.nf == 1:
    A(f"s_cmp_ge_u32 s{sRI}, 20\ns_cbranch_scc1 L_nc1\ns_mov_b64 exec, 1")
    A(f"buffer_load_dword v10, v30, s[{WS}:{WS+3}], s{sRB} offen sc1\nbuffer_load_dword v11, v30, s[{WS}:{WS+3}], s{sTMP3} offen sc1\ns_mov_b64 exec, -1\nL_nc1:")
if a.nf == 8:
    sPA, sPB = sM + 4, sM + 5
    A(f"s_cmp_ge_u32 s{sRI}, 20\ns_cbranch_scc1 L_nc1")
    A(f"s_load_dword s{sPA}, s[{sWSP}:{sWSP+1}], s{sTMP}\ns_load_dword s{sPB}, s[{sWSP}:{sWSP+1}], s{sTMP2}")
    A(f"s_load_dword s{sT}, s[{sWSP}:{sWSP+1}], s9")
    if a.nfd:
        A(f"s_mov_b32 s{sST+14}, 0")
        for k, inc in ((3, 1), (2, 1 << 12), (1, 1 << 22)):
            A(f"L_nd{k}:\ns_add_u32 s{sST+14}, s{sST+14}, {inc}\ns_getreg_b32 s{sTMP}, hwreg(HW_REG_IB_STS, 8, 4)\ns_cmp_ge_u32 s{sTMP}, {k}\ns_cbranch_scc1 L_nd{k}")
        A(f"s_bfe_u32 s{sTMP}, s{sST+14}, {12 | (10 << 16)}\ns_cmp_gt_u32 s{sTMP}, {a.nfd}\ns_cselect_b32 s{sRB}, s{sRB}, s{sTMP3}")
    else:
        A("s_waitcnt lgkmcnt(2)")
        A(f"s_sleep {a.nfs}" if a.nfs > 0 else f"s_nop {-a.nfs}")
        A(f"s_getreg_b32 s{sTMP}, hwreg(HW_REG_IB_STS, 8, 4)\ns_cmp_eq_u32 s{sTMP}, 2\ns_cselect_b32 s{sRB}, s{sRB}, s{sTMP3}")
        if a.stamps: A(f"s_sub_u32 s{sST+14}, 3, s{sTMP}")
    A("s_branch L_nc2\nL_nc1:")
    A(f"s_load_dword s{sT}, s[{sWSP}:{sWSP+1}], s9")
    A("L_nc2:")
    srd(WS, sWSP, 0x10000000)
    srd(SR2, sM, 2560)
    A("s_barrier")
elif a.nf != 9 and not a.pads: A(f"s_load_dword s{sT}, s[{sWSP}:{sWSP+1}], s9")
if a.nf in (8, 9): pass
elif a.nf == 7:
    sPA, sPB = sM + 4, sM + 5
    A(f"s_cmp_ge_u32 s{sRI}, 20\ns_cbranch_scc1 L_nc1")
    A(f"s_mul_i32 s{sTMP}, s{sP}, 20\ns_add_u32 s{sTMP}, s{sTMP}, s{sRI}\ns_lshl_b32 s{sTMP}, s{sTMP}, 14\ns_add_u32 s{sTMP}, s{sTMP}, {FBOX + 20*16384}\ns_add_u32 s{sTMP2}, s{sTMP}, 8192")
    A(f"s_load_dword s{sPA}, s[{sWSP}:{sWSP+1}], s{sTMP}\ns_load_dword s{sPB}, s[{sWSP}:{sWSP+1}], s{sTMP2}")
    A("s_waitcnt lgkmcnt(1)")
    A(f"s_sleep {a.nfs}" if a.nfs else "s_nop 15\ns_nop 15")
    A(f"s_getreg_b32 s{sTMP}, hwreg(HW_REG_IB_STS, 8, 4)\ns_cmp_lg_u32 s{sTMP}, 0\ns_cselect_b32 s{sRB}, s{sRB}, s{sTMP3}")
    if a.stamps: A(f"s_sub_u32 s{sST+14}, 2, s{sTMP}")
    A("L_nc1:")
    srd(SR2, sM, 2560)
    A("s_barrier")
elif a.nf == 6:
    SENT = 0x5a17c3e9
    sPA, sPB = sM + 4, sM + 5
    A(f"s_cmp_ge_u32 s{sRI}, 20\ns_cbranch_scc1 L_nc1")
    A(f"s_mul_i32 s{sTMP}, s{sP}, 20\ns_add_u32 s{sTMP}, s{sTMP}, s{sRI}\ns_lshl_b32 s{sTMP}, s{sTMP}, 14\ns_add_u32 s{sTMP}, s{sTMP}, {FBOX + 20*16384}\ns_add_u32 s{sTMP2}, s{sTMP}, 8192")
    A(f"s_mov_b32 s{sPA}, {SENT:#x}\ns_mov_b32 s{sPB}, {SENT:#x}")
    A(f"s_load_dword s{sPA}, s[{sWSP}:{sWSP+1}], s{sTMP}\ns_load_dword s{sPB}, s[{sWSP}:{sWSP+1}], s{sTMP2}\nL_nc1:")
    srd(SR2, sM, 2560)
    A(f"s_cmp_ge_u32 s{sRI}, 20\ns_cbranch_scc1 L_prA")
    A(f"L_pr:\ns_cmp_lg_u32 s{sPA}, {SENT:#x}\ns_cbranch_scc1 L_prA\ns_cmp_lg_u32 s{sPB}, {SENT:#x}\ns_cbranch_scc1 L_prB")
    A(f"s_getreg_b32 s{sTMP}, hwreg(HW_REG_IB_STS, 8, 4)\ns_cmp_lg_u32 s{sTMP}, 0\ns_cbranch_scc1 L_pr")
    A(f"L_prB:\ns_mov_b32 s{sRB}, s{sTMP3}")
    if a.stamps: A(f"s_mov_b32 s{sST+14}, 1")
    A("L_prA:")
    if a.stamps: A(f"s_add_u32 s{sST+14}, s{sST+14}, 1")
    A("s_barrier")
else:
    srd(SR2, sM, 2560)
    if not a.pads: A("s_barrier" if a.nf == 10 or a.eb else "s_waitcnt lgkmcnt(0)\ns_barrier")
get_T()
if a.nf == 9 and a.nfv == 0: vote_store()
if a.nf == 1:
    A(f"s_waitcnt vmcnt(1)\ns_memtime s[{sM+4}:{sM+5}]\ns_waitcnt vmcnt(0)\ns_memtime s[{sM+6}:{sM+7}]\ns_waitcnt lgkmcnt(0)")
    A(f"s_sub_u32 s{sM+4}, s{sM+6}, s{sM+4}\ns_cmp_gt_u32 s{sM+4}, {a.nft}\ns_cselect_b32 s{sRB}, s{sRB}, s{sTMP3}")
    if a.stamps: A(f"s_add_u32 s{sST+14}, s{sM+4}, 1\ns_mov_b32 s{sST+15}, 0")
elif a.nf == 3:
    A(f"s_mov_b32 s{sRB}, s{sTMP3}")
if a.lat:
    A(f"v_lshlrev_b32 v37, 4, v{vL}")
    A(f"s_lshl_b32 s{sOFF}, s2, 10\ns_add_u32 s{sOFF}, s{sOFF}, 0x200000")
    A(f"s_cmp_eq_u32 s{sWAVE}, 11\ns_cbranch_scc1 L_lat2")
    for k in range(4):
        A(f"s_memrealtime s[{sST+4*k}:{sST+4*k+1}]\ns_waitcnt lgkmcnt(0)")
        A(f"buffer_load_dwordx4 v[40:43], v37, s[{WS}:{WS+3}], s{sOFF} offen sc1\ns_waitcnt vmcnt(0)")
        A(f"s_memrealtime s[{sST+4*k+2}:{sST+4*k+3}]\ns_waitcnt lgkmcnt(0)")
        A("s_sleep 40")
    A("s_branch L_end")
    A("L_lat2:")
    A(f"s_add_u32 s{sOFF}, s{sOFF}, 0x100000")
    A(f"buffer_load_dwordx4 v[40:43], v37, s[{WS}:{WS+3}], s{sOFF} offen {'nt' if a.lat == 1 else 'sc1'}\ns_waitcnt vmcnt(0)")
    for k in range(4):
        A(f"s_memrealtime s[{sST+4*k}:{sST+4*k+1}]\ns_waitcnt lgkmcnt(0)")
        A(f"buffer_load_dwordx4 v[40:43], v37, s[{WS}:{WS+3}], s{sOFF} offen {'nt' if a.lat == 1 else 'sc1'}\ns_waitcnt vmcnt(0)")
        A(f"s_memrealtime s[{sST+4*k+2}:{sST+4*k+3}]\ns_waitcnt lgkmcnt(0)")
        A("s_sleep 40")
    A("s_branch L_end")
if a.rank:
    A(f"s_lshl_b32 s{sNEED}, s{sJ}, 7\ns_add_u32 s{sNEED}, s{sNEED}, {RBOX}\nv_mov_b32 v30, 0\nbuffer_load_dword v60, v30, s[{WS}:{WS+3}], s{sNEED} offen sc1 nt")
stamp(1)
lds_wait(L_LS, [1, 3, 5, 7], 8, 8)
A(f"v_mov_b32 v30, 0\nds_read_b128 v[20:23], v30 offset:{L_MX}\nds_read_b128 v[24:27], v30 offset:{L_MX+16}\nds_read_b32 v31, v30 offset:{L_MODE}\ns_waitcnt lgkmcnt(0)\nv_readfirstlane_b32 s{sMODE}, v31")
A("v_max_f32 v32, v20, v22\nv_max3_f32 v32, v32, v24, v26")
A("v_add_f32 v33, v8, v10\nv_add_f32 v34, v12, v14\nv_add_f32 v33, v33, v34\nv_mov_b32 v34, 0\nv_mov_b32 v35, 0")
for k in range(4):
    A(f"v_perm_b32 v{32+k}, v{32+k}, v{vT}, s{sSEL+k}")
A(f"s_lshl_b32 s{sOFF}, s{sH}, 7\ns_add_u32 s{sOFF}, s{sOFF}, {SBOX}\ns_lshl_b32 s{sTMP}, s{sJ}, 4\ns_add_u32 s{sTMP}, s{sTMP}, s{sOFF}")
A("s_mov_b64 exec, 1")
A(f"s_cmp_lg_u32 s{sMODE}, 0\ns_cbranch_scc1 L_ux1")
A(f"buffer_store_dwordx4 v[32:35], v30, s[{WS}:{WS+3}], s{sTMP} offen\ns_branch L_ux2\nL_ux1:")
A(f"buffer_store_dwordx4 v[32:35], v30, s[{WS}:{WS+3}], s{sTMP} offen sc1\nL_ux2:")
A("s_mov_b64 exec, -1")
if a.nf == 9 and a.nfv == 1: vote_store()
stamp(2)
A(f"v_and_b32 v36, 3, v{vL}\nv_lshlrev_b32 v37, 4, v36")
poll(40, 37, sOFF)
stamp(3)
A("v_and_b32 v40, 0xffffff00, v40\ns_nop 1")
A("v_max_f32_dpp v44, v40, v40 quad_perm:[1,0,3,2] row_mask:0xf bank_mask:0xf\ns_nop 1")
A("v_max_f32_dpp v44, v44, v44 quad_perm:[2,3,0,1] row_mask:0xf bank_mask:0xf")
A("v_sub_f32 v40, v40, v44\nv_mul_f32 v40, 0x3fb8aa3b, v40\nv_exp_f32 v40, v40\ns_nop 0")
A("v_mul_f32 v41, v41, v40\ns_nop 1")
A("v_add_f32_dpp v44, v41, v41 quad_perm:[1,0,3,2] row_mask:0xf bank_mask:0xf\ns_nop 1")
A("v_add_f32_dpp v44, v44, v44 quad_perm:[2,3,0,1] row_mask:0xf bank_mask:0xf")
A("v_rcp_f32 v44, v44\ns_nop 0\nv_mul_f32 v40, v40, v44")
A("v_lshlrev_b32 v36, 2, v36")
A("s_mov_b64 exec, 15")
A(f"ds_write_b32 v36, v40 offset:{L_FF}")
A(f"ds_write_b32 v30, v{vT} offset:{L_FFLAG}")
A("s_mov_b64 exec, -1")
if a.dirty:
    A(f"v_lshlrev_b32 v37, 4, v{vL}\ns_lshl_b32 s{sTMP}, s2, 14\ns_add_u32 s{sTMP}, s{sTMP}, 0x1000000")
    for k in range(a.dirty):
        A(f"buffer_store_dwordx4 v[40:43], v37, s[{WS}:{WS+3}], s{sTMP} offen\ns_add_u32 s{sTMP}, s{sTMP}, 1024")
if a.rank:
    lds_wait(L_VT, [0], 1, 8)
    A(f"v_mov_b32 v61, 1\ns_mov_b64 exec, 1\nbuffer_atomic_add v61, v30, s[{WS}:{WS+3}], s{sNEED} offen sc0 sc1\ns_mov_b64 exec, -1\ns_waitcnt vmcnt(0)")
    A(f"v_sub_u32 v61, v61, v60\ns_nop 0\nv_readfirstlane_b32 s{sTMP}, v61\ns_cmp_lt_u32 s{sTMP}, {a.rank}\ns_cbranch_scc1 L_rk")
    if a.stamps: A(f"s_mov_b32 s{sST+14}, s{sTMP}\ns_mov_b32 s{sST+15}, 0")
    if a.rop: lds_wait(L_VT, [1, 2, 3], 4, 8)
    A(f"ds_write_b32 v30, v{vT} offset:{L_OF+12}")
    A("L_rk:")
if a.fp:
    gp = a.fp // 16; lg = gp.bit_length() - 1; nx = 256 // a.fp; R = 10 * nx; nl = a.fp // 32
    if a.nf:
        A(f"s_mov_b32 s{sCNT}, s{sRI}\ns_cmp_ge_u32 s{sCNT}, {R}\ns_cbranch_scc1 L_end")
    else:
        A(f"s_and_b32 s{sTMP}, s{sHH}, 7\ns_lshl_b32 s{sTMP}, s{sTMP}, 2\ns_lshr_b32 s{sTMP2}, s{sHH}, 3\ns_add_u32 s{sTMP}, s{sTMP}, s{sTMP2}\ns_lshl_b32 s{sTMP}, s{sTMP}, 1\n{'s_and_b32' if a.lmap else 's_lshr_b32'} s{sTMP2}, s{sJ}, 1\ns_add_u32 s{sTMP}, s{sTMP}, s{sTMP2}")
        A(f"{'s_lshr_b32' if a.lmap else 's_and_b32'} s{sTMP2}, s{sJ}, 1\ns_xor_b32 s{sTMP2}, s{sTMP2}, 1\ns_lshl_b32 s{sTMP2}, s{sTMP2}, 6\ns_add_u32 s{sCNT}, s{sTMP}, s{sTMP2}\ns_cmp_ge_u32 s{sCNT}, {R}\ns_cbranch_scc1 L_end")
    A(f"s_mul_i32 s{sOFF}, s{sP}, {R}\ns_add_u32 s{sOFF}, s{sOFF}, s{sCNT}\ns_mul_i32 s{sTMP2}, s{sOFF}, {gp*8}\ns_mul_i32 s{sOFF}, s{sOFF}, {32*a.fp}\ns_add_u32 s{sOFF}, s{sOFF}, {FBOX}")
    if a.nf == 10: A(f"s_lshl_b32 s{SR}, s{sXCC}, 10\ns_add_u32 s{SR}, s{SR}, {VBOX}")
    if a.nf in (9, 10):
        A(f"v_lshlrev_b32 v37, 4, v{vL}\nbuffer_load_dwordx4 v[60:63], v37, s[{WS}:{WS+3}], s{SR} offen sc1{'' if a.nfx else ' nt'}\ns_waitcnt vmcnt(0)")
        A(f"s_mov_b32 s{sTMP}, 0\ns_mov_b32 s{sTMP3}, 0\ns_xor_b32 s{SR+1}, s{sT}, 16")
        for k in range(4):
            if a.nfx:
                A(f"v_xor_b32 v{60+k}, s{sT}, v{60+k}\nv_and_b32 v{60+k}, -4, v{60+k}")
                for c, d in ((0, sTMP), (20, sTMP), (16, sTMP3), (4, sTMP3)):
                    A(f"v_cmp_eq_u32 vcc, {c}, v{60+k}\ns_bcnt1_i32_b64 s{SR+2}, vcc\ns_add_u32 s{d}, s{d}, s{SR+2}")
            else:
                A(f"v_cmp_eq_u32 vcc, s{sT}, v{60+k}\ns_bcnt1_i32_b64 s{SR+2}, vcc\ns_add_u32 s{sTMP}, s{sTMP}, s{SR+2}")
                A(f"v_cmp_eq_u32 vcc, s{SR+1}, v{60+k}\ns_bcnt1_i32_b64 s{SR+2}, vcc\ns_add_u32 s{sTMP3}, s{sTMP3}, s{SR+2}")
        if a.stamps: A(f"s_add_u32 s{sST+14}, s{sTMP}, s{sTMP3}\ns_lshl_b32 s{sST+14}, s{sST+14}, 16\ns_add_u32 s{sST+14}, s{sST+14}, s{sTMP3}")
        if a.dbgv == 2:
            A(f"s_max_u32 s{SR+2}, s{sTMP}, s{sTMP3}\ns_min_u32 s{SR+3}, s{sTMP}, s{sTMP3}\ns_lshl_b32 s{SR+3}, s{SR+3}, 1\ns_add_u32 s{SR+3}, s{SR+3}, 6\ns_cmp_gt_u32 s{SR+2}, s{SR+3}\ns_cbranch_scc1 L_dv")
            for k in range(6): A("s_sleep 127")
            A("L_dv:")
        if a.dbgv >= 10:
            A(f"s_max_u32 s{SR+2}, s{sTMP}, s{sTMP3}\ns_min_u32 s{SR+3}, s{sTMP}, s{sTMP3}\ns_add_u32 s{SR+3}, s{SR+3}, {a.dbgv - 10}\ns_cmp_ge_u32 s{SR+2}, s{SR+3}\ns_cbranch_scc1 L_dv")
            for k in range(6): A("s_sleep 127")
            A("L_dv:")
        if a.dbgv == 1:
            A(f"s_lshl_b32 s{SR+2}, s{sTMP}, 8\ns_add_u32 s{SR+2}, s{SR+2}, s{sTMP3}\nv_mov_b32 v60, s{SR+2}\ns_lshl_b32 s{SR+2}, s{sXCC}, 2\nv_mov_b32 v61, s{SR+2}")
            srd(SR, sM + 2, 256)
            A(f"s_mov_b64 exec, 1\nbuffer_store_dword v60, v61, s[{SR}:{SR+3}], 0 offen sc1\ns_mov_b64 exec, -1")
        if not a.nfr and a.nf == 9: A(f"s_lshl_b32 s{sTMP3}, s{sTMP3}, 1")
        A(f"s_cmp_gt_u32 s{sTMP3}, s{sTMP}\ns_cselect_b32 s{sTMP}, 0, 8192\ns_add_u32 s{sRB}, s{sRB}, s{sTMP}")
    if a.nf: A(f"s_mov_b32 s{sOFF}, s{sRB}")
    A(f"v_lshlrev_b32 v37, 4, v{vL}\nv_lshlrev_b32 v38, 3, v{vL}")
    lds_wait(L_PF, [0, 1, 2], 4, 8)
    stamp(4)
    if a.nofin: A("s_branch L_end")
    if a.nf == 5:
        A(f"s_add_u32 s{sTMP3}, s{sOFF}, 8192")
        for cp in range(2):
            for i in range(nl):
                A(f"buffer_load_dwordx4 v[{80+16*cp+4*i}:{83+16*cp+4*i}], v37, s[{WS}:{WS+3}], s{sTMP3 if cp else sOFF} offen offset:{1024*i} sc1{FN}")
        for cp in range(2):
            for i in range(nl):
                r = 80 + 16 * cp + 4 * i
                if cp == 0:
                    if i == 0: A(f"s_waitcnt vmcnt({nl})")
                else: A(f"s_waitcnt vmcnt({nl-1-i})")
                A(f"v_perm_b32 v44, v{r+1}, v{r}, s{sSELA}\nv_perm_b32 v45, v{r+3}, v{r+2}, s{sSELB}\nv_or_b32 v44, v44, v45\nv_xor_b32 v44, s{sT}, v44")
                A(f"v_or_b32 v46, v46, v44" if i else "v_mov_b32 v46, v44")
                for k in range(4):
                    A(f"v_add_f32 v{40+k}, v{40+k}, v{r+k}" if i else f"v_mov_b32 v{40+k}, v{r+k}")
                if cp == 0 and i == a.nfi:
                    A(f"s_getreg_b32 s{sTMP}, hwreg(HW_REG_IB_STS, 0, 4)")
                    if a.stamps: A(f"s_add_u32 s{sST+14}, s{sTMP}, 1\ns_mov_b32 s{sST+15}, 0")
            A("v_cmp_lt_u32 vcc, 7, v46\ns_cmp_eq_u64 vcc, 0\ns_cbranch_scc1 L_fpd")
        A(f"s_cmp_eq_u32 s{sTMP}, {nl}\ns_cselect_b32 s{sOFF}, s{sOFF}, s{sTMP3}")
    if a.fdepth > 1:
        D = a.fdepth
        def fissue(k):
            for i in range(nl):
                A(f"buffer_load_dwordx4 v[{80+16*k+4*i}:{83+16*k+4*i}], v37, s[{WS}:{WS+3}], s{sOFF} offen offset:{1024*i} sc1{FN}")
        for k in range(D - 1):
            fissue(k)
            A(f"s_sleep {a.fgap}")
        A("L_fq:")
        for k in range(D):
            fissue((k + D - 1) % D)
            for i in range(nl):
                r = 80 + 16 * k + 4 * i
                A(f"s_waitcnt vmcnt({nl*(D-1)+nl-1-i})")
                A(f"v_perm_b32 v44, v{r+1}, v{r}, s{sSELA}\nv_perm_b32 v45, v{r+3}, v{r+2}, s{sSELB}\nv_or_b32 v44, v44, v45\nv_xor_b32 v44, s{sT}, v44")
                A(f"v_or_b32 v46, v46, v44" if i else "v_mov_b32 v46, v44")
                for q in range(4):
                    A(f"v_add_f32 v{40+q}, v{40+q}, v{r+q}" if i else f"v_mov_b32 v{40+q}, v{r+q}")
            A("v_cmp_lt_u32 vcc, 7, v46\ns_cmp_eq_u64 vcc, 0\ns_cbranch_scc1 L_fpd")
        spin_tail("L_fq", 0)
    A("L_fp:")
    for i in range(nl):
        A(f"buffer_load_dwordx4 v[{80+4*i}:{83+4*i}], v37, s[{WS}:{WS+3}], s{sOFF} offen offset:{1024*i} sc1{FN}")
    for i in range(nl):
        r = 80 + 4 * i
        A(f"s_waitcnt vmcnt({nl-1-i})")
        A(f"v_perm_b32 v44, v{r+1}, v{r}, s{sSELA}\nv_perm_b32 v45, v{r+3}, v{r+2}, s{sSELB}\nv_or_b32 v44, v44, v45\nv_xor_b32 v44, s{sT}, v44")
        A(f"v_or_b32 v46, v46, v44" if i else "v_mov_b32 v46, v44")
        for k in range(4):
            A(f"v_add_f32 v{40+k}, v{40+k}, v{r+k}" if i else f"v_mov_b32 v{40+k}, v{r+k}")
    A("v_cmp_lt_u32 vcc, 7, v46\ns_cmp_eq_u64 vcc, 0\ns_cbranch_scc1 L_fpd")
    spin_tail("L_fp", a.fsl)
    A("L_fpd:")
    stamp(5)
    d = gp
    while d < 16:
        for k in range(4):
            A(f"v_add_f32_dpp v{40+k}, v{40+k}, v{40+k} row_ror:{d} row_mask:0xf bank_mask:0xf")
        if d * 2 < 16: A("s_nop 0")
        d *= 2
    for op in ("v_permlane16_swap_b32", "v_permlane32_swap_b32"):
        for k in range(4): A(f"v_mov_b32 v{44+k}, v{40+k}")
        A("s_nop 1")
        for k in range(4): A(f"{op} v{40+k}, v{44+k}")
        A("s_nop 1")
        for k in range(4): A(f"v_add_f32 v{40+k}, v{40+k}, v{44+k}")
    A("v_cvt_pk_bf16_f32 v44, v40, v41\nv_cvt_pk_bf16_f32 v45, v42, v43")
    A(f"s_mov_b64 exec, {(1 << gp) - 1}")
    A(f"buffer_store_dwordx2 v[44:45], v38, s[{SR2}:{SR2+3}], s{sTMP2} offen")
    A(f"s_cmp_lg_u32 s{sCNT}, 0\ns_cbranch_scc1 L_aux2")
    A("s_mov_b64 exec, 1")
    A(f"buffer_store_dword v{vT}, v30, s[{WS}:{WS+3}], s9 offen")
    A("L_aux2:")
    A("s_mov_b64 exec, -1")
    stamp(6)
else:
    A(f"s_and_b32 s{sTMP}, s{sJ}, 1\ns_lshl_b32 s{sTMP}, s{sTMP}, 3\ns_add_u32 s{sTMP}, s{sTMP}, s{sHH}\ns_cmp_ge_u32 s{sTMP}, 24\ns_cbranch_scc1 L_end")
    A(f"s_lshl_b32 s{sTMP}, s{sP}, 2\ns_add_u32 s{sTMP}, s{sTMP}, s{sJ}\ns_mul_i32 s{sOFF}, s{sTMP}, 24\ns_add_u32 s{sOFF}, s{sOFF}, s{sHH}")
    A(f"s_lshl_b32 s{sOFF}, s{sOFF}, 10\ns_add_u32 s{sOFF}, s{sOFF}, {FBOX}")
    A(f"s_mul_i32 s{sTMP}, s{sJ}, 5\ns_add_u32 s{sTMP}, s{sTMP}, 1\ns_lshr_b32 s{sTMP}, s{sTMP}, 1\ns_lshl_b32 s{sTMP2}, s{sTMP}, 7")
    A(f"s_mul_i32 s{sTMP}, s{sP}, 1280\ns_add_u32 s{sTMP2}, s{sTMP2}, s{sTMP}\ns_lshl_b32 s{sTMP}, s{sHH}, 4\ns_add_u32 s{sTMP2}, s{sTMP2}, s{sTMP}")
    A(f"v_lshlrev_b32 v37, 4, v{vL}\nv_lshrrev_b32 v38, 5, v{vL}\nv_lshlrev_b32 v38, 3, v38")
    lds_wait(L_PF, [0, 1, 2], 4, 8)
    stamp(4)
    if a.nofin: A("s_branch L_end")
    if a.fmask:
        D = a.fdepth
        mk = sM + 4
        sets = [80 + 4 * k for k in range(D)]
        A(f"s_mov_b64 s[{mk}:{mk+1}], -1")
        for k in range(D):
            for q in range(4): A(f"v_mov_b32 v{sets[k]+q}, 0")
        A(f"v_not_b32 v{sets[0]}, v{vT}")
        for k in range(1, D): A(f"v_mov_b32 v{sets[k]}, v{sets[0]}")
        def issue(r):
            A(f"s_mov_b64 exec, s[{mk}:{mk+1}]\nbuffer_load_dwordx4 v[{r}:{r+3}], v37, s[{WS}:{WS+3}], s{sOFF} offen sc1\ns_mov_b64 exec, -1")
        for k in range(D - 1):
            issue(sets[k])
            if a.fgap: A(f"s_sleep {a.fgap}")
        A("L_fp:")
        for k in range(D):
            issue(sets[(k + D - 1) % D])
            r = sets[k]
            A(f"s_waitcnt vmcnt({D-1})")
            A(f"v_perm_b32 v44, v{r+1}, v{r}, s{sSELA}\nv_perm_b32 v45, v{r+3}, v{r+2}, s{sSELB}\nv_or_b32 v44, v44, v45\nv_xor_b32 v44, s{sT}, v44")
            A(f"v_cmp_ge_u32 vcc, 7, v44")
            A(f"s_and_b64 vcc, vcc, s[{mk}:{mk+1}]\ns_andn2_b64 s[{mk}:{mk+1}], s[{mk}:{mk+1}], vcc\ns_mov_b64 exec, vcc")
            for q in range(4): A(f"v_mov_b32 v{40+q}, v{r+q}")
            A(f"s_mov_b64 exec, -1\ns_cmp_eq_u64 s[{mk}:{mk+1}], 0\ns_cbranch_scc1 L_fpd")
            if a.fsl: A(f"s_sleep {a.fsl}")
        spin_tail("L_fp", 0)
        A("L_fpd:")
    else:
        poll(80, 37, sOFF, depth=a.fdepth, gap=a.fgap, lfl=FN)
        for k in range(4):
            A(f"v_mov_b32 v{40+k}, v{80+k}")
    A("s_nop 1")
    stamp(5)
    for d in ["row_shr:1", "row_shr:2", "row_shr:4", "row_shr:8"]:
        for k in range(4):
            A(f"v_add_f32_dpp v{40+k}, v{40+k}, v{40+k} {d} row_mask:0xf bank_mask:0xf")
    for k in range(4):
        A(f"v_add_f32_dpp v{40+k}, v{40+k}, v{40+k} row_bcast:15 row_mask:0xa bank_mask:0xf")
    A("v_cvt_pk_bf16_f32 v44, v40, v41\nv_cvt_pk_bf16_f32 v45, v42, v43")
    A("s_mov_b32 exec_lo, 0x80000000\ns_mov_b32 exec_hi, 0x80000000")
    A(f"buffer_store_dwordx2 v[44:45], v38, s[{SR2}:{SR2+3}], s{sTMP2} offen")
    A(f"s_or_b32 s{sTMP}, s{sJ}, s{sHH}\ns_cmp_lg_u32 s{sTMP}, 0\ns_cbranch_scc1 L_aux2")
    A("s_mov_b64 exec, 1")
    A(f"buffer_store_dword v{vT}, v30, s[{WS}:{WS+3}], s9 offen")
    A("L_aux2:")
    A("s_mov_b64 exec, -1")
    stamp(6)


A("L_end:")
if a.dbg:
    A("s_mov_b64 exec, -1")
    A("s_waitcnt vmcnt(0) lgkmcnt(0)")
    A(f"s_memrealtime s[{sST+16}:{sST+17}]\ns_memtime s[86:87]\ns_waitcnt lgkmcnt(0)")
    for k in range(9):
        A(f"v_mov_b32 v{8+k}, s{sST+2*k}")
    A(f"s_sub_u32 s86, s86, s84\ns_sub_u32 s87, s{sST+16}, s{sST}\nv_mov_b32 v17, s86\nv_mov_b32 v18, s87\nv_not_b32 v19, v8")
    A(f"s_lshl_b32 s{sTMP}, s{sWAVE}, 6\nv_mov_b32 v30, s{sTMP}\ns_lshl_b32 s{sTMP}, s{sWAVE}, 2\nv_mov_b32 v31, s{sTMP}\ns_mov_b64 exec, 1")
    for k in range(3):
        A(f"ds_write_b128 v30, v[{8+4*k}:{11+4*k}] offset:{L_ST+16*k}")
    A(f"ds_write_b32 v31, v{vT} offset:{L_DN}")
    A("s_mov_b64 exec, -1")
    A(f"s_cmp_lg_u32 s{sWAVE}, 3\ns_cbranch_scc1 L_done")
    A(f"L_dw:\nv_lshlrev_b32 v8, 2, v{vL}\nv_min_u32 v8, 40, v8\nds_read_b32 v9, v8 offset:{L_DN}\ns_waitcnt lgkmcnt(0)\nv_cmp_ne_u32 vcc, s{sT}, v9\ns_cmp_eq_u64 vcc, 0\ns_cbranch_scc1 L_dw2\ns_sleep 4\ns_sub_u32 s{sSPIN}, s{sSPIN}, 1\ns_cbranch_scc0 L_dw\ns_branch L_done\nL_dw2:")
    A("s_sleep 127\ns_sleep 127")
    adds = [(3,0,1),(0,2,2),(0,4,3),(4,4,4),(8,2,5),(8,3,6),(8,4,7),(0,7,8),(3,9,13),(3,10,14)]
    maxs = [(3,11,0),(0,7,9),(1,7,9),(2,7,9),(3,8,10),(8,3,11),(9,3,11),(10,3,11),(8,4,12),(9,4,12),(10,4,12),(3,0,15)]
    A("v_mov_b32 v20, 0\nv_mov_b32 v21, 0")
    for k, (w, st, d) in enumerate(adds + maxs):
        A(f"s_mov_b32 s{sTMP}, {L_ST + w*64 + st*4}\nv_writelane_b32 v20, s{sTMP}, {k}\ns_mov_b32 s{sTMP}, {d*4}\nv_writelane_b32 v21, s{sTMP}, {k}")
    A("ds_read_b32 v22, v20")
    A(f"s_load_dwordx2 s[{sM+2}:{sM+3}], s[0:1], 88\ns_waitcnt lgkmcnt(0)")
    srd(SR, sM + 2, 256)
    A("s_waitcnt lgkmcnt(0)")
    A(f"s_mov_b64 exec, {(1 << len(adds)) - 1}")
    A(f"buffer_atomic_add v22, v21, s[{SR}:{SR+3}], 0 offen")
    A(f"s_mov_b64 exec, {((1 << len(maxs)) - 1) << len(adds)}")
    A(f"buffer_atomic_umax v22, v21, s[{SR}:{SR+3}], 0 offen")
elif a.stamps:
    A("s_mov_b64 exec, -1")
    A("s_waitcnt vmcnt(0) lgkmcnt(0)")
    A(f"s_memrealtime s[{sST+16}:{sST+17}]\ns_waitcnt lgkmcnt(0)")
    A(f"s_lshl_b32 s{sTMP}, s2, 4\ns_add_u32 s{sTMP}, s{sTMP}, s{sWAVE}\ns_mul_i32 s{sTMP}, s{sTMP}, 80\ns_add_u32 s{sTMP}, s{sTMP}, {STAMP}")
    for k in range(18):
        A(f"v_mov_b32 v{8+k}, s{sST+k}")
    A("v_mov_b32 v30, 0\ns_mov_b64 exec, 1")
    for k in range(4):
        A(f"buffer_store_dwordx4 v[{8+4*k}:{11+4*k}], v30, s[{WS}:{WS+3}], s{sTMP} offen offset:{16*k}")
    A("s_getreg_b32 s3, hwreg(HW_REG_XCC_ID)\nv_mov_b32 v26, s3\nv_mov_b32 v27, 0")
    A(f"buffer_store_dwordx4 v[24:27], v30, s[{WS}:{WS+3}], s{sTMP} offen offset:64")
A("L_done:\ns_endpgm")
A.footer(168)
if a.pads:
    assert a.nf in (0, 2, 3, 10) and not a.lat
    A.L = [l.replace(".p2align 8\n.type", ".p2align 12\n.type") for l in A.L]
if a.pads == 1:
    import padlib
    A.L = padlib.add_pads(A.L, 8)
A.write(a.out)
```

```python
import sys, argparse
from asmlib import *
ap = argparse.ArgumentParser()
ap.add_argument("out")
ap.add_argument("--stamps", type=int, default=0)
ap.add_argument("--prio", type=int, default=1)
ap.add_argument("--lds", type=int, default=163840)
ap.add_argument("--nopoll", type=int, default=0)
ap.add_argument("--near", type=int, default=0)
ap.add_argument("--kfull", type=int, default=0)
ap.add_argument("--psleep", type=int, default=0)
ap.add_argument("--lat", type=int, default=0)
ap.add_argument("--thr", type=int, default=0)
ap.add_argument("--rot", type=int, default=0)
ap.add_argument("--pdepth", type=int, default=3)
ap.add_argument("--pgap", type=int, default=16)
ap.add_argument("--fgap", type=int, default=5)
ap.add_argument("--fdepth", type=int, default=3)
ap.add_argument("--g2", type=int, default=1)
ap.add_argument("--dbg", type=int, default=0)
ap.add_argument("--win", type=str, default="")
ap.add_argument("--gsleep", type=int, default=1)
ap.add_argument("--nt", type=int, default=12)
ap.add_argument("--nofin", type=int, default=0)
ap.add_argument("--lsleep", type=int, default=1)
ap.add_argument("--x1", type=int, default=0)
ap.add_argument("--fmask", type=int, default=0)
ap.add_argument("--fsl", type=int, default=0)
ap.add_argument("--pro", type=int, default=0)
ap.add_argument("--contig", type=str, default="")
ap.add_argument("--fp", type=int, default=0)
ap.add_argument("--xmap", type=int, default=0)
ap.add_argument("--dly", type=str, default="")
ap.add_argument("--pnt", type=int, default=3)
ap.add_argument("--slab", type=int, default=0)
ap.add_argument("--wsl", type=int, default=1)
ap.add_argument("--no2", type=int, default=0)
ap.add_argument("--ks2", type=int, default=2)
ap.add_argument("--lmap", type=int, default=0)
ap.add_argument("--boost", type=int, default=0)
ap.add_argument("--vboost", type=int, default=0)
ap.add_argument("--kboost", type=int, default=0)
ap.add_argument("--vtrig", type=int, default=0)
ap.add_argument("--wj", type=str, default="")
ap.add_argument("--rank", type=int, default=0)
ap.add_argument("--vr", type=int, default=24)
ap.add_argument("--rop", type=int, default=1)
ap.add_argument("--dirty", type=int, default=0)
ap.add_argument("--nf", type=int, default=0)
ap.add_argument("--nft", type=int, default=110)
ap.add_argument("--nfi", type=int, default=0)
ap.add_argument("--nfs", type=int, default=1)
ap.add_argument("--nfd", type=int, default=0)
ap.add_argument("--nfv", type=int, default=0)
ap.add_argument("--enc", type=int, default=0)
ap.add_argument("--pads", type=int, default=0)
ap.add_argument("--dbgv", type=int, default=0)
ap.add_argument("--eb", type=int, default=0)
ap.add_argument("--nfp", default="sc1")
ap.add_argument("--nfx", type=int, default=0)
ap.add_argument("--nfj", type=int, default=-1)
ap.add_argument("--dry", type=int, default=0)
ap.add_argument("--nfr", type=int, default=0)
ap.add_argument("--nfdl", type=int, default=32)
ap.add_argument("--nfo", type=int, default=0)
ap.add_argument("--nfw", type=int, default=0)
ap.add_argument("--thx", type=str, default="")
a = ap.parse_args()
THX = [int(x, 0) for x in a.thx.split(",")] if a.thx else None
sTH = 3
def thx(n, d):
    if THX and d:
        l = A.label("Lth")
        A(f"s_cmp_eq_u32 s{sTH}, 0\ns_cbranch_scc1 {l}\ns_waitcnt vmcnt({n-1-d})\n{l}:")

PN = " nt" if a.pnt & 1 else ""
FN = " nt" if a.pnt & 2 else ""
XN = " nt" if a.pnt & 4 else ""
WIN = [int(x) for x in a.win.split(",")] if a.win else None
if a.dbg: a.stamps = 1

A = Asm()
NW = 12 if a.lat else 11
A.header(256, 64 * NW, a.lds)

QBOX = 0x10000
OBOX = 0x40000
SBOX = 0x70000
FBOX = 0x80000
RBOX = 0x78000
VBOX = 0x7a000
STAMP = 0x8000000
L_PW, L_PK, L_PV = 0, 16, 32
L_QF = 48
L_MX = 64
L_LS = 96
L_FF = 128
L_FFLAG = 144
L_MODE = 148
L_OF = 160
L_PF = 176
L_KI = 192
L_VT = 192
L_DN = 208
L_ST = 2048
L_Q = 256
L_P = 640
L_O = 1152
sH, sJ, sP, sHH = 4, 5, 6, 7
sX, sK, sV, sWQ, sWO = 12, 14, 16, 18, 20
sWSP = 22
sWAVE = 24
sT = 25
sSPIN = 26
sC = 27
WS = 28
SR = 32
sOFF = 36
sTMP, sTMP2, sTMP3 = 37, 38, 39
sSEL = 40
sSELA, sSELB = 44, 45
sFL = sT
SR2 = 48
sM = 52
sNEED, sHAVE = 56, 57
sMODE, sCNT = 58, 59
sXCC = 60
sRB, sRI = 62, 63
sDRY = 61
sST = 64
vL = 0
vOFF = 1
vAD = 2
vT = 3
vACC = 4
vA0, vA1 = 8, 12
vSEL = 16
vCO = 24
vD = 40

nstamp = [0]
def stamp(k):
    if a.stamps:
        A(f"s_memrealtime s[{sST+2*k}:{sST+2*k+1}]")

def thr(n):
    if a.thr and n >= a.thr:
        A(f"s_waitcnt vmcnt({a.thr-1})")

def prio(p):
    if a.prio:
        A(f"s_setprio {p}")

def spin_tail(loop, sleep=1):
    if sleep:
        A(f"s_sleep {sleep}")
    A(f"s_sub_u32 s{sSPIN}, s{sSPIN}, 1\ns_cbranch_scc0 {loop}\ns_branch L_end")

def lds_wait(off, positions, nread, vt):
    if a.nopoll >= 2: return
    lp = A.label("Lw"); dn = A.label("Lwd")
    vz = vt + nread + 1
    vx = vt + nread
    A(f"v_mov_b32 v{vz}, 0")
    A(f"{lp}:")
    k = 0
    while k < nread:
        n = min(4, nread - k)
        op = {1: "ds_read_b32", 2: "ds_read_b64", 4: "ds_read_b128"}[n]
        reg = f"v{vt+k}" if n == 1 else f"v[{vt+k}:{vt+k+n-1}]"
        A(f"{op} {reg}, v{vz} offset:{off+4*k}")
        k += n
    A("s_waitcnt lgkmcnt(0)")
    first = True
    for p in positions:
        if first:
            A(f"v_xor_b32 v{vx}, s{sFL}, v{vt+p}")
            first = False
        else:
            A(f"v_xor_b32 v{vz}, s{sFL}, v{vt+p}\nv_or_b32 v{vx}, v{vx}, v{vz}")
    A(f"v_mov_b32 v{vz}, 0")
    A(f"v_cmp_ne_u32 vcc, 0, v{vx}")
    A(f"s_cmp_eq_u64 vcc, 0\ns_cbranch_scc1 {dn}")
    spin_tail(lp, a.lsleep)
    A(f"{dn}:")

def gate_init(widx, NP, vz):
    A(f"s_add_u32 s{sNEED}, s{widx}, 1\ns_mul_i32 s{sNEED}, s{sNEED}, {NP}\ns_mov_b32 s{sHAVE}, 0\nv_mov_b32 v{vz}, 0")

def gate(loff, kS, NP, NS, vz, vt):
    lp = A.label("Lg"); go = A.label("Lgo")
    A(f"{lp}:\ns_cmp_ge_u32 s{sHAVE}, s{sNEED}\ns_cbranch_scc1 {go}")
    if a.x1: A("s_mov_b64 exec, 1")
    A(f"ds_read_b128 v[{vt}:{vt+3}], v{vz} offset:{loff}\ns_waitcnt lgkmcnt(0)")
    A(f"v_add3_u32 v{vt}, v{vt}, v{vt+1}, v{vt+2}\nv_add_u32 v{vt}, v{vt}, v{vt+3}\ns_nop 0\nv_readfirstlane_b32 s{sHAVE}, v{vt}")
    if a.x1: A("s_mov_b64 exec, -1")
    A(f"s_mul_i32 s{sHAVE}, s{sHAVE}, {NS}\ns_cmp_ge_u32 s{sHAVE}, s{sNEED}\ns_cbranch_scc1 {go}")
    spin_tail(lp, a.gsleep)
    A(f"{go}:\ns_add_u32 s{sNEED}, s{sNEED}, {kS*NP}")

def credit(loff, vaddr, vval, n):
    A(f"v_mov_b32 v{vval}, {n}\nds_write_b32 v{vaddr}, v{vval} offset:{loff}")

def lds_flag(off, vtmp):
    A(f"v_mov_b32 v{vtmp}, 0\nds_write_b32 v{vtmp}, v{vT} offset:{off}")

def get_T():
    A("s_waitcnt lgkmcnt(0)")
    A(f"s_mul_i32 s{sT}, s{sT}, 0x9E3779B1\ns_add_u32 s{sT}, s{sT}, 0x7F4A7C15\ns_andn2_b32 s{sT}, s{sT}, 15\ns_or_b32 s{sT}, s{sT}, 8\ns_or_b32 s{sT}, s{sT}, s{sXCC}")
    A(f"v_mov_b32 v{vT}, s{sT}")

def make_selectors():
    t0, t1, t2, t3 = vA0, vA0 + 1, vA0 + 2, vA0 + 3
    A(f"v_bfe_u32 v{t0}, v{vL}, 2, 2")
    A(f"v_bfe_u32 v{t1}, v{vL}, 1, 1")
    A(f"v_cmp_eq_u32 vcc, 1, v{t1}")
    A(f"v_mov_b32 v{t2}, 0x0c0c0100\nv_mov_b32 v{t3}, 0x01000c0c")
    A(f"v_cndmask_b32 v{t2}, v{t2}, v{t3}, vcc")
    A(f"v_mov_b32 v{t1}, 0x0c0c0302\nv_mov_b32 v{t3}, 0x03020c0c")
    A(f"v_cndmask_b32 v{t3}, v{t1}, v{t3}, vcc")
    A(f"v_mov_b32 v{t1}, 0x0c0c0c0c")
    for t in range(4):
        A(f"v_cmp_eq_u32 vcc, {t}, v{t0}\ns_nop 1")
        A(f"v_cndmask_b32 v{vSEL+2*t}, v{t1}, v{t2}, vcc\nv_cndmask_b32 v{vSEL+2*t+1}, v{t1}, v{t3}, vcc")

def build_A(b, buf):
    src = vCO + b // 2
    for t in range(4):
        A(f"v_perm_b32 v{buf+t}, v{src}, v{src}, v{vSEL+2*t+(b&1)}")

def diag_gemv(nb, extra_after=0, win=None, hook=None):
    build_A(0, vA0)
    for b in range(nb):
        if b + 1 < nb:
            build_A(b + 1, vA1 if (b & 1) == 0 else vA0)
        else:
            A("s_nop 1")
        A(f"s_waitcnt vmcnt({min(nb-1-b, (win or nb)-1)+extra_after})")
        if hook: hook(b)
        buf = vA0 if (b & 1) == 0 else vA1
        c = "0" if b == 0 else f"v[{vACC}:{vACC+3}]"
        A(f"v_mfma_f32_16x16x32_bf16 v[{vACC}:{vACC+3}], v[{buf}:{buf+3}], v[{vD+4*b}:{vD+4*b+3}], {c}")

def combine(g):
    A("s_nop 7")
    A(f"v_add_f32_dpp v{g}, v{vACC+1}, v{vACC} row_ror:8 row_mask:0xf bank_mask:0xf")
    A(f"v_add_f32_dpp v{g+1}, v{vACC+3}, v{vACC+2} row_ror:8 row_mask:0xf bank_mask:0xf")
    A(f"v_mov_b32 v{g+2}, 0\nv_mov_b32 v{g+3}, 0")
    A("s_nop 1")
    A(f"v_permlane16_swap_b32 v{g}, v{g+2}\nv_permlane16_swap_b32 v{g+1}, v{g+3}")
    A("s_nop 1")
    for k in range(4):
        A(f"v_perm_b32 v{g+k}, v{g+k}, v{vT}, s{sSEL+k}")

def poll(g, voff, soff, sleep=0, depth=None, gap=None, on_timeout=None, lfl=None, after_first=None):
    if a.nopoll >= 1: return
    depth = depth or a.pdepth
    gap = a.pgap if gap is None else gap
    lp = A.label("Lp"); dn = A.label("Lpd")
    sets = [g + 8 + 4 * k for k in range(depth)]
    def issue(r):
        A(f"buffer_load_dwordx4 v[{r}:{r+3}], v{voff}, s[{WS}:{WS+3}], s{soff} offen sc1{PN if lfl is None else lfl}")
    for k in range(depth - 1):
        issue(sets[k])
        if k == 0 and after_first: after_first()
        if gap: A(f"s_sleep {gap}")
    if on_timeout: A(f"s_mov_b32 s{sCNT}, 0")
    A(f"{lp}:")
    fins = []
    for k in range(depth):
        issue(sets[(k + depth - 1) % depth])
        r = sets[k]
        A(f"s_waitcnt vmcnt({depth-1})")
        A(f"v_perm_b32 v{g+4}, v{r+1}, v{r}, s{sSELA}\nv_perm_b32 v{g+5}, v{r+3}, v{r+2}, s{sSELB}")
        A(f"v_or_b32 v{g+4}, v{g+4}, v{g+5}\nv_xor_b32 v{g+4}, s{sT}, v{g+4}")
        A(f"v_cmp_lt_u32 vcc, 7, v{g+4}")
        fl = A.label("Lpf"); fins.append((fl, r))
        A(f"s_cmp_eq_u64 vcc, 0\ns_cbranch_scc1 {fl}")
    if on_timeout:
        A(f"s_add_u32 s{sCNT}, s{sCNT}, 1\ns_cmp_lg_u32 s{sCNT}, {a.nt}\ns_cbranch_scc1 {lp}_t")
        on_timeout()
        A(f"{lp}_t:")
    spin_tail(lp, 0)
    for i, (fl, r) in enumerate(fins):
        A(f"{fl}:")
        for k in range(4):
            A(f"v_mov_b32 v{g+k}, v{r+k}")
        if i < len(fins) - 1: A(f"s_branch {dn}")
    A(f"{dn}:")
    A("s_nop 1")

def lds_mode(vz, vr):
    A(f"v_mov_b32 v{vz}, 0\nds_read_b32 v{vr}, v{vz} offset:{L_MODE}")

def publish_gather(box, ldsdst, ldsflag, fscale, g=vD, h=None):
    combine(g)
    A(f"v_and_b32 v{g+8}, 7, v{vL}\nv_lshrrev_b32 v{g+9}, 5, v{vL}\nv_lshl_add_u32 v{g+8}, v{g+8}, 1, v{g+9}\nv_lshlrev_b32 v{g+8}, 4, v{g+8}")
    A(f"s_mul_i32 s{sOFF}, s{sH}, 3072\ns_lshl_b32 s{sTMP}, s{sC}, 10\ns_add_u32 s{sOFF}, s{sOFF}, s{sTMP}\ns_add_u32 s{sOFF}, s{sOFF}, {box}")
    A(f"s_lshl_b32 s{sTMP3}, s{sJ}, 8\ns_add_u32 s{sTMP3}, s{sTMP3}, s{sOFF}")
    def store(fl):
        A("s_mov_b32 exec_lo, 0xff\ns_mov_b32 exec_hi, 0xff")
        A(f"buffer_store_dwordx4 v[{g}:{g+3}], v{g+8}, s[{WS}:{WS+3}], s{sTMP3} offen{fl}")
        A("s_mov_b64 exec, -1")
    if fscale:
        l1 = A.label("Ls"); l2 = A.label("Ls")
        A(f"s_cmp_lg_u32 s{sMODE}, 0\ns_cbranch_scc1 {l1}")
        store("")
        A(f"s_branch {l2}\n{l1}:")
        store(" sc1")
        A(f"{l2}:")
    else:
        store("")
    stamp(3)
    A(f"v_and_b32 v{g+10}, 3, v{vL}\nv_lshrrev_b32 v{g+11}, 2, v{vL}\nv_lshlrev_b32 v{g+12}, 4, v{g+11}\nv_lshl_add_u32 v{g+12}, v{g+10}, 8, v{g+12}")
    if fscale:
        lds_wait(L_FFLAG, [0], 1, g + 16)
        A(f"v_lshlrev_b32 v{g+13}, 2, v{g+10}\nds_read_b32 v{g+13}, v{g+13} offset:{L_FF}")
    h = h or g + 20
    def opf(): A(f"s_lshl_b32 s{sTMP}, s{sC}, 2\nv_mov_b32 v{g+14}, s{sTMP}\nds_write_b32 v{g+14}, v{vT} offset:{L_VT+4}")
    poll(h, g + 12, sOFF, on_timeout=None if fscale else (lambda: store(" sc1")), after_first=opf if fscale and a.rank else None)
    stamp(4)
    if fscale:
        A("s_waitcnt lgkmcnt(0)")
        for k in range(4):
            A(f"v_mul_f32 v{h+k}, v{h+k}, v{g+13}")
    else:
        if a.nopoll: A(f"v_mov_b32 v{h+4}, 0")
        A(f"v_cmp_ne_u32 vcc, 0, v{h+4}\ns_cmp_lg_u64 vcc, 0\ns_cselect_b32 s{sMODE}, 1, 0\nv_mov_b32 v{g+13}, s{sMODE}\nv_mov_b32 v{g+14}, 0")
        l1 = A.label("Ls")
        A(f"s_cbranch_scc0 {l1}")
        store(" sc1")
        A(f"{l1}:")
    for k in range(4):
        A(f"v_add_f32_dpp v{h+4+k}, v{h+k}, v{h+k} quad_perm:[1,0,3,2] row_mask:0xf bank_mask:0xf")
    for k in range(4):
        A(f"v_add_f32_dpp v{h+k}, v{h+4+k}, v{h+4+k} quad_perm:[2,3,0,1] row_mask:0xf bank_mask:0xf")
    A(f"v_cvt_pk_bf16_f32 v{h+4}, v{h}, v{h+1}\nv_cvt_pk_bf16_f32 v{h+5}, v{h+2}, v{h+3}")
    A(f"s_lshl_b32 s{sTMP}, s{sC}, 7\nv_lshlrev_b32 v{g+11}, 3, v{g+11}\nv_add_u32 v{g+11}, s{sTMP}, v{g+11}")
    A(f"s_lshl_b32 s{sTMP}, s{sC}, 2\nv_mov_b32 v{g+10}, s{sTMP}")
    A("s_mov_b32 exec_lo, 0x11111111\ns_mov_b32 exec_hi, 0x11111111")
    A(f"ds_write_b64 v{g+11}, v[{h+4}:{h+5}] offset:{ldsdst}")
    if not fscale:
        A(f"ds_write_b32 v{g+14}, v{g+13} offset:{L_MODE}")
    A(f"ds_write_b32 v{g+10}, v{vT} offset:{ldsflag}")
    A("s_mov_b64 exec, -1")

def coef_addr(vdst, per):
    A(f"v_lshrrev_b32 v{vdst}, 4, v{vL}\nv_and_b32 v{vA0}, 1, v{vL}\nv_lshl_add_u32 v{vdst}, v{vdst}, 1, v{vA0}\nv_mul_u32_u24 v{vdst}, {per}, v{vdst}")

def data_voff(rowstep):
    A(f"v_lshrrev_b32 v{vOFF}, 3, v{vL}\nv_mul_u32_u24 v{vOFF}, {rowstep}, v{vOFF}\nv_and_b32 v{vA0}, 7, v{vL}\nv_lshl_add_u32 v{vOFF}, v{vA0}, 4, v{vOFF}")

def srd(d, lo, n):
    A.srd(d, lo, n)

A("s_cmp_ge_u32 s2, 256\ns_cbranch_scc1 L_done")
stamp(0)
if a.stamps:
    for k in range(2, 18):
        A(f"s_mov_b32 s{sST+k}, 0")
if a.dly:
    dl = a.dly
    if dl[0] == "w":
        dl = dl[1:]; A("s_and_b32 s3, s2, 7")
    else:
        A("s_getreg_b32 s3, hwreg(HW_REG_XCC_ID, 0, 3)")
    dl = [int(x) for x in dl.split(",")]
    lo = sum(v << (8 * i) for i, v in enumerate(dl[:4])); hi = sum(v << (8 * i) for i, v in enumerate(dl[4:]))
    A(f"s_mov_b32 s4, {lo}\ns_mov_b32 s5, {hi}\ns_lshl_b32 s3, s3, 3\ns_lshr_b64 s[4:5], s[4:5], s3\ns_and_b32 s4, s4, 0xff")
    A("L_dl:\ns_sub_u32 s4, s4, 1\ns_cbranch_scc1 L_nd\ns_sleep 2\ns_branch L_dl\nL_nd:")
A(f"s_load_dwordx2 s[{sWSP}:{sWSP+1}], s[0:1], 96")
if a.xmap == 1:
    A(f"s_and_b32 s{sJ}, s2, 3\ns_lshr_b32 s{sH}, s2, 2")
elif a.xmap == 2:
    A(f"s_lshr_b32 s{sH}, s2, 3\ns_and_b32 s{sJ}, s{sH}, 3\ns_cmp_eq_u32 s{sJ}, 3\ns_cselect_b32 s3, 1, 0\ns_add_u32 s3, s3, s2\ns_and_b32 s3, s3, 7\ns_lshr_b32 s{sH}, s{sH}, 2\ns_lshl_b32 s3, s3, 3\ns_add_u32 s{sH}, s{sH}, s3")
else:
    A(f"s_add_u32 s3, s2, {a.rot}\ns_and_b32 s3, s3, 7\ns_lshr_b32 s{sH}, s2, 3\ns_and_b32 s{sJ}, s{sH}, 3\ns_lshr_b32 s{sH}, s{sH}, 2\ns_lshl_b32 s3, s3, 3\ns_add_u32 s{sH}, s{sH}, s3")
A(f"s_lshr_b32 s{sP}, s{sH}, 5\ns_and_b32 s{sHH}, s{sH}, 31")
A(f"s_lshl_b32 s9, s{sP}, 7")
A(f"s_mul_i32 s8, s{sP}, 40\ns_add_u32 s10, s0, s8\ns_addc_u32 s11, s1, 0")
A(f"s_load_dwordx8 s[{sX}:{sX+7}], s[10:11], 0")
A(f"s_load_dwordx2 s[{sWO}:{sWO+1}], s[10:11], 32")
A(f"v_lshrrev_b32 v1, 6, v0\nv_and_b32 v0, 63, v0\nv_readfirstlane_b32 s{sWAVE}, v1")
A(f"s_mov_b32 s{sSPIN}, 200000\ns_getreg_b32 s{sXCC}, hwreg(HW_REG_XCC_ID, 0, 3)")
if THX: A(f"s_lshr_b32 s{sTH}, {THX[0]}, s{sXCC}\ns_and_b32 s{sTH}, s{sTH}, 1")
for k in range(4):
    A(f"s_mov_b32 s{sSEL+k}, {0x07060500 + k:#x}")
A(f"s_mov_b32 s{sSELA}, 0x0c0c0400\ns_mov_b32 s{sSELB}, 0x04000c0c")
if a.pads:
    A(f"s_cmp_lt_u32 s{sWAVE}, 3\ns_cbranch_scc1 L_w")
    A(f"v_lshlrev_b32 v8, 2, v{vL}\nv_mov_b32 v9, 0\ns_cmp_lg_u32 s{sWAVE}, 3\ns_cbranch_scc1 L_nz\nds_write_b32 v8, v9\nL_nz:")
    A(f"s_waitcnt lgkmcnt(0)\ns_load_dword s{sT}, s[{sWSP}:{sWSP+1}], s9\ns_barrier")
    if a.pads == 1:
        for w in range(7): A(f"s_cmp_eq_u32 s{sWAVE}, {3+w}\ns_cbranch_scc1 @PAD{w}@")
        A("s_branch @PAD7@")
    A("L_pdone:")
    A(f"""s_cmp_eq_u32 s{sWAVE}, 3
s_cbranch_scc1 L_aux
s_cmp_lt_u32 s{sWAVE}, 8
s_cbranch_scc1 L_k
s_branch L_v""")
else:
    A(f"""s_cmp_lt_u32 s{sWAVE}, 3
s_cbranch_scc1 L_w
s_cmp_eq_u32 s{sWAVE}, 3
s_cbranch_scc1 L_aux
s_cmp_lt_u32 s{sWAVE}, 8
s_cbranch_scc1 L_k
s_cmp_lt_u32 s{sWAVE}, 11
s_cbranch_scc1 L_v
s_branch L_aux""")

A("L_w:")
prio(3)
A(f"s_mov_b32 s{sC}, s{sWAVE}")
A(f"s_mul_i32 s{sOFF}, s{sJ}, {160*12288}\ns_mul_i32 s{sTMP3}, s{sHH}, 384\ns_add_u32 s{sOFF}, s{sOFF}, s{sTMP3}\ns_lshl_b32 s{sTMP3}, s{sC}, 7\ns_add_u32 s{sOFF}, s{sOFF}, s{sTMP3}")
A(f"s_mul_i32 s{sTMP2}, s{sJ}, 320")
for nb in (20,):
    data_voff(nb * 12288)
    if "q" in a.contig:
        A(f"v_lshlrev_b32 v{vOFF}, 4, v{vL}\ns_lshl_b32 s{sOFF}, s{sHH}, 2\ns_add_u32 s{sOFF}, s{sOFF}, s{sJ}\ns_mul_i32 s{sOFF}, s{sOFF}, 3\ns_add_u32 s{sOFF}, s{sOFF}, s{sC}\ns_mul_i32 s{sOFF}, s{sOFF}, 20480")
    coef_addr(vAD, 2 * nb)
    if a.nf == 10:
        A(f"s_lshr_b32 s{sRB}, s2, 4\ns_lshl_b32 s{sRB}, s{sRB}, 14\ns_and_b32 s{sRI}, s2, 15\ns_lshl_b32 s{sRI}, s{sRI}, 9\ns_add_u32 s{sRB}, s{sRB}, s{sRI}\ns_add_u32 s{sRB}, s{sRB}, {FBOX + 20*16384}")
        A(f"s_and_b32 s{sRI}, s{sJ}, 1\ns_lshl_b32 s{sRI}, s{sRI}, 13\ns_add_u32 s{sRB}, s{sRB}, s{sRI}\ns_xor_b32 s{sRI}, s{sRB}, 8192\nv_mov_b32 v165, 0\ns_mov_b32 s{WS+2}, 0x10000000\ns_mov_b32 s{WS+3}, 0x00020000\ns_cmp_lg_u32 s{sC}, 0")
    A("s_waitcnt lgkmcnt(0)")
    if a.nf == 10:
        A(f"s_mov_b32 s{WS}, s{sWSP}\ns_cbranch_scc1 L_wnp\ns_and_b32 s{WS+1}, s{sWSP+1}, 0xffff\ns_mov_b64 exec, 1")
        A(f"buffer_load_dword v166, v165, s[{WS}:{WS+3}], s{sRB} offen {a.nfp}\nbuffer_load_dword v167, v165, s[{WS}:{WS+3}], s{sRI} offen {a.nfp}\ns_mov_b64 exec, -1\nL_wnp:")
    if a.pro: stamp(5)
    A(f"s_load_dword s{sT}, s[{sWSP}:{sWSP+1}], s9")
    srd(SR, sWQ, 640 * 12288)
    srd(SR2, sX, 1280)
    for k in range(nb // 8):
        A(f"buffer_load_dwordx4 v[{vCO+4*k}:{vCO+4*k+3}], v{vAD}, s[{SR2}:{SR2+3}], s{sTMP2} offen offset:{16*k}{XN}")
    A(f"buffer_load_dwordx2 v[{vCO+8}:{vCO+9}], v{vAD}, s[{SR2}:{SR2+3}], s{sTMP2} offen offset:32{XN}")
    nw = WIN[0] if WIN else nb
    def wq_load(b):
        A(f"buffer_load_dwordx4 v[{vD+4*b}:{vD+4*b+3}], v{vOFF}, s[{SR}:{SR+3}], s{sOFF} offen nt")
        if b < nb - 1: A(f"s_add_u32 s{sOFF}, s{sOFF}, {1024 if 'q' in a.contig else 12288}")
    for b in range(nw):
        thr(b)
        wq_load(b)
    stamp(1)
    A("s_barrier")
    srd(WS, sWSP, 0x10000000)
    make_selectors()
    if a.nf == 10:
        A(f"s_cmp_lg_u32 s{sC}, 0\ns_cbranch_scc1 L_wnq\ns_waitcnt vmcnt({nw+4})")
        A(f"s_sleep {a.nfs}" if a.nfs > 0 else f"s_nop {-a.nfs}")
        A(f"s_getreg_b32 s{sRI}, hwreg(HW_REG_IB_STS, 0, 4)\ns_bitcmp1_b32 s{sJ}, 0\ns_cselect_b32 s{sRB}, 0, 16\ns_cmp_eq_u32 s{sRI}, {nw+4}\ns_cselect_b32 s{sRB}, s{sRB}, 32\nL_wnq:")
    get_T()
    A(f"s_waitcnt vmcnt({nw})")
    if a.pro:
        A(f"s_waitcnt vmcnt({nw-1})")
        stamp(6)
    if WIN:
        A(f"s_lshl_b32 s{sTMP}, s{sC}, 2\nv_mov_b32 v{vAD}, s{sTMP}")
        def hook(b):
            if b + nw < nb: wq_load(b + nw)
            else: credit(L_PW, vAD, vCO - 1 - 0 if False else 164, b + nw - nb + 1)
        diag_gemv(nb, win=nw, hook=hook)
    else:
        diag_gemv(nb)
stamp(2)
publish_gather(QBOX, L_Q, L_QF, False, g=vD, h=136)
if not a.pro: stamp(5)
if a.nf == 10:
    A(f"s_cmp_lg_u32 s{sC}, 0\ns_cbranch_scc1 L_wnv\ns_xor_b32 s{sRB}, s{sRB}, s{sT}\nv_mov_b32 v166, s{sRB}\ns_lshl_b32 s{sRI}, s{sXCC}, 10\ns_add_u32 s{sRI}, s{sRI}, {VBOX}\ns_lshl_b32 s{sTMP}, s2, 2\nv_mov_b32 v165, s{sTMP}")
    A(f"s_mov_b64 exec, 1\nbuffer_store_dword v166, v165, s[{WS}:{WS+3}], s{sRI} offen\ns_mov_b64 exec, -1\nL_wnv:")
vF = 160
A(f"s_lshl_b32 s{sTMP}, s{sC}, 2\nv_mov_b32 v{vF+1}, s{sTMP}")
A(f"{'s_lshr_b32' if a.lmap else 's_and_b32'} s{sTMP}, s{sJ}, 1\ns_add_u32 s{sTMP}, s{sTMP}, s{sC}\ns_cmp_eq_u32 s{sTMP}, 3\ns_cbranch_scc1 L_w_fin")
prio(0)
if a.dry & 1: A(f"s_mov_b32 s{sDRY}, 1\ns_branch L_fc\nL_fcb:\ns_mov_b32 s{sDRY}, 0")
srd(SR, sWO, 6144 * 1280)
data_voff(8 * 1280 if a.slab else 24 * 1280)
if a.lmap: A(f"s_mul_i32 s{sTMP}, s{sJ}, 3\ns_add_u32 s{sM}, s{sJ}, 1\ns_lshr_b32 s{sM}, s{sM}, 2\ns_sub_u32 s{sTMP}, s{sTMP}, s{sM}\ns_add_u32 s{sM}, s{sTMP}, s{sC}")
else: A(f"s_mul_i32 s{sTMP}, s{sJ}, 5\ns_add_u32 s{sTMP}, s{sTMP}, 1\ns_lshr_b32 s{sTMP}, s{sTMP}, 1\ns_add_u32 s{sM}, s{sTMP}, s{sC}")
A(f"s_mul_i32 s{sOFF}, s{sHH}, {192*1280}\ns_lshl_b32 s{sTMP}, s{sM}, 7\ns_add_u32 s{sOFF}, s{sOFF}, s{sTMP}")
if "o" in a.contig:
    A(f"v_lshlrev_b32 v{vOFF}, 4, v{vL}\ns_mul_i32 s{sOFF}, s{sHH}, 10\ns_add_u32 s{sOFF}, s{sOFF}, s{sM}\ns_mul_i32 s{sOFF}, s{sOFF}, 24576")
if WIN: gate_init(sC, 3 * WIN[2], vCO)
def wo_issue(nO, kS):
    rest = [A.label("Lb") for b in range(24)]
    for b in range(24):
        thr(b)
        if WIN:
            if b < nO: gate(L_PV, kS, 3 * WIN[2], kS * nO, vCO, vCO + 4)
            else:
                if a.boost:
                    t = vCO + 4
                    if THX and THX[4] & 2:
                        lnb = A.label("Lnb"); A(f"s_cmp_lg_u32 s{sTH}, 0\ns_cbranch_scc1 {lnb}")
                    A(f"ds_read_b128 v[{t}:{t+3}], v{vCO} offset:{L_OF}\ns_waitcnt lgkmcnt(0)")
                    op = "v_or3_b32" if a.boost == 2 else None
                    if a.boost == 1:
                        A(f"v_and_b32 v{t}, v{t}, v{t+1}\nv_and_or_b32 v{t}, v{t}, v{t+2}, v{t+3}")
                    else:
                        A(f"v_or3_b32 v{t}, v{t}, v{t+1}, v{t+2}")
                    A(f"v_cmp_ne_u32 vcc, 0, v{t}\ns_cbranch_vccnz {rest[b]}")
                    if THX and THX[4] & 2: A(f"{lnb}:")
                A(f"s_waitcnt vmcnt({nO-1})")
            if THX and b >= nO - THX[3]: thx(nO, THX[3])
        A(f"buffer_load_dwordx4 v[{vD+4*b}:{vD+4*b+3}], v{vOFF}, s[{SR}:{SR+3}], s{sOFF} offen nt")
        if b < 23: A(f"s_add_u32 s{sOFF}, s{sOFF}, {1024 if 'o' in a.contig else (57 * 1280 if a.slab and b % 8 == 7 else 1280)}")
    if a.boost and WIN:
        A("s_branch L_wo_j")
        for b in range(nO, 24):
            A(f"{rest[b]}:")
            A(f"buffer_load_dwordx4 v[{vD+4*b}:{vD+4*b+3}], v{vOFF}, s[{SR}:{SR+3}], s{sOFF} offen nt")
            if b < 23: A(f"s_add_u32 s{sOFF}, s{sOFF}, {1024 if 'o' in a.contig else (57 * 1280 if a.slab and b % 8 == 7 else 1280)}")
        A("s_branch L_wo_j")
    return
    for b in range(24):
        A(f"buffer_load_dwordx4 v[{vD+4*b}:{vD+4*b+3}], v{vOFF}, s[{SR}:{SR+3}], s{sOFF} offen nt")
        if b < 23: A(f"s_add_u32 s{sOFF}, s{sOFF}, {1024 if 'o' in a.contig else (57 * 1280 if a.slab and b % 8 == 7 else 1280)}")
if a.wj:
    assert a.boost
    wj = [int(x) for x in a.wj.split(",")]
    for jj in range(4):
        heavy = (jj < 2) if a.lmap else (jj % 2 == 0)
        if jj < 3: A(f"s_cmp_lg_u32 s{sJ}, {jj}\ns_cbranch_scc1 L_wj{jj}")
        wo_issue(wj[jj], 3 if heavy else 2)
        A(f"L_wj{jj}:")
elif a.no2:
    A(f"s_bitcmp1_b32 s{sJ}, {1 if a.lmap else 0}\ns_cbranch_scc0 L_wo_e")
    wo_issue(a.no2, a.ks2)
    A("s_branch L_wo_j\nL_wo_e:")
if not a.wj: wo_issue(WIN[3] if WIN else 24, 3)
A("L_wo_j:")
prio(3)
if not a.pro: stamp(6)
coef_addr(vAD, 16 if a.slab else 48)
if a.fp:
    gp = a.fp // 16; lg = gp.bit_length() - 1
    A(f"v_and_b32 v{vF}, 7, v{vL}\nv_lshrrev_b32 v{vF+2}, 5, v{vL}\nv_lshl_add_u32 v{vF}, v{vF}, 1, v{vF+2}")
    A(f"v_and_b32 v{vF+2}, {gp-1}, v{vF}\nv_lshrrev_b32 v{vF}, {lg}, v{vF}\nv_mul_u32_u24 v{vF}, {32*a.fp}, v{vF}\nv_lshl_add_u32 v{vF}, v{vF+2}, 4, v{vF}")
    A(f"s_mul_i32 s{sOFF}, s{sP}, 10\ns_add_u32 s{sOFF}, s{sOFF}, s{sM}\ns_lshl_b32 s{sOFF}, s{sOFF}, {14 if a.nf else 13}\ns_mul_i32 s{sTMP}, s{sHH}, {a.fp}\ns_add_u32 s{sOFF}, s{sOFF}, s{sTMP}\ns_add_u32 s{sOFF}, s{sOFF}, {FBOX}")
else:
    A(f"v_and_b32 v{vF}, 7, v{vL}\nv_lshrrev_b32 v{vF+2}, 5, v{vL}\nv_lshlrev_b32 v{vF}, 10, v{vF}\nv_lshl_add_u32 v{vF}, v{vF+2}, 9, v{vF}")
    A(f"s_lshl_b32 s{sTMP}, s{sP}, 2\ns_add_u32 s{sTMP}, s{sTMP}, s{sJ}\ns_mul_i32 s{sOFF}, s{sTMP}, 24576\ns_lshl_b32 s{sTMP}, s{sHH}, 4\ns_add_u32 s{sOFF}, s{sOFF}, s{sTMP}\ns_lshl_b32 s{sTMP}, s{sC}, 13\ns_add_u32 s{sOFF}, s{sOFF}, s{sTMP}\ns_add_u32 s{sOFF}, s{sOFF}, {FBOX}")
if a.slab:
    vfl = vCO + 12
    A(f"v_mov_b32 v{vF+2}, 0\ns_mov_b32 s{sM}, 7")
    for k in range(4): A(f"v_mov_b32 v{vACC+k}, 0")
    A("L_kl:")
    A(f"ds_read_b128 v[{vfl}:{vfl+3}], v{vF+2} offset:{L_OF}")
    for c in range(3): A(f"ds_read_b128 v[{vCO+4*c}:{vCO+4*c+3}], v{vAD} offset:{L_O+128*c}")
    A("s_waitcnt lgkmcnt(0)")
    for c in range(3): A(f"v_readfirstlane_b32 s{sTMP+c}, v{vfl+c}")
    for c in range(3):
        A(f"s_bitcmp0_b32 s{sM}, {c}\ns_cbranch_scc1 L_kn{c}")
        if a.nopoll < 2: A(f"s_cmp_lg_u32 s{sTMP+c}, s{sT}\ns_cbranch_scc1 L_kn{c}")
        A(f"s_bitset0_b32 s{sM}, {c}")
        def bA(b, buf):
            for t in range(4): A(f"v_perm_b32 v{buf+t}, v{vCO+4*c+b//2}, v{vCO+4*c+b//2}, v{vSEL+2*t+(b&1)}")
        bA(0, vA0)
        for b in range(8):
            if b < 7: bA(b + 1, vA1 if (b & 1) == 0 else vA0)
            else: A("s_nop 1")
            buf = vA0 if (b & 1) == 0 else vA1
            n = 8 * c + b
            A(f"s_waitcnt vmcnt({23-n})")
            A(f"v_mfma_f32_16x16x32_bf16 v[{vACC}:{vACC+3}], v[{buf}:{buf+3}], v[{vD+4*n}:{vD+4*n+3}], v[{vACC}:{vACC+3}]")
        A(f"L_kn{c}:")
    A(f"s_cmp_eq_u32 s{sM}, 0\ns_cbranch_scc1 L_kd")
    spin_tail("L_kl", a.wsl)
    A("L_kd:")
else:
    lds_wait(L_OF, [0, 1, 2], 4, vCO)
    for k in range(3):
        A(f"ds_read_b128 v[{vCO+4*k}:{vCO+4*k+3}], v{vAD} offset:{L_O+16*k}")
    A("s_waitcnt lgkmcnt(0)")
    A("L_fc:")
    diag_gemv(24)
combine(vCO)
if a.dry & 1: A(f"s_cmp_lg_u32 s{sDRY}, 0\ns_cbranch_scc1 L_fcb")
A("s_mov_b32 exec_lo, 0xff\ns_mov_b32 exec_hi, 0xff")
if a.nofin != 1: A(f"buffer_store_dwordx4 v[{vCO}:{vCO+3}], v{vF}, s[{WS}:{WS+3}], s{sOFF} offen{'' if a.nofin == 3 else ' sc1'}")
if a.nf and a.nofin != 1: A(f"s_add_u32 s{sOFF}, s{sOFF}, 8192\nbuffer_store_dwordx4 v[{vCO}:{vCO+3}], v{vF}, s[{WS}:{WS+3}], s{sOFF} offen sc1")
A("s_mov_b64 exec, -1")
A("L_w_fin:")
A(f"ds_write_b32 v{vF+1}, v{vT} offset:{L_PF}")
stamp(7)
A("s_branch L_end")

A("L_k:")
prio(2)
A(f"s_sub_u32 s{sC}, s{sWAVE}, 4")
A(f"v_and_b32 v{vOFF}, 7, v{vL}\nv_mul_u32_u24 v{vOFF}, 384, v{vOFF}\nv_bfe_u32 v8, v{vL}, 3, 1\nv_lshl_add_u32 v{vOFF}, v8, 6, v{vOFF}\nv_lshrrev_b32 v8, 4, v{vL}\nv_lshl_add_u32 v{vOFF}, v8, 4, v{vOFF}")
A(f"v_and_b32 v{vAD}, 1, v{vL}\nv_lshlrev_b32 v{vAD}, 6, v{vAD}\nv_lshl_add_u32 v{vAD}, v8, 4, v{vAD}")
A(f"s_mul_i32 s{sOFF}, s{sHH}, 1572864\ns_mul_i32 s{sTMP}, s{sJ}, 98304\ns_add_u32 s{sOFF}, s{sOFF}, s{sTMP}\ns_mul_i32 s{sTMP}, s{sC}, 24576\ns_add_u32 s{sOFF}, s{sOFF}, s{sTMP}\ns_add_u32 s{sOFF}, s{sOFF}, {3072*384}")
if not a.pads:
    A("s_waitcnt lgkmcnt(0)")
    A(f"s_load_dword s{sT}, s[{sWSP}:{sWSP+1}], s9")
srd(SR, sK, 50331648)
srd(WS, sWSP, 0x10000000)
if not a.pads: A("s_barrier")
get_T()
if WIN: gate_init(sC, 3 * WIN[0], 24)
krest = [A.label("Lkb") for b in range(24)]
def k_load(t):
    A(f"buffer_load_dwordx4 v[{vD+4*t}:{vD+4*t+3}], v{vOFF}, s[{SR}:{SR+3}], s{sOFF} offen offset:{128*(t%3)} nt")
    if t % 3 == 2 and t < 23: A(f"s_add_u32 s{sOFF}, s{sOFF}, 3072")
for t in range(24):
    thr(t)
    if WIN:
        if t < WIN[1]: gate(L_PW, 4, 3 * WIN[0], 4 * WIN[1], 24, 28)
        else:
            if a.kboost:
                A(f"ds_read_b128 v[28:31], v24 offset:{L_QF}\ns_waitcnt lgkmcnt(0)\nv_and_b32 v28, v28, v29\nv_and_b32 v28, v28, v30\nv_cmp_ne_u32 vcc, 0, v28\ns_cbranch_vccnz {krest[t]}")
            A(f"s_waitcnt vmcnt({WIN[1]-1})")
        if THX and t >= WIN[1] - THX[1]: thx(WIN[1], THX[1])
    k_load(t)
if a.kboost:
    A("s_branch L_kb_j")
    for t in range(WIN[1], 24):
        if t >= a.kboost: A(f"s_waitcnt vmcnt({a.kboost-1})")
        A(f"{krest[t]}:")
        k_load(t)
    A("L_kb_j:")
if WIN:
    prio(3)
    A(f"s_lshl_b32 s{sTMP}, s{sC}, 2\nv_mov_b32 v8, s{sTMP}")
    for i in range(WIN[1]):
        A(f"s_waitcnt vmcnt({WIN[1]-1-i})")
        credit(L_PK, 8, 9, i + 1)
elif a.g2:
    A(f"s_lshl_b32 s{sTMP}, s{sC}, 2\nv_mov_b32 v8, s{sTMP}\nds_write_b32 v8, v{vT} offset:{L_KI}")
prio(3)
stamp(1)
vQ = 8
vS = 136
lds_wait(L_QF, [0, 1, 2], 4, 24)
stamp(2)
for u in range(3):
    A(f"ds_read_b128 v[{vQ+4*u}:{vQ+4*u+3}], v{vAD} offset:{L_Q+128*u}")
A("s_waitcnt lgkmcnt(0)")
s_ = 24
for t in range(24):
    G, u = divmod(t, 3)
    A(f"s_waitcnt vmcnt({23-t})")
    c = "0" if u == 0 else f"v[{vS+4*G}:{vS+4*G+3}]"
    A(f"v_mfma_f32_16x16x32_bf16 v[{vS+4*G}:{vS+4*G+3}], v[{vQ+4*u}:{vQ+4*u+3}], v[{vD+4*t}:{vD+4*t+3}], {c}")
stamp(3)
A("s_nop 7")
for G in range(8):
    d0, d1 = vS + 4 * G, vS + 4 * G + 1
    if G & 1:
        A(f"v_add_f32_dpp v{s_}, v{d0}, v{d1} row_ror:8 row_mask:{1 << (G >> 1):#x} bank_mask:0xc")
    else:
        A(f"v_add_f32_dpp v{s_}, v{d1}, v{d0} row_ror:8 row_mask:{1 << (G >> 1):#x} bank_mask:0x3")
A(f"v_cvt_pk_bf16_f32 v{s_}, v{s_}, v{s_}\nv_lshlrev_b32 v{s_}, 16, v{s_}")
A(f"v_mul_f32 v{s_}, 0x3d93cd3a, v{s_}")
A(f"v_cvt_pk_bf16_f32 v{s_}, v{s_}, v{s_}\nv_lshlrev_b32 v{s_}, 16, v{s_}")
def wave_reduce(op, v):
    for d in ["row_shr:1", "row_shr:2", "row_shr:4", "row_shr:8"]:
        A(f"s_nop 1\n{op}_dpp v{v}, v{v}, v{v} {d} row_mask:0xf bank_mask:0xf")
    A(f"s_nop 1\n{op}_dpp v{v}, v{v}, v{v} row_bcast:15 row_mask:0xa bank_mask:0xf")
    A(f"s_nop 1\n{op}_dpp v{v}, v{v}, v{v} row_bcast:31 row_mask:0xc bank_mask:0xf")
A(f"v_mov_b32 v{s_+1}, v{s_}")
wave_reduce("v_max_f32", s_ + 1)
A(f"s_nop 0\nv_readlane_b32 s{sTMP}, v{s_+1}, 63")
A(f"s_lshl_b32 s{sTMP2}, s{sC}, 3\nv_mov_b32 v{s_+4}, s{sTMP2}\nv_mov_b32 v{s_+2}, s{sTMP}\nv_mov_b32 v{s_+3}, s{sT}")
A(f"ds_write_b64 v{s_+4}, v[{s_+2}:{s_+3}] offset:{L_MX}")
lds_wait(L_MX, [1, 3, 5, 7], 8, s_ + 8)
A(f"v_max_f32 v{s_+8}, v{s_+8}, v{s_+10}\nv_max3_f32 v{s_+8}, v{s_+8}, v{s_+12}, v{s_+14}")
A(f"v_sub_f32 v{s_}, v{s_}, v{s_+8}\nv_mul_f32 v{s_}, 0x3fb8aa3b, v{s_}\nv_exp_f32 v{s_}, v{s_}\ns_nop 0")
A(f"v_cvt_pk_bf16_f32 v{s_+1}, v{s_}, v{s_}")
A(f"s_lshl_b32 s{sTMP}, s{sC}, 7\nv_lshlrev_b32 v{s_+5}, 1, v{vL}\nv_add_u32 v{s_+5}, s{sTMP}, v{s_+5}")
A(f"ds_write_b16 v{s_+5}, v{s_+1} offset:{L_P}")
wave_reduce("v_add_f32", s_)
A(f"s_nop 0\nv_readlane_b32 s{sTMP}, v{s_}, 63\ns_nop 1\nv_mov_b32 v{s_+2}, s{sTMP}")
A(f"ds_write_b64 v{s_+4}, v[{s_+2}:{s_+3}] offset:{L_LS}")
stamp(4)
A("s_branch L_end")

A("L_v:")
prio(1)
A(f"s_sub_u32 s{sC}, s{sWAVE}, 8")
data_voff(384 if a.near else 32 * 384)
A(f"s_mul_i32 s{sOFF}, s{sHH}, 1572864\ns_mul_i32 s{sTMP}, s{sJ}, 98304\ns_add_u32 s{sOFF}, s{sOFF}, s{sTMP}\ns_lshl_b32 s{sTMP}, s{sC}, 7\ns_add_u32 s{sOFF}, s{sOFF}, s{sTMP}\ns_add_u32 s{sOFF}, s{sOFF}, {3072*384}")
if "k" in a.contig:
    data_voff(384)
    A(f"s_mul_i32 s{sTMP}, s{sC}, {30720-128}\ns_add_u32 s{sOFF}, s{sOFF}, s{sTMP}")
if "v" in a.contig:
    A(f"v_lshlrev_b32 v{vOFF}, 4, v{vL}\ns_mul_i32 s{sTMP}, s{sC}, {32768-128}\ns_add_u32 s{sOFF}, s{sOFF}, s{sTMP}")
if not a.pads:
    A("s_waitcnt lgkmcnt(0)")
    A(f"s_load_dword s{sT}, s[{sWSP}:{sWSP+1}], s9")
srd(SR, sV, 50331648)
srd(WS, sWSP, 0x10000000)
if not a.pads: A("s_barrier")
get_T()
if WIN:
    gate_init(sC, 4 * WIN[1], vCO)
elif a.g2:
    lds_wait(L_KI, [0, 1, 2, 3], 4, vCO)
if WIN:
    make_selectors()
    coef_addr(vAD, 64)
vrest = [A.label("Lvb") for b in range(32)]
def v_load(b):
    A(f"buffer_load_dwordx4 v[{vD+4*b}:{vD+4*b+3}], v{vOFF}, s[{SR}:{SR+3}], s{sOFF} offen offset:{384*(b%8)} nt")
    if b % 8 == 7 and b < 31: A(f"s_add_u32 s{sOFF}, s{sOFF}, 3072")
    if a.rank and b == a.vr: A(f"ds_write_b32 v{vCO}, v{vT} offset:{L_VT}")
for b in range(32):
    thr(b)
    if WIN:
        if b < WIN[2]: gate(L_PK, 3, 4 * WIN[1], 3 * WIN[2], vCO, vCO + 4)
        else:
            if a.vboost:
                t = vCO + 4
                if a.vtrig == 0:
                    if THX and THX[4] & 1:
                        lnb = A.label("Lnb"); A(f"s_cmp_lg_u32 s{sTH}, 0\ns_cbranch_scc1 {lnb}")
                    A(f"ds_read_b32 v{t}, v{vCO} offset:{L_FFLAG}\ns_waitcnt lgkmcnt(0)\nv_cmp_ne_u32 vcc, 0, v{t}\ns_cbranch_vccnz {vrest[b]}")
                    if THX and THX[4] & 1: A(f"{lnb}:")
                elif a.vtrig == 1:
                    A(f"ds_read_b32 v{t}, v{vCO} offset:{L_LS+4}\ns_waitcnt lgkmcnt(0)\nv_cmp_ne_u32 vcc, 0, v{t}\ns_cbranch_vccnz {vrest[b]}")
                elif b == a.vtrig:
                    A(f"s_branch {vrest[b]}")
            A(f"s_waitcnt vmcnt({WIN[2]-1})")
        if THX and b >= WIN[2] - THX[2]: thx(WIN[2], THX[2])
    if "k" in a.contig:
        A(f"buffer_load_dwordx4 v[{vD+4*b}:{vD+4*b+3}], v{vOFF}, s[{SR}:{SR+3}], s{sOFF} offen offset:{128*(b%3)} nt")
        if b % 3 == 2: A(f"s_add_u32 s{sOFF}, s{sOFF}, 3072")
        continue
    if a.near or "v" in a.contig:
        A(f"buffer_load_dwordx4 v[{vD+4*b}:{vD+4*b+3}], v{vOFF}, s[{SR}:{SR+3}], s{sOFF} offen nt\ns_add_u32 s{sOFF}, s{sOFF}, {3072 if a.near else 1024}")
        continue
    v_load(b)
if a.vboost:
    A("s_branch L_vb_j")
    for b in range(WIN[2], 32):
        if b >= a.vboost: A(f"s_waitcnt vmcnt({a.vboost-1})")
        A(f"{vrest[b]}:")
        v_load(b)
    A("L_vb_j:")
prio(3)
stamp(1)
if WIN:
    nv = WIN[2]
    A(f"s_lshl_b32 s{sTMP}, s{sC}, 2\nv_mov_b32 v{vOFF}, s{sTMP}")
    A(f"v_mov_b32 v{vCO+9}, 0\nds_read_b128 v[{vCO}:{vCO+3}], v{vCO+9} offset:{L_LS}\nds_read_b128 v[{vCO+4}:{vCO+7}], v{vCO+9} offset:{L_LS+16}\ns_waitcnt lgkmcnt(0)")
    A(f"v_xor_b32 v{vCO+1}, s{sFL}, v{vCO+1}\nv_xor_b32 v{vCO+3}, s{sFL}, v{vCO+3}\nv_xor_b32 v{vCO+5}, s{sFL}, v{vCO+5}\nv_xor_b32 v{vCO+7}, s{sFL}, v{vCO+7}")
    A(f"v_or3_b32 v{vCO+1}, v{vCO+1}, v{vCO+3}, v{vCO+5}\nv_or_b32 v{vCO+1}, v{vCO+1}, v{vCO+7}\nv_cmp_ne_u32 vcc, 0, v{vCO+1}\ns_cmp_eq_u64 vcc, 0\ns_cbranch_scc1 L_v_fast")
    for i in range(nv):
        A(f"s_waitcnt vmcnt({nv-1-i})")
        credit(L_PV, vOFF, vCO, i + 1)
    lds_wait(L_LS, [1, 3, 5, 7], 8, vCO)
    A(f"s_mov_b32 s{sNEED}, 1\ns_branch L_v_go\nL_v_fast:\ns_mov_b32 s{sNEED}, 0\nL_v_go:")
else:
    make_selectors()
    coef_addr(vAD, 64)
    lds_wait(L_LS, [1, 3, 5, 7], 8, vCO)
for k in range(4):
    A(f"ds_read_b128 v[{vCO+4*k}:{vCO+4*k+3}], v{vAD} offset:{L_P+16*k}")
lds_mode(vA0, vA0 + 1)
A(f"s_waitcnt lgkmcnt(0)\nv_readfirstlane_b32 s{sMODE}, v{vA0+1}")
stamp(2)
if WIN:
    def vhook(b):
        if b >= 32 - nv: credit(L_PV, vOFF, vAD, b - (32 - nv) + 1)
    diag_gemv(32, hook=vhook)
else:
    diag_gemv(32)
publish_gather(OBOX, L_O, L_OF, True)
stamp(5)
A("s_branch L_end")

A("L_aux:")
prio(3)
if a.dbg: A("s_memtime s[84:85]")
if not a.pads: A(f"v_lshlrev_b32 v8, 2, v{vL}\nv_mov_b32 v9, 0\nds_write_b32 v8, v9")
A(f"s_load_dwordx4 s[{sM}:{sM+3}], s[0:1], 80")
if a.nf:
    assert a.fp == 128
    A(f"s_and_b32 s{sTMP}, s{sHH}, 7\ns_lshl_b32 s{sTMP}, s{sTMP}, 2\ns_lshr_b32 s{sTMP2}, s{sHH}, 3\ns_add_u32 s{sTMP}, s{sTMP}, s{sTMP2}\ns_lshl_b32 s{sTMP}, s{sTMP}, 1\n{'s_and_b32' if a.lmap else 's_lshr_b32'} s{sTMP2}, s{sJ}, 1\ns_add_u32 s{sTMP}, s{sTMP}, s{sTMP2}")
    A(f"{'s_lshr_b32' if a.lmap else 's_and_b32'} s{sTMP2}, s{sJ}, 1\ns_xor_b32 s{sTMP2}, s{sTMP2}, 1\ns_lshl_b32 s{sTMP2}, s{sTMP2}, 6\ns_add_u32 s{sRI}, s{sTMP}, s{sTMP2}")
    A(f"s_mul_i32 s{sRB}, s{sP}, 20\ns_add_u32 s{sRB}, s{sRB}, s{sRI}\ns_and_b32 s{sTMP}, s{sRB}, 1\ns_lshr_b32 s{sRB}, s{sRB}, 1\ns_lshl_b32 s{sRB}, s{sRB}, 14\ns_lshl_b32 s{sTMP}, s{sTMP}, 12\ns_add_u32 s{sRB}, s{sRB}, s{sTMP}\ns_add_u32 s{sRB}, s{sRB}, {FBOX}\ns_add_u32 s{sTMP3}, s{sRB}, 8192\nv_mov_b32 v30, 0")
if a.nf == 8:
    A(f"s_mul_i32 s{sTMP}, s{sP}, 20\ns_add_u32 s{sTMP}, s{sTMP}, s{sRI}\ns_lshl_b32 s{sTMP}, s{sTMP}, 14\ns_add_u32 s{sTMP}, s{sTMP}, {FBOX + 20*16384}\ns_add_u32 s{sTMP2}, s{sTMP}, 8192")
if a.nf == 9:
    A(f"s_lshr_b32 s{sTMP}, s2, 4\ns_lshl_b32 s{sTMP}, s{sTMP}, 14\ns_and_b32 s{sTMP2}, s2, 15\ns_lshl_b32 s{sTMP2}, s{sTMP2}, 9\ns_add_u32 s{sTMP}, s{sTMP}, s{sTMP2}\ns_add_u32 s{sTMP}, s{sTMP}, {FBOX + 20*16384}\ns_add_u32 s{sTMP2}, s{sTMP}, 8192")
A("s_waitcnt lgkmcnt(0)")
if a.nf not in (8, 9): srd(WS, sWSP, 0x10000000)
if a.nf == 9:
    sPA, sPB = sM + 4, sM + 5
    if a.nfr:
        A(f"s_load_dword s{sT}, s[{sWSP}:{sWSP+1}], s9")
    elif a.nfo:
        A(f"s_load_dword s{sT}, s[{sWSP}:{sWSP+1}], s9")
        A("s_barrier")
        A(f"s_load_dword s{sPA}, s[{sWSP}:{sWSP+1}], s{sTMP}\ns_load_dword s{sPB}, s[{sWSP}:{sWSP+1}], s{sTMP2}")
    else:
        A(f"s_load_dword s{sPA}, s[{sWSP}:{sWSP+1}], s{sTMP}\ns_load_dword s{sPB}, s[{sWSP}:{sWSP+1}], s{sTMP2}")
        A(f"s_load_dword s{sT}, s[{sWSP}:{sWSP+1}], s9")
        A("s_barrier")
    srd(WS, sWSP, 0x10000000)
    srd(SR2, sM, 2560)
    A(f"s_lshl_b32 s{SR}, s{sXCC}, 10\ns_add_u32 s{SR}, s{SR}, {VBOX}\ns_lshl_b32 s{sTMP2}, s2, 2\nv_mov_b32 v60, s{sTMP2}")
    if a.nfr:
        A(f"s_mov_b32 s{SR+2}, s{sTMP}\ns_add_u32 s{SR+3}, s{sTMP}, 8192")
        A("s_waitcnt lgkmcnt(0)\ns_barrier")
        d = a.nfdl
        while d > 0:
            A(f"s_sleep {min(d, 127)}"); d -= 127
        A(f"s_mov_b32 s{SR+1}, 0")
        if a.nfx: A(f"s_mov_b32 s{SR}, {VBOX}\ns_bitcmp1_b32 s{sXCC}, 0\ns_cbranch_scc0 L_npr")
        if a.nfj >= 0: A(f"s_cmp_lg_u32 s{sJ}, {a.nfj}\ns_cbranch_scc1 L_npr")
        for r in range(a.nfr):
            f1, f2 = (SR + 2, SR + 3) if r % 2 == 0 else (SR + 3, SR + 2)
            A(f"s_load_dword s{sPA}, s[{sWSP}:{sWSP+1}], s{f1}\ns_load_dword s{sPB}, s[{sWSP}:{sWSP+1}], s{f2}")
            if r + 1 < a.nfr: A(f"s_add_u32 s{SR+2}, s{SR+2}, 128\ns_add_u32 s{SR+3}, s{SR+3}, 128")
            A("s_waitcnt lgkmcnt(1)")
            A(f"s_sleep {a.nfs}" if a.nfs > 0 else f"s_nop {-a.nfs}")
            A(f"s_getreg_b32 s{sTMP}, hwreg(HW_REG_IB_STS, 8, 4)\n{'s_add_u32' if r % 2 == 0 else 's_sub_u32'} s{SR+1}, s{SR+1}, s{sTMP}\ns_waitcnt lgkmcnt(0)")
        A("L_npr:")
        A(f"s_cmp_gt_i32 s{SR+1}, 0\ns_cselect_b32 s{sTMP}, 16, 32\ns_cmp_lt_i32 s{SR+1}, 0\ns_cselect_b32 s{SR+1}, 0, s{sTMP}")
    else:
        A(f"s_waitcnt lgkmcnt({2 - a.nfo})")
        A(f"s_sleep {a.nfs}" if a.nfs > 0 else f"s_nop {-a.nfs}")
        A(f"s_getreg_b32 s{sTMP}, hwreg(HW_REG_IB_STS, 8, 4)\ns_cmp_eq_u32 s{sTMP}, {2 - a.nfo}\ns_cselect_b32 s{SR+1}, 16, 0")
def vote_store():
    A(f"s_xor_b32 s{SR+1}, s{SR+1}, s{sT}\nv_mov_b32 v61, s{SR+1}")
    if a.nfx: A(f"s_bitcmp1_b32 s{sXCC}, 0\ns_cbranch_scc0 L_nvs")
    A(f"s_mov_b64 exec, 1\nbuffer_store_dword v61, v60, s[{WS}:{WS+3}], s{SR} offen{' sc1' if a.nfx else ''}\ns_mov_b64 exec, -1")
    if a.nfx: A("L_nvs:")
if a.nf == 1:
    A(f"s_cmp_ge_u32 s{sRI}, 20\ns_cbranch_scc1 L_nc1\ns_mov_b64 exec, 1")
    A(f"buffer_load_dword v10, v30, s[{WS}:{WS+3}], s{sRB} offen sc1\nbuffer_load_dword v11, v30, s[{WS}:{WS+3}], s{sTMP3} offen sc1\ns_mov_b64 exec, -1\nL_nc1:")
if a.nf == 8:
    sPA, sPB = sM + 4, sM + 5
    A(f"s_cmp_ge_u32 s{sRI}, 20\ns_cbranch_scc1 L_nc1")
    A(f"s_load_dword s{sPA}, s[{sWSP}:{sWSP+1}], s{sTMP}\ns_load_dword s{sPB}, s[{sWSP}:{sWSP+1}], s{sTMP2}")
    A(f"s_load_dword s{sT}, s[{sWSP}:{sWSP+1}], s9")
    if a.nfd:
        A(f"s_mov_b32 s{sST+14}, 0")
        for k, inc in ((3, 1), (2, 1 << 12), (1, 1 << 22)):
            A(f"L_nd{k}:\ns_add_u32 s{sST+14}, s{sST+14}, {inc}\ns_getreg_b32 s{sTMP}, hwreg(HW_REG_IB_STS, 8, 4)\ns_cmp_ge_u32 s{sTMP}, {k}\ns_cbranch_scc1 L_nd{k}")
        A(f"s_bfe_u32 s{sTMP}, s{sST+14}, {12 | (10 << 16)}\ns_cmp_gt_u32 s{sTMP}, {a.nfd}\ns_cselect_b32 s{sRB}, s{sRB}, s{sTMP3}")
    else:
        A("s_waitcnt lgkmcnt(2)")
        A(f"s_sleep {a.nfs}" if a.nfs > 0 else f"s_nop {-a.nfs}")
        A(f"s_getreg_b32 s{sTMP}, hwreg(HW_REG_IB_STS, 8, 4)\ns_cmp_eq_u32 s{sTMP}, 2\ns_cselect_b32 s{sRB}, s{sRB}, s{sTMP3}")
        if a.stamps: A(f"s_sub_u32 s{sST+14}, 3, s{sTMP}")
    A("s_branch L_nc2\nL_nc1:")
    A(f"s_load_dword s{sT}, s[{sWSP}:{sWSP+1}], s9")
    A("L_nc2:")
    srd(WS, sWSP, 0x10000000)
    srd(SR2, sM, 2560)
    A("s_barrier")
elif a.nf != 9 and not a.pads: A(f"s_load_dword s{sT}, s[{sWSP}:{sWSP+1}], s9")
if a.nf in (8, 9): pass
elif a.nf == 7:
    sPA, sPB = sM + 4, sM + 5
    A(f"s_cmp_ge_u32 s{sRI}, 20\ns_cbranch_scc1 L_nc1")
    A(f"s_mul_i32 s{sTMP}, s{sP}, 20\ns_add_u32 s{sTMP}, s{sTMP}, s{sRI}\ns_lshl_b32 s{sTMP}, s{sTMP}, 14\ns_add_u32 s{sTMP}, s{sTMP}, {FBOX + 20*16384}\ns_add_u32 s{sTMP2}, s{sTMP}, 8192")
    A(f"s_load_dword s{sPA}, s[{sWSP}:{sWSP+1}], s{sTMP}\ns_load_dword s{sPB}, s[{sWSP}:{sWSP+1}], s{sTMP2}")
    A("s_waitcnt lgkmcnt(1)")
    A(f"s_sleep {a.nfs}" if a.nfs else "s_nop 15\ns_nop 15")
    A(f"s_getreg_b32 s{sTMP}, hwreg(HW_REG_IB_STS, 8, 4)\ns_cmp_lg_u32 s{sTMP}, 0\ns_cselect_b32 s{sRB}, s{sRB}, s{sTMP3}")
    if a.stamps: A(f"s_sub_u32 s{sST+14}, 2, s{sTMP}")
    A("L_nc1:")
    srd(SR2, sM, 2560)
    A("s_barrier")
elif a.nf == 6:
    SENT = 0x5a17c3e9
    sPA, sPB = sM + 4, sM + 5
    A(f"s_cmp_ge_u32 s{sRI}, 20\ns_cbranch_scc1 L_nc1")
    A(f"s_mul_i32 s{sTMP}, s{sP}, 20\ns_add_u32 s{sTMP}, s{sTMP}, s{sRI}\ns_lshl_b32 s{sTMP}, s{sTMP}, 14\ns_add_u32 s{sTMP}, s{sTMP}, {FBOX + 20*16384}\ns_add_u32 s{sTMP2}, s{sTMP}, 8192")
    A(f"s_mov_b32 s{sPA}, {SENT:#x}\ns_mov_b32 s{sPB}, {SENT:#x}")
    A(f"s_load_dword s{sPA}, s[{sWSP}:{sWSP+1}], s{sTMP}\ns_load_dword s{sPB}, s[{sWSP}:{sWSP+1}], s{sTMP2}\nL_nc1:")
    srd(SR2, sM, 2560)
    A(f"s_cmp_ge_u32 s{sRI}, 20\ns_cbranch_scc1 L_prA")
    A(f"L_pr:\ns_cmp_lg_u32 s{sPA}, {SENT:#x}\ns_cbranch_scc1 L_prA\ns_cmp_lg_u32 s{sPB}, {SENT:#x}\ns_cbranch_scc1 L_prB")
    A(f"s_getreg_b32 s{sTMP}, hwreg(HW_REG_IB_STS, 8, 4)\ns_cmp_lg_u32 s{sTMP}, 0\ns_cbranch_scc1 L_pr")
    A(f"L_prB:\ns_mov_b32 s{sRB}, s{sTMP3}")
    if a.stamps: A(f"s_mov_b32 s{sST+14}, 1")
    A("L_prA:")
    if a.stamps: A(f"s_add_u32 s{sST+14}, s{sST+14}, 1")
    A("s_barrier")
else:
    srd(SR2, sM, 2560)
    if not a.pads: A("s_barrier" if a.nf == 10 or a.eb else "s_waitcnt lgkmcnt(0)\ns_barrier")
get_T()
if a.nf == 9 and a.nfv == 0: vote_store()
if a.nf == 1:
    A(f"s_waitcnt vmcnt(1)\ns_memtime s[{sM+4}:{sM+5}]\ns_waitcnt vmcnt(0)\ns_memtime s[{sM+6}:{sM+7}]\ns_waitcnt lgkmcnt(0)")
    A(f"s_sub_u32 s{sM+4}, s{sM+6}, s{sM+4}\ns_cmp_gt_u32 s{sM+4}, {a.nft}\ns_cselect_b32 s{sRB}, s{sRB}, s{sTMP3}")
    if a.stamps: A(f"s_add_u32 s{sST+14}, s{sM+4}, 1\ns_mov_b32 s{sST+15}, 0")
elif a.nf == 3:
    A(f"s_mov_b32 s{sRB}, s{sTMP3}")
if a.lat:
    A(f"v_lshlrev_b32 v37, 4, v{vL}")
    A(f"s_lshl_b32 s{sOFF}, s2, 10\ns_add_u32 s{sOFF}, s{sOFF}, 0x200000")
    A(f"s_cmp_eq_u32 s{sWAVE}, 11\ns_cbranch_scc1 L_lat2")
    for k in range(4):
        A(f"s_memrealtime s[{sST+4*k}:{sST+4*k+1}]\ns_waitcnt lgkmcnt(0)")
        A(f"buffer_load_dwordx4 v[40:43], v37, s[{WS}:{WS+3}], s{sOFF} offen sc1\ns_waitcnt vmcnt(0)")
        A(f"s_memrealtime s[{sST+4*k+2}:{sST+4*k+3}]\ns_waitcnt lgkmcnt(0)")
        A("s_sleep 40")
    A("s_branch L_end")
    A("L_lat2:")
    A(f"s_add_u32 s{sOFF}, s{sOFF}, 0x100000")
    A(f"buffer_load_dwordx4 v[40:43], v37, s[{WS}:{WS+3}], s{sOFF} offen {'nt' if a.lat == 1 else 'sc1'}\ns_waitcnt vmcnt(0)")
    for k in range(4):
        A(f"s_memrealtime s[{sST+4*k}:{sST+4*k+1}]\ns_waitcnt lgkmcnt(0)")
        A(f"buffer_load_dwordx4 v[40:43], v37, s[{WS}:{WS+3}], s{sOFF} offen {'nt' if a.lat == 1 else 'sc1'}\ns_waitcnt vmcnt(0)")
        A(f"s_memrealtime s[{sST+4*k+2}:{sST+4*k+3}]\ns_waitcnt lgkmcnt(0)")
        A("s_sleep 40")
    A("s_branch L_end")
if a.rank:
    A(f"s_lshl_b32 s{sNEED}, s{sJ}, 7\ns_add_u32 s{sNEED}, s{sNEED}, {RBOX}\nv_mov_b32 v30, 0\nbuffer_load_dword v60, v30, s[{WS}:{WS+3}], s{sNEED} offen sc1 nt")
if a.enc == 11: lds_wait(L_QF, [0, 1, 2], 4, 8)
stamp(1)
lds_wait(L_LS, [1, 3, 5, 7], 8, 8)
A(f"v_mov_b32 v30, 0\nds_read_b128 v[20:23], v30 offset:{L_MX}\nds_read_b128 v[24:27], v30 offset:{L_MX+16}\nds_read_b32 v31, v30 offset:{L_MODE}\ns_waitcnt lgkmcnt(0)\nv_readfirstlane_b32 s{sMODE}, v31")
A("v_max_f32 v32, v20, v22\nv_max3_f32 v32, v32, v24, v26")
A("v_add_f32 v33, v8, v10\nv_add_f32 v34, v12, v14\nv_add_f32 v33, v33, v34\nv_mov_b32 v34, 0\nv_mov_b32 v35, 0")
for k in range(4):
    A(f"v_perm_b32 v{32+k}, v{32+k}, v{vT}, s{sSEL+k}")
A(f"s_lshl_b32 s{sOFF}, s{sH}, 7\ns_add_u32 s{sOFF}, s{sOFF}, {SBOX}\ns_lshl_b32 s{sTMP}, s{sJ}, 4\ns_add_u32 s{sTMP}, s{sTMP}, s{sOFF}")
A("s_mov_b64 exec, 1")
A(f"s_cmp_lg_u32 s{sMODE}, 0\ns_cbranch_scc1 L_ux1")
A(f"buffer_store_dwordx4 v[32:35], v30, s[{WS}:{WS+3}], s{sTMP} offen\ns_branch L_ux2\nL_ux1:")
A(f"buffer_store_dwordx4 v[32:35], v30, s[{WS}:{WS+3}], s{sTMP} offen sc1\nL_ux2:")
A("s_mov_b64 exec, -1")
if a.nf == 9 and a.nfv == 1: vote_store()
stamp(2)
A(f"v_and_b32 v36, 3, v{vL}\nv_lshlrev_b32 v37, 4, v36")
poll(40, 37, sOFF)
stamp(3)
A("v_and_b32 v40, 0xffffff00, v40\ns_nop 1")
A("v_max_f32_dpp v44, v40, v40 quad_perm:[1,0,3,2] row_mask:0xf bank_mask:0xf\ns_nop 1")
A("v_max_f32_dpp v44, v44, v44 quad_perm:[2,3,0,1] row_mask:0xf bank_mask:0xf")
A("v_sub_f32 v40, v40, v44\nv_mul_f32 v40, 0x3fb8aa3b, v40\nv_exp_f32 v40, v40\ns_nop 0")
A("v_mul_f32 v41, v41, v40\ns_nop 1")
A("v_add_f32_dpp v44, v41, v41 quad_perm:[1,0,3,2] row_mask:0xf bank_mask:0xf\ns_nop 1")
A("v_add_f32_dpp v44, v44, v44 quad_perm:[2,3,0,1] row_mask:0xf bank_mask:0xf")
A("v_rcp_f32 v44, v44\ns_nop 0\nv_mul_f32 v40, v40, v44")
A("v_lshlrev_b32 v36, 2, v36")
A("s_mov_b64 exec, 15")
A(f"ds_write_b32 v36, v40 offset:{L_FF}")
A(f"ds_write_b32 v30, v{vT} offset:{L_FFLAG}")
A("s_mov_b64 exec, -1")
if a.dirty:
    A(f"v_lshlrev_b32 v37, 4, v{vL}\ns_lshl_b32 s{sTMP}, s2, 14\ns_add_u32 s{sTMP}, s{sTMP}, 0x1000000")
    for k in range(a.dirty):
        A(f"buffer_store_dwordx4 v[40:43], v37, s[{WS}:{WS+3}], s{sTMP} offen\ns_add_u32 s{sTMP}, s{sTMP}, 1024")
if a.rank:
    lds_wait(L_VT, [0], 1, 8)
    A(f"v_mov_b32 v61, 1\ns_mov_b64 exec, 1\nbuffer_atomic_add v61, v30, s[{WS}:{WS+3}], s{sNEED} offen sc0 sc1\ns_mov_b64 exec, -1\ns_waitcnt vmcnt(0)")
    A(f"v_sub_u32 v61, v61, v60\ns_nop 0\nv_readfirstlane_b32 s{sTMP}, v61\ns_cmp_lt_u32 s{sTMP}, {a.rank}\ns_cbranch_scc1 L_rk")
    if a.stamps: A(f"s_mov_b32 s{sST+14}, s{sTMP}\ns_mov_b32 s{sST+15}, 0")
    if a.rop: lds_wait(L_VT, [1, 2, 3], 4, 8)
    A(f"ds_write_b32 v30, v{vT} offset:{L_OF+12}")
    A("L_rk:")
if a.fp:
    gp = a.fp // 16; lg = gp.bit_length() - 1; nx = 256 // a.fp; R = 10 * nx; nl = a.fp // 32
    if a.nf:
        A(f"s_mov_b32 s{sCNT}, s{sRI}\ns_cmp_ge_u32 s{sCNT}, {R}\ns_cbranch_scc1 L_end")
    else:
        A(f"s_and_b32 s{sTMP}, s{sHH}, 7\ns_lshl_b32 s{sTMP}, s{sTMP}, 2\ns_lshr_b32 s{sTMP2}, s{sHH}, 3\ns_add_u32 s{sTMP}, s{sTMP}, s{sTMP2}\ns_lshl_b32 s{sTMP}, s{sTMP}, 1\n{'s_and_b32' if a.lmap else 's_lshr_b32'} s{sTMP2}, s{sJ}, 1\ns_add_u32 s{sTMP}, s{sTMP}, s{sTMP2}")
        A(f"{'s_lshr_b32' if a.lmap else 's_and_b32'} s{sTMP2}, s{sJ}, 1\ns_xor_b32 s{sTMP2}, s{sTMP2}, 1\ns_lshl_b32 s{sTMP2}, s{sTMP2}, 6\ns_add_u32 s{sCNT}, s{sTMP}, s{sTMP2}\ns_cmp_ge_u32 s{sCNT}, {R}\ns_cbranch_scc1 L_end")
    A(f"s_mul_i32 s{sOFF}, s{sP}, {R}\ns_add_u32 s{sOFF}, s{sOFF}, s{sCNT}\ns_mul_i32 s{sTMP2}, s{sOFF}, {gp*8}\ns_mul_i32 s{sOFF}, s{sOFF}, {32*a.fp}\ns_add_u32 s{sOFF}, s{sOFF}, {FBOX}")
    if a.nf == 10: A(f"s_lshl_b32 s{SR}, s{sXCC}, 10\ns_add_u32 s{SR}, s{SR}, {VBOX}")
    if a.nf in (9, 10):
        A(f"v_lshlrev_b32 v37, 4, v{vL}\nbuffer_load_dwordx4 v[60:63], v37, s[{WS}:{WS+3}], s{SR} offen sc1{'' if a.nfx else ' nt'}\ns_waitcnt vmcnt(0)")
        A(f"s_mov_b32 s{sTMP}, 0\ns_mov_b32 s{sTMP3}, 0\ns_xor_b32 s{SR+1}, s{sT}, 16")
        for k in range(4):
            if a.nfx:
                A(f"v_xor_b32 v{60+k}, s{sT}, v{60+k}\nv_and_b32 v{60+k}, -4, v{60+k}")
                for c, d in ((0, sTMP), (20, sTMP), (16, sTMP3), (4, sTMP3)):
                    A(f"v_cmp_eq_u32 vcc, {c}, v{60+k}\ns_bcnt1_i32_b64 s{SR+2}, vcc\ns_add_u32 s{d}, s{d}, s{SR+2}")
            else:
                A(f"v_cmp_eq_u32 vcc, s{sT}, v{60+k}\ns_bcnt1_i32_b64 s{SR+2}, vcc\ns_add_u32 s{sTMP}, s{sTMP}, s{SR+2}")
                A(f"v_cmp_eq_u32 vcc, s{SR+1}, v{60+k}\ns_bcnt1_i32_b64 s{SR+2}, vcc\ns_add_u32 s{sTMP3}, s{sTMP3}, s{SR+2}")
        if a.stamps: A(f"s_add_u32 s{sST+14}, s{sTMP}, s{sTMP3}\ns_lshl_b32 s{sST+14}, s{sST+14}, 16\ns_add_u32 s{sST+14}, s{sST+14}, s{sTMP3}")
        if a.dbgv == 2:
            A(f"s_max_u32 s{SR+2}, s{sTMP}, s{sTMP3}\ns_min_u32 s{SR+3}, s{sTMP}, s{sTMP3}\ns_lshl_b32 s{SR+3}, s{SR+3}, 1\ns_add_u32 s{SR+3}, s{SR+3}, 6\ns_cmp_gt_u32 s{SR+2}, s{SR+3}\ns_cbranch_scc1 L_dv")
            for k in range(6): A("s_sleep 127")
            A("L_dv:")
        if a.dbgv >= 10:
            A(f"s_max_u32 s{SR+2}, s{sTMP}, s{sTMP3}\ns_min_u32 s{SR+3}, s{sTMP}, s{sTMP3}\ns_add_u32 s{SR+3}, s{SR+3}, {a.dbgv - 10}\ns_cmp_ge_u32 s{SR+2}, s{SR+3}\ns_cbranch_scc1 L_dv")
            for k in range(6): A("s_sleep 127")
            A("L_dv:")
        if a.dbgv == 1:
            A(f"s_lshl_b32 s{SR+2}, s{sTMP}, 8\ns_add_u32 s{SR+2}, s{SR+2}, s{sTMP3}\nv_mov_b32 v60, s{SR+2}\ns_lshl_b32 s{SR+2}, s{sXCC}, 2\nv_mov_b32 v61, s{SR+2}")
            srd(SR, sM + 2, 256)
            A(f"s_mov_b64 exec, 1\nbuffer_store_dword v60, v61, s[{SR}:{SR+3}], 0 offen sc1\ns_mov_b64 exec, -1")
        if not a.nfr and a.nf == 9: A(f"s_lshl_b32 s{sTMP3}, s{sTMP3}, 1")
        A(f"s_cmp_gt_u32 s{sTMP3}, s{sTMP}\ns_cselect_b32 s{sTMP}, 0, 8192\ns_add_u32 s{sRB}, s{sRB}, s{sTMP}")
    if a.nf: A(f"s_mov_b32 s{sOFF}, s{sRB}")
    A(f"v_lshlrev_b32 v37, 4, v{vL}\nv_lshlrev_b32 v38, 3, v{vL}")
    lds_wait(L_PF, [0, 1, 2], 4, 8)
    stamp(4)
    if a.nofin: A("s_branch L_end")
    if a.nf == 5:
        A(f"s_add_u32 s{sTMP3}, s{sOFF}, 8192")
        for cp in range(2):
            for i in range(nl):
                A(f"buffer_load_dwordx4 v[{80+16*cp+4*i}:{83+16*cp+4*i}], v37, s[{WS}:{WS+3}], s{sTMP3 if cp else sOFF} offen offset:{1024*i} sc1{FN}")
        for cp in range(2):
            for i in range(nl):
                r = 80 + 16 * cp + 4 * i
                if cp == 0:
                    if i == 0: A(f"s_waitcnt vmcnt({nl})")
                else: A(f"s_waitcnt vmcnt({nl-1-i})")
                A(f"v_perm_b32 v44, v{r+1}, v{r}, s{sSELA}\nv_perm_b32 v45, v{r+3}, v{r+2}, s{sSELB}\nv_or_b32 v44, v44, v45\nv_xor_b32 v44, s{sT}, v44")
                A(f"v_or_b32 v46, v46, v44" if i else "v_mov_b32 v46, v44")
                for k in range(4):
                    A(f"v_add_f32 v{40+k}, v{40+k}, v{r+k}" if i else f"v_mov_b32 v{40+k}, v{r+k}")
                if cp == 0 and i == a.nfi:
                    A(f"s_getreg_b32 s{sTMP}, hwreg(HW_REG_IB_STS, 0, 4)")
                    if a.stamps: A(f"s_add_u32 s{sST+14}, s{sTMP}, 1\ns_mov_b32 s{sST+15}, 0")
            A("v_cmp_lt_u32 vcc, 7, v46\ns_cmp_eq_u64 vcc, 0\ns_cbranch_scc1 L_fpd")
        A(f"s_cmp_eq_u32 s{sTMP}, {nl}\ns_cselect_b32 s{sOFF}, s{sOFF}, s{sTMP3}")
    if a.fdepth > 1:
        D = a.fdepth
        def fissue(k):
            for i in range(nl):
                A(f"buffer_load_dwordx4 v[{80+16*k+4*i}:{83+16*k+4*i}], v37, s[{WS}:{WS+3}], s{sOFF} offen offset:{1024*i} sc1{FN}")
        for k in range(D - 1):
            fissue(k)
            A(f"s_sleep {a.fgap}")
        A("L_fq:")
        for k in range(D):
            fissue((k + D - 1) % D)
            for i in range(nl):
                r = 80 + 16 * k + 4 * i
                A(f"s_waitcnt vmcnt({nl*(D-1)+nl-1-i})")
                A(f"v_perm_b32 v44, v{r+1}, v{r}, s{sSELA}\nv_perm_b32 v45, v{r+3}, v{r+2}, s{sSELB}\nv_or_b32 v44, v44, v45\nv_xor_b32 v44, s{sT}, v44")
                A(f"v_or_b32 v46, v46, v44" if i else "v_mov_b32 v46, v44")
                for q in range(4):
                    A(f"v_add_f32 v{40+q}, v{40+q}, v{r+q}" if i else f"v_mov_b32 v{40+q}, v{r+q}")
            A("v_cmp_lt_u32 vcc, 7, v46\ns_cmp_eq_u64 vcc, 0\ns_cbranch_scc1 L_fpd")
        spin_tail("L_fq", 0)
    A("L_fp:")
    for i in range(nl):
        A(f"buffer_load_dwordx4 v[{80+4*i}:{83+4*i}], v37, s[{WS}:{WS+3}], s{sOFF} offen offset:{1024*i} sc1{FN}")
    for i in range(nl):
        r = 80 + 4 * i
        A(f"s_waitcnt vmcnt({nl-1-i})")
        A(f"v_perm_b32 v44, v{r+1}, v{r}, s{sSELA}\nv_perm_b32 v45, v{r+3}, v{r+2}, s{sSELB}\nv_or_b32 v44, v44, v45\nv_xor_b32 v44, s{sT}, v44")
        A(f"v_or_b32 v46, v46, v44" if i else "v_mov_b32 v46, v44")
        for k in range(4):
            A(f"v_add_f32 v{40+k}, v{40+k}, v{r+k}" if i else f"v_mov_b32 v{40+k}, v{r+k}")
    A("v_cmp_lt_u32 vcc, 7, v46\ns_cmp_eq_u64 vcc, 0\ns_cbranch_scc1 L_fpd")
    spin_tail("L_fp", a.fsl)
    A("L_fpd:")
    stamp(5)
    d = gp
    while d < 16:
        for k in range(4):
            A(f"v_add_f32_dpp v{40+k}, v{40+k}, v{40+k} row_ror:{d} row_mask:0xf bank_mask:0xf")
        if d * 2 < 16: A("s_nop 0")
        d *= 2
    for op in ("v_permlane16_swap_b32", "v_permlane32_swap_b32"):
        for k in range(4): A(f"v_mov_b32 v{44+k}, v{40+k}")
        A("s_nop 1")
        for k in range(4): A(f"{op} v{40+k}, v{44+k}")
        A("s_nop 1")
        for k in range(4): A(f"v_add_f32 v{40+k}, v{40+k}, v{44+k}")
    A("v_cvt_pk_bf16_f32 v44, v40, v41\nv_cvt_pk_bf16_f32 v45, v42, v43")
    A(f"s_mov_b64 exec, {(1 << gp) - 1}")
    A(f"buffer_store_dwordx2 v[44:45], v38, s[{SR2}:{SR2+3}], s{sTMP2} offen")
    A(f"s_cmp_lg_u32 s{sCNT}, 0\ns_cbranch_scc1 L_aux2")
    A("s_mov_b64 exec, 1")
    A(f"buffer_store_dword v{vT}, v30, s[{WS}:{WS+3}], s9 offen")
    A("L_aux2:")
    A("s_mov_b64 exec, -1")
    stamp(6)
    if a.enc:
        A(f"s_waitcnt lgkmcnt(0)\ns_sub_u32 s{sTMP}, s{sST+2*(a.enc%10)}, s{sST}\ns_lshl_b32 s{sTMP}, s{sTMP}, 2\ns_add_u32 s{sTMP}, s{sTMP}, s{sST+12}")
        A(f"L_enc:\ns_sleep 2\ns_memrealtime s[{SR}:{SR+1}]\ns_waitcnt lgkmcnt(0)\ns_sub_u32 s{sTMP2}, s{sTMP}, s{SR}\ns_cmp_gt_i32 s{sTMP2}, 0\ns_cbranch_scc1 L_enc")
else:
    A(f"s_and_b32 s{sTMP}, s{sJ}, 1\ns_lshl_b32 s{sTMP}, s{sTMP}, 3\ns_add_u32 s{sTMP}, s{sTMP}, s{sHH}\ns_cmp_ge_u32 s{sTMP}, 24\ns_cbranch_scc1 L_end")
    A(f"s_lshl_b32 s{sTMP}, s{sP}, 2\ns_add_u32 s{sTMP}, s{sTMP}, s{sJ}\ns_mul_i32 s{sOFF}, s{sTMP}, 24\ns_add_u32 s{sOFF}, s{sOFF}, s{sHH}")
    A(f"s_lshl_b32 s{sOFF}, s{sOFF}, 10\ns_add_u32 s{sOFF}, s{sOFF}, {FBOX}")
    A(f"s_mul_i32 s{sTMP}, s{sJ}, 5\ns_add_u32 s{sTMP}, s{sTMP}, 1\ns_lshr_b32 s{sTMP}, s{sTMP}, 1\ns_lshl_b32 s{sTMP2}, s{sTMP}, 7")
    A(f"s_mul_i32 s{sTMP}, s{sP}, 1280\ns_add_u32 s{sTMP2}, s{sTMP2}, s{sTMP}\ns_lshl_b32 s{sTMP}, s{sHH}, 4\ns_add_u32 s{sTMP2}, s{sTMP2}, s{sTMP}")
    A(f"v_lshlrev_b32 v37, 4, v{vL}\nv_lshrrev_b32 v38, 5, v{vL}\nv_lshlrev_b32 v38, 3, v38")
    lds_wait(L_PF, [0, 1, 2], 4, 8)
    stamp(4)
    if a.nofin: A("s_branch L_end")
    if a.fmask:
        D = a.fdepth
        mk = sM + 4
        sets = [80 + 4 * k for k in range(D)]
        A(f"s_mov_b64 s[{mk}:{mk+1}], -1")
        for k in range(D):
            for q in range(4): A(f"v_mov_b32 v{sets[k]+q}, 0")
        A(f"v_not_b32 v{sets[0]}, v{vT}")
        for k in range(1, D): A(f"v_mov_b32 v{sets[k]}, v{sets[0]}")
        def issue(r):
            A(f"s_mov_b64 exec, s[{mk}:{mk+1}]\nbuffer_load_dwordx4 v[{r}:{r+3}], v37, s[{WS}:{WS+3}], s{sOFF} offen sc1\ns_mov_b64 exec, -1")
        for k in range(D - 1):
            issue(sets[k])
            if a.fgap: A(f"s_sleep {a.fgap}")
        A("L_fp:")
        for k in range(D):
            issue(sets[(k + D - 1) % D])
            r = sets[k]
            A(f"s_waitcnt vmcnt({D-1})")
            A(f"v_perm_b32 v44, v{r+1}, v{r}, s{sSELA}\nv_perm_b32 v45, v{r+3}, v{r+2}, s{sSELB}\nv_or_b32 v44, v44, v45\nv_xor_b32 v44, s{sT}, v44")
            A(f"v_cmp_ge_u32 vcc, 7, v44")
            A(f"s_and_b64 vcc, vcc, s[{mk}:{mk+1}]\ns_andn2_b64 s[{mk}:{mk+1}], s[{mk}:{mk+1}], vcc\ns_mov_b64 exec, vcc")
            for q in range(4): A(f"v_mov_b32 v{40+q}, v{r+q}")
            A(f"s_mov_b64 exec, -1\ns_cmp_eq_u64 s[{mk}:{mk+1}], 0\ns_cbranch_scc1 L_fpd")
            if a.fsl: A(f"s_sleep {a.fsl}")
        spin_tail("L_fp", 0)
        A("L_fpd:")
    else:
        poll(80, 37, sOFF, depth=a.fdepth, gap=a.fgap, lfl=FN)
        for k in range(4):
            A(f"v_mov_b32 v{40+k}, v{80+k}")
    A("s_nop 1")
    stamp(5)
    for d in ["row_shr:1", "row_shr:2", "row_shr:4", "row_shr:8"]:
        for k in range(4):
            A(f"v_add_f32_dpp v{40+k}, v{40+k}, v{40+k} {d} row_mask:0xf bank_mask:0xf")
    for k in range(4):
        A(f"v_add_f32_dpp v{40+k}, v{40+k}, v{40+k} row_bcast:15 row_mask:0xa bank_mask:0xf")
    A("v_cvt_pk_bf16_f32 v44, v40, v41\nv_cvt_pk_bf16_f32 v45, v42, v43")
    A("s_mov_b32 exec_lo, 0x80000000\ns_mov_b32 exec_hi, 0x80000000")
    A(f"buffer_store_dwordx2 v[44:45], v38, s[{SR2}:{SR2+3}], s{sTMP2} offen")
    A(f"s_or_b32 s{sTMP}, s{sJ}, s{sHH}\ns_cmp_lg_u32 s{sTMP}, 0\ns_cbranch_scc1 L_aux2")
    A("s_mov_b64 exec, 1")
    A(f"buffer_store_dword v{vT}, v30, s[{WS}:{WS+3}], s9 offen")
    A("L_aux2:")
    A("s_mov_b64 exec, -1")
    stamp(6)


A("L_end:")
if a.dbg:
    A("s_mov_b64 exec, -1")
    A("s_waitcnt vmcnt(0) lgkmcnt(0)")
    A(f"s_memrealtime s[{sST+16}:{sST+17}]\ns_memtime s[86:87]\ns_waitcnt lgkmcnt(0)")
    for k in range(9):
        A(f"v_mov_b32 v{8+k}, s{sST+2*k}")
    A(f"s_sub_u32 s86, s86, s84\ns_sub_u32 s87, s{sST+16}, s{sST}\nv_mov_b32 v17, s86\nv_mov_b32 v18, s87\nv_not_b32 v19, v8")
    A(f"s_lshl_b32 s{sTMP}, s{sWAVE}, 6\nv_mov_b32 v30, s{sTMP}\ns_lshl_b32 s{sTMP}, s{sWAVE}, 2\nv_mov_b32 v31, s{sTMP}\ns_mov_b64 exec, 1")
    for k in range(3):
        A(f"ds_write_b128 v30, v[{8+4*k}:{11+4*k}] offset:{L_ST+16*k}")
    A(f"ds_write_b32 v31, v{vT} offset:{L_DN}")
    A("s_mov_b64 exec, -1")
    A(f"s_cmp_lg_u32 s{sWAVE}, 3\ns_cbranch_scc1 L_done")
    A(f"L_dw:\nv_lshlrev_b32 v8, 2, v{vL}\nv_min_u32 v8, 40, v8\nds_read_b32 v9, v8 offset:{L_DN}\ns_waitcnt lgkmcnt(0)\nv_cmp_ne_u32 vcc, s{sT}, v9\ns_cmp_eq_u64 vcc, 0\ns_cbranch_scc1 L_dw2\ns_sleep 4\ns_sub_u32 s{sSPIN}, s{sSPIN}, 1\ns_cbranch_scc0 L_dw\ns_branch L_done\nL_dw2:")
    A("s_sleep 127\ns_sleep 127")
    adds = [(3,0,1),(0,2,2),(0,4,3),(4,4,4),(8,2,5),(8,3,6),(8,4,7),(0,7,8),(3,9,13),(3,10,14)]
    maxs = [(3,11,0),(0,7,9),(1,7,9),(2,7,9),(3,8,10),(8,3,11),(9,3,11),(10,3,11),(8,4,12),(9,4,12),(10,4,12),(3,0,15)]
    A("v_mov_b32 v20, 0\nv_mov_b32 v21, 0")
    for k, (w, st, d) in enumerate(adds + maxs):
        A(f"s_mov_b32 s{sTMP}, {L_ST + w*64 + st*4}\nv_writelane_b32 v20, s{sTMP}, {k}\ns_mov_b32 s{sTMP}, {d*4}\nv_writelane_b32 v21, s{sTMP}, {k}")
    A("ds_read_b32 v22, v20")
    A(f"s_load_dwordx2 s[{sM+2}:{sM+3}], s[0:1], 88\ns_waitcnt lgkmcnt(0)")
    srd(SR, sM + 2, 256)
    A("s_waitcnt lgkmcnt(0)")
    A(f"s_mov_b64 exec, {(1 << len(adds)) - 1}")
    A(f"buffer_atomic_add v22, v21, s[{SR}:{SR+3}], 0 offen")
    A(f"s_mov_b64 exec, {((1 << len(maxs)) - 1) << len(adds)}")
    A(f"buffer_atomic_umax v22, v21, s[{SR}:{SR+3}], 0 offen")
elif a.stamps:
    A("s_mov_b64 exec, -1")
    A("s_waitcnt vmcnt(0) lgkmcnt(0)")
    A(f"s_memrealtime s[{sST+16}:{sST+17}]\ns_waitcnt lgkmcnt(0)")
    A(f"s_lshl_b32 s{sTMP}, s2, 4\ns_add_u32 s{sTMP}, s{sTMP}, s{sWAVE}\ns_mul_i32 s{sTMP}, s{sTMP}, 80\ns_add_u32 s{sTMP}, s{sTMP}, {STAMP}")
    for k in range(18):
        A(f"v_mov_b32 v{8+k}, s{sST+k}")
    A("v_mov_b32 v30, 0\ns_mov_b64 exec, 1")
    for k in range(4):
        A(f"buffer_store_dwordx4 v[{8+4*k}:{11+4*k}], v30, s[{WS}:{WS+3}], s{sTMP} offen offset:{16*k}")
    A("s_getreg_b32 s3, hwreg(HW_REG_XCC_ID)\nv_mov_b32 v26, s3\nv_mov_b32 v27, 0")
    A(f"buffer_store_dwordx4 v[24:27], v30, s[{WS}:{WS+3}], s{sTMP} offen offset:64")
A("L_done:\ns_endpgm")
A.footer(168)
if a.pads:
    assert a.nf in (0, 2, 3, 10) and not a.lat
    A.L = [l.replace(".p2align 8\n.type", ".p2align 12\n.type") for l in A.L]
if a.pads == 1:
    import padlib
    A.L = padlib.add_pads(A.L, 8)
A.write(a.out)
```

```python
import sys, argparse
from asmlib import *
ap = argparse.ArgumentParser()
ap.add_argument("out")
ap.add_argument("--stamps", type=int, default=0)
ap.add_argument("--prio", type=int, default=1)
ap.add_argument("--lds", type=int, default=163840)
ap.add_argument("--nopoll", type=int, default=0)
ap.add_argument("--near", type=int, default=0)
ap.add_argument("--kfull", type=int, default=0)
ap.add_argument("--psleep", type=int, default=0)
ap.add_argument("--lat", type=int, default=0)
ap.add_argument("--thr", type=int, default=0)
ap.add_argument("--rot", type=int, default=0)
ap.add_argument("--pdepth", type=int, default=3)
ap.add_argument("--pgap", type=int, default=16)
ap.add_argument("--fgap", type=int, default=5)
ap.add_argument("--fdepth", type=int, default=3)
ap.add_argument("--g2", type=int, default=1)
ap.add_argument("--dbg", type=int, default=0)
ap.add_argument("--win", type=str, default="")
ap.add_argument("--gsleep", type=int, default=1)
ap.add_argument("--nt", type=int, default=12)
ap.add_argument("--nofin", type=int, default=0)
ap.add_argument("--lsleep", type=int, default=1)
ap.add_argument("--x1", type=int, default=0)
ap.add_argument("--fmask", type=int, default=0)
ap.add_argument("--fsl", type=int, default=0)
ap.add_argument("--pro", type=int, default=0)
ap.add_argument("--contig", type=str, default="")
ap.add_argument("--fp", type=int, default=0)
ap.add_argument("--xmap", type=int, default=0)
ap.add_argument("--dly", type=str, default="")
ap.add_argument("--pnt", type=int, default=3)
ap.add_argument("--slab", type=int, default=0)
ap.add_argument("--wsl", type=int, default=1)
ap.add_argument("--no2", type=int, default=0)
ap.add_argument("--ks2", type=int, default=2)
ap.add_argument("--lmap", type=int, default=0)
ap.add_argument("--boost", type=int, default=0)
ap.add_argument("--vboost", type=int, default=0)
ap.add_argument("--kboost", type=int, default=0)
ap.add_argument("--vtrig", type=int, default=0)
ap.add_argument("--wj", type=str, default="")
ap.add_argument("--rank", type=int, default=0)
ap.add_argument("--vr", type=int, default=24)
ap.add_argument("--rop", type=int, default=1)
ap.add_argument("--dirty", type=int, default=0)
ap.add_argument("--nf", type=int, default=0)
ap.add_argument("--nft", type=int, default=110)
ap.add_argument("--nfi", type=int, default=0)
ap.add_argument("--nfs", type=int, default=1)
ap.add_argument("--nfd", type=int, default=0)
ap.add_argument("--nfv", type=int, default=0)
ap.add_argument("--enc", type=int, default=0)
ap.add_argument("--pads", type=int, default=0)
ap.add_argument("--dbgv", type=int, default=0)
ap.add_argument("--eb", type=int, default=0)
ap.add_argument("--nfp", default="sc1")
ap.add_argument("--nfx", type=int, default=0)
ap.add_argument("--nfj", type=int, default=-1)
ap.add_argument("--dry", type=int, default=0)
ap.add_argument("--nfr", type=int, default=0)
ap.add_argument("--nfdl", type=int, default=32)
ap.add_argument("--nfo", type=int, default=0)
ap.add_argument("--nfw", type=int, default=0)
ap.add_argument("--thx", type=str, default="")
ap.add_argument("--lb", type=int, default=0)
a = ap.parse_args()
THX = [int(x, 0) for x in a.thx.split(",")] if a.thx else None
sTH = 3
def thx(n, d):
    if THX and d:
        l = A.label("Lth")
        A(f"s_cmp_eq_u32 s{sTH}, 0\ns_cbranch_scc1 {l}\ns_waitcnt vmcnt({n-1-d})\n{l}:")

PN = " nt" if a.pnt & 1 else ""
FN = " nt" if a.pnt & 2 else ""
XN = " nt" if a.pnt & 4 else ""
WIN = [int(x) for x in a.win.split(",")] if a.win else None
if a.dbg: a.stamps = 1

A = Asm()
NW = 12 if a.lat else 11
A.header(256, 64 * NW, a.lds)

QBOX = 0x10000
OBOX = 0x40000
SBOX = 0x70000
FBOX = 0x80000
RBOX = 0x78000
VBOX = 0x7a000
STAMP = 0x8000000
L_PW, L_PK, L_PV = 0, 16, 32
L_QF = 48
L_MX = 64
L_LS = 96
L_FF = 128
L_FFLAG = 144
L_MODE = 148
L_OF = 160
L_PF = 176
L_KI = 192
L_VT = 192
L_DN = 208
L_ST = 2048
L_Q = 256
L_P = 640
L_O = 1152
sH, sJ, sP, sHH = 4, 5, 6, 7
sX, sK, sV, sWQ, sWO = 12, 14, 16, 18, 20
sWSP = 22
sWAVE = 24
sT = 25
sSPIN = 26
sC = 27
WS = 28
SR = 32
sOFF = 36
sTMP, sTMP2, sTMP3 = 37, 38, 39
sSEL = 40
sSELA, sSELB = 44, 45
sFL = sT
SR2 = 48
sM = 52
sNEED, sHAVE = 56, 57
sMODE, sCNT = 58, 59
sXCC = 60
sRB, sRI = 62, 63
sDRY = 61
sST = 64
vL = 0
vOFF = 1
vAD = 2
vT = 3
vACC = 4
vA0, vA1 = 8, 12
vSEL = 16
vCO = 24
vD = 40

nstamp = [0]
def stamp(k):
    if a.stamps:
        A(f"s_memrealtime s[{sST+2*k}:{sST+2*k+1}]")

def thr(n):
    if a.thr and n >= a.thr:
        A(f"s_waitcnt vmcnt({a.thr-1})")

def prio(p):
    if a.prio:
        A(f"s_setprio {p}")

def spin_tail(loop, sleep=1):
    if sleep:
        A(f"s_sleep {sleep}")
    A(f"s_sub_u32 s{sSPIN}, s{sSPIN}, 1\ns_cbranch_scc0 {loop}\ns_branch L_end")

def lds_wait(off, positions, nread, vt):
    if a.nopoll >= 2: return
    lp = A.label("Lw"); dn = A.label("Lwd")
    vz = vt + nread + 1
    vx = vt + nread
    A(f"v_mov_b32 v{vz}, 0")
    A(f"{lp}:")
    k = 0
    while k < nread:
        n = min(4, nread - k)
        op = {1: "ds_read_b32", 2: "ds_read_b64", 4: "ds_read_b128"}[n]
        reg = f"v{vt+k}" if n == 1 else f"v[{vt+k}:{vt+k+n-1}]"
        A(f"{op} {reg}, v{vz} offset:{off+4*k}")
        k += n
    A("s_waitcnt lgkmcnt(0)")
    first = True
    for p in positions:
        if first:
            A(f"v_xor_b32 v{vx}, s{sFL}, v{vt+p}")
            first = False
        else:
            A(f"v_xor_b32 v{vz}, s{sFL}, v{vt+p}\nv_or_b32 v{vx}, v{vx}, v{vz}")
    A(f"v_mov_b32 v{vz}, 0")
    A(f"v_cmp_ne_u32 vcc, 0, v{vx}")
    A(f"s_cmp_eq_u64 vcc, 0\ns_cbranch_scc1 {dn}")
    spin_tail(lp, a.lsleep)
    A(f"{dn}:")

def gate_init(widx, NP, vz):
    A(f"s_add_u32 s{sNEED}, s{widx}, 1\ns_mul_i32 s{sNEED}, s{sNEED}, {NP}\ns_mov_b32 s{sHAVE}, 0\nv_mov_b32 v{vz}, 0")

def gate(loff, kS, NP, NS, vz, vt):
    lp = A.label("Lg"); go = A.label("Lgo")
    A(f"{lp}:\ns_cmp_ge_u32 s{sHAVE}, s{sNEED}\ns_cbranch_scc1 {go}")
    if a.x1: A("s_mov_b64 exec, 1")
    A(f"ds_read_b128 v[{vt}:{vt+3}], v{vz} offset:{loff}\ns_waitcnt lgkmcnt(0)")
    A(f"v_add3_u32 v{vt}, v{vt}, v{vt+1}, v{vt+2}\nv_add_u32 v{vt}, v{vt}, v{vt+3}\ns_nop 0\nv_readfirstlane_b32 s{sHAVE}, v{vt}")
    if a.x1: A("s_mov_b64 exec, -1")
    A(f"s_mul_i32 s{sHAVE}, s{sHAVE}, {NS}\ns_cmp_ge_u32 s{sHAVE}, s{sNEED}\ns_cbranch_scc1 {go}")
    spin_tail(lp, a.gsleep)
    A(f"{go}:\ns_add_u32 s{sNEED}, s{sNEED}, {kS*NP}")

def credit(loff, vaddr, vval, n):
    A(f"v_mov_b32 v{vval}, {n}\nds_write_b32 v{vaddr}, v{vval} offset:{loff}")

def lds_flag(off, vtmp):
    A(f"v_mov_b32 v{vtmp}, 0\nds_write_b32 v{vtmp}, v{vT} offset:{off}")

def get_T():
    A("s_waitcnt lgkmcnt(0)")
    A(f"s_mul_i32 s{sT}, s{sT}, 0x9E3779B1\ns_add_u32 s{sT}, s{sT}, 0x7F4A7C15\ns_andn2_b32 s{sT}, s{sT}, 15\ns_or_b32 s{sT}, s{sT}, 8\ns_or_b32 s{sT}, s{sT}, s{sXCC}")
    A(f"v_mov_b32 v{vT}, s{sT}")

def make_selectors():
    t0, t1, t2, t3 = vA0, vA0 + 1, vA0 + 2, vA0 + 3
    A(f"v_bfe_u32 v{t0}, v{vL}, 2, 2")
    A(f"v_bfe_u32 v{t1}, v{vL}, 1, 1")
    A(f"v_cmp_eq_u32 vcc, 1, v{t1}")
    A(f"v_mov_b32 v{t2}, 0x0c0c0100\nv_mov_b32 v{t3}, 0x01000c0c")
    A(f"v_cndmask_b32 v{t2}, v{t2}, v{t3}, vcc")
    A(f"v_mov_b32 v{t1}, 0x0c0c0302\nv_mov_b32 v{t3}, 0x03020c0c")
    A(f"v_cndmask_b32 v{t3}, v{t1}, v{t3}, vcc")
    A(f"v_mov_b32 v{t1}, 0x0c0c0c0c")
    for t in range(4):
        A(f"v_cmp_eq_u32 vcc, {t}, v{t0}\ns_nop 1")
        A(f"v_cndmask_b32 v{vSEL+2*t}, v{t1}, v{t2}, vcc\nv_cndmask_b32 v{vSEL+2*t+1}, v{t1}, v{t3}, vcc")

def build_A(b, buf):
    src = vCO + b // 2
    for t in range(4):
        A(f"v_perm_b32 v{buf+t}, v{src}, v{src}, v{vSEL+2*t+(b&1)}")

def diag_gemv(nb, extra_after=0, win=None, hook=None):
    build_A(0, vA0)
    for b in range(nb):
        if b + 1 < nb:
            build_A(b + 1, vA1 if (b & 1) == 0 else vA0)
        else:
            A("s_nop 1")
        A(f"s_waitcnt vmcnt({min(nb-1-b, (win or nb)-1)+extra_after})")
        if hook: hook(b)
        buf = vA0 if (b & 1) == 0 else vA1
        c = "0" if b == 0 else f"v[{vACC}:{vACC+3}]"
        A(f"v_mfma_f32_16x16x32_bf16 v[{vACC}:{vACC+3}], v[{buf}:{buf+3}], v[{vD+4*b}:{vD+4*b+3}], {c}")

def combine(g):
    A("s_nop 7")
    A(f"v_add_f32_dpp v{g}, v{vACC+1}, v{vACC} row_ror:8 row_mask:0xf bank_mask:0xf")
    A(f"v_add_f32_dpp v{g+1}, v{vACC+3}, v{vACC+2} row_ror:8 row_mask:0xf bank_mask:0xf")
    A(f"v_mov_b32 v{g+2}, 0\nv_mov_b32 v{g+3}, 0")
    A("s_nop 1")
    A(f"v_permlane16_swap_b32 v{g}, v{g+2}\nv_permlane16_swap_b32 v{g+1}, v{g+3}")
    A("s_nop 1")
    for k in range(4):
        A(f"v_perm_b32 v{g+k}, v{g+k}, v{vT}, s{sSEL+k}")

def poll(g, voff, soff, sleep=0, depth=None, gap=None, on_timeout=None, lfl=None, after_first=None):
    if a.nopoll >= 1: return
    depth = depth or a.pdepth
    gap = a.pgap if gap is None else gap
    lp = A.label("Lp"); dn = A.label("Lpd")
    sets = [g + 8 + 4 * k for k in range(depth)]
    def issue(r):
        A(f"buffer_load_dwordx4 v[{r}:{r+3}], v{voff}, s[{WS}:{WS+3}], s{soff} offen sc1{PN if lfl is None else lfl}")
    for k in range(depth - 1):
        issue(sets[k])
        if k == 0 and after_first: after_first()
        if gap: A(f"s_sleep {gap}")
    if on_timeout: A(f"s_mov_b32 s{sCNT}, 0")
    A(f"{lp}:")
    fins = []
    for k in range(depth):
        issue(sets[(k + depth - 1) % depth])
        r = sets[k]
        A(f"s_waitcnt vmcnt({depth-1})")
        A(f"v_perm_b32 v{g+4}, v{r+1}, v{r}, s{sSELA}\nv_perm_b32 v{g+5}, v{r+3}, v{r+2}, s{sSELB}")
        A(f"v_or_b32 v{g+4}, v{g+4}, v{g+5}\nv_xor_b32 v{g+4}, s{sT}, v{g+4}")
        A(f"v_cmp_lt_u32 vcc, 7, v{g+4}")
        fl = A.label("Lpf"); fins.append((fl, r))
        A(f"s_cmp_eq_u64 vcc, 0\ns_cbranch_scc1 {fl}")
    if on_timeout:
        A(f"s_add_u32 s{sCNT}, s{sCNT}, 1\ns_cmp_lg_u32 s{sCNT}, {a.nt}\ns_cbranch_scc1 {lp}_t")
        on_timeout()
        A(f"{lp}_t:")
    spin_tail(lp, 0)
    for i, (fl, r) in enumerate(fins):
        A(f"{fl}:")
        for k in range(4):
            A(f"v_mov_b32 v{g+k}, v{r+k}")
        if i < len(fins) - 1: A(f"s_branch {dn}")
    A(f"{dn}:")
    A("s_nop 1")

def lds_mode(vz, vr):
    A(f"v_mov_b32 v{vz}, 0\nds_read_b32 v{vr}, v{vz} offset:{L_MODE}")

def publish_gather(box, ldsdst, ldsflag, fscale, g=vD, h=None):
    combine(g)
    A(f"v_and_b32 v{g+8}, 7, v{vL}\nv_lshrrev_b32 v{g+9}, 5, v{vL}\nv_lshl_add_u32 v{g+8}, v{g+8}, 1, v{g+9}\nv_lshlrev_b32 v{g+8}, 4, v{g+8}")
    A(f"s_mul_i32 s{sOFF}, s{sH}, 3072\ns_lshl_b32 s{sTMP}, s{sC}, 10\ns_add_u32 s{sOFF}, s{sOFF}, s{sTMP}\ns_add_u32 s{sOFF}, s{sOFF}, {box}")
    A(f"s_lshl_b32 s{sTMP3}, s{sJ}, 8\ns_add_u32 s{sTMP3}, s{sTMP3}, s{sOFF}")
    def store(fl):
        A("s_mov_b32 exec_lo, 0xff\ns_mov_b32 exec_hi, 0xff")
        A(f"buffer_store_dwordx4 v[{g}:{g+3}], v{g+8}, s[{WS}:{WS+3}], s{sTMP3} offen{fl}")
        A("s_mov_b64 exec, -1")
    if fscale:
        l1 = A.label("Ls"); l2 = A.label("Ls")
        A(f"s_cmp_lg_u32 s{sMODE}, 0\ns_cbranch_scc1 {l1}")
        store("")
        A(f"s_branch {l2}\n{l1}:")
        store(" sc1")
        A(f"{l2}:")
    else:
        store("")
    stamp(3)
    A(f"v_and_b32 v{g+10}, 3, v{vL}\nv_lshrrev_b32 v{g+11}, 2, v{vL}\nv_lshlrev_b32 v{g+12}, 4, v{g+11}\nv_lshl_add_u32 v{g+12}, v{g+10}, 8, v{g+12}")
    if fscale:
        lds_wait(L_FFLAG, [0], 1, g + 16)
        A(f"v_lshlrev_b32 v{g+13}, 2, v{g+10}\nds_read_b32 v{g+13}, v{g+13} offset:{L_FF}")
    h = h or g + 20
    def opf(): A(f"s_lshl_b32 s{sTMP}, s{sC}, 2\nv_mov_b32 v{g+14}, s{sTMP}\nds_write_b32 v{g+14}, v{vT} offset:{L_VT+4}")
    poll(h, g + 12, sOFF, on_timeout=None if fscale else (lambda: store(" sc1")), after_first=opf if fscale and a.rank else None)
    stamp(4)
    if fscale:
        A("s_waitcnt lgkmcnt(0)")
        for k in range(4):
            A(f"v_mul_f32 v{h+k}, v{h+k}, v{g+13}")
    else:
        if a.nopoll: A(f"v_mov_b32 v{h+4}, 0")
        A(f"v_cmp_ne_u32 vcc, 0, v{h+4}\ns_cmp_lg_u64 vcc, 0\ns_cselect_b32 s{sMODE}, 1, 0\nv_mov_b32 v{g+13}, s{sMODE}\nv_mov_b32 v{g+14}, 0")
        l1 = A.label("Ls")
        A(f"s_cbranch_scc0 {l1}")
        store(" sc1")
        A(f"{l1}:")
    for k in range(4):
        A(f"v_add_f32_dpp v{h+4+k}, v{h+k}, v{h+k} quad_perm:[1,0,3,2] row_mask:0xf bank_mask:0xf")
    for k in range(4):
        A(f"v_add_f32_dpp v{h+k}, v{h+4+k}, v{h+4+k} quad_perm:[2,3,0,1] row_mask:0xf bank_mask:0xf")
    A(f"v_cvt_pk_bf16_f32 v{h+4}, v{h}, v{h+1}\nv_cvt_pk_bf16_f32 v{h+5}, v{h+2}, v{h+3}")
    A(f"s_lshl_b32 s{sTMP}, s{sC}, 7\nv_lshlrev_b32 v{g+11}, 3, v{g+11}\nv_add_u32 v{g+11}, s{sTMP}, v{g+11}")
    A(f"s_lshl_b32 s{sTMP}, s{sC}, 2\nv_mov_b32 v{g+10}, s{sTMP}")
    A("s_mov_b32 exec_lo, 0x11111111\ns_mov_b32 exec_hi, 0x11111111")
    A(f"ds_write_b64 v{g+11}, v[{h+4}:{h+5}] offset:{ldsdst}")
    if not fscale:
        A(f"ds_write_b32 v{g+14}, v{g+13} offset:{L_MODE}")
    A(f"ds_write_b32 v{g+10}, v{vT} offset:{ldsflag}")
    A("s_mov_b64 exec, -1")

def coef_addr(vdst, per):
    A(f"v_lshrrev_b32 v{vdst}, 4, v{vL}\nv_and_b32 v{vA0}, 1, v{vL}\nv_lshl_add_u32 v{vdst}, v{vdst}, 1, v{vA0}\nv_mul_u32_u24 v{vdst}, {per}, v{vdst}")

def data_voff(rowstep):
    A(f"v_lshrrev_b32 v{vOFF}, 3, v{vL}\nv_mul_u32_u24 v{vOFF}, {rowstep}, v{vOFF}\nv_and_b32 v{vA0}, 7, v{vL}\nv_lshl_add_u32 v{vOFF}, v{vA0}, 4, v{vOFF}")

def srd(d, lo, n):
    A.srd(d, lo, n)

A("s_cmp_ge_u32 s2, 256\ns_cbranch_scc1 L_done")
stamp(0)
if a.stamps:
    for k in range(2, 18):
        A(f"s_mov_b32 s{sST+k}, 0")
if a.dly:
    dl = a.dly
    if dl[0] == "w":
        dl = dl[1:]; A("s_and_b32 s3, s2, 7")
    else:
        A("s_getreg_b32 s3, hwreg(HW_REG_XCC_ID, 0, 3)")
    dl = [int(x) for x in dl.split(",")]
    lo = sum(v << (8 * i) for i, v in enumerate(dl[:4])); hi = sum(v << (8 * i) for i, v in enumerate(dl[4:]))
    A(f"s_mov_b32 s4, {lo}\ns_mov_b32 s5, {hi}\ns_lshl_b32 s3, s3, 3\ns_lshr_b64 s[4:5], s[4:5], s3\ns_and_b32 s4, s4, 0xff")
    A("L_dl:\ns_sub_u32 s4, s4, 1\ns_cbranch_scc1 L_nd\ns_sleep 2\ns_branch L_dl\nL_nd:")
A(f"s_load_dwordx2 s[{sWSP}:{sWSP+1}], s[0:1], 96")
if a.xmap == 1:
    A(f"s_and_b32 s{sJ}, s2, 3\ns_lshr_b32 s{sH}, s2, 2")
elif a.xmap == 2:
    A(f"s_lshr_b32 s{sH}, s2, 3\ns_and_b32 s{sJ}, s{sH}, 3\ns_cmp_eq_u32 s{sJ}, 3\ns_cselect_b32 s3, 1, 0\ns_add_u32 s3, s3, s2\ns_and_b32 s3, s3, 7\ns_lshr_b32 s{sH}, s{sH}, 2\ns_lshl_b32 s3, s3, 3\ns_add_u32 s{sH}, s{sH}, s3")
else:
    A(f"s_add_u32 s3, s2, {a.rot}\ns_and_b32 s3, s3, 7\ns_lshr_b32 s{sH}, s2, 3\ns_and_b32 s{sJ}, s{sH}, 3\ns_lshr_b32 s{sH}, s{sH}, 2\ns_lshl_b32 s3, s3, 3\ns_add_u32 s{sH}, s{sH}, s3")
A(f"s_lshr_b32 s{sP}, s{sH}, 5\ns_and_b32 s{sHH}, s{sH}, 31")
A(f"s_lshl_b32 s9, s{sP}, 7")
A(f"s_mul_i32 s8, s{sP}, 40\ns_add_u32 s10, s0, s8\ns_addc_u32 s11, s1, 0")
A(f"s_load_dwordx8 s[{sX}:{sX+7}], s[10:11], 0")
A(f"s_load_dwordx2 s[{sWO}:{sWO+1}], s[10:11], 32")
A(f"v_lshrrev_b32 v1, 6, v0\nv_and_b32 v0, 63, v0\nv_readfirstlane_b32 s{sWAVE}, v1")
A(f"s_mov_b32 s{sSPIN}, 200000\ns_getreg_b32 s{sXCC}, hwreg(HW_REG_XCC_ID, 0, 3)")
if THX: A(f"s_lshr_b32 s{sTH}, {THX[0]}, s{sXCC}\ns_and_b32 s{sTH}, s{sTH}, 1")
for k in range(4):
    A(f"s_mov_b32 s{sSEL+k}, {0x07060500 + k:#x}")
A(f"s_mov_b32 s{sSELA}, 0x0c0c0400\ns_mov_b32 s{sSELB}, 0x04000c0c")
if a.pads == 3:
    A(f"s_cmp_lt_u32 s{sWAVE}, 3\ns_cbranch_scc1 L_w")
    A(f"v_lshlrev_b32 v8, 2, v{vL}\nv_mov_b32 v9, 0\ns_cmp_lg_u32 s{sWAVE}, 3\ns_cbranch_scc1 L_nz\nds_write_b32 v8, v9\ns_branch @PAE0@\nL_nz:")
    for w in range(1, 7): A(f"s_cmp_eq_u32 s{sWAVE}, {3+w}\ns_cbranch_scc1 @PAE{w}@")
    A("s_branch @PAE7@")
    A("L_p1done:")
    A(f"s_waitcnt lgkmcnt(0)\ns_load_dword s{sT}, s[{sWSP}:{sWSP+1}], s9\ns_barrier")
    A(f"s_cmp_eq_u32 s{sWAVE}, 3\ns_cbranch_scc1 @PAD0@\ns_cmp_lt_u32 s{sWAVE}, 8\ns_cbranch_scc1 L_k")
    for w in (5, 6): A(f"s_cmp_eq_u32 s{sWAVE}, {3+w}\ns_cbranch_scc1 @PAD{w}@")
    A("s_branch @PAD7@")
    A("L_pdone:")
    A(f"s_cmp_eq_u32 s{sWAVE}, 3\ns_cbranch_scc1 L_aux\ns_branch L_v")
elif a.pads:
    A(f"s_cmp_lt_u32 s{sWAVE}, 3\ns_cbranch_scc1 L_w")
    A(f"v_lshlrev_b32 v8, 2, v{vL}\nv_mov_b32 v9, 0\ns_cmp_lg_u32 s{sWAVE}, 3\ns_cbranch_scc1 L_nz\nds_write_b32 v8, v9\nL_nz:")
    A(f"s_waitcnt lgkmcnt(0)\ns_load_dword s{sT}, s[{sWSP}:{sWSP+1}], s9\ns_barrier")
    if a.pads == 1:
        for w in range(7): A(f"s_cmp_eq_u32 s{sWAVE}, {3+w}\ns_cbranch_scc1 @PAD{w}@")
        A("s_branch @PAD7@")
    A("L_pdone:")
    A(f"""s_cmp_eq_u32 s{sWAVE}, 3
s_cbranch_scc1 L_aux
s_cmp_lt_u32 s{sWAVE}, 8
s_cbranch_scc1 L_k
s_branch L_v""")
else:
    A(f"""s_cmp_lt_u32 s{sWAVE}, 3
s_cbranch_scc1 L_w
s_cmp_eq_u32 s{sWAVE}, 3
s_cbranch_scc1 L_aux
s_cmp_lt_u32 s{sWAVE}, 8
s_cbranch_scc1 L_k
s_cmp_lt_u32 s{sWAVE}, 11
s_cbranch_scc1 L_v
s_branch L_aux""")

A("L_w:")
prio(3)
A(f"s_mov_b32 s{sC}, s{sWAVE}")
A(f"s_mul_i32 s{sOFF}, s{sJ}, {160*12288}\ns_mul_i32 s{sTMP3}, s{sHH}, 384\ns_add_u32 s{sOFF}, s{sOFF}, s{sTMP3}\ns_lshl_b32 s{sTMP3}, s{sC}, 7\ns_add_u32 s{sOFF}, s{sOFF}, s{sTMP3}")
A(f"s_mul_i32 s{sTMP2}, s{sJ}, 320")
for nb in (20,):
    data_voff(nb * 12288)
    if "q" in a.contig:
        A(f"v_lshlrev_b32 v{vOFF}, 4, v{vL}\ns_lshl_b32 s{sOFF}, s{sHH}, 2\ns_add_u32 s{sOFF}, s{sOFF}, s{sJ}\ns_mul_i32 s{sOFF}, s{sOFF}, 3\ns_add_u32 s{sOFF}, s{sOFF}, s{sC}\ns_mul_i32 s{sOFF}, s{sOFF}, 20480")
    coef_addr(vAD, 2 * nb)
    if a.nf == 10:
        A(f"s_lshr_b32 s{sRB}, s2, 4\ns_lshl_b32 s{sRB}, s{sRB}, 14\ns_and_b32 s{sRI}, s2, 15\ns_lshl_b32 s{sRI}, s{sRI}, 9\ns_add_u32 s{sRB}, s{sRB}, s{sRI}\ns_add_u32 s{sRB}, s{sRB}, {FBOX + 20*16384}")
        A(f"s_and_b32 s{sRI}, s{sJ}, 1\ns_lshl_b32 s{sRI}, s{sRI}, 13\ns_add_u32 s{sRB}, s{sRB}, s{sRI}\ns_xor_b32 s{sRI}, s{sRB}, 8192\nv_mov_b32 v165, 0\ns_mov_b32 s{WS+2}, 0x10000000\ns_mov_b32 s{WS+3}, 0x00020000\ns_cmp_lg_u32 s{sC}, 0")
    A("s_waitcnt lgkmcnt(0)")
    if a.nf == 10:
        A(f"s_mov_b32 s{WS}, s{sWSP}\ns_cbranch_scc1 L_wnp\ns_and_b32 s{WS+1}, s{sWSP+1}, 0xffff\ns_mov_b64 exec, 1")
        A(f"buffer_load_dword v166, v165, s[{WS}:{WS+3}], s{sRB} offen {a.nfp}\nbuffer_load_dword v167, v165, s[{WS}:{WS+3}], s{sRI} offen {a.nfp}\ns_mov_b64 exec, -1\nL_wnp:")
    if a.pro: stamp(5)
    A(f"s_load_dword s{sT}, s[{sWSP}:{sWSP+1}], s9")
    srd(SR, sWQ, 640 * 12288)
    srd(SR2, sX, 1280)
    for k in range(nb // 8):
        A(f"buffer_load_dwordx4 v[{vCO+4*k}:{vCO+4*k+3}], v{vAD}, s[{SR2}:{SR2+3}], s{sTMP2} offen offset:{16*k}{XN}")
    A(f"buffer_load_dwordx2 v[{vCO+8}:{vCO+9}], v{vAD}, s[{SR2}:{SR2+3}], s{sTMP2} offen offset:32{XN}")
    nw = WIN[0] if WIN else nb
    def wq_load(b):
        A(f"buffer_load_dwordx4 v[{vD+4*b}:{vD+4*b+3}], v{vOFF}, s[{SR}:{SR+3}], s{sOFF} offen nt")
        if b < nb - 1: A(f"s_add_u32 s{sOFF}, s{sOFF}, {1024 if 'q' in a.contig else 12288}")
    for b in range(nw):
        thr(b)
        wq_load(b)
    stamp(1)
    if not a.lb: A("s_barrier")
    srd(WS, sWSP, 0x10000000)
    make_selectors()
    if a.nf == 10:
        A(f"s_cmp_lg_u32 s{sC}, 0\ns_cbranch_scc1 L_wnq\ns_waitcnt vmcnt({nw+4})")
        A(f"s_sleep {a.nfs}" if a.nfs > 0 else f"s_nop {-a.nfs}")
        A(f"s_getreg_b32 s{sRI}, hwreg(HW_REG_IB_STS, 0, 4)\ns_bitcmp1_b32 s{sJ}, 0\ns_cselect_b32 s{sRB}, 0, 16\ns_cmp_eq_u32 s{sRI}, {nw+4}\ns_cselect_b32 s{sRB}, s{sRB}, 32\nL_wnq:")
    get_T()
    if a.lb == 1: A("s_barrier")
    A(f"s_waitcnt vmcnt({nw})")
    if a.pro:
        A(f"s_waitcnt vmcnt({nw-1})")
        stamp(6)
    if WIN:
        A(f"s_lshl_b32 s{sTMP}, s{sC}, 2\nv_mov_b32 v{vAD}, s{sTMP}")
        def hook(b):
            if a.lb >= 2 and b == a.lb - 2 + 1: A("s_barrier")
            if b + nw < nb: wq_load(b + nw)
            else: credit(L_PW, vAD, vCO - 1 - 0 if False else 164, b + nw - nb + 1)
        diag_gemv(nb, win=nw, hook=hook)
    else:
        diag_gemv(nb)
stamp(2)
publish_gather(QBOX, L_Q, L_QF, False, g=vD, h=136)
if not a.pro: stamp(5)
if a.nf == 10:
    A(f"s_cmp_lg_u32 s{sC}, 0\ns_cbranch_scc1 L_wnv\ns_xor_b32 s{sRB}, s{sRB}, s{sT}\nv_mov_b32 v166, s{sRB}\ns_lshl_b32 s{sRI}, s{sXCC}, 10\ns_add_u32 s{sRI}, s{sRI}, {VBOX}\ns_lshl_b32 s{sTMP}, s2, 2\nv_mov_b32 v165, s{sTMP}")
    A(f"s_mov_b64 exec, 1\nbuffer_store_dword v166, v165, s[{WS}:{WS+3}], s{sRI} offen\ns_mov_b64 exec, -1\nL_wnv:")
A("L_wo:")
vF = 160
A(f"s_lshl_b32 s{sTMP}, s{sC}, 2\nv_mov_b32 v{vF+1}, s{sTMP}")
A(f"{'s_lshr_b32' if a.lmap else 's_and_b32'} s{sTMP}, s{sJ}, 1\ns_add_u32 s{sTMP}, s{sTMP}, s{sC}\ns_cmp_eq_u32 s{sTMP}, 3\ns_cbranch_scc1 L_w_fin")
prio(0)
if a.dry & 1: A(f"s_mov_b32 s{sDRY}, 1\ns_branch L_fc\nL_fcb:\ns_mov_b32 s{sDRY}, 0")
srd(SR, sWO, 6144 * 1280)
data_voff(8 * 1280 if a.slab else 24 * 1280)
if a.lmap: A(f"s_mul_i32 s{sTMP}, s{sJ}, 3\ns_add_u32 s{sM}, s{sJ}, 1\ns_lshr_b32 s{sM}, s{sM}, 2\ns_sub_u32 s{sTMP}, s{sTMP}, s{sM}\ns_add_u32 s{sM}, s{sTMP}, s{sC}")
else: A(f"s_mul_i32 s{sTMP}, s{sJ}, 5\ns_add_u32 s{sTMP}, s{sTMP}, 1\ns_lshr_b32 s{sTMP}, s{sTMP}, 1\ns_add_u32 s{sM}, s{sTMP}, s{sC}")
A(f"s_mul_i32 s{sOFF}, s{sHH}, {192*1280}\ns_lshl_b32 s{sTMP}, s{sM}, 7\ns_add_u32 s{sOFF}, s{sOFF}, s{sTMP}")
if "o" in a.contig:
    A(f"v_lshlrev_b32 v{vOFF}, 4, v{vL}\ns_mul_i32 s{sOFF}, s{sHH}, 10\ns_add_u32 s{sOFF}, s{sOFF}, s{sM}\ns_mul_i32 s{sOFF}, s{sOFF}, 24576")
if WIN: gate_init(sC, 3 * WIN[2], vCO)
def wo_issue(nO, kS):
    rest = [A.label("Lb") for b in range(24)]
    for b in range(24):
        thr(b)
        if WIN:
            if b < nO: gate(L_PV, kS, 3 * WIN[2], kS * nO, vCO, vCO + 4)
            else:
                if a.boost:
                    t = vCO + 4
                    if THX and THX[4] & 2:
                        lnb = A.label("Lnb"); A(f"s_cmp_lg_u32 s{sTH}, 0\ns_cbranch_scc1 {lnb}")
                    A(f"ds_read_b128 v[{t}:{t+3}], v{vCO} offset:{L_OF}\ns_waitcnt lgkmcnt(0)")
                    op = "v_or3_b32" if a.boost == 2 else None
                    if a.boost == 1:
                        A(f"v_and_b32 v{t}, v{t}, v{t+1}\nv_and_or_b32 v{t}, v{t}, v{t+2}, v{t+3}")
                    else:
                        A(f"v_or3_b32 v{t}, v{t}, v{t+1}, v{t+2}")
                    A(f"v_cmp_ne_u32 vcc, 0, v{t}\ns_cbranch_vccnz {rest[b]}")
                    if THX and THX[4] & 2: A(f"{lnb}:")
                A(f"s_waitcnt vmcnt({nO-1})")
            if THX and b >= nO - THX[3]: thx(nO, THX[3])
        A(f"buffer_load_dwordx4 v[{vD+4*b}:{vD+4*b+3}], v{vOFF}, s[{SR}:{SR+3}], s{sOFF} offen nt")
        if b < 23: A(f"s_add_u32 s{sOFF}, s{sOFF}, {1024 if 'o' in a.contig else (57 * 1280 if a.slab and b % 8 == 7 else 1280)}")
    if a.boost and WIN:
        A("s_branch L_wo_j")
        for b in range(nO, 24):
            A(f"{rest[b]}:")
            A(f"buffer_load_dwordx4 v[{vD+4*b}:{vD+4*b+3}], v{vOFF}, s[{SR}:{SR+3}], s{sOFF} offen nt")
            if b < 23: A(f"s_add_u32 s{sOFF}, s{sOFF}, {1024 if 'o' in a.contig else (57 * 1280 if a.slab and b % 8 == 7 else 1280)}")
        A("s_branch L_wo_j")
    return
    for b in range(24):
        A(f"buffer_load_dwordx4 v[{vD+4*b}:{vD+4*b+3}], v{vOFF}, s[{SR}:{SR+3}], s{sOFF} offen nt")
        if b < 23: A(f"s_add_u32 s{sOFF}, s{sOFF}, {1024 if 'o' in a.contig else (57 * 1280 if a.slab and b % 8 == 7 else 1280)}")
if a.wj:
    assert a.boost
    wj = [int(x) for x in a.wj.split(",")]
    for jj in range(4):
        heavy = (jj < 2) if a.lmap else (jj % 2 == 0)
        if jj < 3: A(f"s_cmp_lg_u32 s{sJ}, {jj}\ns_cbranch_scc1 L_wj{jj}")
        wo_issue(wj[jj], 3 if heavy else 2)
        A(f"L_wj{jj}:")
elif a.no2:
    A(f"s_bitcmp1_b32 s{sJ}, {1 if a.lmap else 0}\ns_cbranch_scc0 L_wo_e")
    wo_issue(a.no2, a.ks2)
    A("s_branch L_wo_j\nL_wo_e:")
if not a.wj: wo_issue(WIN[3] if WIN else 24, 3)
A("L_wo_j:")
prio(3)
if not a.pro: stamp(6)
coef_addr(vAD, 16 if a.slab else 48)
if a.fp:
    gp = a.fp // 16; lg = gp.bit_length() - 1
    A(f"v_and_b32 v{vF}, 7, v{vL}\nv_lshrrev_b32 v{vF+2}, 5, v{vL}\nv_lshl_add_u32 v{vF}, v{vF}, 1, v{vF+2}")
    A(f"v_and_b32 v{vF+2}, {gp-1}, v{vF}\nv_lshrrev_b32 v{vF}, {lg}, v{vF}\nv_mul_u32_u24 v{vF}, {32*a.fp}, v{vF}\nv_lshl_add_u32 v{vF}, v{vF+2}, 4, v{vF}")
    A(f"s_mul_i32 s{sOFF}, s{sP}, 10\ns_add_u32 s{sOFF}, s{sOFF}, s{sM}\ns_lshl_b32 s{sOFF}, s{sOFF}, {14 if a.nf else 13}\ns_mul_i32 s{sTMP}, s{sHH}, {a.fp}\ns_add_u32 s{sOFF}, s{sOFF}, s{sTMP}\ns_add_u32 s{sOFF}, s{sOFF}, {FBOX}")
else:
    A(f"v_and_b32 v{vF}, 7, v{vL}\nv_lshrrev_b32 v{vF+2}, 5, v{vL}\nv_lshlrev_b32 v{vF}, 10, v{vF}\nv_lshl_add_u32 v{vF}, v{vF+2}, 9, v{vF}")
    A(f"s_lshl_b32 s{sTMP}, s{sP}, 2\ns_add_u32 s{sTMP}, s{sTMP}, s{sJ}\ns_mul_i32 s{sOFF}, s{sTMP}, 24576\ns_lshl_b32 s{sTMP}, s{sHH}, 4\ns_add_u32 s{sOFF}, s{sOFF}, s{sTMP}\ns_lshl_b32 s{sTMP}, s{sC}, 13\ns_add_u32 s{sOFF}, s{sOFF}, s{sTMP}\ns_add_u32 s{sOFF}, s{sOFF}, {FBOX}")
if a.slab:
    vfl = vCO + 12
    A(f"v_mov_b32 v{vF+2}, 0\ns_mov_b32 s{sM}, 7")
    for k in range(4): A(f"v_mov_b32 v{vACC+k}, 0")
    A("L_kl:")
    A(f"ds_read_b128 v[{vfl}:{vfl+3}], v{vF+2} offset:{L_OF}")
    for c in range(3): A(f"ds_read_b128 v[{vCO+4*c}:{vCO+4*c+3}], v{vAD} offset:{L_O+128*c}")
    A("s_waitcnt lgkmcnt(0)")
    for c in range(3): A(f"v_readfirstlane_b32 s{sTMP+c}, v{vfl+c}")
    for c in range(3):
        A(f"s_bitcmp0_b32 s{sM}, {c}\ns_cbranch_scc1 L_kn{c}")
        if a.nopoll < 2: A(f"s_cmp_lg_u32 s{sTMP+c}, s{sT}\ns_cbranch_scc1 L_kn{c}")
        A(f"s_bitset0_b32 s{sM}, {c}")
        def bA(b, buf):
            for t in range(4): A(f"v_perm_b32 v{buf+t}, v{vCO+4*c+b//2}, v{vCO+4*c+b//2}, v{vSEL+2*t+(b&1)}")
        bA(0, vA0)
        for b in range(8):
            if b < 7: bA(b + 1, vA1 if (b & 1) == 0 else vA0)
            else: A("s_nop 1")
            buf = vA0 if (b & 1) == 0 else vA1
            n = 8 * c + b
            A(f"s_waitcnt vmcnt({23-n})")
            A(f"v_mfma_f32_16x16x32_bf16 v[{vACC}:{vACC+3}], v[{buf}:{buf+3}], v[{vD+4*n}:{vD+4*n+3}], v[{vACC}:{vACC+3}]")
        A(f"L_kn{c}:")
    A(f"s_cmp_eq_u32 s{sM}, 0\ns_cbranch_scc1 L_kd")
    spin_tail("L_kl", a.wsl)
    A("L_kd:")
else:
    lds_wait(L_OF, [0, 1, 2], 4, vCO)
    for k in range(3):
        A(f"ds_read_b128 v[{vCO+4*k}:{vCO+4*k+3}], v{vAD} offset:{L_O+16*k}")
    A("s_waitcnt lgkmcnt(0)")
    A("L_fc:")
    diag_gemv(24)
combine(vCO)
if a.dry & 1: A(f"s_cmp_lg_u32 s{sDRY}, 0\ns_cbranch_scc1 L_fcb")
A("s_mov_b32 exec_lo, 0xff\ns_mov_b32 exec_hi, 0xff")
if a.nofin != 1: A(f"buffer_store_dwordx4 v[{vCO}:{vCO+3}], v{vF}, s[{WS}:{WS+3}], s{sOFF} offen{'' if a.nofin == 3 else ' sc1'}")
if a.nf and a.nofin != 1: A(f"s_add_u32 s{sOFF}, s{sOFF}, 8192\nbuffer_store_dwordx4 v[{vCO}:{vCO+3}], v{vF}, s[{WS}:{WS+3}], s{sOFF} offen sc1")
A("s_mov_b64 exec, -1")
A("L_w_fin:")
A(f"ds_write_b32 v{vF+1}, v{vT} offset:{L_PF}")
stamp(7)
A("s_branch L_end")

A("L_k:")
prio(2)
A(f"s_sub_u32 s{sC}, s{sWAVE}, 4")
A(f"v_and_b32 v{vOFF}, 7, v{vL}\nv_mul_u32_u24 v{vOFF}, 384, v{vOFF}\nv_bfe_u32 v8, v{vL}, 3, 1\nv_lshl_add_u32 v{vOFF}, v8, 6, v{vOFF}\nv_lshrrev_b32 v8, 4, v{vL}\nv_lshl_add_u32 v{vOFF}, v8, 4, v{vOFF}")
A(f"v_and_b32 v{vAD}, 1, v{vL}\nv_lshlrev_b32 v{vAD}, 6, v{vAD}\nv_lshl_add_u32 v{vAD}, v8, 4, v{vAD}")
A(f"s_mul_i32 s{sOFF}, s{sHH}, 1572864\ns_mul_i32 s{sTMP}, s{sJ}, 98304\ns_add_u32 s{sOFF}, s{sOFF}, s{sTMP}\ns_mul_i32 s{sTMP}, s{sC}, 24576\ns_add_u32 s{sOFF}, s{sOFF}, s{sTMP}\ns_add_u32 s{sOFF}, s{sOFF}, {3072*384}")
if not a.pads:
    A("s_waitcnt lgkmcnt(0)")
    A(f"s_load_dword s{sT}, s[{sWSP}:{sWSP+1}], s9")
srd(SR, sK, 50331648)
srd(WS, sWSP, 0x10000000)
if not a.pads: A("s_barrier")
get_T()
if WIN: gate_init(sC, 3 * WIN[0], 24)
krest = [A.label("Lkb") for b in range(24)]
def k_load(t):
    A(f"buffer_load_dwordx4 v[{vD+4*t}:{vD+4*t+3}], v{vOFF}, s[{SR}:{SR+3}], s{sOFF} offen offset:{128*(t%3)} nt")
    if t % 3 == 2 and t < 23: A(f"s_add_u32 s{sOFF}, s{sOFF}, 3072")
for t in range(24):
    thr(t)
    if WIN:
        if t < WIN[1]: gate(L_PW, 4, 3 * WIN[0], 4 * WIN[1], 24, 28)
        else:
            if a.kboost:
                A(f"ds_read_b128 v[28:31], v24 offset:{L_QF}\ns_waitcnt lgkmcnt(0)\nv_and_b32 v28, v28, v29\nv_and_b32 v28, v28, v30\nv_cmp_ne_u32 vcc, 0, v28\ns_cbranch_vccnz {krest[t]}")
            A(f"s_waitcnt vmcnt({WIN[1]-1})")
        if THX and t >= WIN[1] - THX[1]: thx(WIN[1], THX[1])
    k_load(t)
if a.kboost:
    A("s_branch L_kb_j")
    for t in range(WIN[1], 24):
        if t >= a.kboost: A(f"s_waitcnt vmcnt({a.kboost-1})")
        A(f"{krest[t]}:")
        k_load(t)
    A("L_kb_j:")
if WIN:
    prio(3)
    A(f"s_lshl_b32 s{sTMP}, s{sC}, 2\nv_mov_b32 v8, s{sTMP}")
    for i in range(WIN[1]):
        A(f"s_waitcnt vmcnt({WIN[1]-1-i})")
        credit(L_PK, 8, 9, i + 1)
elif a.g2:
    A(f"s_lshl_b32 s{sTMP}, s{sC}, 2\nv_mov_b32 v8, s{sTMP}\nds_write_b32 v8, v{vT} offset:{L_KI}")
prio(3)
stamp(1)
vQ = 8
vS = 136
lds_wait(L_QF, [0, 1, 2], 4, 24)
stamp(2)
for u in range(3):
    A(f"ds_read_b128 v[{vQ+4*u}:{vQ+4*u+3}], v{vAD} offset:{L_Q+128*u}")
A("s_waitcnt lgkmcnt(0)")
s_ = 24
for t in range(24):
    G, u = divmod(t, 3)
    A(f"s_waitcnt vmcnt({23-t})")
    c = "0" if u == 0 else f"v[{vS+4*G}:{vS+4*G+3}]"
    A(f"v_mfma_f32_16x16x32_bf16 v[{vS+4*G}:{vS+4*G+3}], v[{vQ+4*u}:{vQ+4*u+3}], v[{vD+4*t}:{vD+4*t+3}], {c}")
stamp(3)
A("s_nop 7")
for G in range(8):
    d0, d1 = vS + 4 * G, vS + 4 * G + 1
    if G & 1:
        A(f"v_add_f32_dpp v{s_}, v{d0}, v{d1} row_ror:8 row_mask:{1 << (G >> 1):#x} bank_mask:0xc")
    else:
        A(f"v_add_f32_dpp v{s_}, v{d1}, v{d0} row_ror:8 row_mask:{1 << (G >> 1):#x} bank_mask:0x3")
A(f"v_cvt_pk_bf16_f32 v{s_}, v{s_}, v{s_}\nv_lshlrev_b32 v{s_}, 16, v{s_}")
A(f"v_mul_f32 v{s_}, 0x3d93cd3a, v{s_}")
A(f"v_cvt_pk_bf16_f32 v{s_}, v{s_}, v{s_}\nv_lshlrev_b32 v{s_}, 16, v{s_}")
def wave_reduce(op, v):
    for d in ["row_shr:1", "row_shr:2", "row_shr:4", "row_shr:8"]:
        A(f"s_nop 1\n{op}_dpp v{v}, v{v}, v{v} {d} row_mask:0xf bank_mask:0xf")
    A(f"s_nop 1\n{op}_dpp v{v}, v{v}, v{v} row_bcast:15 row_mask:0xa bank_mask:0xf")
    A(f"s_nop 1\n{op}_dpp v{v}, v{v}, v{v} row_bcast:31 row_mask:0xc bank_mask:0xf")
A(f"v_mov_b32 v{s_+1}, v{s_}")
wave_reduce("v_max_f32", s_ + 1)
A(f"s_nop 0\nv_readlane_b32 s{sTMP}, v{s_+1}, 63")
A(f"s_lshl_b32 s{sTMP2}, s{sC}, 3\nv_mov_b32 v{s_+4}, s{sTMP2}\nv_mov_b32 v{s_+2}, s{sTMP}\nv_mov_b32 v{s_+3}, s{sT}")
A(f"ds_write_b64 v{s_+4}, v[{s_+2}:{s_+3}] offset:{L_MX}")
lds_wait(L_MX, [1, 3, 5, 7], 8, s_ + 8)
A(f"v_max_f32 v{s_+8}, v{s_+8}, v{s_+10}\nv_max3_f32 v{s_+8}, v{s_+8}, v{s_+12}, v{s_+14}")
A(f"v_sub_f32 v{s_}, v{s_}, v{s_+8}\nv_mul_f32 v{s_}, 0x3fb8aa3b, v{s_}\nv_exp_f32 v{s_}, v{s_}\ns_nop 0")
A(f"v_cvt_pk_bf16_f32 v{s_+1}, v{s_}, v{s_}")
A(f"s_lshl_b32 s{sTMP}, s{sC}, 7\nv_lshlrev_b32 v{s_+5}, 1, v{vL}\nv_add_u32 v{s_+5}, s{sTMP}, v{s_+5}")
A(f"ds_write_b16 v{s_+5}, v{s_+1} offset:{L_P}")
wave_reduce("v_add_f32", s_)
A(f"s_nop 0\nv_readlane_b32 s{sTMP}, v{s_}, 63\ns_nop 1\nv_mov_b32 v{s_+2}, s{sTMP}")
A(f"ds_write_b64 v{s_+4}, v[{s_+2}:{s_+3}] offset:{L_LS}")
stamp(4)
A("s_branch L_end")

A("L_v:")
prio(1)
A(f"s_sub_u32 s{sC}, s{sWAVE}, 8")
data_voff(384 if a.near else 32 * 384)
A(f"s_mul_i32 s{sOFF}, s{sHH}, 1572864\ns_mul_i32 s{sTMP}, s{sJ}, 98304\ns_add_u32 s{sOFF}, s{sOFF}, s{sTMP}\ns_lshl_b32 s{sTMP}, s{sC}, 7\ns_add_u32 s{sOFF}, s{sOFF}, s{sTMP}\ns_add_u32 s{sOFF}, s{sOFF}, {3072*384}")
if "k" in a.contig:
    data_voff(384)
    A(f"s_mul_i32 s{sTMP}, s{sC}, {30720-128}\ns_add_u32 s{sOFF}, s{sOFF}, s{sTMP}")
if "v" in a.contig:
    A(f"v_lshlrev_b32 v{vOFF}, 4, v{vL}\ns_mul_i32 s{sTMP}, s{sC}, {32768-128}\ns_add_u32 s{sOFF}, s{sOFF}, s{sTMP}")
if not a.pads:
    A("s_waitcnt lgkmcnt(0)")
    A(f"s_load_dword s{sT}, s[{sWSP}:{sWSP+1}], s9")
srd(SR, sV, 50331648)
srd(WS, sWSP, 0x10000000)
if not a.pads: A("s_barrier")
get_T()
if WIN:
    gate_init(sC, 4 * WIN[1], vCO)
elif a.g2:
    lds_wait(L_KI, [0, 1, 2, 3], 4, vCO)
if WIN:
    make_selectors()
    coef_addr(vAD, 64)
vrest = [A.label("Lvb") for b in range(32)]
def v_load(b):
    A(f"buffer_load_dwordx4 v[{vD+4*b}:{vD+4*b+3}], v{vOFF}, s[{SR}:{SR+3}], s{sOFF} offen offset:{384*(b%8)} nt")
    if b % 8 == 7 and b < 31: A(f"s_add_u32 s{sOFF}, s{sOFF}, 3072")
    if a.rank and b == a.vr: A(f"ds_write_b32 v{vCO}, v{vT} offset:{L_VT}")
for b in range(32):
    thr(b)
    if WIN:
        if b < WIN[2]: gate(L_PK, 3, 4 * WIN[1], 3 * WIN[2], vCO, vCO + 4)
        else:
            if a.vboost:
                t = vCO + 4
                if a.vtrig == 0:
                    if THX and THX[4] & 1:
                        lnb = A.label("Lnb"); A(f"s_cmp_lg_u32 s{sTH}, 0\ns_cbranch_scc1 {lnb}")
                    A(f"ds_read_b32 v{t}, v{vCO} offset:{L_FFLAG}\ns_waitcnt lgkmcnt(0)\nv_cmp_ne_u32 vcc, 0, v{t}\ns_cbranch_vccnz {vrest[b]}")
                    if THX and THX[4] & 1: A(f"{lnb}:")
                elif a.vtrig == 1:
                    A(f"ds_read_b32 v{t}, v{vCO} offset:{L_LS+4}\ns_waitcnt lgkmcnt(0)\nv_cmp_ne_u32 vcc, 0, v{t}\ns_cbranch_vccnz {vrest[b]}")
                elif b == a.vtrig:
                    A(f"s_branch {vrest[b]}")
            A(f"s_waitcnt vmcnt({WIN[2]-1})")
        if THX and b >= WIN[2] - THX[2]: thx(WIN[2], THX[2])
    if "k" in a.contig:
        A(f"buffer_load_dwordx4 v[{vD+4*b}:{vD+4*b+3}], v{vOFF}, s[{SR}:{SR+3}], s{sOFF} offen offset:{128*(b%3)} nt")
        if b % 3 == 2: A(f"s_add_u32 s{sOFF}, s{sOFF}, 3072")
        continue
    if a.near or "v" in a.contig:
        A(f"buffer_load_dwordx4 v[{vD+4*b}:{vD+4*b+3}], v{vOFF}, s[{SR}:{SR+3}], s{sOFF} offen nt\ns_add_u32 s{sOFF}, s{sOFF}, {3072 if a.near else 1024}")
        continue
    v_load(b)
if a.vboost:
    A("s_branch L_vb_j")
    for b in range(WIN[2], 32):
        if b >= a.vboost: A(f"s_waitcnt vmcnt({a.vboost-1})")
        A(f"{vrest[b]}:")
        v_load(b)
    A("L_vb_j:")
prio(3)
stamp(1)
if WIN:
    nv = WIN[2]
    A(f"s_lshl_b32 s{sTMP}, s{sC}, 2\nv_mov_b32 v{vOFF}, s{sTMP}")
    A(f"v_mov_b32 v{vCO+9}, 0\nds_read_b128 v[{vCO}:{vCO+3}], v{vCO+9} offset:{L_LS}\nds_read_b128 v[{vCO+4}:{vCO+7}], v{vCO+9} offset:{L_LS+16}\ns_waitcnt lgkmcnt(0)")
    A(f"v_xor_b32 v{vCO+1}, s{sFL}, v{vCO+1}\nv_xor_b32 v{vCO+3}, s{sFL}, v{vCO+3}\nv_xor_b32 v{vCO+5}, s{sFL}, v{vCO+5}\nv_xor_b32 v{vCO+7}, s{sFL}, v{vCO+7}")
    A(f"v_or3_b32 v{vCO+1}, v{vCO+1}, v{vCO+3}, v{vCO+5}\nv_or_b32 v{vCO+1}, v{vCO+1}, v{vCO+7}\nv_cmp_ne_u32 vcc, 0, v{vCO+1}\ns_cmp_eq_u64 vcc, 0\ns_cbranch_scc1 L_v_fast")
    for i in range(nv):
        A(f"s_waitcnt vmcnt({nv-1-i})")
        credit(L_PV, vOFF, vCO, i + 1)
    lds_wait(L_LS, [1, 3, 5, 7], 8, vCO)
    A(f"s_mov_b32 s{sNEED}, 1\ns_branch L_v_go\nL_v_fast:\ns_mov_b32 s{sNEED}, 0\nL_v_go:")
else:
    make_selectors()
    coef_addr(vAD, 64)
    lds_wait(L_LS, [1, 3, 5, 7], 8, vCO)
for k in range(4):
    A(f"ds_read_b128 v[{vCO+4*k}:{vCO+4*k+3}], v{vAD} offset:{L_P+16*k}")
lds_mode(vA0, vA0 + 1)
A(f"s_waitcnt lgkmcnt(0)\nv_readfirstlane_b32 s{sMODE}, v{vA0+1}")
stamp(2)
if WIN:
    def vhook(b):
        if b >= 32 - nv: credit(L_PV, vOFF, vAD, b - (32 - nv) + 1)
    diag_gemv(32, hook=vhook)
else:
    diag_gemv(32)
publish_gather(OBOX, L_O, L_OF, True)
stamp(5)
A("s_branch L_end")

A("L_aux:")
prio(3)
if a.dbg: A("s_memtime s[84:85]")
if not a.pads: A(f"v_lshlrev_b32 v8, 2, v{vL}\nv_mov_b32 v9, 0\nds_write_b32 v8, v9")
A(f"s_load_dwordx4 s[{sM}:{sM+3}], s[0:1], 80")
if a.nf:
    assert a.fp == 128
    A(f"s_and_b32 s{sTMP}, s{sHH}, 7\ns_lshl_b32 s{sTMP}, s{sTMP}, 2\ns_lshr_b32 s{sTMP2}, s{sHH}, 3\ns_add_u32 s{sTMP}, s{sTMP}, s{sTMP2}\ns_lshl_b32 s{sTMP}, s{sTMP}, 1\n{'s_and_b32' if a.lmap else 's_lshr_b32'} s{sTMP2}, s{sJ}, 1\ns_add_u32 s{sTMP}, s{sTMP}, s{sTMP2}")
    A(f"{'s_lshr_b32' if a.lmap else 's_and_b32'} s{sTMP2}, s{sJ}, 1\ns_xor_b32 s{sTMP2}, s{sTMP2}, 1\ns_lshl_b32 s{sTMP2}, s{sTMP2}, 6\ns_add_u32 s{sRI}, s{sTMP}, s{sTMP2}")
    A(f"s_mul_i32 s{sRB}, s{sP}, 20\ns_add_u32 s{sRB}, s{sRB}, s{sRI}\ns_and_b32 s{sTMP}, s{sRB}, 1\ns_lshr_b32 s{sRB}, s{sRB}, 1\ns_lshl_b32 s{sRB}, s{sRB}, 14\ns_lshl_b32 s{sTMP}, s{sTMP}, 12\ns_add_u32 s{sRB}, s{sRB}, s{sTMP}\ns_add_u32 s{sRB}, s{sRB}, {FBOX}\ns_add_u32 s{sTMP3}, s{sRB}, 8192\nv_mov_b32 v30, 0")
if a.nf == 8:
    A(f"s_mul_i32 s{sTMP}, s{sP}, 20\ns_add_u32 s{sTMP}, s{sTMP}, s{sRI}\ns_lshl_b32 s{sTMP}, s{sTMP}, 14\ns_add_u32 s{sTMP}, s{sTMP}, {FBOX + 20*16384}\ns_add_u32 s{sTMP2}, s{sTMP}, 8192")
if a.nf == 9:
    A(f"s_lshr_b32 s{sTMP}, s2, 4\ns_lshl_b32 s{sTMP}, s{sTMP}, 14\ns_and_b32 s{sTMP2}, s2, 15\ns_lshl_b32 s{sTMP2}, s{sTMP2}, 9\ns_add_u32 s{sTMP}, s{sTMP}, s{sTMP2}\ns_add_u32 s{sTMP}, s{sTMP}, {FBOX + 20*16384}\ns_add_u32 s{sTMP2}, s{sTMP}, 8192")
A("s_waitcnt lgkmcnt(0)")
if a.nf not in (8, 9): srd(WS, sWSP, 0x10000000)
if a.nf == 9:
    sPA, sPB = sM + 4, sM + 5
    if a.nfr:
        A(f"s_load_dword s{sT}, s[{sWSP}:{sWSP+1}], s9")
    elif a.nfo:
        A(f"s_load_dword s{sT}, s[{sWSP}:{sWSP+1}], s9")
        A("s_barrier")
        A(f"s_load_dword s{sPA}, s[{sWSP}:{sWSP+1}], s{sTMP}\ns_load_dword s{sPB}, s[{sWSP}:{sWSP+1}], s{sTMP2}")
    else:
        A(f"s_load_dword s{sPA}, s[{sWSP}:{sWSP+1}], s{sTMP}\ns_load_dword s{sPB}, s[{sWSP}:{sWSP+1}], s{sTMP2}")
        A(f"s_load_dword s{sT}, s[{sWSP}:{sWSP+1}], s9")
        A("s_barrier")
    srd(WS, sWSP, 0x10000000)
    srd(SR2, sM, 2560)
    A(f"s_lshl_b32 s{SR}, s{sXCC}, 10\ns_add_u32 s{SR}, s{SR}, {VBOX}\ns_lshl_b32 s{sTMP2}, s2, 2\nv_mov_b32 v60, s{sTMP2}")
    if a.nfr:
        A(f"s_mov_b32 s{SR+2}, s{sTMP}\ns_add_u32 s{SR+3}, s{sTMP}, 8192")
        A("s_waitcnt lgkmcnt(0)\ns_barrier")
        d = a.nfdl
        while d > 0:
            A(f"s_sleep {min(d, 127)}"); d -= 127
        A(f"s_mov_b32 s{SR+1}, 0")
        if a.nfx: A(f"s_mov_b32 s{SR}, {VBOX}\ns_bitcmp1_b32 s{sXCC}, 0\ns_cbranch_scc0 L_npr")
        if a.nfj >= 0: A(f"s_cmp_lg_u32 s{sJ}, {a.nfj}\ns_cbranch_scc1 L_npr")
        for r in range(a.nfr):
            f1, f2 = (SR + 2, SR + 3) if r % 2 == 0 else (SR + 3, SR + 2)
            A(f"s_load_dword s{sPA}, s[{sWSP}:{sWSP+1}], s{f1}\ns_load_dword s{sPB}, s[{sWSP}:{sWSP+1}], s{f2}")
            if r + 1 < a.nfr: A(f"s_add_u32 s{SR+2}, s{SR+2}, 128\ns_add_u32 s{SR+3}, s{SR+3}, 128")
            A("s_waitcnt lgkmcnt(1)")
            A(f"s_sleep {a.nfs}" if a.nfs > 0 else f"s_nop {-a.nfs}")
            A(f"s_getreg_b32 s{sTMP}, hwreg(HW_REG_IB_STS, 8, 4)\n{'s_add_u32' if r % 2 == 0 else 's_sub_u32'} s{SR+1}, s{SR+1}, s{sTMP}\ns_waitcnt lgkmcnt(0)")
        A("L_npr:")
        A(f"s_cmp_gt_i32 s{SR+1}, 0\ns_cselect_b32 s{sTMP}, 16, 32\ns_cmp_lt_i32 s{SR+1}, 0\ns_cselect_b32 s{SR+1}, 0, s{sTMP}")
    else:
        A(f"s_waitcnt lgkmcnt({2 - a.nfo})")
        A(f"s_sleep {a.nfs}" if a.nfs > 0 else f"s_nop {-a.nfs}")
        A(f"s_getreg_b32 s{sTMP}, hwreg(HW_REG_IB_STS, 8, 4)\ns_cmp_eq_u32 s{sTMP}, {2 - a.nfo}\ns_cselect_b32 s{SR+1}, 16, 0")
def vote_store():
    A(f"s_xor_b32 s{SR+1}, s{SR+1}, s{sT}\nv_mov_b32 v61, s{SR+1}")
    if a.nfx: A(f"s_bitcmp1_b32 s{sXCC}, 0\ns_cbranch_scc0 L_nvs")
    A(f"s_mov_b64 exec, 1\nbuffer_store_dword v61, v60, s[{WS}:{WS+3}], s{SR} offen{' sc1' if a.nfx else ''}\ns_mov_b64 exec, -1")
    if a.nfx: A("L_nvs:")
if a.nf == 1:
    A(f"s_cmp_ge_u32 s{sRI}, 20\ns_cbranch_scc1 L_nc1\ns_mov_b64 exec, 1")
    A(f"buffer_load_dword v10, v30, s[{WS}:{WS+3}], s{sRB} offen sc1\nbuffer_load_dword v11, v30, s[{WS}:{WS+3}], s{sTMP3} offen sc1\ns_mov_b64 exec, -1\nL_nc1:")
if a.nf == 8:
    sPA, sPB = sM + 4, sM + 5
    A(f"s_cmp_ge_u32 s{sRI}, 20\ns_cbranch_scc1 L_nc1")
    A(f"s_load_dword s{sPA}, s[{sWSP}:{sWSP+1}], s{sTMP}\ns_load_dword s{sPB}, s[{sWSP}:{sWSP+1}], s{sTMP2}")
    A(f"s_load_dword s{sT}, s[{sWSP}:{sWSP+1}], s9")
    if a.nfd:
        A(f"s_mov_b32 s{sST+14}, 0")
        for k, inc in ((3, 1), (2, 1 << 12), (1, 1 << 22)):
            A(f"L_nd{k}:\ns_add_u32 s{sST+14}, s{sST+14}, {inc}\ns_getreg_b32 s{sTMP}, hwreg(HW_REG_IB_STS, 8, 4)\ns_cmp_ge_u32 s{sTMP}, {k}\ns_cbranch_scc1 L_nd{k}")
        A(f"s_bfe_u32 s{sTMP}, s{sST+14}, {12 | (10 << 16)}\ns_cmp_gt_u32 s{sTMP}, {a.nfd}\ns_cselect_b32 s{sRB}, s{sRB}, s{sTMP3}")
    else:
        A("s_waitcnt lgkmcnt(2)")
        A(f"s_sleep {a.nfs}" if a.nfs > 0 else f"s_nop {-a.nfs}")
        A(f"s_getreg_b32 s{sTMP}, hwreg(HW_REG_IB_STS, 8, 4)\ns_cmp_eq_u32 s{sTMP}, 2\ns_cselect_b32 s{sRB}, s{sRB}, s{sTMP3}")
        if a.stamps: A(f"s_sub_u32 s{sST+14}, 3, s{sTMP}")
    A("s_branch L_nc2\nL_nc1:")
    A(f"s_load_dword s{sT}, s[{sWSP}:{sWSP+1}], s9")
    A("L_nc2:")
    srd(WS, sWSP, 0x10000000)
    srd(SR2, sM, 2560)
    A("s_barrier")
elif a.nf != 9 and not a.pads: A(f"s_load_dword s{sT}, s[{sWSP}:{sWSP+1}], s9")
if a.nf in (8, 9): pass
elif a.nf == 7:
    sPA, sPB = sM + 4, sM + 5
    A(f"s_cmp_ge_u32 s{sRI}, 20\ns_cbranch_scc1 L_nc1")
    A(f"s_mul_i32 s{sTMP}, s{sP}, 20\ns_add_u32 s{sTMP}, s{sTMP}, s{sRI}\ns_lshl_b32 s{sTMP}, s{sTMP}, 14\ns_add_u32 s{sTMP}, s{sTMP}, {FBOX + 20*16384}\ns_add_u32 s{sTMP2}, s{sTMP}, 8192")
    A(f"s_load_dword s{sPA}, s[{sWSP}:{sWSP+1}], s{sTMP}\ns_load_dword s{sPB}, s[{sWSP}:{sWSP+1}], s{sTMP2}")
    A("s_waitcnt lgkmcnt(1)")
    A(f"s_sleep {a.nfs}" if a.nfs else "s_nop 15\ns_nop 15")
    A(f"s_getreg_b32 s{sTMP}, hwreg(HW_REG_IB_STS, 8, 4)\ns_cmp_lg_u32 s{sTMP}, 0\ns_cselect_b32 s{sRB}, s{sRB}, s{sTMP3}")
    if a.stamps: A(f"s_sub_u32 s{sST+14}, 2, s{sTMP}")
    A("L_nc1:")
    srd(SR2, sM, 2560)
    A("s_barrier")
elif a.nf == 6:
    SENT = 0x5a17c3e9
    sPA, sPB = sM + 4, sM + 5
    A(f"s_cmp_ge_u32 s{sRI}, 20\ns_cbranch_scc1 L_nc1")
    A(f"s_mul_i32 s{sTMP}, s{sP}, 20\ns_add_u32 s{sTMP}, s{sTMP}, s{sRI}\ns_lshl_b32 s{sTMP}, s{sTMP}, 14\ns_add_u32 s{sTMP}, s{sTMP}, {FBOX + 20*16384}\ns_add_u32 s{sTMP2}, s{sTMP}, 8192")
    A(f"s_mov_b32 s{sPA}, {SENT:#x}\ns_mov_b32 s{sPB}, {SENT:#x}")
    A(f"s_load_dword s{sPA}, s[{sWSP}:{sWSP+1}], s{sTMP}\ns_load_dword s{sPB}, s[{sWSP}:{sWSP+1}], s{sTMP2}\nL_nc1:")
    srd(SR2, sM, 2560)
    A(f"s_cmp_ge_u32 s{sRI}, 20\ns_cbranch_scc1 L_prA")
    A(f"L_pr:\ns_cmp_lg_u32 s{sPA}, {SENT:#x}\ns_cbranch_scc1 L_prA\ns_cmp_lg_u32 s{sPB}, {SENT:#x}\ns_cbranch_scc1 L_prB")
    A(f"s_getreg_b32 s{sTMP}, hwreg(HW_REG_IB_STS, 8, 4)\ns_cmp_lg_u32 s{sTMP}, 0\ns_cbranch_scc1 L_pr")
    A(f"L_prB:\ns_mov_b32 s{sRB}, s{sTMP3}")
    if a.stamps: A(f"s_mov_b32 s{sST+14}, 1")
    A("L_prA:")
    if a.stamps: A(f"s_add_u32 s{sST+14}, s{sST+14}, 1")
    A("s_barrier")
else:
    srd(SR2, sM, 2560)
    if not a.pads: A("s_barrier" if a.nf == 10 or a.eb else "s_waitcnt lgkmcnt(0)\ns_barrier")
get_T()
if a.nf == 9 and a.nfv == 0: vote_store()
if a.nf == 1:
    A(f"s_waitcnt vmcnt(1)\ns_memtime s[{sM+4}:{sM+5}]\ns_waitcnt vmcnt(0)\ns_memtime s[{sM+6}:{sM+7}]\ns_waitcnt lgkmcnt(0)")
    A(f"s_sub_u32 s{sM+4}, s{sM+6}, s{sM+4}\ns_cmp_gt_u32 s{sM+4}, {a.nft}\ns_cselect_b32 s{sRB}, s{sRB}, s{sTMP3}")
    if a.stamps: A(f"s_add_u32 s{sST+14}, s{sM+4}, 1\ns_mov_b32 s{sST+15}, 0")
elif a.nf == 3:
    A(f"s_mov_b32 s{sRB}, s{sTMP3}")
if a.lat:
    A(f"v_lshlrev_b32 v37, 4, v{vL}")
    A(f"s_lshl_b32 s{sOFF}, s2, 10\ns_add_u32 s{sOFF}, s{sOFF}, 0x200000")
    A(f"s_cmp_eq_u32 s{sWAVE}, 11\ns_cbranch_scc1 L_lat2")
    for k in range(4):
        A(f"s_memrealtime s[{sST+4*k}:{sST+4*k+1}]\ns_waitcnt lgkmcnt(0)")
        A(f"buffer_load_dwordx4 v[40:43], v37, s[{WS}:{WS+3}], s{sOFF} offen sc1\ns_waitcnt vmcnt(0)")
        A(f"s_memrealtime s[{sST+4*k+2}:{sST+4*k+3}]\ns_waitcnt lgkmcnt(0)")
        A("s_sleep 40")
    A("s_branch L_end")
    A("L_lat2:")
    A(f"s_add_u32 s{sOFF}, s{sOFF}, 0x100000")
    A(f"buffer_load_dwordx4 v[40:43], v37, s[{WS}:{WS+3}], s{sOFF} offen {'nt' if a.lat == 1 else 'sc1'}\ns_waitcnt vmcnt(0)")
    for k in range(4):
        A(f"s_memrealtime s[{sST+4*k}:{sST+4*k+1}]\ns_waitcnt lgkmcnt(0)")
        A(f"buffer_load_dwordx4 v[40:43], v37, s[{WS}:{WS+3}], s{sOFF} offen {'nt' if a.lat == 1 else 'sc1'}\ns_waitcnt vmcnt(0)")
        A(f"s_memrealtime s[{sST+4*k+2}:{sST+4*k+3}]\ns_waitcnt lgkmcnt(0)")
        A("s_sleep 40")
    A("s_branch L_end")
if a.rank:
    A(f"s_lshl_b32 s{sNEED}, s{sJ}, 7\ns_add_u32 s{sNEED}, s{sNEED}, {RBOX}\nv_mov_b32 v30, 0\nbuffer_load_dword v60, v30, s[{WS}:{WS+3}], s{sNEED} offen sc1 nt")
if a.enc == 11: lds_wait(L_QF, [0, 1, 2], 4, 8)
stamp(1)
lds_wait(L_LS, [1, 3, 5, 7], 8, 8)
A(f"v_mov_b32 v30, 0\nds_read_b128 v[20:23], v30 offset:{L_MX}\nds_read_b128 v[24:27], v30 offset:{L_MX+16}\nds_read_b32 v31, v30 offset:{L_MODE}\ns_waitcnt lgkmcnt(0)\nv_readfirstlane_b32 s{sMODE}, v31")
A("v_max_f32 v32, v20, v22\nv_max3_f32 v32, v32, v24, v26")
A("v_add_f32 v33, v8, v10\nv_add_f32 v34, v12, v14\nv_add_f32 v33, v33, v34\nv_mov_b32 v34, 0\nv_mov_b32 v35, 0")
for k in range(4):
    A(f"v_perm_b32 v{32+k}, v{32+k}, v{vT}, s{sSEL+k}")
A(f"s_lshl_b32 s{sOFF}, s{sH}, 7\ns_add_u32 s{sOFF}, s{sOFF}, {SBOX}\ns_lshl_b32 s{sTMP}, s{sJ}, 4\ns_add_u32 s{sTMP}, s{sTMP}, s{sOFF}")
A("s_mov_b64 exec, 1")
A(f"s_cmp_lg_u32 s{sMODE}, 0\ns_cbranch_scc1 L_ux1")
A(f"buffer_store_dwordx4 v[32:35], v30, s[{WS}:{WS+3}], s{sTMP} offen\ns_branch L_ux2\nL_ux1:")
A(f"buffer_store_dwordx4 v[32:35], v30, s[{WS}:{WS+3}], s{sTMP} offen sc1\nL_ux2:")
A("s_mov_b64 exec, -1")
if a.nf == 9 and a.nfv == 1: vote_store()
stamp(2)
A(f"v_and_b32 v36, 3, v{vL}\nv_lshlrev_b32 v37, 4, v36")
poll(40, 37, sOFF)
stamp(3)
A("v_and_b32 v40, 0xffffff00, v40\ns_nop 1")
A("v_max_f32_dpp v44, v40, v40 quad_perm:[1,0,3,2] row_mask:0xf bank_mask:0xf\ns_nop 1")
A("v_max_f32_dpp v44, v44, v44 quad_perm:[2,3,0,1] row_mask:0xf bank_mask:0xf")
A("v_sub_f32 v40, v40, v44\nv_mul_f32 v40, 0x3fb8aa3b, v40\nv_exp_f32 v40, v40\ns_nop 0")
A("v_mul_f32 v41, v41, v40\ns_nop 1")
A("v_add_f32_dpp v44, v41, v41 quad_perm:[1,0,3,2] row_mask:0xf bank_mask:0xf\ns_nop 1")
A("v_add_f32_dpp v44, v44, v44 quad_perm:[2,3,0,1] row_mask:0xf bank_mask:0xf")
A("v_rcp_f32 v44, v44\ns_nop 0\nv_mul_f32 v40, v40, v44")
A("v_lshlrev_b32 v36, 2, v36")
A("s_mov_b64 exec, 15")
A(f"ds_write_b32 v36, v40 offset:{L_FF}")
A(f"ds_write_b32 v30, v{vT} offset:{L_FFLAG}")
A("s_mov_b64 exec, -1")
if a.dirty:
    A(f"v_lshlrev_b32 v37, 4, v{vL}\ns_lshl_b32 s{sTMP}, s2, 14\ns_add_u32 s{sTMP}, s{sTMP}, 0x1000000")
    for k in range(a.dirty):
        A(f"buffer_store_dwordx4 v[40:43], v37, s[{WS}:{WS+3}], s{sTMP} offen\ns_add_u32 s{sTMP}, s{sTMP}, 1024")
if a.rank:
    lds_wait(L_VT, [0], 1, 8)
    A(f"v_mov_b32 v61, 1\ns_mov_b64 exec, 1\nbuffer_atomic_add v61, v30, s[{WS}:{WS+3}], s{sNEED} offen sc0 sc1\ns_mov_b64 exec, -1\ns_waitcnt vmcnt(0)")
    A(f"v_sub_u32 v61, v61, v60\ns_nop 0\nv_readfirstlane_b32 s{sTMP}, v61\ns_cmp_lt_u32 s{sTMP}, {a.rank}\ns_cbranch_scc1 L_rk")
    if a.stamps: A(f"s_mov_b32 s{sST+14}, s{sTMP}\ns_mov_b32 s{sST+15}, 0")
    if a.rop: lds_wait(L_VT, [1, 2, 3], 4, 8)
    A(f"ds_write_b32 v30, v{vT} offset:{L_OF+12}")
    A("L_rk:")
if a.fp:
    gp = a.fp // 16; lg = gp.bit_length() - 1; nx = 256 // a.fp; R = 10 * nx; nl = a.fp // 32
    if a.nf:
        A(f"s_mov_b32 s{sCNT}, s{sRI}\ns_cmp_ge_u32 s{sCNT}, {R}\ns_cbranch_scc1 L_end")
    else:
        A(f"s_and_b32 s{sTMP}, s{sHH}, 7\ns_lshl_b32 s{sTMP}, s{sTMP}, 2\ns_lshr_b32 s{sTMP2}, s{sHH}, 3\ns_add_u32 s{sTMP}, s{sTMP}, s{sTMP2}\ns_lshl_b32 s{sTMP}, s{sTMP}, 1\n{'s_and_b32' if a.lmap else 's_lshr_b32'} s{sTMP2}, s{sJ}, 1\ns_add_u32 s{sTMP}, s{sTMP}, s{sTMP2}")
        A(f"{'s_lshr_b32' if a.lmap else 's_and_b32'} s{sTMP2}, s{sJ}, 1\ns_xor_b32 s{sTMP2}, s{sTMP2}, 1\ns_lshl_b32 s{sTMP2}, s{sTMP2}, 6\ns_add_u32 s{sCNT}, s{sTMP}, s{sTMP2}\ns_cmp_ge_u32 s{sCNT}, {R}\ns_cbranch_scc1 L_end")
    A(f"s_mul_i32 s{sOFF}, s{sP}, {R}\ns_add_u32 s{sOFF}, s{sOFF}, s{sCNT}\ns_mul_i32 s{sTMP2}, s{sOFF}, {gp*8}\ns_mul_i32 s{sOFF}, s{sOFF}, {32*a.fp}\ns_add_u32 s{sOFF}, s{sOFF}, {FBOX}")
    if a.nf == 10: A(f"s_lshl_b32 s{SR}, s{sXCC}, 10\ns_add_u32 s{SR}, s{SR}, {VBOX}")
    if a.nf in (9, 10):
        A(f"v_lshlrev_b32 v37, 4, v{vL}\nbuffer_load_dwordx4 v[60:63], v37, s[{WS}:{WS+3}], s{SR} offen sc1{'' if a.nfx else ' nt'}\ns_waitcnt vmcnt(0)")
        A(f"s_mov_b32 s{sTMP}, 0\ns_mov_b32 s{sTMP3}, 0\ns_xor_b32 s{SR+1}, s{sT}, 16")
        for k in range(4):
            if a.nfx:
                A(f"v_xor_b32 v{60+k}, s{sT}, v{60+k}\nv_and_b32 v{60+k}, -4, v{60+k}")
                for c, d in ((0, sTMP), (20, sTMP), (16, sTMP3), (4, sTMP3)):
                    A(f"v_cmp_eq_u32 vcc, {c}, v{60+k}\ns_bcnt1_i32_b64 s{SR+2}, vcc\ns_add_u32 s{d}, s{d}, s{SR+2}")
            else:
                A(f"v_cmp_eq_u32 vcc, s{sT}, v{60+k}\ns_bcnt1_i32_b64 s{SR+2}, vcc\ns_add_u32 s{sTMP}, s{sTMP}, s{SR+2}")
                A(f"v_cmp_eq_u32 vcc, s{SR+1}, v{60+k}\ns_bcnt1_i32_b64 s{SR+2}, vcc\ns_add_u32 s{sTMP3}, s{sTMP3}, s{SR+2}")
        if a.stamps: A(f"s_add_u32 s{sST+14}, s{sTMP}, s{sTMP3}\ns_lshl_b32 s{sST+14}, s{sST+14}, 16\ns_add_u32 s{sST+14}, s{sST+14}, s{sTMP3}")
        if a.dbgv == 2:
            A(f"s_max_u32 s{SR+2}, s{sTMP}, s{sTMP3}\ns_min_u32 s{SR+3}, s{sTMP}, s{sTMP3}\ns_lshl_b32 s{SR+3}, s{SR+3}, 1\ns_add_u32 s{SR+3}, s{SR+3}, 6\ns_cmp_gt_u32 s{SR+2}, s{SR+3}\ns_cbranch_scc1 L_dv")
            for k in range(6): A("s_sleep 127")
            A("L_dv:")
        if a.dbgv >= 10:
            A(f"s_max_u32 s{SR+2}, s{sTMP}, s{sTMP3}\ns_min_u32 s{SR+3}, s{sTMP}, s{sTMP3}\ns_add_u32 s{SR+3}, s{SR+3}, {a.dbgv - 10}\ns_cmp_ge_u32 s{SR+2}, s{SR+3}\ns_cbranch_scc1 L_dv")
            for k in range(6): A("s_sleep 127")
            A("L_dv:")
        if a.dbgv == 1:
            A(f"s_lshl_b32 s{SR+2}, s{sTMP}, 8\ns_add_u32 s{SR+2}, s{SR+2}, s{sTMP3}\nv_mov_b32 v60, s{SR+2}\ns_lshl_b32 s{SR+2}, s{sXCC}, 2\nv_mov_b32 v61, s{SR+2}")
            srd(SR, sM + 2, 256)
            A(f"s_mov_b64 exec, 1\nbuffer_store_dword v60, v61, s[{SR}:{SR+3}], 0 offen sc1\ns_mov_b64 exec, -1")
        if not a.nfr and a.nf == 9: A(f"s_lshl_b32 s{sTMP3}, s{sTMP3}, 1")
        A(f"s_cmp_gt_u32 s{sTMP3}, s{sTMP}\ns_cselect_b32 s{sTMP}, 0, 8192\ns_add_u32 s{sRB}, s{sRB}, s{sTMP}")
    if a.nf: A(f"s_mov_b32 s{sOFF}, s{sRB}")
    A(f"v_lshlrev_b32 v37, 4, v{vL}\nv_lshlrev_b32 v38, 3, v{vL}")
    lds_wait(L_PF, [0, 1, 2], 4, 8)
    stamp(4)
    if a.nofin: A("s_branch L_end")
    if a.nf == 5:
        A(f"s_add_u32 s{sTMP3}, s{sOFF}, 8192")
        for cp in range(2):
            for i in range(nl):
                A(f"buffer_load_dwordx4 v[{80+16*cp+4*i}:{83+16*cp+4*i}], v37, s[{WS}:{WS+3}], s{sTMP3 if cp else sOFF} offen offset:{1024*i} sc1{FN}")
        for cp in range(2):
            for i in range(nl):
                r = 80 + 16 * cp + 4 * i
                if cp == 0:
                    if i == 0: A(f"s_waitcnt vmcnt({nl})")
                else: A(f"s_waitcnt vmcnt({nl-1-i})")
                A(f"v_perm_b32 v44, v{r+1}, v{r}, s{sSELA}\nv_perm_b32 v45, v{r+3}, v{r+2}, s{sSELB}\nv_or_b32 v44, v44, v45\nv_xor_b32 v44, s{sT}, v44")
                A(f"v_or_b32 v46, v46, v44" if i else "v_mov_b32 v46, v44")
                for k in range(4):
                    A(f"v_add_f32 v{40+k}, v{40+k}, v{r+k}" if i else f"v_mov_b32 v{40+k}, v{r+k}")
                if cp == 0 and i == a.nfi:
                    A(f"s_getreg_b32 s{sTMP}, hwreg(HW_REG_IB_STS, 0, 4)")
                    if a.stamps: A(f"s_add_u32 s{sST+14}, s{sTMP}, 1\ns_mov_b32 s{sST+15}, 0")
            A("v_cmp_lt_u32 vcc, 7, v46\ns_cmp_eq_u64 vcc, 0\ns_cbranch_scc1 L_fpd")
        A(f"s_cmp_eq_u32 s{sTMP}, {nl}\ns_cselect_b32 s{sOFF}, s{sOFF}, s{sTMP3}")
    if a.fdepth > 1:
        D = a.fdepth
        def fissue(k):
            for i in range(nl):
                A(f"buffer_load_dwordx4 v[{80+16*k+4*i}:{83+16*k+4*i}], v37, s[{WS}:{WS+3}], s{sOFF} offen offset:{1024*i} sc1{FN}")
        for k in range(D - 1):
            fissue(k)
            A(f"s_sleep {a.fgap}")
        A("L_fq:")
        for k in range(D):
            fissue((k + D - 1) % D)
            for i in range(nl):
                r = 80 + 16 * k + 4 * i
                A(f"s_waitcnt vmcnt({nl*(D-1)+nl-1-i})")
                A(f"v_perm_b32 v44, v{r+1}, v{r}, s{sSELA}\nv_perm_b32 v45, v{r+3}, v{r+2}, s{sSELB}\nv_or_b32 v44, v44, v45\nv_xor_b32 v44, s{sT}, v44")
                A(f"v_or_b32 v46, v46, v44" if i else "v_mov_b32 v46, v44")
                for q in range(4):
                    A(f"v_add_f32 v{40+q}, v{40+q}, v{r+q}" if i else f"v_mov_b32 v{40+q}, v{r+q}")
            A("v_cmp_lt_u32 vcc, 7, v46\ns_cmp_eq_u64 vcc, 0\ns_cbranch_scc1 L_fpd")
        spin_tail("L_fq", 0)
    A("L_fp:")
    for i in range(nl):
        A(f"buffer_load_dwordx4 v[{80+4*i}:{83+4*i}], v37, s[{WS}:{WS+3}], s{sOFF} offen offset:{1024*i} sc1{FN}")
    for i in range(nl):
        r = 80 + 4 * i
        A(f"s_waitcnt vmcnt({nl-1-i})")
        A(f"v_perm_b32 v44, v{r+1}, v{r}, s{sSELA}\nv_perm_b32 v45, v{r+3}, v{r+2}, s{sSELB}\nv_or_b32 v44, v44, v45\nv_xor_b32 v44, s{sT}, v44")
        A(f"v_or_b32 v46, v46, v44" if i else "v_mov_b32 v46, v44")
        for k in range(4):
            A(f"v_add_f32 v{40+k}, v{40+k}, v{r+k}" if i else f"v_mov_b32 v{40+k}, v{r+k}")
    A("v_cmp_lt_u32 vcc, 7, v46\ns_cmp_eq_u64 vcc, 0\ns_cbranch_scc1 L_fpd")
    spin_tail("L_fp", a.fsl)
    A("L_fpd:")
    stamp(5)
    d = gp
    while d < 16:
        for k in range(4):
            A(f"v_add_f32_dpp v{40+k}, v{40+k}, v{40+k} row_ror:{d} row_mask:0xf bank_mask:0xf")
        if d * 2 < 16: A("s_nop 0")
        d *= 2
    for op in ("v_permlane16_swap_b32", "v_permlane32_swap_b32"):
        for k in range(4): A(f"v_mov_b32 v{44+k}, v{40+k}")
        A("s_nop 1")
        for k in range(4): A(f"{op} v{40+k}, v{44+k}")
        A("s_nop 1")
        for k in range(4): A(f"v_add_f32 v{40+k}, v{40+k}, v{44+k}")
    A("v_cvt_pk_bf16_f32 v44, v40, v41\nv_cvt_pk_bf16_f32 v45, v42, v43")
    A(f"s_mov_b64 exec, {(1 << gp) - 1}")
    A(f"buffer_store_dwordx2 v[44:45], v38, s[{SR2}:{SR2+3}], s{sTMP2} offen")
    A(f"s_cmp_lg_u32 s{sCNT}, 0\ns_cbranch_scc1 L_aux2")
    A("s_mov_b64 exec, 1")
    A(f"buffer_store_dword v{vT}, v30, s[{WS}:{WS+3}], s9 offen")
    A("L_aux2:")
    A("s_mov_b64 exec, -1")
    stamp(6)
    if a.enc:
        A(f"s_waitcnt lgkmcnt(0)\ns_sub_u32 s{sTMP}, s{sST+2*(a.enc%10)}, s{sST}\ns_lshl_b32 s{sTMP}, s{sTMP}, 2\ns_add_u32 s{sTMP}, s{sTMP}, s{sST+12}")
        A(f"L_enc:\ns_sleep 2\ns_memrealtime s[{SR}:{SR+1}]\ns_waitcnt lgkmcnt(0)\ns_sub_u32 s{sTMP2}, s{sTMP}, s{SR}\ns_cmp_gt_i32 s{sTMP2}, 0\ns_cbranch_scc1 L_enc")
else:
    A(f"s_and_b32 s{sTMP}, s{sJ}, 1\ns_lshl_b32 s{sTMP}, s{sTMP}, 3\ns_add_u32 s{sTMP}, s{sTMP}, s{sHH}\ns_cmp_ge_u32 s{sTMP}, 24\ns_cbranch_scc1 L_end")
    A(f"s_lshl_b32 s{sTMP}, s{sP}, 2\ns_add_u32 s{sTMP}, s{sTMP}, s{sJ}\ns_mul_i32 s{sOFF}, s{sTMP}, 24\ns_add_u32 s{sOFF}, s{sOFF}, s{sHH}")
    A(f"s_lshl_b32 s{sOFF}, s{sOFF}, 10\ns_add_u32 s{sOFF}, s{sOFF}, {FBOX}")
    A(f"s_mul_i32 s{sTMP}, s{sJ}, 5\ns_add_u32 s{sTMP}, s{sTMP}, 1\ns_lshr_b32 s{sTMP}, s{sTMP}, 1\ns_lshl_b32 s{sTMP2}, s{sTMP}, 7")
    A(f"s_mul_i32 s{sTMP}, s{sP}, 1280\ns_add_u32 s{sTMP2}, s{sTMP2}, s{sTMP}\ns_lshl_b32 s{sTMP}, s{sHH}, 4\ns_add_u32 s{sTMP2}, s{sTMP2}, s{sTMP}")
    A(f"v_lshlrev_b32 v37, 4, v{vL}\nv_lshrrev_b32 v38, 5, v{vL}\nv_lshlrev_b32 v38, 3, v38")
    lds_wait(L_PF, [0, 1, 2], 4, 8)
    stamp(4)
    if a.nofin: A("s_branch L_end")
    if a.fmask:
        D = a.fdepth
        mk = sM + 4
        sets = [80 + 4 * k for k in range(D)]
        A(f"s_mov_b64 s[{mk}:{mk+1}], -1")
        for k in range(D):
            for q in range(4): A(f"v_mov_b32 v{sets[k]+q}, 0")
        A(f"v_not_b32 v{sets[0]}, v{vT}")
        for k in range(1, D): A(f"v_mov_b32 v{sets[k]}, v{sets[0]}")
        def issue(r):
            A(f"s_mov_b64 exec, s[{mk}:{mk+1}]\nbuffer_load_dwordx4 v[{r}:{r+3}], v37, s[{WS}:{WS+3}], s{sOFF} offen sc1\ns_mov_b64 exec, -1")
        for k in range(D - 1):
            issue(sets[k])
            if a.fgap: A(f"s_sleep {a.fgap}")
        A("L_fp:")
        for k in range(D):
            issue(sets[(k + D - 1) % D])
            r = sets[k]
            A(f"s_waitcnt vmcnt({D-1})")
            A(f"v_perm_b32 v44, v{r+1}, v{r}, s{sSELA}\nv_perm_b32 v45, v{r+3}, v{r+2}, s{sSELB}\nv_or_b32 v44, v44, v45\nv_xor_b32 v44, s{sT}, v44")
            A(f"v_cmp_ge_u32 vcc, 7, v44")
            A(f"s_and_b64 vcc, vcc, s[{mk}:{mk+1}]\ns_andn2_b64 s[{mk}:{mk+1}], s[{mk}:{mk+1}], vcc\ns_mov_b64 exec, vcc")
            for q in range(4): A(f"v_mov_b32 v{40+q}, v{r+q}")
            A(f"s_mov_b64 exec, -1\ns_cmp_eq_u64 s[{mk}:{mk+1}], 0\ns_cbranch_scc1 L_fpd")
            if a.fsl: A(f"s_sleep {a.fsl}")
        spin_tail("L_fp", 0)
        A("L_fpd:")
    else:
        poll(80, 37, sOFF, depth=a.fdepth, gap=a.fgap, lfl=FN)
        for k in range(4):
            A(f"v_mov_b32 v{40+k}, v{80+k}")
    A("s_nop 1")
    stamp(5)
    for d in ["row_shr:1", "row_shr:2", "row_shr:4", "row_shr:8"]:
        for k in range(4):
            A(f"v_add_f32_dpp v{40+k}, v{40+k}, v{40+k} {d} row_mask:0xf bank_mask:0xf")
    for k in range(4):
        A(f"v_add_f32_dpp v{40+k}, v{40+k}, v{40+k} row_bcast:15 row_mask:0xa bank_mask:0xf")
    A("v_cvt_pk_bf16_f32 v44, v40, v41\nv_cvt_pk_bf16_f32 v45, v42, v43")
    A("s_mov_b32 exec_lo, 0x80000000\ns_mov_b32 exec_hi, 0x80000000")
    A(f"buffer_store_dwordx2 v[44:45], v38, s[{SR2}:{SR2+3}], s{sTMP2} offen")
    A(f"s_or_b32 s{sTMP}, s{sJ}, s{sHH}\ns_cmp_lg_u32 s{sTMP}, 0\ns_cbranch_scc1 L_aux2")
    A("s_mov_b64 exec, 1")
    A(f"buffer_store_dword v{vT}, v30, s[{WS}:{WS+3}], s9 offen")
    A("L_aux2:")
    A("s_mov_b64 exec, -1")
    stamp(6)


A("L_end:")
if a.dbg:
    A("s_mov_b64 exec, -1")
    A("s_waitcnt vmcnt(0) lgkmcnt(0)")
    A(f"s_memrealtime s[{sST+16}:{sST+17}]\ns_memtime s[86:87]\ns_waitcnt lgkmcnt(0)")
    for k in range(9):
        A(f"v_mov_b32 v{8+k}, s{sST+2*k}")
    A(f"s_sub_u32 s86, s86, s84\ns_sub_u32 s87, s{sST+16}, s{sST}\nv_mov_b32 v17, s86\nv_mov_b32 v18, s87\nv_not_b32 v19, v8")
    A(f"s_lshl_b32 s{sTMP}, s{sWAVE}, 6\nv_mov_b32 v30, s{sTMP}\ns_lshl_b32 s{sTMP}, s{sWAVE}, 2\nv_mov_b32 v31, s{sTMP}\ns_mov_b64 exec, 1")
    for k in range(3):
        A(f"ds_write_b128 v30, v[{8+4*k}:{11+4*k}] offset:{L_ST+16*k}")
    A(f"ds_write_b32 v31, v{vT} offset:{L_DN}")
    A("s_mov_b64 exec, -1")
    A(f"s_cmp_lg_u32 s{sWAVE}, 3\ns_cbranch_scc1 L_done")
    A(f"L_dw:\nv_lshlrev_b32 v8, 2, v{vL}\nv_min_u32 v8, 40, v8\nds_read_b32 v9, v8 offset:{L_DN}\ns_waitcnt lgkmcnt(0)\nv_cmp_ne_u32 vcc, s{sT}, v9\ns_cmp_eq_u64 vcc, 0\ns_cbranch_scc1 L_dw2\ns_sleep 4\ns_sub_u32 s{sSPIN}, s{sSPIN}, 1\ns_cbranch_scc0 L_dw\ns_branch L_done\nL_dw2:")
    A("s_sleep 127\ns_sleep 127")
    adds = [(3,0,1),(0,2,2),(0,4,3),(4,4,4),(8,2,5),(8,3,6),(8,4,7),(0,7,8),(3,9,13),(3,10,14)]
    maxs = [(3,11,0),(0,7,9),(1,7,9),(2,7,9),(3,8,10),(8,3,11),(9,3,11),(10,3,11),(8,4,12),(9,4,12),(10,4,12),(3,0,15)]
    A("v_mov_b32 v20, 0\nv_mov_b32 v21, 0")
    for k, (w, st, d) in enumerate(adds + maxs):
        A(f"s_mov_b32 s{sTMP}, {L_ST + w*64 + st*4}\nv_writelane_b32 v20, s{sTMP}, {k}\ns_mov_b32 s{sTMP}, {d*4}\nv_writelane_b32 v21, s{sTMP}, {k}")
    A("ds_read_b32 v22, v20")
    A(f"s_load_dwordx2 s[{sM+2}:{sM+3}], s[0:1], 88\ns_waitcnt lgkmcnt(0)")
    srd(SR, sM + 2, 256)
    A("s_waitcnt lgkmcnt(0)")
    A(f"s_mov_b64 exec, {(1 << len(adds)) - 1}")
    A(f"buffer_atomic_add v22, v21, s[{SR}:{SR+3}], 0 offen")
    A(f"s_mov_b64 exec, {((1 << len(maxs)) - 1) << len(adds)}")
    A(f"buffer_atomic_umax v22, v21, s[{SR}:{SR+3}], 0 offen")
elif a.stamps:
    A("s_mov_b64 exec, -1")
    A("s_waitcnt vmcnt(0) lgkmcnt(0)")
    A(f"s_memrealtime s[{sST+16}:{sST+17}]\ns_waitcnt lgkmcnt(0)")
    A(f"s_lshl_b32 s{sTMP}, s2, 4\ns_add_u32 s{sTMP}, s{sTMP}, s{sWAVE}\ns_mul_i32 s{sTMP}, s{sTMP}, 80\ns_add_u32 s{sTMP}, s{sTMP}, {STAMP}")
    for k in range(18):
        A(f"v_mov_b32 v{8+k}, s{sST+k}")
    A("v_mov_b32 v30, 0\ns_mov_b64 exec, 1")
    for k in range(4):
        A(f"buffer_store_dwordx4 v[{8+4*k}:{11+4*k}], v30, s[{WS}:{WS+3}], s{sTMP} offen offset:{16*k}")
    A("s_getreg_b32 s3, hwreg(HW_REG_XCC_ID)\nv_mov_b32 v26, s3\nv_mov_b32 v27, 0")
    A(f"buffer_store_dwordx4 v[24:27], v30, s[{WS}:{WS+3}], s{sTMP} offen offset:64")
A("L_done:\ns_endpgm")
A.footer(168)
if a.pads:
    assert a.nf in (0, 2, 3, 10) and not a.lat
    A.L = [l.replace(".p2align 8\n.type", ".p2align 12\n.type") for l in A.L]
if a.pads in (1, 3):
    import padlib
    def plan3(pads, lines, i0):
        def li(lab): return next(i for i, l in enumerate(lines) if l.strip() == lab) - i0
        wo, k, v, ax = li("L_wo:"), li("L_k:"), li("L_v:"), li("L_aux:")
        W = [i for i, p in enumerate(pads) if p[1] < wo]
        O = [i for i, p in enumerate(pads) if wo <= p[1] < k]
        K = [i for i, p in enumerate(pads) if k <= p[1] < v]
        V = [i for i, p in enumerate(pads) if v <= p[1] < ax]
        X = [i for i, p in enumerate(pads) if ax <= p[1]]
        pri = (W + K + O + V + X)
        e = pri[:8]; rest = pri[8:]
        order = [1, 2, 3, 4, 0, 5, 6, 7]
        e2 = [p for p in e if p in K] + [p for p in e if p not in K]
        early = {order[i]: p for i, p in enumerate(e2)}
        ch = {0: [], 5: [], 6: [], 7: []}
        ws = [5, 6, 7, 0]
        rx = [p for p in rest if p in X]; ro = [p for p in rest if p not in X]
        ch[0] += rx
        i = 0
        for p in ro:
            w = min(ws, key=lambda q: len(ch[q])); ch[w].append(p)
        return early, ch
    A.L = padlib.add_pads(A.L, 8, plan=plan3 if a.pads == 3 else None)
A.write(a.out)
```

```python
import sys, argparse
from asmlib import *
ap = argparse.ArgumentParser()
ap.add_argument("out")
ap.add_argument("--stamps", type=int, default=0)
ap.add_argument("--prio", type=int, default=1)
ap.add_argument("--lds", type=int, default=163840)
ap.add_argument("--nopoll", type=int, default=0)
ap.add_argument("--near", type=int, default=0)
ap.add_argument("--kfull", type=int, default=0)
ap.add_argument("--psleep", type=int, default=0)
ap.add_argument("--lat", type=int, default=0)
ap.add_argument("--thr", type=int, default=0)
ap.add_argument("--rot", type=int, default=0)
ap.add_argument("--pdepth", type=int, default=3)
ap.add_argument("--pgap", type=int, default=16)
ap.add_argument("--fgap", type=int, default=5)
ap.add_argument("--fdepth", type=int, default=3)
ap.add_argument("--g2", type=int, default=1)
ap.add_argument("--dbg", type=int, default=0)
ap.add_argument("--win", type=str, default="")
ap.add_argument("--gsleep", type=int, default=1)
ap.add_argument("--nt", type=int, default=12)
ap.add_argument("--nofin", type=int, default=0)
ap.add_argument("--lsleep", type=int, default=1)
ap.add_argument("--x1", type=int, default=0)
ap.add_argument("--fmask", type=int, default=0)
ap.add_argument("--fsl", type=int, default=0)
ap.add_argument("--pro", type=int, default=0)
ap.add_argument("--contig", type=str, default="")
ap.add_argument("--fp", type=int, default=0)
ap.add_argument("--xmap", type=int, default=0)
ap.add_argument("--dly", type=str, default="")
ap.add_argument("--pnt", type=int, default=3)
ap.add_argument("--slab", type=int, default=0)
ap.add_argument("--wsl", type=int, default=1)
ap.add_argument("--no2", type=int, default=0)
ap.add_argument("--ks2", type=int, default=2)
ap.add_argument("--lmap", type=int, default=0)
ap.add_argument("--boost", type=int, default=0)
ap.add_argument("--vboost", type=int, default=0)
ap.add_argument("--kboost", type=int, default=0)
ap.add_argument("--vtrig", type=int, default=0)
ap.add_argument("--wj", type=str, default="")
ap.add_argument("--rank", type=int, default=0)
ap.add_argument("--vr", type=int, default=24)
ap.add_argument("--rop", type=int, default=1)
ap.add_argument("--dirty", type=int, default=0)
ap.add_argument("--nf", type=int, default=0)
ap.add_argument("--nft", type=int, default=110)
ap.add_argument("--nfi", type=int, default=0)
ap.add_argument("--nfs", type=int, default=1)
ap.add_argument("--nfd", type=int, default=0)
ap.add_argument("--nfv", type=int, default=0)
ap.add_argument("--enc", type=int, default=0)
ap.add_argument("--pads", type=int, default=0)
ap.add_argument("--dbgv", type=int, default=0)
ap.add_argument("--eb", type=int, default=0)
ap.add_argument("--nfp", default="sc1")
ap.add_argument("--nfx", type=int, default=0)
ap.add_argument("--nfj", type=int, default=-1)
ap.add_argument("--dry", type=int, default=0)
ap.add_argument("--nfr", type=int, default=0)
ap.add_argument("--nfdl", type=int, default=32)
ap.add_argument("--nfo", type=int, default=0)
ap.add_argument("--nfw", type=int, default=0)
ap.add_argument("--thx", type=str, default="")
ap.add_argument("--lb", type=int, default=0)
ap.add_argument("--fm", type=int, default=0)
ap.add_argument("--tlb", type=int, default=0)
a = ap.parse_args()
THX = [int(x, 0) for x in a.thx.split(",")] if a.thx else None
sTH = 3
def thx(n, d):
    if THX and d:
        l = A.label("Lth")
        A(f"s_cmp_eq_u32 s{sTH}, 0\ns_cbranch_scc1 {l}\ns_waitcnt vmcnt({n-1-d})\n{l}:")

PN = " nt" if a.pnt & 1 else ""
FN = " nt" if a.pnt & 2 else ""
XN = " nt" if a.pnt & 4 else ""
WIN = [int(x) for x in a.win.split(",")] if a.win else None
if a.dbg: a.stamps = 1

A = Asm()
NW = 12 if a.lat else 11
A.header(256, 64 * NW, a.lds)

QBOX = 0x10000
OBOX = 0x40000
SBOX = 0x70000
FBOX = 0x80000
RBOX = 0x78000
VBOX = 0x7a000
STAMP = 0x8000000
L_PW, L_PK, L_PV = 0, 16, 32
L_QF = 48
L_MX = 64
L_LS = 96
L_FF = 128
L_FFLAG = 144
L_MODE = 148
L_OF = 160
L_PF = 176
L_KI = 192
L_VT = 192
L_DN = 208
L_ST = 2048
L_Q = 256
L_P = 640
L_O = 1152
sH, sJ, sP, sHH = 4, 5, 6, 7
sX, sK, sV, sWQ, sWO = 12, 14, 16, 18, 20
sWSP = 22
sWAVE = 24
sT = 25
sSPIN = 26
sC = 27
WS = 28
SR = 32
sOFF = 36
sTMP, sTMP2, sTMP3 = 37, 38, 39
sSEL = 40
sSELA, sSELB = 44, 45
sFL = sT
SR2 = 48
sM = 52
sNEED, sHAVE = 56, 57
sMODE, sCNT = 58, 59
sXCC = 60
sRB, sRI = 62, 63
sDRY = 61
sST = 64
vL = 0
vOFF = 1
vAD = 2
vT = 3
vACC = 4
vA0, vA1 = 8, 12
vSEL = 16
vCO = 24
vD = 40

nstamp = [0]
def stamp(k):
    if a.stamps:
        A(f"s_memrealtime s[{sST+2*k}:{sST+2*k+1}]")

def thr(n):
    if a.thr and n >= a.thr:
        A(f"s_waitcnt vmcnt({a.thr-1})")

def prio(p):
    if a.prio:
        A(f"s_setprio {p}")

def spin_tail(loop, sleep=1):
    if sleep:
        A(f"s_sleep {sleep}")
    A(f"s_sub_u32 s{sSPIN}, s{sSPIN}, 1\ns_cbranch_scc0 {loop}\ns_branch L_end")

def lds_wait(off, positions, nread, vt):
    if a.nopoll >= 2: return
    lp = A.label("Lw"); dn = A.label("Lwd")
    vz = vt + nread + 1
    vx = vt + nread
    A(f"v_mov_b32 v{vz}, 0")
    A(f"{lp}:")
    k = 0
    while k < nread:
        n = min(4, nread - k)
        op = {1: "ds_read_b32", 2: "ds_read_b64", 4: "ds_read_b128"}[n]
        reg = f"v{vt+k}" if n == 1 else f"v[{vt+k}:{vt+k+n-1}]"
        A(f"{op} {reg}, v{vz} offset:{off+4*k}")
        k += n
    A("s_waitcnt lgkmcnt(0)")
    first = True
    for p in positions:
        if first:
            A(f"v_xor_b32 v{vx}, s{sFL}, v{vt+p}")
            first = False
        else:
            A(f"v_xor_b32 v{vz}, s{sFL}, v{vt+p}\nv_or_b32 v{vx}, v{vx}, v{vz}")
    A(f"v_mov_b32 v{vz}, 0")
    A(f"v_cmp_ne_u32 vcc, 0, v{vx}")
    A(f"s_cmp_eq_u64 vcc, 0\ns_cbranch_scc1 {dn}")
    spin_tail(lp, a.lsleep)
    A(f"{dn}:")

def gate_init(widx, NP, vz):
    A(f"s_add_u32 s{sNEED}, s{widx}, 1\ns_mul_i32 s{sNEED}, s{sNEED}, {NP}\ns_mov_b32 s{sHAVE}, 0\nv_mov_b32 v{vz}, 0")

def gate(loff, kS, NP, NS, vz, vt):
    lp = A.label("Lg"); go = A.label("Lgo")
    A(f"{lp}:\ns_cmp_ge_u32 s{sHAVE}, s{sNEED}\ns_cbranch_scc1 {go}")
    if a.x1: A("s_mov_b64 exec, 1")
    A(f"ds_read_b128 v[{vt}:{vt+3}], v{vz} offset:{loff}\ns_waitcnt lgkmcnt(0)")
    A(f"v_add3_u32 v{vt}, v{vt}, v{vt+1}, v{vt+2}\nv_add_u32 v{vt}, v{vt}, v{vt+3}\ns_nop 0\nv_readfirstlane_b32 s{sHAVE}, v{vt}")
    if a.x1: A("s_mov_b64 exec, -1")
    A(f"s_mul_i32 s{sHAVE}, s{sHAVE}, {NS}\ns_cmp_ge_u32 s{sHAVE}, s{sNEED}\ns_cbranch_scc1 {go}")
    spin_tail(lp, a.gsleep)
    A(f"{go}:\ns_add_u32 s{sNEED}, s{sNEED}, {kS*NP}")

def credit(loff, vaddr, vval, n):
    A(f"v_mov_b32 v{vval}, {n}\nds_write_b32 v{vaddr}, v{vval} offset:{loff}")

def lds_flag(off, vtmp):
    A(f"v_mov_b32 v{vtmp}, 0\nds_write_b32 v{vtmp}, v{vT} offset:{off}")

def get_T():
    A("s_waitcnt lgkmcnt(0)")
    A(f"s_mul_i32 s{sT}, s{sT}, 0x9E3779B1\ns_add_u32 s{sT}, s{sT}, 0x7F4A7C15\ns_andn2_b32 s{sT}, s{sT}, 15\ns_or_b32 s{sT}, s{sT}, 8\ns_or_b32 s{sT}, s{sT}, s{sXCC}")
    A(f"v_mov_b32 v{vT}, s{sT}")

def make_selectors():
    t0, t1, t2, t3 = vA0, vA0 + 1, vA0 + 2, vA0 + 3
    A(f"v_bfe_u32 v{t0}, v{vL}, 2, 2")
    A(f"v_bfe_u32 v{t1}, v{vL}, 1, 1")
    A(f"v_cmp_eq_u32 vcc, 1, v{t1}")
    A(f"v_mov_b32 v{t2}, 0x0c0c0100\nv_mov_b32 v{t3}, 0x01000c0c")
    A(f"v_cndmask_b32 v{t2}, v{t2}, v{t3}, vcc")
    A(f"v_mov_b32 v{t1}, 0x0c0c0302\nv_mov_b32 v{t3}, 0x03020c0c")
    A(f"v_cndmask_b32 v{t3}, v{t1}, v{t3}, vcc")
    A(f"v_mov_b32 v{t1}, 0x0c0c0c0c")
    for t in range(4):
        A(f"v_cmp_eq_u32 vcc, {t}, v{t0}\ns_nop 1")
        A(f"v_cndmask_b32 v{vSEL+2*t}, v{t1}, v{t2}, vcc\nv_cndmask_b32 v{vSEL+2*t+1}, v{t1}, v{t3}, vcc")

def build_A(b, buf):
    src = vCO + b // 2
    for t in range(4):
        A(f"v_perm_b32 v{buf+t}, v{src}, v{src}, v{vSEL+2*t+(b&1)}")

def diag_gemv(nb, extra_after=0, win=None, hook=None):
    build_A(0, vA0)
    for b in range(nb):
        if b + 1 < nb:
            build_A(b + 1, vA1 if (b & 1) == 0 else vA0)
        else:
            A("s_nop 1")
        A(f"s_waitcnt vmcnt({min(nb-1-b, (win or nb)-1)+extra_after})")
        if hook: hook(b)
        buf = vA0 if (b & 1) == 0 else vA1
        c = "0" if b == 0 else f"v[{vACC}:{vACC+3}]"
        A(f"v_mfma_f32_16x16x32_bf16 v[{vACC}:{vACC+3}], v[{buf}:{buf+3}], v[{vD+4*b}:{vD+4*b+3}], {c}")

def combine(g):
    A("s_nop 7")
    A(f"v_add_f32_dpp v{g}, v{vACC+1}, v{vACC} row_ror:8 row_mask:0xf bank_mask:0xf")
    A(f"v_add_f32_dpp v{g+1}, v{vACC+3}, v{vACC+2} row_ror:8 row_mask:0xf bank_mask:0xf")
    A(f"v_mov_b32 v{g+2}, 0\nv_mov_b32 v{g+3}, 0")
    A("s_nop 1")
    A(f"v_permlane16_swap_b32 v{g}, v{g+2}\nv_permlane16_swap_b32 v{g+1}, v{g+3}")
    A("s_nop 1")
    for k in range(4):
        A(f"v_perm_b32 v{g+k}, v{g+k}, v{vT}, s{sSEL+k}")

def poll(g, voff, soff, sleep=0, depth=None, gap=None, on_timeout=None, lfl=None, after_first=None):
    if a.nopoll >= 1: return
    depth = depth or a.pdepth
    gap = a.pgap if gap is None else gap
    lp = A.label("Lp"); dn = A.label("Lpd")
    sets = [g + 8 + 4 * k for k in range(depth)]
    def issue(r):
        A(f"buffer_load_dwordx4 v[{r}:{r+3}], v{voff}, s[{WS}:{WS+3}], s{soff} offen sc1{PN if lfl is None else lfl}")
    for k in range(depth - 1):
        issue(sets[k])
        if k == 0 and after_first: after_first()
        if gap: A(f"s_sleep {gap}")
    if on_timeout: A(f"s_mov_b32 s{sCNT}, 0")
    A(f"{lp}:")
    fins = []
    for k in range(depth):
        issue(sets[(k + depth - 1) % depth])
        r = sets[k]
        A(f"s_waitcnt vmcnt({depth-1})")
        A(f"v_perm_b32 v{g+4}, v{r+1}, v{r}, s{sSELA}\nv_perm_b32 v{g+5}, v{r+3}, v{r+2}, s{sSELB}")
        A(f"v_or_b32 v{g+4}, v{g+4}, v{g+5}\nv_xor_b32 v{g+4}, s{sT}, v{g+4}")
        A(f"v_cmp_lt_u32 vcc, 7, v{g+4}")
        fl = A.label("Lpf"); fins.append((fl, r))
        A(f"s_cmp_eq_u64 vcc, 0\ns_cbranch_scc1 {fl}")
    if on_timeout:
        A(f"s_add_u32 s{sCNT}, s{sCNT}, 1\ns_cmp_lg_u32 s{sCNT}, {a.nt}\ns_cbranch_scc1 {lp}_t")
        on_timeout()
        A(f"{lp}_t:")
    spin_tail(lp, 0)
    for i, (fl, r) in enumerate(fins):
        A(f"{fl}:")
        for k in range(4):
            A(f"v_mov_b32 v{g+k}, v{r+k}")
        if i < len(fins) - 1: A(f"s_branch {dn}")
    A(f"{dn}:")
    A("s_nop 1")

def lds_mode(vz, vr):
    A(f"v_mov_b32 v{vz}, 0\nds_read_b32 v{vr}, v{vz} offset:{L_MODE}")

def publish_gather(box, ldsdst, ldsflag, fscale, g=vD, h=None):
    combine(g)
    A(f"v_and_b32 v{g+8}, 7, v{vL}\nv_lshrrev_b32 v{g+9}, 5, v{vL}\nv_lshl_add_u32 v{g+8}, v{g+8}, 1, v{g+9}\nv_lshlrev_b32 v{g+8}, 4, v{g+8}")
    A(f"s_mul_i32 s{sOFF}, s{sH}, 3072\ns_lshl_b32 s{sTMP}, s{sC}, 10\ns_add_u32 s{sOFF}, s{sOFF}, s{sTMP}\ns_add_u32 s{sOFF}, s{sOFF}, {box}")
    A(f"s_lshl_b32 s{sTMP3}, s{sJ}, 8\ns_add_u32 s{sTMP3}, s{sTMP3}, s{sOFF}")
    def store(fl):
        A("s_mov_b32 exec_lo, 0xff\ns_mov_b32 exec_hi, 0xff")
        A(f"buffer_store_dwordx4 v[{g}:{g+3}], v{g+8}, s[{WS}:{WS+3}], s{sTMP3} offen{fl}")
        A("s_mov_b64 exec, -1")
    if fscale:
        l1 = A.label("Ls"); l2 = A.label("Ls")
        A(f"s_cmp_lg_u32 s{sMODE}, 0\ns_cbranch_scc1 {l1}")
        store("")
        A(f"s_branch {l2}\n{l1}:")
        store(" sc1")
        A(f"{l2}:")
    else:
        store("")
    stamp(3)
    A(f"v_and_b32 v{g+10}, 3, v{vL}\nv_lshrrev_b32 v{g+11}, 2, v{vL}\nv_lshlrev_b32 v{g+12}, 4, v{g+11}\nv_lshl_add_u32 v{g+12}, v{g+10}, 8, v{g+12}")
    if fscale:
        lds_wait(L_FFLAG, [0], 1, g + 16)
        A(f"v_lshlrev_b32 v{g+13}, 2, v{g+10}\nds_read_b32 v{g+13}, v{g+13} offset:{L_FF}")
    h = h or g + 20
    def opf(): A(f"s_lshl_b32 s{sTMP}, s{sC}, 2\nv_mov_b32 v{g+14}, s{sTMP}\nds_write_b32 v{g+14}, v{vT} offset:{L_VT+4}")
    poll(h, g + 12, sOFF, on_timeout=None if fscale else (lambda: store(" sc1")), after_first=opf if fscale and a.rank else None)
    stamp(4)
    if fscale:
        A("s_waitcnt lgkmcnt(0)")
        for k in range(4):
            A(f"v_mul_f32 v{h+k}, v{h+k}, v{g+13}")
    else:
        if a.nopoll: A(f"v_mov_b32 v{h+4}, 0")
        A(f"v_cmp_ne_u32 vcc, 0, v{h+4}\ns_cmp_lg_u64 vcc, 0\ns_cselect_b32 s{sMODE}, 1, 0\nv_mov_b32 v{g+13}, s{sMODE}\nv_mov_b32 v{g+14}, 0")
        l1 = A.label("Ls")
        A(f"s_cbranch_scc0 {l1}")
        store(" sc1")
        A(f"{l1}:")
    for k in range(4):
        A(f"v_add_f32_dpp v{h+4+k}, v{h+k}, v{h+k} quad_perm:[1,0,3,2] row_mask:0xf bank_mask:0xf")
    for k in range(4):
        A(f"v_add_f32_dpp v{h+k}, v{h+4+k}, v{h+4+k} quad_perm:[2,3,0,1] row_mask:0xf bank_mask:0xf")
    A(f"v_cvt_pk_bf16_f32 v{h+4}, v{h}, v{h+1}\nv_cvt_pk_bf16_f32 v{h+5}, v{h+2}, v{h+3}")
    A(f"s_lshl_b32 s{sTMP}, s{sC}, 7\nv_lshlrev_b32 v{g+11}, 3, v{g+11}\nv_add_u32 v{g+11}, s{sTMP}, v{g+11}")
    A(f"s_lshl_b32 s{sTMP}, s{sC}, 2\nv_mov_b32 v{g+10}, s{sTMP}")
    A("s_mov_b32 exec_lo, 0x11111111\ns_mov_b32 exec_hi, 0x11111111")
    A(f"ds_write_b64 v{g+11}, v[{h+4}:{h+5}] offset:{ldsdst}")
    if not fscale:
        A(f"ds_write_b32 v{g+14}, v{g+13} offset:{L_MODE}")
    A(f"ds_write_b32 v{g+10}, v{vT} offset:{ldsflag}")
    A("s_mov_b64 exec, -1")

def coef_addr(vdst, per):
    A(f"v_lshrrev_b32 v{vdst}, 4, v{vL}\nv_and_b32 v{vA0}, 1, v{vL}\nv_lshl_add_u32 v{vdst}, v{vdst}, 1, v{vA0}\nv_mul_u32_u24 v{vdst}, {per}, v{vdst}")

def data_voff(rowstep):
    A(f"v_lshrrev_b32 v{vOFF}, 3, v{vL}\nv_mul_u32_u24 v{vOFF}, {rowstep}, v{vOFF}\nv_and_b32 v{vA0}, 7, v{vL}\nv_lshl_add_u32 v{vOFF}, v{vA0}, 4, v{vOFF}")

def srd(d, lo, n):
    A.srd(d, lo, n)

A("s_cmp_ge_u32 s2, 256\ns_cbranch_scc1 L_done")
stamp(0)
if a.stamps:
    for k in range(2, 18):
        A(f"s_mov_b32 s{sST+k}, 0")
if a.dly:
    dl = a.dly
    if dl[0] == "w":
        dl = dl[1:]; A("s_and_b32 s3, s2, 7")
    else:
        A("s_getreg_b32 s3, hwreg(HW_REG_XCC_ID, 0, 3)")
    dl = [int(x) for x in dl.split(",")]
    lo = sum(v << (8 * i) for i, v in enumerate(dl[:4])); hi = sum(v << (8 * i) for i, v in enumerate(dl[4:]))
    A(f"s_mov_b32 s4, {lo}\ns_mov_b32 s5, {hi}\ns_lshl_b32 s3, s3, 3\ns_lshr_b64 s[4:5], s[4:5], s3\ns_and_b32 s4, s4, 0xff")
    A("L_dl:\ns_sub_u32 s4, s4, 1\ns_cbranch_scc1 L_nd\ns_sleep 2\ns_branch L_dl\nL_nd:")
A(f"s_load_dwordx2 s[{sWSP}:{sWSP+1}], s[0:1], 96")
if a.xmap == 1:
    A(f"s_and_b32 s{sJ}, s2, 3\ns_lshr_b32 s{sH}, s2, 2")
elif a.xmap == 2:
    A(f"s_lshr_b32 s{sH}, s2, 3\ns_and_b32 s{sJ}, s{sH}, 3\ns_cmp_eq_u32 s{sJ}, 3\ns_cselect_b32 s3, 1, 0\ns_add_u32 s3, s3, s2\ns_and_b32 s3, s3, 7\ns_lshr_b32 s{sH}, s{sH}, 2\ns_lshl_b32 s3, s3, 3\ns_add_u32 s{sH}, s{sH}, s3")
else:
    A(f"s_add_u32 s3, s2, {a.rot}\ns_and_b32 s3, s3, 7\ns_lshr_b32 s{sH}, s2, 3\ns_and_b32 s{sJ}, s{sH}, 3\ns_lshr_b32 s{sH}, s{sH}, 2\ns_lshl_b32 s3, s3, 3\ns_add_u32 s{sH}, s{sH}, s3")
A(f"s_lshr_b32 s{sP}, s{sH}, 5\ns_and_b32 s{sHH}, s{sH}, 31")
A(f"s_lshl_b32 s9, s{sP}, 7")
A(f"s_mul_i32 s8, s{sP}, 40\ns_add_u32 s10, s0, s8\ns_addc_u32 s11, s1, 0")
A(f"s_load_dwordx8 s[{sX}:{sX+7}], s[10:11], 0")
A(f"s_load_dwordx2 s[{sWO}:{sWO+1}], s[10:11], 32")
A(f"v_lshrrev_b32 v1, 6, v0\nv_and_b32 v0, 63, v0\nv_readfirstlane_b32 s{sWAVE}, v1")
A(f"s_mov_b32 s{sSPIN}, 200000\ns_getreg_b32 s{sXCC}, hwreg(HW_REG_XCC_ID, 0, 3)")
if THX: A(f"s_lshr_b32 s{sTH}, {THX[0]}, s{sXCC}\ns_and_b32 s{sTH}, s{sTH}, 1")
for k in range(4):
    A(f"s_mov_b32 s{sSEL+k}, {0x07060500 + k:#x}")
A(f"s_mov_b32 s{sSELA}, 0x0c0c0400\ns_mov_b32 s{sSELB}, 0x04000c0c")
if a.pads == 3:
    A(f"s_cmp_lt_u32 s{sWAVE}, 3\ns_cbranch_scc1 L_w")
    A(f"v_lshlrev_b32 v8, 2, v{vL}\nv_mov_b32 v9, 0\ns_cmp_lg_u32 s{sWAVE}, 3\ns_cbranch_scc1 L_nz\nds_write_b32 v8, v9\ns_branch @PAE0@\nL_nz:")
    for w in range(1, 7): A(f"s_cmp_eq_u32 s{sWAVE}, {3+w}\ns_cbranch_scc1 @PAE{w}@")
    A("s_branch @PAE7@")
    A("L_p1done:")
    A(f"s_waitcnt lgkmcnt(0)\ns_load_dword s{sT}, s[{sWSP}:{sWSP+1}], s9\ns_barrier")
    A(f"s_cmp_eq_u32 s{sWAVE}, 3\ns_cbranch_scc1 @PAD0@\ns_cmp_lt_u32 s{sWAVE}, 8\ns_cbranch_scc1 L_k")
    for w in (5, 6): A(f"s_cmp_eq_u32 s{sWAVE}, {3+w}\ns_cbranch_scc1 @PAD{w}@")
    A("s_branch @PAD7@")
    A("L_pdone:")
    A(f"s_cmp_eq_u32 s{sWAVE}, 3\ns_cbranch_scc1 L_aux\ns_branch L_v")
elif a.pads:
    A(f"s_cmp_lt_u32 s{sWAVE}, 3\ns_cbranch_scc1 L_w")
    A(f"v_lshlrev_b32 v8, 2, v{vL}\nv_mov_b32 v9, 0\ns_cmp_lg_u32 s{sWAVE}, 3\ns_cbranch_scc1 L_nz\nds_write_b32 v8, v9\nL_nz:")
    A(f"s_waitcnt lgkmcnt(0)\ns_load_dword s{sT}, s[{sWSP}:{sWSP+1}], s9\ns_barrier")
    if a.pads == 1:
        for w in range(7): A(f"s_cmp_eq_u32 s{sWAVE}, {3+w}\ns_cbranch_scc1 @PAD{w}@")
        A("s_branch @PAD7@")
    A("L_pdone:")
    A(f"""s_cmp_eq_u32 s{sWAVE}, 3
s_cbranch_scc1 L_aux
s_cmp_lt_u32 s{sWAVE}, 8
s_cbranch_scc1 L_k
s_branch L_v""")
else:
    A(f"""s_cmp_lt_u32 s{sWAVE}, 3
s_cbranch_scc1 L_w
s_cmp_eq_u32 s{sWAVE}, 3
s_cbranch_scc1 L_aux
s_cmp_lt_u32 s{sWAVE}, 8
s_cbranch_scc1 L_k
s_cmp_lt_u32 s{sWAVE}, 11
s_cbranch_scc1 L_v
s_branch L_aux""")

A("L_w:")
prio(3)
A(f"s_mov_b32 s{sC}, s{sWAVE}")
A(f"s_mul_i32 s{sOFF}, s{sJ}, {160*12288}\ns_mul_i32 s{sTMP3}, s{sHH}, 384\ns_add_u32 s{sOFF}, s{sOFF}, s{sTMP3}\ns_lshl_b32 s{sTMP3}, s{sC}, 7\ns_add_u32 s{sOFF}, s{sOFF}, s{sTMP3}")
A(f"s_mul_i32 s{sTMP2}, s{sJ}, 320")
for nb in (20,):
    data_voff(nb * 12288)
    if "q" in a.contig:
        A(f"v_lshlrev_b32 v{vOFF}, 4, v{vL}\ns_lshl_b32 s{sOFF}, s{sHH}, 2\ns_add_u32 s{sOFF}, s{sOFF}, s{sJ}\ns_mul_i32 s{sOFF}, s{sOFF}, 3\ns_add_u32 s{sOFF}, s{sOFF}, s{sC}\ns_mul_i32 s{sOFF}, s{sOFF}, 20480")
    coef_addr(vAD, 2 * nb)
    if a.nf == 10:
        A(f"s_lshr_b32 s{sRB}, s2, 4\ns_lshl_b32 s{sRB}, s{sRB}, 14\ns_and_b32 s{sRI}, s2, 15\ns_lshl_b32 s{sRI}, s{sRI}, 9\ns_add_u32 s{sRB}, s{sRB}, s{sRI}\ns_add_u32 s{sRB}, s{sRB}, {FBOX + 20*16384}")
        A(f"s_and_b32 s{sRI}, s{sJ}, 1\ns_lshl_b32 s{sRI}, s{sRI}, 13\ns_add_u32 s{sRB}, s{sRB}, s{sRI}\ns_xor_b32 s{sRI}, s{sRB}, 8192\nv_mov_b32 v165, 0\ns_mov_b32 s{WS+2}, 0x10000000\ns_mov_b32 s{WS+3}, 0x00020000\ns_cmp_lg_u32 s{sC}, 0")
    A("s_waitcnt lgkmcnt(0)")
    if a.nf == 10:
        A(f"s_mov_b32 s{WS}, s{sWSP}\ns_cbranch_scc1 L_wnp\ns_and_b32 s{WS+1}, s{sWSP+1}, 0xffff\ns_mov_b64 exec, 1")
        A(f"buffer_load_dword v166, v165, s[{WS}:{WS+3}], s{sRB} offen {a.nfp}\nbuffer_load_dword v167, v165, s[{WS}:{WS+3}], s{sRI} offen {a.nfp}\ns_mov_b64 exec, -1\nL_wnp:")
    if a.pro: stamp(5)
    A(f"s_load_dword s{sT}, s[{sWSP}:{sWSP+1}], s9")
    srd(SR, sWQ, 640 * 12288)
    srd(SR2, sX, 1280)
    for k in range(nb // 8):
        A(f"buffer_load_dwordx4 v[{vCO+4*k}:{vCO+4*k+3}], v{vAD}, s[{SR2}:{SR2+3}], s{sTMP2} offen offset:{16*k}{XN}")
    A(f"buffer_load_dwordx2 v[{vCO+8}:{vCO+9}], v{vAD}, s[{SR2}:{SR2+3}], s{sTMP2} offen offset:32{XN}")
    nw = WIN[0] if WIN else nb
    def wq_load(b):
        A(f"buffer_load_dwordx4 v[{vD+4*b}:{vD+4*b+3}], v{vOFF}, s[{SR}:{SR+3}], s{sOFF} offen nt")
        if b < nb - 1: A(f"s_add_u32 s{sOFF}, s{sOFF}, {1024 if 'q' in a.contig else 12288}")
    for b in range(nw):
        thr(b)
        wq_load(b)
    stamp(1)
    if not a.lb: A("s_barrier")
    srd(WS, sWSP, 0x10000000)
    make_selectors()
    if a.nf == 10:
        A(f"s_cmp_lg_u32 s{sC}, 0\ns_cbranch_scc1 L_wnq\ns_waitcnt vmcnt({nw+4})")
        A(f"s_sleep {a.nfs}" if a.nfs > 0 else f"s_nop {-a.nfs}")
        A(f"s_getreg_b32 s{sRI}, hwreg(HW_REG_IB_STS, 0, 4)\ns_bitcmp1_b32 s{sJ}, 0\ns_cselect_b32 s{sRB}, 0, 16\ns_cmp_eq_u32 s{sRI}, {nw+4}\ns_cselect_b32 s{sRB}, s{sRB}, 32\nL_wnq:")
    get_T()
    if a.lb == 1: A("s_barrier")
    A(f"s_waitcnt vmcnt({nw})")
    if a.pro:
        A(f"s_waitcnt vmcnt({nw-1})")
        stamp(6)
    if WIN:
        A(f"s_lshl_b32 s{sTMP}, s{sC}, 2\nv_mov_b32 v{vAD}, s{sTMP}")
        def hook(b):
            if a.lb >= 2 and b == a.lb - 2 + 1: A("s_barrier")
            if b + nw < nb: wq_load(b + nw)
            else: credit(L_PW, vAD, vCO - 1 - 0 if False else 164, b + nw - nb + 1)
        diag_gemv(nb, win=nw, hook=hook)
    else:
        diag_gemv(nb)
stamp(2)
publish_gather(QBOX, L_Q, L_QF, False, g=vD, h=136)
if not a.pro: stamp(5)
if a.nf == 10:
    A(f"s_cmp_lg_u32 s{sC}, 0\ns_cbranch_scc1 L_wnv\ns_xor_b32 s{sRB}, s{sRB}, s{sT}\nv_mov_b32 v166, s{sRB}\ns_lshl_b32 s{sRI}, s{sXCC}, 10\ns_add_u32 s{sRI}, s{sRI}, {VBOX}\ns_lshl_b32 s{sTMP}, s2, 2\nv_mov_b32 v165, s{sTMP}")
    A(f"s_mov_b64 exec, 1\nbuffer_store_dword v166, v165, s[{WS}:{WS+3}], s{sRI} offen\ns_mov_b64 exec, -1\nL_wnv:")
A("L_wo:")
vF = 160
A(f"s_lshl_b32 s{sTMP}, s{sC}, 2\nv_mov_b32 v{vF+1}, s{sTMP}")
A(f"{'s_lshr_b32' if a.lmap else 's_and_b32'} s{sTMP}, s{sJ}, 1\ns_add_u32 s{sTMP}, s{sTMP}, s{sC}\ns_cmp_eq_u32 s{sTMP}, 3\ns_cbranch_scc1 L_w_fin")
prio(0)
if a.dry & 1: A(f"s_mov_b32 s{sDRY}, 1\ns_branch L_fc\nL_fcb:\ns_mov_b32 s{sDRY}, 0")
srd(SR, sWO, 6144 * 1280)
data_voff(8 * 1280 if a.slab else 24 * 1280)
if a.lmap: A(f"s_mul_i32 s{sTMP}, s{sJ}, 3\ns_add_u32 s{sM}, s{sJ}, 1\ns_lshr_b32 s{sM}, s{sM}, 2\ns_sub_u32 s{sTMP}, s{sTMP}, s{sM}\ns_add_u32 s{sM}, s{sTMP}, s{sC}")
else: A(f"s_mul_i32 s{sTMP}, s{sJ}, 5\ns_add_u32 s{sTMP}, s{sTMP}, 1\ns_lshr_b32 s{sTMP}, s{sTMP}, 1\ns_add_u32 s{sM}, s{sTMP}, s{sC}")
A(f"s_mul_i32 s{sOFF}, s{sHH}, {192*1280}\ns_lshl_b32 s{sTMP}, s{sM}, 7\ns_add_u32 s{sOFF}, s{sOFF}, s{sTMP}")
if "o" in a.contig:
    A(f"v_lshlrev_b32 v{vOFF}, 4, v{vL}\ns_mul_i32 s{sOFF}, s{sHH}, 10\ns_add_u32 s{sOFF}, s{sOFF}, s{sM}\ns_mul_i32 s{sOFF}, s{sOFF}, 24576")
if WIN: gate_init(sC, 3 * WIN[2], vCO)
def wo_issue(nO, kS):
    rest = [A.label("Lb") for b in range(24)]
    for b in range(24):
        thr(b)
        if WIN:
            if b < nO: gate(L_PV, kS, 3 * WIN[2], kS * nO, vCO, vCO + 4)
            else:
                if a.boost:
                    t = vCO + 4
                    if THX and THX[4] & 2:
                        lnb = A.label("Lnb"); A(f"s_cmp_lg_u32 s{sTH}, 0\ns_cbranch_scc1 {lnb}")
                    A(f"ds_read_b128 v[{t}:{t+3}], v{vCO} offset:{L_OF}\ns_waitcnt lgkmcnt(0)")
                    op = "v_or3_b32" if a.boost == 2 else None
                    if a.boost == 1:
                        A(f"v_and_b32 v{t}, v{t}, v{t+1}\nv_and_or_b32 v{t}, v{t}, v{t+2}, v{t+3}")
                    else:
                        A(f"v_or3_b32 v{t}, v{t}, v{t+1}, v{t+2}")
                    A(f"v_cmp_ne_u32 vcc, 0, v{t}\ns_cbranch_vccnz {rest[b]}")
                    if THX and THX[4] & 2: A(f"{lnb}:")
                A(f"s_waitcnt vmcnt({nO-1})")
            if THX and b >= nO - THX[3]: thx(nO, THX[3])
        A(f"buffer_load_dwordx4 v[{vD+4*b}:{vD+4*b+3}], v{vOFF}, s[{SR}:{SR+3}], s{sOFF} offen nt")
        if b < 23: A(f"s_add_u32 s{sOFF}, s{sOFF}, {1024 if 'o' in a.contig else (57 * 1280 if a.slab and b % 8 == 7 else 1280)}")
    if a.boost and WIN:
        A("s_branch L_wo_j")
        for b in range(nO, 24):
            A(f"{rest[b]}:")
            A(f"buffer_load_dwordx4 v[{vD+4*b}:{vD+4*b+3}], v{vOFF}, s[{SR}:{SR+3}], s{sOFF} offen nt")
            if b < 23: A(f"s_add_u32 s{sOFF}, s{sOFF}, {1024 if 'o' in a.contig else (57 * 1280 if a.slab and b % 8 == 7 else 1280)}")
        A("s_branch L_wo_j")
    return
    for b in range(24):
        A(f"buffer_load_dwordx4 v[{vD+4*b}:{vD+4*b+3}], v{vOFF}, s[{SR}:{SR+3}], s{sOFF} offen nt")
        if b < 23: A(f"s_add_u32 s{sOFF}, s{sOFF}, {1024 if 'o' in a.contig else (57 * 1280 if a.slab and b % 8 == 7 else 1280)}")
if a.wj:
    assert a.boost
    wj = [int(x) for x in a.wj.split(",")]
    for jj in range(4):
        heavy = (jj < 2) if a.lmap else (jj % 2 == 0)
        if jj < 3: A(f"s_cmp_lg_u32 s{sJ}, {jj}\ns_cbranch_scc1 L_wj{jj}")
        wo_issue(wj[jj], 3 if heavy else 2)
        A(f"L_wj{jj}:")
elif a.no2:
    A(f"s_bitcmp1_b32 s{sJ}, {1 if a.lmap else 0}\ns_cbranch_scc0 L_wo_e")
    wo_issue(a.no2, a.ks2)
    A("s_branch L_wo_j\nL_wo_e:")
if not a.wj: wo_issue(WIN[3] if WIN else 24, 3)
A("L_wo_j:")
prio(3)
if not a.pro: stamp(6)
coef_addr(vAD, 16 if a.slab else 48)
if a.fp:
    gp = a.fp // 16; lg = gp.bit_length() - 1
    A(f"v_and_b32 v{vF}, 7, v{vL}\nv_lshrrev_b32 v{vF+2}, 5, v{vL}\nv_lshl_add_u32 v{vF}, v{vF}, 1, v{vF+2}")
    A(f"v_and_b32 v{vF+2}, {gp-1}, v{vF}\nv_lshrrev_b32 v{vF}, {lg}, v{vF}\nv_mul_u32_u24 v{vF}, {32*a.fp}, v{vF}\nv_lshl_add_u32 v{vF}, v{vF+2}, 4, v{vF}")
    A(f"s_mul_i32 s{sOFF}, s{sP}, 10\ns_add_u32 s{sOFF}, s{sOFF}, s{sM}\ns_lshl_b32 s{sOFF}, s{sOFF}, {14 if a.nf else 13}\ns_mul_i32 s{sTMP}, s{sHH}, {a.fp}\ns_add_u32 s{sOFF}, s{sOFF}, s{sTMP}\ns_add_u32 s{sOFF}, s{sOFF}, {FBOX}")
else:
    A(f"v_and_b32 v{vF}, 7, v{vL}\nv_lshrrev_b32 v{vF+2}, 5, v{vL}\nv_lshlrev_b32 v{vF}, 10, v{vF}\nv_lshl_add_u32 v{vF}, v{vF+2}, 9, v{vF}")
    A(f"s_lshl_b32 s{sTMP}, s{sP}, 2\ns_add_u32 s{sTMP}, s{sTMP}, s{sJ}\ns_mul_i32 s{sOFF}, s{sTMP}, 24576\ns_lshl_b32 s{sTMP}, s{sHH}, 4\ns_add_u32 s{sOFF}, s{sOFF}, s{sTMP}\ns_lshl_b32 s{sTMP}, s{sC}, 13\ns_add_u32 s{sOFF}, s{sOFF}, s{sTMP}\ns_add_u32 s{sOFF}, s{sOFF}, {FBOX}")
if a.slab:
    vfl = vCO + 12
    A(f"v_mov_b32 v{vF+2}, 0\ns_mov_b32 s{sM}, 7")
    for k in range(4): A(f"v_mov_b32 v{vACC+k}, 0")
    A("L_kl:")
    A(f"ds_read_b128 v[{vfl}:{vfl+3}], v{vF+2} offset:{L_OF}")
    for c in range(3): A(f"ds_read_b128 v[{vCO+4*c}:{vCO+4*c+3}], v{vAD} offset:{L_O+128*c}")
    A("s_waitcnt lgkmcnt(0)")
    for c in range(3): A(f"v_readfirstlane_b32 s{sTMP+c}, v{vfl+c}")
    for c in range(3):
        A(f"s_bitcmp0_b32 s{sM}, {c}\ns_cbranch_scc1 L_kn{c}")
        if a.nopoll < 2: A(f"s_cmp_lg_u32 s{sTMP+c}, s{sT}\ns_cbranch_scc1 L_kn{c}")
        A(f"s_bitset0_b32 s{sM}, {c}")
        def bA(b, buf):
            for t in range(4): A(f"v_perm_b32 v{buf+t}, v{vCO+4*c+b//2}, v{vCO+4*c+b//2}, v{vSEL+2*t+(b&1)}")
        bA(0, vA0)
        for b in range(8):
            if b < 7: bA(b + 1, vA1 if (b & 1) == 0 else vA0)
            else: A("s_nop 1")
            buf = vA0 if (b & 1) == 0 else vA1
            n = 8 * c + b
            A(f"s_waitcnt vmcnt({23-n})")
            A(f"v_mfma_f32_16x16x32_bf16 v[{vACC}:{vACC+3}], v[{buf}:{buf+3}], v[{vD+4*n}:{vD+4*n+3}], v[{vACC}:{vACC+3}]")
        A(f"L_kn{c}:")
    A(f"s_cmp_eq_u32 s{sM}, 0\ns_cbranch_scc1 L_kd")
    spin_tail("L_kl", a.wsl)
    A("L_kd:")
else:
    lds_wait(L_OF, [0, 1, 2], 4, vCO)
    for k in range(3):
        A(f"ds_read_b128 v[{vCO+4*k}:{vCO+4*k+3}], v{vAD} offset:{L_O+16*k}")
    A("s_waitcnt lgkmcnt(0)")
    A("L_fc:")
    diag_gemv(24)
combine(vCO)
if a.dry & 1: A(f"s_cmp_lg_u32 s{sDRY}, 0\ns_cbranch_scc1 L_fcb")
A("s_mov_b32 exec_lo, 0xff\ns_mov_b32 exec_hi, 0xff")
if a.nofin != 1: A(f"buffer_store_dwordx4 v[{vCO}:{vCO+3}], v{vF}, s[{WS}:{WS+3}], s{sOFF} offen{'' if a.nofin == 3 else ' sc1'}")
if a.nf and a.nofin != 1: A(f"s_add_u32 s{sOFF}, s{sOFF}, 8192\nbuffer_store_dwordx4 v[{vCO}:{vCO+3}], v{vF}, s[{WS}:{WS+3}], s{sOFF} offen sc1")
A("s_mov_b64 exec, -1")
A("L_w_fin:")
A(f"ds_write_b32 v{vF+1}, v{vT} offset:{L_PF}")
stamp(7)
A("s_branch L_end")

A("L_k:")
prio(2)
A(f"s_sub_u32 s{sC}, s{sWAVE}, 4")
A(f"v_and_b32 v{vOFF}, 7, v{vL}\nv_mul_u32_u24 v{vOFF}, 384, v{vOFF}\nv_bfe_u32 v8, v{vL}, 3, 1\nv_lshl_add_u32 v{vOFF}, v8, 6, v{vOFF}\nv_lshrrev_b32 v8, 4, v{vL}\nv_lshl_add_u32 v{vOFF}, v8, 4, v{vOFF}")
A(f"v_and_b32 v{vAD}, 1, v{vL}\nv_lshlrev_b32 v{vAD}, 6, v{vAD}\nv_lshl_add_u32 v{vAD}, v8, 4, v{vAD}")
A(f"s_mul_i32 s{sOFF}, s{sHH}, 1572864\ns_mul_i32 s{sTMP}, s{sJ}, 98304\ns_add_u32 s{sOFF}, s{sOFF}, s{sTMP}\ns_mul_i32 s{sTMP}, s{sC}, 24576\ns_add_u32 s{sOFF}, s{sOFF}, s{sTMP}\ns_add_u32 s{sOFF}, s{sOFF}, {3072*384}")
if not a.pads:
    A("s_waitcnt lgkmcnt(0)")
    A(f"s_load_dword s{sT}, s[{sWSP}:{sWSP+1}], s9")
srd(SR, sK, 50331648)
if a.tlb & 1: A(f"v_mul_u32_u24 v9, 24448, v{vL}\ns_mov_b64 exec, 3\nbuffer_load_dword v10, v9, s[{SR}:{SR+3}], s{sOFF} offen nt\ns_mov_b64 exec, -1")
srd(WS, sWSP, 0x10000000)
if not a.pads: A("s_barrier")
get_T()
if WIN: gate_init(sC, 3 * WIN[0], 24)
krest = [A.label("Lkb") for b in range(24)]
def k_load(t):
    A(f"buffer_load_dwordx4 v[{vD+4*t}:{vD+4*t+3}], v{vOFF}, s[{SR}:{SR+3}], s{sOFF} offen offset:{128*(t%3)} nt")
    if t % 3 == 2 and t < 23: A(f"s_add_u32 s{sOFF}, s{sOFF}, 3072")
for t in range(24):
    thr(t)
    if WIN:
        if t < WIN[1]: gate(L_PW, 4, 3 * WIN[0], 4 * WIN[1], 24, 28)
        else:
            if a.kboost:
                A(f"ds_read_b128 v[28:31], v24 offset:{L_QF}\ns_waitcnt lgkmcnt(0)\nv_and_b32 v28, v28, v29\nv_and_b32 v28, v28, v30\nv_cmp_ne_u32 vcc, 0, v28\ns_cbranch_vccnz {krest[t]}")
            A(f"s_waitcnt vmcnt({WIN[1]-1})")
        if THX and t >= WIN[1] - THX[1]: thx(WIN[1], THX[1])
    k_load(t)
if a.kboost:
    A("s_branch L_kb_j")
    for t in range(WIN[1], 24):
        if t >= a.kboost: A(f"s_waitcnt vmcnt({a.kboost-1})")
        A(f"{krest[t]}:")
        k_load(t)
    A("L_kb_j:")
if WIN:
    prio(3)
    A(f"s_lshl_b32 s{sTMP}, s{sC}, 2\nv_mov_b32 v8, s{sTMP}")
    for i in range(WIN[1]):
        A(f"s_waitcnt vmcnt({WIN[1]-1-i})")
        credit(L_PK, 8, 9, i + 1)
elif a.g2:
    A(f"s_lshl_b32 s{sTMP}, s{sC}, 2\nv_mov_b32 v8, s{sTMP}\nds_write_b32 v8, v{vT} offset:{L_KI}")
prio(3)
stamp(1)
vQ = 8
vS = 136
lds_wait(L_QF, [0, 1, 2], 4, 24)
stamp(2)
for u in range(3):
    A(f"ds_read_b128 v[{vQ+4*u}:{vQ+4*u+3}], v{vAD} offset:{L_Q+128*u}")
A("s_waitcnt lgkmcnt(0)")
s_ = 24
for t in range(24):
    G, u = divmod(t, 3)
    A(f"s_waitcnt vmcnt({23-t})")
    c = "0" if u == 0 else f"v[{vS+4*G}:{vS+4*G+3}]"
    A(f"v_mfma_f32_16x16x32_bf16 v[{vS+4*G}:{vS+4*G+3}], v[{vQ+4*u}:{vQ+4*u+3}], v[{vD+4*t}:{vD+4*t+3}], {c}")
stamp(3)
A("s_nop 7")
for G in range(8):
    d0, d1 = vS + 4 * G, vS + 4 * G + 1
    if G & 1:
        A(f"v_add_f32_dpp v{s_}, v{d0}, v{d1} row_ror:8 row_mask:{1 << (G >> 1):#x} bank_mask:0xc")
    else:
        A(f"v_add_f32_dpp v{s_}, v{d1}, v{d0} row_ror:8 row_mask:{1 << (G >> 1):#x} bank_mask:0x3")
A(f"v_cvt_pk_bf16_f32 v{s_}, v{s_}, v{s_}\nv_lshlrev_b32 v{s_}, 16, v{s_}")
A(f"v_mul_f32 v{s_}, 0x3d93cd3a, v{s_}")
A(f"v_cvt_pk_bf16_f32 v{s_}, v{s_}, v{s_}\nv_lshlrev_b32 v{s_}, 16, v{s_}")
def wave_reduce(op, v):
    for d in ["row_shr:1", "row_shr:2", "row_shr:4", "row_shr:8"]:
        A(f"s_nop 1\n{op}_dpp v{v}, v{v}, v{v} {d} row_mask:0xf bank_mask:0xf")
    A(f"s_nop 1\n{op}_dpp v{v}, v{v}, v{v} row_bcast:15 row_mask:0xa bank_mask:0xf")
    A(f"s_nop 1\n{op}_dpp v{v}, v{v}, v{v} row_bcast:31 row_mask:0xc bank_mask:0xf")
A(f"v_mov_b32 v{s_+1}, v{s_}")
wave_reduce("v_max_f32", s_ + 1)
A(f"s_nop 0\nv_readlane_b32 s{sTMP}, v{s_+1}, 63")
A(f"s_lshl_b32 s{sTMP2}, s{sC}, 3\nv_mov_b32 v{s_+4}, s{sTMP2}\nv_mov_b32 v{s_+2}, s{sTMP}\nv_mov_b32 v{s_+3}, s{sT}")
A(f"ds_write_b64 v{s_+4}, v[{s_+2}:{s_+3}] offset:{L_MX}")
lds_wait(L_MX, [1, 3, 5, 7], 8, s_ + 8)
A(f"v_max_f32 v{s_+8}, v{s_+8}, v{s_+10}\nv_max3_f32 v{s_+8}, v{s_+8}, v{s_+12}, v{s_+14}")
A(f"v_sub_f32 v{s_}, v{s_}, v{s_+8}\nv_mul_f32 v{s_}, 0x3fb8aa3b, v{s_}\nv_exp_f32 v{s_}, v{s_}\ns_nop 0")
A(f"v_cvt_pk_bf16_f32 v{s_+1}, v{s_}, v{s_}")
A(f"s_lshl_b32 s{sTMP}, s{sC}, 7\nv_lshlrev_b32 v{s_+5}, 1, v{vL}\nv_add_u32 v{s_+5}, s{sTMP}, v{s_+5}")
A(f"ds_write_b16 v{s_+5}, v{s_+1} offset:{L_P}")
wave_reduce("v_add_f32", s_)
A(f"s_nop 0\nv_readlane_b32 s{sTMP}, v{s_}, 63\ns_nop 1\nv_mov_b32 v{s_+2}, s{sTMP}")
A(f"ds_write_b64 v{s_+4}, v[{s_+2}:{s_+3}] offset:{L_LS}")
stamp(4)
A("s_branch L_end")

A("L_v:")
prio(1)
A(f"s_sub_u32 s{sC}, s{sWAVE}, 8")
data_voff(384 if a.near else 32 * 384)
A(f"s_mul_i32 s{sOFF}, s{sHH}, 1572864\ns_mul_i32 s{sTMP}, s{sJ}, 98304\ns_add_u32 s{sOFF}, s{sOFF}, s{sTMP}\ns_lshl_b32 s{sTMP}, s{sC}, 7\ns_add_u32 s{sOFF}, s{sOFF}, s{sTMP}\ns_add_u32 s{sOFF}, s{sOFF}, {3072*384}")
if "k" in a.contig:
    data_voff(384)
    A(f"s_mul_i32 s{sTMP}, s{sC}, {30720-128}\ns_add_u32 s{sOFF}, s{sOFF}, s{sTMP}")
if "v" in a.contig:
    A(f"v_lshlrev_b32 v{vOFF}, 4, v{vL}\ns_mul_i32 s{sTMP}, s{sC}, {32768-128}\ns_add_u32 s{sOFF}, s{sOFF}, s{sTMP}")
if not a.pads:
    A("s_waitcnt lgkmcnt(0)")
    A(f"s_load_dword s{sT}, s[{sWSP}:{sWSP+1}], s9")
srd(SR, sV, 50331648)
if a.tlb & 2: A(f"v_mul_u32_u24 v9, {255*384}, v{vL}\ns_mov_b64 exec, 3\nbuffer_load_dword v10, v9, s[{SR}:{SR+3}], s{sOFF} offen nt\ns_mov_b64 exec, -1")
srd(WS, sWSP, 0x10000000)
if not a.pads: A("s_barrier")
get_T()
if WIN:
    gate_init(sC, 4 * WIN[1], vCO)
elif a.g2:
    lds_wait(L_KI, [0, 1, 2, 3], 4, vCO)
if WIN:
    make_selectors()
    coef_addr(vAD, 64)
vrest = [A.label("Lvb") for b in range(32)]
def v_load(b):
    A(f"buffer_load_dwordx4 v[{vD+4*b}:{vD+4*b+3}], v{vOFF}, s[{SR}:{SR+3}], s{sOFF} offen offset:{384*(b%8)} nt")
    if b % 8 == 7 and b < 31: A(f"s_add_u32 s{sOFF}, s{sOFF}, 3072")
    if a.rank and b == a.vr: A(f"ds_write_b32 v{vCO}, v{vT} offset:{L_VT}")
for b in range(32):
    thr(b)
    if WIN:
        if b < WIN[2]: gate(L_PK, 3, 4 * WIN[1], 3 * WIN[2], vCO, vCO + 4)
        else:
            if a.vboost:
                t = vCO + 4
                if a.vtrig == 0:
                    if THX and THX[4] & 1:
                        lnb = A.label("Lnb"); A(f"s_cmp_lg_u32 s{sTH}, 0\ns_cbranch_scc1 {lnb}")
                    A(f"ds_read_b32 v{t}, v{vCO} offset:{L_FFLAG}\ns_waitcnt lgkmcnt(0)\nv_cmp_ne_u32 vcc, 0, v{t}\ns_cbranch_vccnz {vrest[b]}")
                    if THX and THX[4] & 1: A(f"{lnb}:")
                elif a.vtrig == 1:
                    A(f"ds_read_b32 v{t}, v{vCO} offset:{L_LS+4}\ns_waitcnt lgkmcnt(0)\nv_cmp_ne_u32 vcc, 0, v{t}\ns_cbranch_vccnz {vrest[b]}")
                elif b == a.vtrig:
                    A(f"s_branch {vrest[b]}")
            A(f"s_waitcnt vmcnt({WIN[2]-1})")
        if THX and b >= WIN[2] - THX[2]: thx(WIN[2], THX[2])
    if "k" in a.contig:
        A(f"buffer_load_dwordx4 v[{vD+4*b}:{vD+4*b+3}], v{vOFF}, s[{SR}:{SR+3}], s{sOFF} offen offset:{128*(b%3)} nt")
        if b % 3 == 2: A(f"s_add_u32 s{sOFF}, s{sOFF}, 3072")
        continue
    if a.near or "v" in a.contig:
        A(f"buffer_load_dwordx4 v[{vD+4*b}:{vD+4*b+3}], v{vOFF}, s[{SR}:{SR+3}], s{sOFF} offen nt\ns_add_u32 s{sOFF}, s{sOFF}, {3072 if a.near else 1024}")
        continue
    v_load(b)
if a.vboost:
    A("s_branch L_vb_j")
    for b in range(WIN[2], 32):
        if b >= a.vboost: A(f"s_waitcnt vmcnt({a.vboost-1})")
        A(f"{vrest[b]}:")
        v_load(b)
    A("L_vb_j:")
prio(3)
stamp(1)
if WIN:
    nv = WIN[2]
    A(f"s_lshl_b32 s{sTMP}, s{sC}, 2\nv_mov_b32 v{vOFF}, s{sTMP}")
    A(f"v_mov_b32 v{vCO+9}, 0\nds_read_b128 v[{vCO}:{vCO+3}], v{vCO+9} offset:{L_LS}\nds_read_b128 v[{vCO+4}:{vCO+7}], v{vCO+9} offset:{L_LS+16}\ns_waitcnt lgkmcnt(0)")
    A(f"v_xor_b32 v{vCO+1}, s{sFL}, v{vCO+1}\nv_xor_b32 v{vCO+3}, s{sFL}, v{vCO+3}\nv_xor_b32 v{vCO+5}, s{sFL}, v{vCO+5}\nv_xor_b32 v{vCO+7}, s{sFL}, v{vCO+7}")
    A(f"v_or3_b32 v{vCO+1}, v{vCO+1}, v{vCO+3}, v{vCO+5}\nv_or_b32 v{vCO+1}, v{vCO+1}, v{vCO+7}\nv_cmp_ne_u32 vcc, 0, v{vCO+1}\ns_cmp_eq_u64 vcc, 0\ns_cbranch_scc1 L_v_fast")
    for i in range(nv):
        A(f"s_waitcnt vmcnt({nv-1-i})")
        credit(L_PV, vOFF, vCO, i + 1)
    lds_wait(L_LS, [1, 3, 5, 7], 8, vCO)
    A(f"s_mov_b32 s{sNEED}, 1\ns_branch L_v_go\nL_v_fast:\ns_mov_b32 s{sNEED}, 0\nL_v_go:")
else:
    make_selectors()
    coef_addr(vAD, 64)
    lds_wait(L_LS, [1, 3, 5, 7], 8, vCO)
for k in range(4):
    A(f"ds_read_b128 v[{vCO+4*k}:{vCO+4*k+3}], v{vAD} offset:{L_P+16*k}")
lds_mode(vA0, vA0 + 1)
A(f"s_waitcnt lgkmcnt(0)\nv_readfirstlane_b32 s{sMODE}, v{vA0+1}")
stamp(2)
if WIN:
    def vhook(b):
        if b >= 32 - nv: credit(L_PV, vOFF, vAD, b - (32 - nv) + 1)
    diag_gemv(32, hook=vhook)
else:
    diag_gemv(32)
publish_gather(OBOX, L_O, L_OF, True)
stamp(5)
A("s_branch L_end")

A("L_aux:")
prio(3)
if a.dbg: A("s_memtime s[84:85]")
if not a.pads: A(f"v_lshlrev_b32 v8, 2, v{vL}\nv_mov_b32 v9, 0\nds_write_b32 v8, v9")
A(f"s_load_dwordx4 s[{sM}:{sM+3}], s[0:1], 80")
if a.nf:
    assert a.fp == 128
    A(f"s_and_b32 s{sTMP}, s{sHH}, 7\ns_lshl_b32 s{sTMP}, s{sTMP}, 2\ns_lshr_b32 s{sTMP2}, s{sHH}, 3\ns_add_u32 s{sTMP}, s{sTMP}, s{sTMP2}\ns_lshl_b32 s{sTMP}, s{sTMP}, 1\n{'s_and_b32' if a.lmap else 's_lshr_b32'} s{sTMP2}, s{sJ}, 1\ns_add_u32 s{sTMP}, s{sTMP}, s{sTMP2}")
    A(f"{'s_lshr_b32' if a.lmap else 's_and_b32'} s{sTMP2}, s{sJ}, 1\ns_xor_b32 s{sTMP2}, s{sTMP2}, 1\ns_lshl_b32 s{sTMP2}, s{sTMP2}, 6\ns_add_u32 s{sRI}, s{sTMP}, s{sTMP2}")
    A(f"s_mul_i32 s{sRB}, s{sP}, 20\ns_add_u32 s{sRB}, s{sRB}, s{sRI}\ns_and_b32 s{sTMP}, s{sRB}, 1\ns_lshr_b32 s{sRB}, s{sRB}, 1\ns_lshl_b32 s{sRB}, s{sRB}, 14\ns_lshl_b32 s{sTMP}, s{sTMP}, 12\ns_add_u32 s{sRB}, s{sRB}, s{sTMP}\ns_add_u32 s{sRB}, s{sRB}, {FBOX}\ns_add_u32 s{sTMP3}, s{sRB}, 8192\nv_mov_b32 v30, 0")
if a.nf == 8:
    A(f"s_mul_i32 s{sTMP}, s{sP}, 20\ns_add_u32 s{sTMP}, s{sTMP}, s{sRI}\ns_lshl_b32 s{sTMP}, s{sTMP}, 14\ns_add_u32 s{sTMP}, s{sTMP}, {FBOX + 20*16384}\ns_add_u32 s{sTMP2}, s{sTMP}, 8192")
if a.nf == 9:
    A(f"s_lshr_b32 s{sTMP}, s2, 4\ns_lshl_b32 s{sTMP}, s{sTMP}, 14\ns_and_b32 s{sTMP2}, s2, 15\ns_lshl_b32 s{sTMP2}, s{sTMP2}, 9\ns_add_u32 s{sTMP}, s{sTMP}, s{sTMP2}\ns_add_u32 s{sTMP}, s{sTMP}, {FBOX + 20*16384}\ns_add_u32 s{sTMP2}, s{sTMP}, 8192")
A("s_waitcnt lgkmcnt(0)")
if a.nf not in (8, 9): srd(WS, sWSP, 0x10000000)
if a.nf == 9:
    sPA, sPB = sM + 4, sM + 5
    if a.nfr:
        A(f"s_load_dword s{sT}, s[{sWSP}:{sWSP+1}], s9")
    elif a.nfo:
        A(f"s_load_dword s{sT}, s[{sWSP}:{sWSP+1}], s9")
        A("s_barrier")
        A(f"s_load_dword s{sPA}, s[{sWSP}:{sWSP+1}], s{sTMP}\ns_load_dword s{sPB}, s[{sWSP}:{sWSP+1}], s{sTMP2}")
    else:
        A(f"s_load_dword s{sPA}, s[{sWSP}:{sWSP+1}], s{sTMP}\ns_load_dword s{sPB}, s[{sWSP}:{sWSP+1}], s{sTMP2}")
        A(f"s_load_dword s{sT}, s[{sWSP}:{sWSP+1}], s9")
        A("s_barrier")
    srd(WS, sWSP, 0x10000000)
    srd(SR2, sM, 2560)
    A(f"s_lshl_b32 s{SR}, s{sXCC}, 10\ns_add_u32 s{SR}, s{SR}, {VBOX}\ns_lshl_b32 s{sTMP2}, s2, 2\nv_mov_b32 v60, s{sTMP2}")
    if a.nfr:
        A(f"s_mov_b32 s{SR+2}, s{sTMP}\ns_add_u32 s{SR+3}, s{sTMP}, 8192")
        A("s_waitcnt lgkmcnt(0)\ns_barrier")
        d = a.nfdl
        while d > 0:
            A(f"s_sleep {min(d, 127)}"); d -= 127
        A(f"s_mov_b32 s{SR+1}, 0")
        if a.nfx: A(f"s_mov_b32 s{SR}, {VBOX}\ns_bitcmp1_b32 s{sXCC}, 0\ns_cbranch_scc0 L_npr")
        if a.nfj >= 0: A(f"s_cmp_lg_u32 s{sJ}, {a.nfj}\ns_cbranch_scc1 L_npr")
        for r in range(a.nfr):
            f1, f2 = (SR + 2, SR + 3) if r % 2 == 0 else (SR + 3, SR + 2)
            A(f"s_load_dword s{sPA}, s[{sWSP}:{sWSP+1}], s{f1}\ns_load_dword s{sPB}, s[{sWSP}:{sWSP+1}], s{f2}")
            if r + 1 < a.nfr: A(f"s_add_u32 s{SR+2}, s{SR+2}, 128\ns_add_u32 s{SR+3}, s{SR+3}, 128")
            A("s_waitcnt lgkmcnt(1)")
            A(f"s_sleep {a.nfs}" if a.nfs > 0 else f"s_nop {-a.nfs}")
            A(f"s_getreg_b32 s{sTMP}, hwreg(HW_REG_IB_STS, 8, 4)\n{'s_add_u32' if r % 2 == 0 else 's_sub_u32'} s{SR+1}, s{SR+1}, s{sTMP}\ns_waitcnt lgkmcnt(0)")
        A("L_npr:")
        A(f"s_cmp_gt_i32 s{SR+1}, 0\ns_cselect_b32 s{sTMP}, 16, 32\ns_cmp_lt_i32 s{SR+1}, 0\ns_cselect_b32 s{SR+1}, 0, s{sTMP}")
    else:
        A(f"s_waitcnt lgkmcnt({2 - a.nfo})")
        A(f"s_sleep {a.nfs}" if a.nfs > 0 else f"s_nop {-a.nfs}")
        A(f"s_getreg_b32 s{sTMP}, hwreg(HW_REG_IB_STS, 8, 4)\ns_cmp_eq_u32 s{sTMP}, {2 - a.nfo}\ns_cselect_b32 s{SR+1}, 16, 0")
def vote_store():
    A(f"s_xor_b32 s{SR+1}, s{SR+1}, s{sT}\nv_mov_b32 v61, s{SR+1}")
    if a.nfx: A(f"s_bitcmp1_b32 s{sXCC}, 0\ns_cbranch_scc0 L_nvs")
    A(f"s_mov_b64 exec, 1\nbuffer_store_dword v61, v60, s[{WS}:{WS+3}], s{SR} offen{' sc1' if a.nfx else ''}\ns_mov_b64 exec, -1")
    if a.nfx: A("L_nvs:")
if a.nf == 1:
    A(f"s_cmp_ge_u32 s{sRI}, 20\ns_cbranch_scc1 L_nc1\ns_mov_b64 exec, 1")
    A(f"buffer_load_dword v10, v30, s[{WS}:{WS+3}], s{sRB} offen sc1\nbuffer_load_dword v11, v30, s[{WS}:{WS+3}], s{sTMP3} offen sc1\ns_mov_b64 exec, -1\nL_nc1:")
if a.nf == 8:
    sPA, sPB = sM + 4, sM + 5
    A(f"s_cmp_ge_u32 s{sRI}, 20\ns_cbranch_scc1 L_nc1")
    A(f"s_load_dword s{sPA}, s[{sWSP}:{sWSP+1}], s{sTMP}\ns_load_dword s{sPB}, s[{sWSP}:{sWSP+1}], s{sTMP2}")
    A(f"s_load_dword s{sT}, s[{sWSP}:{sWSP+1}], s9")
    if a.nfd:
        A(f"s_mov_b32 s{sST+14}, 0")
        for k, inc in ((3, 1), (2, 1 << 12), (1, 1 << 22)):
            A(f"L_nd{k}:\ns_add_u32 s{sST+14}, s{sST+14}, {inc}\ns_getreg_b32 s{sTMP}, hwreg(HW_REG_IB_STS, 8, 4)\ns_cmp_ge_u32 s{sTMP}, {k}\ns_cbranch_scc1 L_nd{k}")
        A(f"s_bfe_u32 s{sTMP}, s{sST+14}, {12 | (10 << 16)}\ns_cmp_gt_u32 s{sTMP}, {a.nfd}\ns_cselect_b32 s{sRB}, s{sRB}, s{sTMP3}")
    else:
        A("s_waitcnt lgkmcnt(2)")
        A(f"s_sleep {a.nfs}" if a.nfs > 0 else f"s_nop {-a.nfs}")
        A(f"s_getreg_b32 s{sTMP}, hwreg(HW_REG_IB_STS, 8, 4)\ns_cmp_eq_u32 s{sTMP}, 2\ns_cselect_b32 s{sRB}, s{sRB}, s{sTMP3}")
        if a.stamps: A(f"s_sub_u32 s{sST+14}, 3, s{sTMP}")
    A("s_branch L_nc2\nL_nc1:")
    A(f"s_load_dword s{sT}, s[{sWSP}:{sWSP+1}], s9")
    A("L_nc2:")
    srd(WS, sWSP, 0x10000000)
    srd(SR2, sM, 2560)
    A("s_barrier")
elif a.nf != 9 and not a.pads: A(f"s_load_dword s{sT}, s[{sWSP}:{sWSP+1}], s9")
if a.nf in (8, 9): pass
elif a.nf == 7:
    sPA, sPB = sM + 4, sM + 5
    A(f"s_cmp_ge_u32 s{sRI}, 20\ns_cbranch_scc1 L_nc1")
    A(f"s_mul_i32 s{sTMP}, s{sP}, 20\ns_add_u32 s{sTMP}, s{sTMP}, s{sRI}\ns_lshl_b32 s{sTMP}, s{sTMP}, 14\ns_add_u32 s{sTMP}, s{sTMP}, {FBOX + 20*16384}\ns_add_u32 s{sTMP2}, s{sTMP}, 8192")
    A(f"s_load_dword s{sPA}, s[{sWSP}:{sWSP+1}], s{sTMP}\ns_load_dword s{sPB}, s[{sWSP}:{sWSP+1}], s{sTMP2}")
    A("s_waitcnt lgkmcnt(1)")
    A(f"s_sleep {a.nfs}" if a.nfs else "s_nop 15\ns_nop 15")
    A(f"s_getreg_b32 s{sTMP}, hwreg(HW_REG_IB_STS, 8, 4)\ns_cmp_lg_u32 s{sTMP}, 0\ns_cselect_b32 s{sRB}, s{sRB}, s{sTMP3}")
    if a.stamps: A(f"s_sub_u32 s{sST+14}, 2, s{sTMP}")
    A("L_nc1:")
    srd(SR2, sM, 2560)
    A("s_barrier")
elif a.nf == 6:
    SENT = 0x5a17c3e9
    sPA, sPB = sM + 4, sM + 5
    A(f"s_cmp_ge_u32 s{sRI}, 20\ns_cbranch_scc1 L_nc1")
    A(f"s_mul_i32 s{sTMP}, s{sP}, 20\ns_add_u32 s{sTMP}, s{sTMP}, s{sRI}\ns_lshl_b32 s{sTMP}, s{sTMP}, 14\ns_add_u32 s{sTMP}, s{sTMP}, {FBOX + 20*16384}\ns_add_u32 s{sTMP2}, s{sTMP}, 8192")
    A(f"s_mov_b32 s{sPA}, {SENT:#x}\ns_mov_b32 s{sPB}, {SENT:#x}")
    A(f"s_load_dword s{sPA}, s[{sWSP}:{sWSP+1}], s{sTMP}\ns_load_dword s{sPB}, s[{sWSP}:{sWSP+1}], s{sTMP2}\nL_nc1:")
    srd(SR2, sM, 2560)
    A(f"s_cmp_ge_u32 s{sRI}, 20\ns_cbranch_scc1 L_prA")
    A(f"L_pr:\ns_cmp_lg_u32 s{sPA}, {SENT:#x}\ns_cbranch_scc1 L_prA\ns_cmp_lg_u32 s{sPB}, {SENT:#x}\ns_cbranch_scc1 L_prB")
    A(f"s_getreg_b32 s{sTMP}, hwreg(HW_REG_IB_STS, 8, 4)\ns_cmp_lg_u32 s{sTMP}, 0\ns_cbranch_scc1 L_pr")
    A(f"L_prB:\ns_mov_b32 s{sRB}, s{sTMP3}")
    if a.stamps: A(f"s_mov_b32 s{sST+14}, 1")
    A("L_prA:")
    if a.stamps: A(f"s_add_u32 s{sST+14}, s{sST+14}, 1")
    A("s_barrier")
else:
    srd(SR2, sM, 2560)
    if not a.pads: A("s_barrier" if a.nf == 10 or a.eb else "s_waitcnt lgkmcnt(0)\ns_barrier")
get_T()
if a.nf == 9 and a.nfv == 0: vote_store()
if a.nf == 1:
    A(f"s_waitcnt vmcnt(1)\ns_memtime s[{sM+4}:{sM+5}]\ns_waitcnt vmcnt(0)\ns_memtime s[{sM+6}:{sM+7}]\ns_waitcnt lgkmcnt(0)")
    A(f"s_sub_u32 s{sM+4}, s{sM+6}, s{sM+4}\ns_cmp_gt_u32 s{sM+4}, {a.nft}\ns_cselect_b32 s{sRB}, s{sRB}, s{sTMP3}")
    if a.stamps: A(f"s_add_u32 s{sST+14}, s{sM+4}, 1\ns_mov_b32 s{sST+15}, 0")
elif a.nf == 3:
    A(f"s_mov_b32 s{sRB}, s{sTMP3}")
if a.lat:
    A(f"v_lshlrev_b32 v37, 4, v{vL}")
    A(f"s_lshl_b32 s{sOFF}, s2, 10\ns_add_u32 s{sOFF}, s{sOFF}, 0x200000")
    A(f"s_cmp_eq_u32 s{sWAVE}, 11\ns_cbranch_scc1 L_lat2")
    for k in range(4):
        A(f"s_memrealtime s[{sST+4*k}:{sST+4*k+1}]\ns_waitcnt lgkmcnt(0)")
        A(f"buffer_load_dwordx4 v[40:43], v37, s[{WS}:{WS+3}], s{sOFF} offen sc1\ns_waitcnt vmcnt(0)")
        A(f"s_memrealtime s[{sST+4*k+2}:{sST+4*k+3}]\ns_waitcnt lgkmcnt(0)")
        A("s_sleep 40")
    A("s_branch L_end")
    A("L_lat2:")
    A(f"s_add_u32 s{sOFF}, s{sOFF}, 0x100000")
    A(f"buffer_load_dwordx4 v[40:43], v37, s[{WS}:{WS+3}], s{sOFF} offen {'nt' if a.lat == 1 else 'sc1'}\ns_waitcnt vmcnt(0)")
    for k in range(4):
        A(f"s_memrealtime s[{sST+4*k}:{sST+4*k+1}]\ns_waitcnt lgkmcnt(0)")
        A(f"buffer_load_dwordx4 v[40:43], v37, s[{WS}:{WS+3}], s{sOFF} offen {'nt' if a.lat == 1 else 'sc1'}\ns_waitcnt vmcnt(0)")
        A(f"s_memrealtime s[{sST+4*k+2}:{sST+4*k+3}]\ns_waitcnt lgkmcnt(0)")
        A("s_sleep 40")
    A("s_branch L_end")
if a.rank:
    A(f"s_lshl_b32 s{sNEED}, s{sJ}, 7\ns_add_u32 s{sNEED}, s{sNEED}, {RBOX}\nv_mov_b32 v30, 0\nbuffer_load_dword v60, v30, s[{WS}:{WS+3}], s{sNEED} offen sc1 nt")
if a.tlb & 4:
    srd(SR, sWO, 6144 * 1280)
    A(f"s_mul_i32 s{sTMP}, s{sHH}, {192*1280}\nv_mul_u32_u24 v9, {191*1280+1024}, v{vL}\ns_mov_b64 exec, 3\nbuffer_load_dword v70, v9, s[{SR}:{SR+3}], s{sTMP} offen nt\ns_mov_b64 exec, -1")
if a.enc >= 20:
    A(f"s_cmp_lg_u32 s2, 0\ns_cbranch_scc1 L_e20\nv_mov_b32 v60, s{sST}\nv_mov_b32 v61, 0\ns_mov_b32 s{sTMP}, {RBOX}\ns_mov_b64 exec, 1\nbuffer_store_dword v60, v61, s[{WS}:{WS+3}], s{sTMP} offen sc1\ns_mov_b64 exec, -1\nL_e20:")
if a.enc == 11: lds_wait(L_QF, [0, 1, 2], 4, 8)
stamp(1)
lds_wait(L_LS, [1, 3, 5, 7], 8, 8)
A(f"v_mov_b32 v30, 0\nds_read_b128 v[20:23], v30 offset:{L_MX}\nds_read_b128 v[24:27], v30 offset:{L_MX+16}\nds_read_b32 v31, v30 offset:{L_MODE}\ns_waitcnt lgkmcnt(0)\nv_readfirstlane_b32 s{sMODE}, v31")
A("v_max_f32 v32, v20, v22\nv_max3_f32 v32, v32, v24, v26")
A("v_add_f32 v33, v8, v10\nv_add_f32 v34, v12, v14\nv_add_f32 v33, v33, v34\nv_mov_b32 v34, 0\nv_mov_b32 v35, 0")
for k in range(4):
    A(f"v_perm_b32 v{32+k}, v{32+k}, v{vT}, s{sSEL+k}")
A(f"s_lshl_b32 s{sOFF}, s{sH}, 7\ns_add_u32 s{sOFF}, s{sOFF}, {SBOX}\ns_lshl_b32 s{sTMP}, s{sJ}, 4\ns_add_u32 s{sTMP}, s{sTMP}, s{sOFF}")
A("s_mov_b64 exec, 1")
A(f"s_cmp_lg_u32 s{sMODE}, 0\ns_cbranch_scc1 L_ux1")
A(f"buffer_store_dwordx4 v[32:35], v30, s[{WS}:{WS+3}], s{sTMP} offen\ns_branch L_ux2\nL_ux1:")
A(f"buffer_store_dwordx4 v[32:35], v30, s[{WS}:{WS+3}], s{sTMP} offen sc1\nL_ux2:")
A("s_mov_b64 exec, -1")
if a.nf == 9 and a.nfv == 1: vote_store()
stamp(2)
A(f"v_and_b32 v36, 3, v{vL}\nv_lshlrev_b32 v37, 4, v36")
poll(40, 37, sOFF)
stamp(3)
A("v_and_b32 v40, 0xffffff00, v40\ns_nop 1")
A("v_max_f32_dpp v44, v40, v40 quad_perm:[1,0,3,2] row_mask:0xf bank_mask:0xf\ns_nop 1")
A("v_max_f32_dpp v44, v44, v44 quad_perm:[2,3,0,1] row_mask:0xf bank_mask:0xf")
A("v_sub_f32 v40, v40, v44\nv_mul_f32 v40, 0x3fb8aa3b, v40\nv_exp_f32 v40, v40\ns_nop 0")
A("v_mul_f32 v41, v41, v40\ns_nop 1")
A("v_add_f32_dpp v44, v41, v41 quad_perm:[1,0,3,2] row_mask:0xf bank_mask:0xf\ns_nop 1")
A("v_add_f32_dpp v44, v44, v44 quad_perm:[2,3,0,1] row_mask:0xf bank_mask:0xf")
A("v_rcp_f32 v44, v44\ns_nop 0\nv_mul_f32 v40, v40, v44")
A("v_lshlrev_b32 v36, 2, v36")
A("s_mov_b64 exec, 15")
A(f"ds_write_b32 v36, v40 offset:{L_FF}")
A(f"ds_write_b32 v30, v{vT} offset:{L_FFLAG}")
A("s_mov_b64 exec, -1")
if a.dirty:
    A(f"v_lshlrev_b32 v37, 4, v{vL}\ns_lshl_b32 s{sTMP}, s2, 14\ns_add_u32 s{sTMP}, s{sTMP}, 0x1000000")
    for k in range(a.dirty):
        A(f"buffer_store_dwordx4 v[40:43], v37, s[{WS}:{WS+3}], s{sTMP} offen\ns_add_u32 s{sTMP}, s{sTMP}, 1024")
if a.rank:
    lds_wait(L_VT, [0], 1, 8)
    A(f"v_mov_b32 v61, 1\ns_mov_b64 exec, 1\nbuffer_atomic_add v61, v30, s[{WS}:{WS+3}], s{sNEED} offen sc0 sc1\ns_mov_b64 exec, -1\ns_waitcnt vmcnt(0)")
    A(f"v_sub_u32 v61, v61, v60\ns_nop 0\nv_readfirstlane_b32 s{sTMP}, v61\ns_cmp_lt_u32 s{sTMP}, {a.rank}\ns_cbranch_scc1 L_rk")
    if a.stamps: A(f"s_mov_b32 s{sST+14}, s{sTMP}\ns_mov_b32 s{sST+15}, 0")
    if a.rop: lds_wait(L_VT, [1, 2, 3], 4, 8)
    A(f"ds_write_b32 v30, v{vT} offset:{L_OF+12}")
    A("L_rk:")
if a.fp:
    gp = a.fp // 16; lg = gp.bit_length() - 1; nx = 256 // a.fp; R = 10 * nx; nl = a.fp // 32
    if a.nf:
        A(f"s_mov_b32 s{sCNT}, s{sRI}\ns_cmp_ge_u32 s{sCNT}, {R}\ns_cbranch_scc1 L_end")
    else:
        A(f"s_and_b32 s{sTMP}, s{sHH}, 7\ns_lshl_b32 s{sTMP}, s{sTMP}, 2\ns_lshr_b32 s{sTMP2}, s{sHH}, 3\ns_add_u32 s{sTMP}, s{sTMP}, s{sTMP2}\ns_lshl_b32 s{sTMP}, s{sTMP}, 1\n{'s_and_b32' if a.lmap else 's_lshr_b32'} s{sTMP2}, s{sJ}, 1\ns_add_u32 s{sTMP}, s{sTMP}, s{sTMP2}")
        A(f"{'s_lshr_b32' if a.lmap else 's_and_b32'} s{sTMP2}, s{sJ}, 1\ns_xor_b32 s{sTMP2}, s{sTMP2}, 1\ns_lshl_b32 s{sTMP2}, s{sTMP2}, 6\ns_add_u32 s{sCNT}, s{sTMP}, s{sTMP2}\ns_cmp_ge_u32 s{sCNT}, {R}\ns_cbranch_scc1 L_end")
    A(f"s_mul_i32 s{sOFF}, s{sP}, {R}\ns_add_u32 s{sOFF}, s{sOFF}, s{sCNT}\ns_mul_i32 s{sTMP2}, s{sOFF}, {gp*8}\ns_mul_i32 s{sOFF}, s{sOFF}, {32*a.fp}\ns_add_u32 s{sOFF}, s{sOFF}, {FBOX}")
    if a.nf == 10: A(f"s_lshl_b32 s{SR}, s{sXCC}, 10\ns_add_u32 s{SR}, s{SR}, {VBOX}")
    if a.nf in (9, 10):
        A(f"v_lshlrev_b32 v37, 4, v{vL}\nbuffer_load_dwordx4 v[60:63], v37, s[{WS}:{WS+3}], s{SR} offen sc1{'' if a.nfx else ' nt'}\ns_waitcnt vmcnt(0)")
        A(f"s_mov_b32 s{sTMP}, 0\ns_mov_b32 s{sTMP3}, 0\ns_xor_b32 s{SR+1}, s{sT}, 16")
        for k in range(4):
            if a.nfx:
                A(f"v_xor_b32 v{60+k}, s{sT}, v{60+k}\nv_and_b32 v{60+k}, -4, v{60+k}")
                for c, d in ((0, sTMP), (20, sTMP), (16, sTMP3), (4, sTMP3)):
                    A(f"v_cmp_eq_u32 vcc, {c}, v{60+k}\ns_bcnt1_i32_b64 s{SR+2}, vcc\ns_add_u32 s{d}, s{d}, s{SR+2}")
            else:
                A(f"v_cmp_eq_u32 vcc, s{sT}, v{60+k}\ns_bcnt1_i32_b64 s{SR+2}, vcc\ns_add_u32 s{sTMP}, s{sTMP}, s{SR+2}")
                A(f"v_cmp_eq_u32 vcc, s{SR+1}, v{60+k}\ns_bcnt1_i32_b64 s{SR+2}, vcc\ns_add_u32 s{sTMP3}, s{sTMP3}, s{SR+2}")
        if a.stamps: A(f"s_add_u32 s{sST+14}, s{sTMP}, s{sTMP3}\ns_lshl_b32 s{sST+14}, s{sST+14}, 16\ns_add_u32 s{sST+14}, s{sST+14}, s{sTMP3}")
        if a.dbgv == 2:
            A(f"s_max_u32 s{SR+2}, s{sTMP}, s{sTMP3}\ns_min_u32 s{SR+3}, s{sTMP}, s{sTMP3}\ns_lshl_b32 s{SR+3}, s{SR+3}, 1\ns_add_u32 s{SR+3}, s{SR+3}, 6\ns_cmp_gt_u32 s{SR+2}, s{SR+3}\ns_cbranch_scc1 L_dv")
            for k in range(6): A("s_sleep 127")
            A("L_dv:")
        if a.dbgv >= 10:
            A(f"s_max_u32 s{SR+2}, s{sTMP}, s{sTMP3}\ns_min_u32 s{SR+3}, s{sTMP}, s{sTMP3}\ns_add_u32 s{SR+3}, s{SR+3}, {a.dbgv - 10}\ns_cmp_ge_u32 s{SR+2}, s{SR+3}\ns_cbranch_scc1 L_dv")
            for k in range(6): A("s_sleep 127")
            A("L_dv:")
        if a.dbgv == 1:
            A(f"s_lshl_b32 s{SR+2}, s{sTMP}, 8\ns_add_u32 s{SR+2}, s{SR+2}, s{sTMP3}\nv_mov_b32 v60, s{SR+2}\ns_lshl_b32 s{SR+2}, s{sXCC}, 2\nv_mov_b32 v61, s{SR+2}")
            srd(SR, sM + 2, 256)
            A(f"s_mov_b64 exec, 1\nbuffer_store_dword v60, v61, s[{SR}:{SR+3}], 0 offen sc1\ns_mov_b64 exec, -1")
        if not a.nfr and a.nf == 9: A(f"s_lshl_b32 s{sTMP3}, s{sTMP3}, 1")
        A(f"s_cmp_gt_u32 s{sTMP3}, s{sTMP}\ns_cselect_b32 s{sTMP}, 0, 8192\ns_add_u32 s{sRB}, s{sRB}, s{sTMP}")
    if a.nf: A(f"s_mov_b32 s{sOFF}, s{sRB}")
    A(f"v_lshlrev_b32 v37, 4, v{vL}\nv_lshlrev_b32 v38, 3, v{vL}")
    lds_wait(L_PF, [0, 1, 2], 4, 8)
    stamp(4)
    if a.nofin: A("s_branch L_end")
    if a.nf == 5:
        A(f"s_add_u32 s{sTMP3}, s{sOFF}, 8192")
        for cp in range(2):
            for i in range(nl):
                A(f"buffer_load_dwordx4 v[{80+16*cp+4*i}:{83+16*cp+4*i}], v37, s[{WS}:{WS+3}], s{sTMP3 if cp else sOFF} offen offset:{1024*i} sc1{FN}")
        for cp in range(2):
            for i in range(nl):
                r = 80 + 16 * cp + 4 * i
                if cp == 0:
                    if i == 0: A(f"s_waitcnt vmcnt({nl})")
                else: A(f"s_waitcnt vmcnt({nl-1-i})")
                A(f"v_perm_b32 v44, v{r+1}, v{r}, s{sSELA}\nv_perm_b32 v45, v{r+3}, v{r+2}, s{sSELB}\nv_or_b32 v44, v44, v45\nv_xor_b32 v44, s{sT}, v44")
                A(f"v_or_b32 v46, v46, v44" if i else "v_mov_b32 v46, v44")
                for k in range(4):
                    A(f"v_add_f32 v{40+k}, v{40+k}, v{r+k}" if i else f"v_mov_b32 v{40+k}, v{r+k}")
                if cp == 0 and i == a.nfi:
                    A(f"s_getreg_b32 s{sTMP}, hwreg(HW_REG_IB_STS, 0, 4)")
                    if a.stamps: A(f"s_add_u32 s{sST+14}, s{sTMP}, 1\ns_mov_b32 s{sST+15}, 0")
            A("v_cmp_lt_u32 vcc, 7, v46\ns_cmp_eq_u64 vcc, 0\ns_cbranch_scc1 L_fpd")
        A(f"s_cmp_eq_u32 s{sTMP}, {nl}\ns_cselect_b32 s{sOFF}, s{sOFF}, s{sTMP3}")
    if a.fdepth > 1:
        D = a.fdepth
        def fissue(k):
            for i in range(nl):
                A(f"buffer_load_dwordx4 v[{80+16*k+4*i}:{83+16*k+4*i}], v37, s[{WS}:{WS+3}], s{sOFF} offen offset:{1024*i} sc1{FN}")
        for k in range(D - 1):
            fissue(k)
            A(f"s_sleep {a.fgap}")
        A("L_fq:")
        for k in range(D):
            fissue((k + D - 1) % D)
            for i in range(nl):
                r = 80 + 16 * k + 4 * i
                A(f"s_waitcnt vmcnt({nl*(D-1)+nl-1-i})")
                A(f"v_perm_b32 v44, v{r+1}, v{r}, s{sSELA}\nv_perm_b32 v45, v{r+3}, v{r+2}, s{sSELB}\nv_or_b32 v44, v44, v45\nv_xor_b32 v44, s{sT}, v44")
                A(f"v_or_b32 v46, v46, v44" if i else "v_mov_b32 v46, v44")
                for q in range(4):
                    A(f"v_add_f32 v{40+q}, v{40+q}, v{r+q}" if i else f"v_mov_b32 v{40+q}, v{r+q}")
            A("v_cmp_lt_u32 vcc, 7, v46\ns_cmp_eq_u64 vcc, 0\ns_cbranch_scc1 L_fpd")
        spin_tail("L_fq", 0)
    if a.fm:
        D = a.fm; MK = 84; E = 92
        def mk(i): return f"s[{MK+2*i}:{MK+2*i+1}]"
        def missue(k):
            for i in range(nl):
                A(f"s_cmp_eq_u64 {mk(i)}, 0\ns_cselect_b64 exec, 1, {mk(i)}")
                A(f"buffer_load_dwordx4 v[{80+16*k+4*i}:{83+16*k+4*i}], v37, s[{WS}:{WS+3}], s{sOFF} offen offset:{1024*i} sc1{FN}")
            A("s_mov_b64 exec, -1")
        def mcheck(k, infl):
            for i in range(nl):
                r = 80 + 16 * k + 4 * i
                sk = A.label("Lms")
                A(f"s_cmp_eq_u64 {mk(i)}, 0\ns_cbranch_scc1 {sk}")
                A(f"s_waitcnt vmcnt({nl*infl+nl-1-i})")
                A(f"v_perm_b32 v44, v{r+1}, v{r}, s{sSELA}\nv_perm_b32 v45, v{r+3}, v{r+2}, s{sSELB}\nv_or_b32 v44, v44, v45\nv_xor_b32 v44, s{sT}, v44")
                A(f"v_cmp_ge_u32 vcc, 7, v44\ns_and_b64 exec, vcc, {mk(i)}\ns_andn2_b64 {mk(i)}, {mk(i)}, exec")
                for q in range(4): A(f"v_mov_b32 v{64+4*i+q}, v{r+q}")
                A(f"s_mov_b64 exec, -1\n{sk}:")
            A(f"s_or_b64 s[{E}:{E+1}], {mk(0)}, {mk(1)}\ns_or_b64 vcc, {mk(2)}, {mk(3)}\ns_or_b64 s[{E}:{E+1}], s[{E}:{E+1}], vcc\ns_cbranch_scc0 L_fms")
        for i in range(nl): A(f"s_mov_b64 {mk(i)}, -1")
        missue(D - 1)
        mcheck(D - 1, 0)
        for k in range(D - 1):
            missue(k)
            if a.fgap: A(f"s_sleep {a.fgap}")
        A("L_fq:")
        for k in range(D):
            missue((k + D - 1) % D)
            mcheck(k, D - 1)
        spin_tail("L_fq", 0)
        A("L_fms:")
        for i in range(1, nl):
            for q in range(4): A(f"v_add_f32 v{40+q}, v{(64 if i == 1 else 40)+q}, v{64+4*i+q}")
        A("s_branch L_fpd")
    A("L_fp:")
    for i in range(nl):
        A(f"buffer_load_dwordx4 v[{80+4*i}:{83+4*i}], v37, s[{WS}:{WS+3}], s{sOFF} offen offset:{1024*i} sc1{FN}")
    for i in range(nl):
        r = 80 + 4 * i
        A(f"s_waitcnt vmcnt({nl-1-i})")
        A(f"v_perm_b32 v44, v{r+1}, v{r}, s{sSELA}\nv_perm_b32 v45, v{r+3}, v{r+2}, s{sSELB}\nv_or_b32 v44, v44, v45\nv_xor_b32 v44, s{sT}, v44")
        A(f"v_or_b32 v46, v46, v44" if i else "v_mov_b32 v46, v44")
        for k in range(4):
            A(f"v_add_f32 v{40+k}, v{40+k}, v{r+k}" if i else f"v_mov_b32 v{40+k}, v{r+k}")
    A("v_cmp_lt_u32 vcc, 7, v46\ns_cmp_eq_u64 vcc, 0\ns_cbranch_scc1 L_fpd")
    spin_tail("L_fp", a.fsl)
    A("L_fpd:")
    stamp(5)
    d = gp
    while d < 16:
        for k in range(4):
            A(f"v_add_f32_dpp v{40+k}, v{40+k}, v{40+k} row_ror:{d} row_mask:0xf bank_mask:0xf")
        if d * 2 < 16: A("s_nop 0")
        d *= 2
    for op in ("v_permlane16_swap_b32", "v_permlane32_swap_b32"):
        for k in range(4): A(f"v_mov_b32 v{44+k}, v{40+k}")
        A("s_nop 1")
        for k in range(4): A(f"{op} v{40+k}, v{44+k}")
        A("s_nop 1")
        for k in range(4): A(f"v_add_f32 v{40+k}, v{40+k}, v{44+k}")
    A("v_cvt_pk_bf16_f32 v44, v40, v41\nv_cvt_pk_bf16_f32 v45, v42, v43")
    A(f"s_mov_b64 exec, {(1 << gp) - 1}")
    A(f"buffer_store_dwordx2 v[44:45], v38, s[{SR2}:{SR2+3}], s{sTMP2} offen")
    A(f"s_cmp_lg_u32 s{sCNT}, 0\ns_cbranch_scc1 L_aux2")
    A("s_mov_b64 exec, 1")
    A(f"buffer_store_dword v{vT}, v30, s[{WS}:{WS+3}], s9 offen")
    A("L_aux2:")
    A("s_mov_b64 exec, -1")
    stamp(6)
    if a.enc >= 20:
        A(f"s_cmp_lg_u32 s{sXCC}, {a.enc-20}\ns_cbranch_scc1 L_end")
        A(f"s_mov_b32 s{sTMP}, {RBOX}\nbuffer_load_dword v60, v30, s[{WS}:{WS+3}], s{sTMP} offen sc1\ns_waitcnt vmcnt(0) lgkmcnt(0)\nv_readfirstlane_b32 s{sTMP2}, v60")
        A(f"s_sub_u32 s{sTMP}, s{sST}, s{sTMP2}\ns_add_u32 s{sTMP}, s{sTMP}, 100\ns_max_i32 s{sTMP}, s{sTMP}, 0\ns_min_i32 s{sTMP}, s{sTMP}, 1000\ns_lshl_b32 s{sTMP}, s{sTMP}, 3\ns_add_u32 s{sTMP}, s{sTMP}, s{sST+12}")
        A(f"L_enc:\ns_sleep 2\ns_memrealtime s[{SR}:{SR+1}]\ns_waitcnt lgkmcnt(0)\ns_sub_u32 s{sTMP2}, s{sTMP}, s{SR}\ns_cmp_gt_i32 s{sTMP2}, 0\ns_cbranch_scc1 L_enc")
    elif a.enc:
        A(f"s_waitcnt lgkmcnt(0)\ns_sub_u32 s{sTMP}, s{sST+2*(a.enc%10)}, s{sST}\ns_lshl_b32 s{sTMP}, s{sTMP}, 2\ns_add_u32 s{sTMP}, s{sTMP}, s{sST+12}")
        A(f"L_enc:\ns_sleep 2\ns_memrealtime s[{SR}:{SR+1}]\ns_waitcnt lgkmcnt(0)\ns_sub_u32 s{sTMP2}, s{sTMP}, s{SR}\ns_cmp_gt_i32 s{sTMP2}, 0\ns_cbranch_scc1 L_enc")
else:
    A(f"s_and_b32 s{sTMP}, s{sJ}, 1\ns_lshl_b32 s{sTMP}, s{sTMP}, 3\ns_add_u32 s{sTMP}, s{sTMP}, s{sHH}\ns_cmp_ge_u32 s{sTMP}, 24\ns_cbranch_scc1 L_end")
    A(f"s_lshl_b32 s{sTMP}, s{sP}, 2\ns_add_u32 s{sTMP}, s{sTMP}, s{sJ}\ns_mul_i32 s{sOFF}, s{sTMP}, 24\ns_add_u32 s{sOFF}, s{sOFF}, s{sHH}")
    A(f"s_lshl_b32 s{sOFF}, s{sOFF}, 10\ns_add_u32 s{sOFF}, s{sOFF}, {FBOX}")
    A(f"s_mul_i32 s{sTMP}, s{sJ}, 5\ns_add_u32 s{sTMP}, s{sTMP}, 1\ns_lshr_b32 s{sTMP}, s{sTMP}, 1\ns_lshl_b32 s{sTMP2}, s{sTMP}, 7")
    A(f"s_mul_i32 s{sTMP}, s{sP}, 1280\ns_add_u32 s{sTMP2}, s{sTMP2}, s{sTMP}\ns_lshl_b32 s{sTMP}, s{sHH}, 4\ns_add_u32 s{sTMP2}, s{sTMP2}, s{sTMP}")
    A(f"v_lshlrev_b32 v37, 4, v{vL}\nv_lshrrev_b32 v38, 5, v{vL}\nv_lshlrev_b32 v38, 3, v38")
    lds_wait(L_PF, [0, 1, 2], 4, 8)
    stamp(4)
    if a.nofin: A("s_branch L_end")
    if a.fmask:
        D = a.fdepth
        mk = sM + 4
        sets = [80 + 4 * k for k in range(D)]
        A(f"s_mov_b64 s[{mk}:{mk+1}], -1")
        for k in range(D):
            for q in range(4): A(f"v_mov_b32 v{sets[k]+q}, 0")
        A(f"v_not_b32 v{sets[0]}, v{vT}")
        for k in range(1, D): A(f"v_mov_b32 v{sets[k]}, v{sets[0]}")
        def issue(r):
            A(f"s_mov_b64 exec, s[{mk}:{mk+1}]\nbuffer_load_dwordx4 v[{r}:{r+3}], v37, s[{WS}:{WS+3}], s{sOFF} offen sc1\ns_mov_b64 exec, -1")
        for k in range(D - 1):
            issue(sets[k])
            if a.fgap: A(f"s_sleep {a.fgap}")
        A("L_fp:")
        for k in range(D):
            issue(sets[(k + D - 1) % D])
            r = sets[k]
            A(f"s_waitcnt vmcnt({D-1})")
            A(f"v_perm_b32 v44, v{r+1}, v{r}, s{sSELA}\nv_perm_b32 v45, v{r+3}, v{r+2}, s{sSELB}\nv_or_b32 v44, v44, v45\nv_xor_b32 v44, s{sT}, v44")
            A(f"v_cmp_ge_u32 vcc, 7, v44")
            A(f"s_and_b64 vcc, vcc, s[{mk}:{mk+1}]\ns_andn2_b64 s[{mk}:{mk+1}], s[{mk}:{mk+1}], vcc\ns_mov_b64 exec, vcc")
            for q in range(4): A(f"v_mov_b32 v{40+q}, v{r+q}")
            A(f"s_mov_b64 exec, -1\ns_cmp_eq_u64 s[{mk}:{mk+1}], 0\ns_cbranch_scc1 L_fpd")
            if a.fsl: A(f"s_sleep {a.fsl}")
        spin_tail("L_fp", 0)
        A("L_fpd:")
    else:
        poll(80, 37, sOFF, depth=a.fdepth, gap=a.fgap, lfl=FN)
        for k in range(4):
            A(f"v_mov_b32 v{40+k}, v{80+k}")
    A("s_nop 1")
    stamp(5)
    for d in ["row_shr:1", "row_shr:2", "row_shr:4", "row_shr:8"]:
        for k in range(4):
            A(f"v_add_f32_dpp v{40+k}, v{40+k}, v{40+k} {d} row_mask:0xf bank_mask:0xf")
    for k in range(4):
        A(f"v_add_f32_dpp v{40+k}, v{40+k}, v{40+k} row_bcast:15 row_mask:0xa bank_mask:0xf")
    A("v_cvt_pk_bf16_f32 v44, v40, v41\nv_cvt_pk_bf16_f32 v45, v42, v43")
    A("s_mov_b32 exec_lo, 0x80000000\ns_mov_b32 exec_hi, 0x80000000")
    A(f"buffer_store_dwordx2 v[44:45], v38, s[{SR2}:{SR2+3}], s{sTMP2} offen")
    A(f"s_or_b32 s{sTMP}, s{sJ}, s{sHH}\ns_cmp_lg_u32 s{sTMP}, 0\ns_cbranch_scc1 L_aux2")
    A("s_mov_b64 exec, 1")
    A(f"buffer_store_dword v{vT}, v30, s[{WS}:{WS+3}], s9 offen")
    A("L_aux2:")
    A("s_mov_b64 exec, -1")
    stamp(6)


A("L_end:")
if a.dbg:
    A("s_mov_b64 exec, -1")
    A("s_waitcnt vmcnt(0) lgkmcnt(0)")
    A(f"s_memrealtime s[{sST+16}:{sST+17}]\ns_memtime s[86:87]\ns_waitcnt lgkmcnt(0)")
    for k in range(9):
        A(f"v_mov_b32 v{8+k}, s{sST+2*k}")
    A(f"s_sub_u32 s86, s86, s84\ns_sub_u32 s87, s{sST+16}, s{sST}\nv_mov_b32 v17, s86\nv_mov_b32 v18, s87\nv_not_b32 v19, v8")
    A(f"s_lshl_b32 s{sTMP}, s{sWAVE}, 6\nv_mov_b32 v30, s{sTMP}\ns_lshl_b32 s{sTMP}, s{sWAVE}, 2\nv_mov_b32 v31, s{sTMP}\ns_mov_b64 exec, 1")
    for k in range(3):
        A(f"ds_write_b128 v30, v[{8+4*k}:{11+4*k}] offset:{L_ST+16*k}")
    A(f"ds_write_b32 v31, v{vT} offset:{L_DN}")
    A("s_mov_b64 exec, -1")
    A(f"s_cmp_lg_u32 s{sWAVE}, 3\ns_cbranch_scc1 L_done")
    A(f"L_dw:\nv_lshlrev_b32 v8, 2, v{vL}\nv_min_u32 v8, 40, v8\nds_read_b32 v9, v8 offset:{L_DN}\ns_waitcnt lgkmcnt(0)\nv_cmp_ne_u32 vcc, s{sT}, v9\ns_cmp_eq_u64 vcc, 0\ns_cbranch_scc1 L_dw2\ns_sleep 4\ns_sub_u32 s{sSPIN}, s{sSPIN}, 1\ns_cbranch_scc0 L_dw\ns_branch L_done\nL_dw2:")
    A("s_sleep 127\ns_sleep 127")
    adds = [(3,0,1),(0,2,2),(0,4,3),(4,4,4),(8,2,5),(8,3,6),(8,4,7),(0,7,8),(3,9,13),(3,10,14)]
    maxs = [(3,11,0),(0,7,9),(1,7,9),(2,7,9),(3,8,10),(8,3,11),(9,3,11),(10,3,11),(8,4,12),(9,4,12),(10,4,12),(3,0,15)]
    A("v_mov_b32 v20, 0\nv_mov_b32 v21, 0")
    for k, (w, st, d) in enumerate(adds + maxs):
        A(f"s_mov_b32 s{sTMP}, {L_ST + w*64 + st*4}\nv_writelane_b32 v20, s{sTMP}, {k}\ns_mov_b32 s{sTMP}, {d*4}\nv_writelane_b32 v21, s{sTMP}, {k}")
    A("ds_read_b32 v22, v20")
    A(f"s_load_dwordx2 s[{sM+2}:{sM+3}], s[0:1], 88\ns_waitcnt lgkmcnt(0)")
    srd(SR, sM + 2, 256)
    A("s_waitcnt lgkmcnt(0)")
    A(f"s_mov_b64 exec, {(1 << len(adds)) - 1}")
    A(f"buffer_atomic_add v22, v21, s[{SR}:{SR+3}], 0 offen")
    A(f"s_mov_b64 exec, {((1 << len(maxs)) - 1) << len(adds)}")
    A(f"buffer_atomic_umax v22, v21, s[{SR}:{SR+3}], 0 offen")
elif a.stamps:
    A("s_mov_b64 exec, -1")
    A("s_waitcnt vmcnt(0) lgkmcnt(0)")
    A(f"s_memrealtime s[{sST+16}:{sST+17}]\ns_waitcnt lgkmcnt(0)")
    A(f"s_lshl_b32 s{sTMP}, s2, 4\ns_add_u32 s{sTMP}, s{sTMP}, s{sWAVE}\ns_mul_i32 s{sTMP}, s{sTMP}, 80\ns_add_u32 s{sTMP}, s{sTMP}, {STAMP}")
    for k in range(18):
        A(f"v_mov_b32 v{8+k}, s{sST+k}")
    A("v_mov_b32 v30, 0\ns_mov_b64 exec, 1")
    for k in range(4):
        A(f"buffer_store_dwordx4 v[{8+4*k}:{11+4*k}], v30, s[{WS}:{WS+3}], s{sTMP} offen offset:{16*k}")
    A("s_getreg_b32 s3, hwreg(HW_REG_XCC_ID)\nv_mov_b32 v26, s3\nv_mov_b32 v27, 0")
    A(f"buffer_store_dwordx4 v[24:27], v30, s[{WS}:{WS+3}], s{sTMP} offen offset:64")
A("L_done:\ns_endpgm")
A.footer(168)
if a.pads:
    assert a.nf in (0, 2, 3, 10) and not a.lat
    A.L = [l.replace(".p2align 8\n.type", ".p2align 12\n.type") for l in A.L]
if a.pads in (1, 3):
    import padlib
    def plan3(pads, lines, i0):
        def li(lab): return next(i for i, l in enumerate(lines) if l.strip() == lab) - i0
        wo, k, v, ax = li("L_wo:"), li("L_k:"), li("L_v:"), li("L_aux:")
        W = [i for i, p in enumerate(pads) if p[1] < wo]
        O = [i for i, p in enumerate(pads) if wo <= p[1] < k]
        K = [i for i, p in enumerate(pads) if k <= p[1] < v]
        V = [i for i, p in enumerate(pads) if v <= p[1] < ax]
        X = [i for i, p in enumerate(pads) if ax <= p[1]]
        pri = (W + K + O + V + X)
        e = pri[:8]; rest = pri[8:]
        order = [1, 2, 3, 4, 0, 5, 6, 7]
        e2 = [p for p in e if p in K] + [p for p in e if p not in K]
        early = {order[i]: p for i, p in enumerate(e2)}
        ch = {0: [], 5: [], 6: [], 7: []}
        ws = [5, 6, 7, 0]
        rx = [p for p in rest if p in X]; ro = [p for p in rest if p not in X]
        ch[0] += rx
        i = 0
        for p in ro:
            w = min(ws, key=lambda q: len(ch[q])); ch[w].append(p)
        return early, ch
    A.L = padlib.add_pads(A.L, 8, plan=plan3 if a.pads == 3 else None)
A.write(a.out)
```

```python
import sys, argparse
from asmlib import *
ap = argparse.ArgumentParser()
ap.add_argument("out")
ap.add_argument("--stamps", type=int, default=0)
ap.add_argument("--prio", type=int, default=1)
ap.add_argument("--lds", type=int, default=163840)
ap.add_argument("--nopoll", type=int, default=0)
ap.add_argument("--near", type=int, default=0)
ap.add_argument("--kfull", type=int, default=0)
ap.add_argument("--psleep", type=int, default=0)
ap.add_argument("--lat", type=int, default=0)
ap.add_argument("--thr", type=int, default=0)
ap.add_argument("--rot", type=int, default=0)
ap.add_argument("--pdepth", type=int, default=3)
ap.add_argument("--pgap", type=int, default=16)
ap.add_argument("--fgap", type=int, default=5)
ap.add_argument("--fdepth", type=int, default=3)
ap.add_argument("--g2", type=int, default=1)
ap.add_argument("--dbg", type=int, default=0)
ap.add_argument("--win", type=str, default="")
ap.add_argument("--gsleep", type=int, default=1)
ap.add_argument("--nt", type=int, default=12)
ap.add_argument("--nofin", type=int, default=0)
ap.add_argument("--lsleep", type=int, default=1)
ap.add_argument("--x1", type=int, default=0)
ap.add_argument("--fmask", type=int, default=0)
ap.add_argument("--fsl", type=int, default=0)
ap.add_argument("--pro", type=int, default=0)
ap.add_argument("--contig", type=str, default="")
ap.add_argument("--fp", type=int, default=0)
ap.add_argument("--xmap", type=int, default=0)
ap.add_argument("--dly", type=str, default="")
ap.add_argument("--pnt", type=int, default=3)
ap.add_argument("--slab", type=int, default=0)
ap.add_argument("--wsl", type=int, default=1)
ap.add_argument("--no2", type=int, default=0)
ap.add_argument("--ks2", type=int, default=2)
ap.add_argument("--lmap", type=int, default=0)
ap.add_argument("--boost", type=int, default=0)
ap.add_argument("--vboost", type=int, default=0)
ap.add_argument("--kboost", type=int, default=0)
ap.add_argument("--vtrig", type=int, default=0)
ap.add_argument("--wj", type=str, default="")
ap.add_argument("--rank", type=int, default=0)
ap.add_argument("--vr", type=int, default=24)
ap.add_argument("--rop", type=int, default=1)
ap.add_argument("--dirty", type=int, default=0)
ap.add_argument("--nf", type=int, default=0)
ap.add_argument("--nft", type=int, default=110)
ap.add_argument("--nfi", type=int, default=0)
ap.add_argument("--nfs", type=int, default=1)
ap.add_argument("--nfd", type=int, default=0)
ap.add_argument("--nfv", type=int, default=0)
ap.add_argument("--enc", type=int, default=0)
ap.add_argument("--pads", type=int, default=0)
ap.add_argument("--dbgv", type=int, default=0)
ap.add_argument("--eb", type=int, default=0)
ap.add_argument("--nfp", default="sc1")
ap.add_argument("--nfx", type=int, default=0)
ap.add_argument("--nfj", type=int, default=-1)
ap.add_argument("--dry", type=int, default=0)
ap.add_argument("--nfr", type=int, default=0)
ap.add_argument("--nfdl", type=int, default=32)
ap.add_argument("--nfo", type=int, default=0)
ap.add_argument("--nfw", type=int, default=0)
ap.add_argument("--thx", type=str, default="")
ap.add_argument("--lb", type=int, default=0)
ap.add_argument("--fm", type=int, default=0)
ap.add_argument("--tlb", type=int, default=0)
ap.add_argument("--lv", type=str, default="")
ap.add_argument("--kq", type=int, default=0)
a = ap.parse_args()
LV = [int(x) for x in a.lv.split(",")] if a.lv else None
L_LV = 208

THX = [int(x, 0) for x in a.thx.split(",")] if a.thx else None
sTH = 3
def lvwait(n, e, l):
    if not LV or (e == 0 and l == 0):
        A(f"s_waitcnt vmcnt({n-1})"); return
    go = A.label("Llv")
    if l: A(f"s_waitcnt vmcnt({n+l-1})\ns_cmp_eq_u32 s{sTH}, 2\ns_cbranch_scc1 {go}")
    A(f"s_waitcnt vmcnt({n-1})")
    if e: A(f"s_cmp_lg_u32 s{sTH}, 1\ns_cbranch_scc1 {go}\ns_waitcnt vmcnt({n-e-1})")
    A(f"{go}:")
def thx(n, d):
    if THX and d:
        l = A.label("Lth")
        A(f"s_cmp_eq_u32 s{sTH}, 0\ns_cbranch_scc1 {l}\ns_waitcnt vmcnt({n-1-d})\n{l}:")

PN = " nt" if a.pnt & 1 else ""
FN = " nt" if a.pnt & 2 else ""
XN = " nt" if a.pnt & 4 else ""
WIN = [int(x) for x in a.win.split(",")] if a.win else None
if a.dbg: a.stamps = 1
if a.kq: a.contig += "Q"

A = Asm()
NW = 12 if a.lat else 11
A.header(256, 64 * NW, a.lds)

QBOX = 0x10000
OBOX = 0x40000
SBOX = 0x70000
FBOX = 0x80000
RBOX = 0x78000
VBOX = 0x7a000
STAMP = 0x8000000
L_PW, L_PK, L_PV = 0, 16, 32
L_QF = 48
L_MX = 64
L_LS = 96
L_FF = 128
L_FFLAG = 144
L_MODE = 148
L_OF = 160
L_PF = 176
L_KI = 192
L_VT = 192
L_DN = 208
L_ST = 2048
L_Q = 256
L_P = 640
L_O = 1152
sH, sJ, sP, sHH = 4, 5, 6, 7
sX, sK, sV, sWQ, sWO = 12, 14, 16, 18, 20
sWSP = 22
sWAVE = 24
sT = 25
sSPIN = 26
sC = 27
WS = 28
SR = 32
sOFF = 36
sTMP, sTMP2, sTMP3 = 37, 38, 39
sSEL = 40
sSELA, sSELB = 44, 45
sFL = sT
SR2 = 48
sM = 52
sNEED, sHAVE = 56, 57
sMODE, sCNT = 58, 59
sXCC = 60
sRB, sRI = 62, 63
sDRY = 61
sST = 64
vL = 0
vOFF = 1
vAD = 2
vT = 3
vACC = 4
vA0, vA1 = 8, 12
vSEL = 16
vCO = 24
vD = 40

nstamp = [0]
def stamp(k):
    if a.stamps:
        A(f"s_memrealtime s[{sST+2*k}:{sST+2*k+1}]")

def thr(n):
    if a.thr and n >= a.thr:
        A(f"s_waitcnt vmcnt({a.thr-1})")

def prio(p):
    if a.prio:
        A(f"s_setprio {p}")

def spin_tail(loop, sleep=1):
    if sleep:
        A(f"s_sleep {sleep}")
    A(f"s_sub_u32 s{sSPIN}, s{sSPIN}, 1\ns_cbranch_scc0 {loop}\ns_branch L_end")

def lds_wait(off, positions, nread, vt):
    if a.nopoll >= 2: return
    lp = A.label("Lw"); dn = A.label("Lwd")
    vz = vt + nread + 1
    vx = vt + nread
    A(f"v_mov_b32 v{vz}, 0")
    A(f"{lp}:")
    k = 0
    while k < nread:
        n = min(4, nread - k)
        op = {1: "ds_read_b32", 2: "ds_read_b64", 4: "ds_read_b128"}[n]
        reg = f"v{vt+k}" if n == 1 else f"v[{vt+k}:{vt+k+n-1}]"
        A(f"{op} {reg}, v{vz} offset:{off+4*k}")
        k += n
    A("s_waitcnt lgkmcnt(0)")
    first = True
    for p in positions:
        if first:
            A(f"v_xor_b32 v{vx}, s{sFL}, v{vt+p}")
            first = False
        else:
            A(f"v_xor_b32 v{vz}, s{sFL}, v{vt+p}\nv_or_b32 v{vx}, v{vx}, v{vz}")
    A(f"v_mov_b32 v{vz}, 0")
    A(f"v_cmp_ne_u32 vcc, 0, v{vx}")
    A(f"s_cmp_eq_u64 vcc, 0\ns_cbranch_scc1 {dn}")
    spin_tail(lp, a.lsleep)
    A(f"{dn}:")

def gate_init(widx, NP, vz):
    A(f"s_add_u32 s{sNEED}, s{widx}, 1\ns_mul_i32 s{sNEED}, s{sNEED}, {NP}\ns_mov_b32 s{sHAVE}, 0\nv_mov_b32 v{vz}, 0")

def gate(loff, kS, NP, NS, vz, vt):
    lp = A.label("Lg"); go = A.label("Lgo")
    A(f"{lp}:\ns_cmp_ge_u32 s{sHAVE}, s{sNEED}\ns_cbranch_scc1 {go}")
    if a.x1: A("s_mov_b64 exec, 1")
    A(f"ds_read_b128 v[{vt}:{vt+3}], v{vz} offset:{loff}\ns_waitcnt lgkmcnt(0)")
    A(f"v_add3_u32 v{vt}, v{vt}, v{vt+1}, v{vt+2}\nv_add_u32 v{vt}, v{vt}, v{vt+3}\ns_nop 0\nv_readfirstlane_b32 s{sHAVE}, v{vt}")
    if a.x1: A("s_mov_b64 exec, -1")
    A(f"s_mul_i32 s{sHAVE}, s{sHAVE}, {NS}\ns_cmp_ge_u32 s{sHAVE}, s{sNEED}\ns_cbranch_scc1 {go}")
    spin_tail(lp, a.gsleep)
    A(f"{go}:\ns_add_u32 s{sNEED}, s{sNEED}, {kS*NP}")

def credit(loff, vaddr, vval, n):
    A(f"v_mov_b32 v{vval}, {n}\nds_write_b32 v{vaddr}, v{vval} offset:{loff}")

def lds_flag(off, vtmp):
    A(f"v_mov_b32 v{vtmp}, 0\nds_write_b32 v{vtmp}, v{vT} offset:{off}")

def get_T():
    A("s_waitcnt lgkmcnt(0)")
    A(f"s_mul_i32 s{sT}, s{sT}, 0x9E3779B1\ns_add_u32 s{sT}, s{sT}, 0x7F4A7C15\ns_andn2_b32 s{sT}, s{sT}, 15\ns_or_b32 s{sT}, s{sT}, 8\ns_or_b32 s{sT}, s{sT}, s{sXCC}")
    A(f"v_mov_b32 v{vT}, s{sT}")

def make_selectors():
    t0, t1, t2, t3 = vA0, vA0 + 1, vA0 + 2, vA0 + 3
    A(f"v_bfe_u32 v{t0}, v{vL}, 2, 2")
    A(f"v_bfe_u32 v{t1}, v{vL}, 1, 1")
    A(f"v_cmp_eq_u32 vcc, 1, v{t1}")
    A(f"v_mov_b32 v{t2}, 0x0c0c0100\nv_mov_b32 v{t3}, 0x01000c0c")
    A(f"v_cndmask_b32 v{t2}, v{t2}, v{t3}, vcc")
    A(f"v_mov_b32 v{t1}, 0x0c0c0302\nv_mov_b32 v{t3}, 0x03020c0c")
    A(f"v_cndmask_b32 v{t3}, v{t1}, v{t3}, vcc")
    A(f"v_mov_b32 v{t1}, 0x0c0c0c0c")
    for t in range(4):
        A(f"v_cmp_eq_u32 vcc, {t}, v{t0}\ns_nop 1")
        A(f"v_cndmask_b32 v{vSEL+2*t}, v{t1}, v{t2}, vcc\nv_cndmask_b32 v{vSEL+2*t+1}, v{t1}, v{t3}, vcc")

def build_A(b, buf):
    src = vCO + b // 2
    for t in range(4):
        A(f"v_perm_b32 v{buf+t}, v{src}, v{src}, v{vSEL+2*t+(b&1)}")

def diag_gemv(nb, extra_after=0, win=None, hook=None):
    build_A(0, vA0)
    for b in range(nb):
        if b + 1 < nb:
            build_A(b + 1, vA1 if (b & 1) == 0 else vA0)
        else:
            A("s_nop 1")
        A(f"s_waitcnt vmcnt({min(nb-1-b, (win or nb)-1)+extra_after})")
        if hook: hook(b)
        buf = vA0 if (b & 1) == 0 else vA1
        c = "0" if b == 0 else f"v[{vACC}:{vACC+3}]"
        A(f"v_mfma_f32_16x16x32_bf16 v[{vACC}:{vACC+3}], v[{buf}:{buf+3}], v[{vD+4*b}:{vD+4*b+3}], {c}")

def combine(g):
    A("s_nop 7")
    A(f"v_add_f32_dpp v{g}, v{vACC+1}, v{vACC} row_ror:8 row_mask:0xf bank_mask:0xf")
    A(f"v_add_f32_dpp v{g+1}, v{vACC+3}, v{vACC+2} row_ror:8 row_mask:0xf bank_mask:0xf")
    A(f"v_mov_b32 v{g+2}, 0\nv_mov_b32 v{g+3}, 0")
    A("s_nop 1")
    A(f"v_permlane16_swap_b32 v{g}, v{g+2}\nv_permlane16_swap_b32 v{g+1}, v{g+3}")
    A("s_nop 1")
    for k in range(4):
        A(f"v_perm_b32 v{g+k}, v{g+k}, v{vT}, s{sSEL+k}")

def poll(g, voff, soff, sleep=0, depth=None, gap=None, on_timeout=None, lfl=None, after_first=None):
    if a.nopoll >= 1: return
    depth = depth or a.pdepth
    gap = a.pgap if gap is None else gap
    lp = A.label("Lp"); dn = A.label("Lpd")
    sets = [g + 8 + 4 * k for k in range(depth)]
    def issue(r):
        A(f"buffer_load_dwordx4 v[{r}:{r+3}], v{voff}, s[{WS}:{WS+3}], s{soff} offen sc1{PN if lfl is None else lfl}")
    for k in range(depth - 1):
        issue(sets[k])
        if k == 0 and after_first: after_first()
        if gap: A(f"s_sleep {gap}")
    if on_timeout: A(f"s_mov_b32 s{sCNT}, 0")
    A(f"{lp}:")
    fins = []
    for k in range(depth):
        issue(sets[(k + depth - 1) % depth])
        r = sets[k]
        A(f"s_waitcnt vmcnt({depth-1})")
        A(f"v_perm_b32 v{g+4}, v{r+1}, v{r}, s{sSELA}\nv_perm_b32 v{g+5}, v{r+3}, v{r+2}, s{sSELB}")
        A(f"v_or_b32 v{g+4}, v{g+4}, v{g+5}\nv_xor_b32 v{g+4}, s{sT}, v{g+4}")
        A(f"v_cmp_lt_u32 vcc, 7, v{g+4}")
        fl = A.label("Lpf"); fins.append((fl, r))
        A(f"s_cmp_eq_u64 vcc, 0\ns_cbranch_scc1 {fl}")
    if on_timeout:
        A(f"s_add_u32 s{sCNT}, s{sCNT}, 1\ns_cmp_lg_u32 s{sCNT}, {a.nt}\ns_cbranch_scc1 {lp}_t")
        on_timeout()
        A(f"{lp}_t:")
    spin_tail(lp, 0)
    for i, (fl, r) in enumerate(fins):
        A(f"{fl}:")
        for k in range(4):
            A(f"v_mov_b32 v{g+k}, v{r+k}")
        if i < len(fins) - 1: A(f"s_branch {dn}")
    A(f"{dn}:")
    A("s_nop 1")

def lds_mode(vz, vr):
    A(f"v_mov_b32 v{vz}, 0\nds_read_b32 v{vr}, v{vz} offset:{L_MODE}")

def publish_gather(box, ldsdst, ldsflag, fscale, g=vD, h=None):
    combine(g)
    A(f"v_and_b32 v{g+8}, 7, v{vL}\nv_lshrrev_b32 v{g+9}, 5, v{vL}\nv_lshl_add_u32 v{g+8}, v{g+8}, 1, v{g+9}\nv_lshlrev_b32 v{g+8}, 4, v{g+8}")
    A(f"s_mul_i32 s{sOFF}, s{sH}, 3072\ns_lshl_b32 s{sTMP}, s{sC}, 10\ns_add_u32 s{sOFF}, s{sOFF}, s{sTMP}\ns_add_u32 s{sOFF}, s{sOFF}, {box}")
    A(f"s_lshl_b32 s{sTMP3}, s{sJ}, 8\ns_add_u32 s{sTMP3}, s{sTMP3}, s{sOFF}")
    def store(fl):
        A("s_mov_b32 exec_lo, 0xff\ns_mov_b32 exec_hi, 0xff")
        A(f"buffer_store_dwordx4 v[{g}:{g+3}], v{g+8}, s[{WS}:{WS+3}], s{sTMP3} offen{fl}")
        A("s_mov_b64 exec, -1")
    if fscale:
        l1 = A.label("Ls"); l2 = A.label("Ls")
        A(f"s_cmp_lg_u32 s{sMODE}, 0\ns_cbranch_scc1 {l1}")
        store("")
        A(f"s_branch {l2}\n{l1}:")
        store(" sc1")
        A(f"{l2}:")
    else:
        store("")
    stamp(3)
    A(f"v_and_b32 v{g+10}, 3, v{vL}\nv_lshrrev_b32 v{g+11}, 2, v{vL}\nv_lshlrev_b32 v{g+12}, 4, v{g+11}\nv_lshl_add_u32 v{g+12}, v{g+10}, 8, v{g+12}")
    if fscale:
        lds_wait(L_FFLAG, [0], 1, g + 16)
        A(f"v_lshlrev_b32 v{g+13}, 2, v{g+10}\nds_read_b32 v{g+13}, v{g+13} offset:{L_FF}")
    h = h or g + 20
    def opf(): A(f"s_lshl_b32 s{sTMP}, s{sC}, 2\nv_mov_b32 v{g+14}, s{sTMP}\nds_write_b32 v{g+14}, v{vT} offset:{L_VT+4}")
    poll(h, g + 12, sOFF, on_timeout=None if fscale else (lambda: store(" sc1")), after_first=opf if fscale and a.rank else None)
    stamp(4)
    if fscale:
        A("s_waitcnt lgkmcnt(0)")
        for k in range(4):
            A(f"v_mul_f32 v{h+k}, v{h+k}, v{g+13}")
    else:
        if a.nopoll: A(f"v_mov_b32 v{h+4}, 0")
        A(f"v_cmp_ne_u32 vcc, 0, v{h+4}\ns_cmp_lg_u64 vcc, 0\ns_cselect_b32 s{sMODE}, 1, 0\nv_mov_b32 v{g+13}, s{sMODE}\nv_mov_b32 v{g+14}, 0")
        l1 = A.label("Ls")
        A(f"s_cbranch_scc0 {l1}")
        store(" sc1")
        A(f"{l1}:")
    for k in range(4):
        A(f"v_add_f32_dpp v{h+4+k}, v{h+k}, v{h+k} quad_perm:[1,0,3,2] row_mask:0xf bank_mask:0xf")
    for k in range(4):
        A(f"v_add_f32_dpp v{h+k}, v{h+4+k}, v{h+4+k} quad_perm:[2,3,0,1] row_mask:0xf bank_mask:0xf")
    A(f"v_cvt_pk_bf16_f32 v{h+4}, v{h}, v{h+1}\nv_cvt_pk_bf16_f32 v{h+5}, v{h+2}, v{h+3}")
    A(f"s_lshl_b32 s{sTMP}, s{sC}, 7\nv_lshlrev_b32 v{g+11}, 3, v{g+11}\nv_add_u32 v{g+11}, s{sTMP}, v{g+11}")
    A(f"s_lshl_b32 s{sTMP}, s{sC}, 2\nv_mov_b32 v{g+10}, s{sTMP}")
    A("s_mov_b32 exec_lo, 0x11111111\ns_mov_b32 exec_hi, 0x11111111")
    A(f"ds_write_b64 v{g+11}, v[{h+4}:{h+5}] offset:{ldsdst}")
    if not fscale:
        A(f"ds_write_b32 v{g+14}, v{g+13} offset:{L_MODE}")
    A(f"ds_write_b32 v{g+10}, v{vT} offset:{ldsflag}")
    A("s_mov_b64 exec, -1")

def coef_addr(vdst, per):
    A(f"v_lshrrev_b32 v{vdst}, 4, v{vL}\nv_and_b32 v{vA0}, 1, v{vL}\nv_lshl_add_u32 v{vdst}, v{vdst}, 1, v{vA0}\nv_mul_u32_u24 v{vdst}, {per}, v{vdst}")

def data_voff(rowstep):
    A(f"v_lshrrev_b32 v{vOFF}, 3, v{vL}\nv_mul_u32_u24 v{vOFF}, {rowstep}, v{vOFF}\nv_and_b32 v{vA0}, 7, v{vL}\nv_lshl_add_u32 v{vOFF}, v{vA0}, 4, v{vOFF}")

def srd(d, lo, n):
    A.srd(d, lo, n)

A("s_cmp_ge_u32 s2, 256\ns_cbranch_scc1 L_done")
stamp(0)
if a.stamps:
    for k in range(2, 18):
        A(f"s_mov_b32 s{sST+k}, 0")
if a.dly:
    dl = a.dly
    if dl[0] == "w":
        dl = dl[1:]; A("s_and_b32 s3, s2, 7")
    else:
        A("s_getreg_b32 s3, hwreg(HW_REG_XCC_ID, 0, 3)")
    dl = [int(x) for x in dl.split(",")]
    lo = sum(v << (8 * i) for i, v in enumerate(dl[:4])); hi = sum(v << (8 * i) for i, v in enumerate(dl[4:]))
    A(f"s_mov_b32 s4, {lo}\ns_mov_b32 s5, {hi}\ns_lshl_b32 s3, s3, 3\ns_lshr_b64 s[4:5], s[4:5], s3\ns_and_b32 s4, s4, 0xff")
    A("L_dl:\ns_sub_u32 s4, s4, 1\ns_cbranch_scc1 L_nd\ns_sleep 2\ns_branch L_dl\nL_nd:")
A(f"s_load_dwordx2 s[{sWSP}:{sWSP+1}], s[0:1], 96")
if a.xmap == 1:
    A(f"s_and_b32 s{sJ}, s2, 3\ns_lshr_b32 s{sH}, s2, 2")
elif a.xmap == 2:
    A(f"s_lshr_b32 s{sH}, s2, 3\ns_and_b32 s{sJ}, s{sH}, 3\ns_cmp_eq_u32 s{sJ}, 3\ns_cselect_b32 s3, 1, 0\ns_add_u32 s3, s3, s2\ns_and_b32 s3, s3, 7\ns_lshr_b32 s{sH}, s{sH}, 2\ns_lshl_b32 s3, s3, 3\ns_add_u32 s{sH}, s{sH}, s3")
else:
    A(f"s_add_u32 s3, s2, {a.rot}\ns_and_b32 s3, s3, 7\ns_lshr_b32 s{sH}, s2, 3\ns_and_b32 s{sJ}, s{sH}, 3\ns_lshr_b32 s{sH}, s{sH}, 2\ns_lshl_b32 s3, s3, 3\ns_add_u32 s{sH}, s{sH}, s3")
A(f"s_lshr_b32 s{sP}, s{sH}, 5\ns_and_b32 s{sHH}, s{sH}, 31")
A(f"s_lshl_b32 s9, s{sP}, 7")
A(f"s_mul_i32 s8, s{sP}, 40\ns_add_u32 s10, s0, s8\ns_addc_u32 s11, s1, 0")
A(f"s_load_dwordx8 s[{sX}:{sX+7}], s[10:11], 0")
A(f"s_load_dwordx2 s[{sWO}:{sWO+1}], s[10:11], 32")
A(f"v_lshrrev_b32 v1, 6, v0\nv_and_b32 v0, 63, v0\nv_readfirstlane_b32 s{sWAVE}, v1")
A(f"s_mov_b32 s{sSPIN}, 200000\ns_getreg_b32 s{sXCC}, hwreg(HW_REG_XCC_ID, 0, 3)")
if LV: A(f"s_mov_b32 s{sTH}, 0")
if THX: A(f"s_lshr_b32 s{sTH}, {THX[0]}, s{sXCC}\ns_and_b32 s{sTH}, s{sTH}, 1")
for k in range(4):
    A(f"s_mov_b32 s{sSEL+k}, {0x07060500 + k:#x}")
A(f"s_mov_b32 s{sSELA}, 0x0c0c0400\ns_mov_b32 s{sSELB}, 0x04000c0c")
if a.pads == 3:
    A(f"s_cmp_lt_u32 s{sWAVE}, 3\ns_cbranch_scc1 L_w")
    A(f"v_lshlrev_b32 v8, 2, v{vL}\nv_mov_b32 v9, 0\ns_cmp_lg_u32 s{sWAVE}, 3\ns_cbranch_scc1 L_nz\nds_write_b32 v8, v9\ns_branch @PAE0@\nL_nz:")
    for w in range(1, 7): A(f"s_cmp_eq_u32 s{sWAVE}, {3+w}\ns_cbranch_scc1 @PAE{w}@")
    A("s_branch @PAE7@")
    A("L_p1done:")
    A(f"s_waitcnt lgkmcnt(0)\ns_load_dword s{sT}, s[{sWSP}:{sWSP+1}], s9\ns_barrier")
    A(f"s_cmp_eq_u32 s{sWAVE}, 3\ns_cbranch_scc1 @PAD0@\ns_cmp_lt_u32 s{sWAVE}, 8\ns_cbranch_scc1 L_k")
    for w in (5, 6): A(f"s_cmp_eq_u32 s{sWAVE}, {3+w}\ns_cbranch_scc1 @PAD{w}@")
    A("s_branch @PAD7@")
    A("L_pdone:")
    A(f"s_cmp_eq_u32 s{sWAVE}, 3\ns_cbranch_scc1 L_aux\ns_branch L_v")
elif a.pads:
    A(f"s_cmp_lt_u32 s{sWAVE}, 3\ns_cbranch_scc1 L_w")
    A(f"v_lshlrev_b32 v8, 2, v{vL}\nv_mov_b32 v9, 0\ns_cmp_lg_u32 s{sWAVE}, 3\ns_cbranch_scc1 L_nz\nds_write_b32 v8, v9\nL_nz:")
    A(f"s_waitcnt lgkmcnt(0)\ns_load_dword s{sT}, s[{sWSP}:{sWSP+1}], s9\ns_barrier")
    if a.pads == 1:
        for w in range(7): A(f"s_cmp_eq_u32 s{sWAVE}, {3+w}\ns_cbranch_scc1 @PAD{w}@")
        A("s_branch @PAD7@")
    A("L_pdone:")
    A(f"""s_cmp_eq_u32 s{sWAVE}, 3
s_cbranch_scc1 L_aux
s_cmp_lt_u32 s{sWAVE}, 8
s_cbranch_scc1 L_k
s_branch L_v""")
else:
    A(f"""s_cmp_lt_u32 s{sWAVE}, 3
s_cbranch_scc1 L_w
s_cmp_eq_u32 s{sWAVE}, 3
s_cbranch_scc1 L_aux
s_cmp_lt_u32 s{sWAVE}, 8
s_cbranch_scc1 L_k
s_cmp_lt_u32 s{sWAVE}, 11
s_cbranch_scc1 L_v
s_branch L_aux""")

A("L_w:")
prio(3)
A(f"s_mov_b32 s{sC}, s{sWAVE}")
A(f"s_mul_i32 s{sOFF}, s{sJ}, {160*12288}\ns_mul_i32 s{sTMP3}, s{sHH}, 384\ns_add_u32 s{sOFF}, s{sOFF}, s{sTMP3}\ns_lshl_b32 s{sTMP3}, s{sC}, 7\ns_add_u32 s{sOFF}, s{sOFF}, s{sTMP3}")
A(f"s_mul_i32 s{sTMP2}, s{sJ}, 320")
for nb in (20,):
    data_voff(12288 if 'N' in a.contig else nb * 12288)
    if "q" in a.contig:
        A(f"v_lshlrev_b32 v{vOFF}, 4, v{vL}\ns_lshl_b32 s{sOFF}, s{sHH}, 2\ns_add_u32 s{sOFF}, s{sOFF}, s{sJ}\ns_mul_i32 s{sOFF}, s{sOFF}, 3\ns_add_u32 s{sOFF}, s{sOFF}, s{sC}\ns_mul_i32 s{sOFF}, s{sOFF}, 20480")
    coef_addr(vAD, 2 * nb)
    if a.nf == 10:
        A(f"s_lshr_b32 s{sRB}, s2, 4\ns_lshl_b32 s{sRB}, s{sRB}, 14\ns_and_b32 s{sRI}, s2, 15\ns_lshl_b32 s{sRI}, s{sRI}, 9\ns_add_u32 s{sRB}, s{sRB}, s{sRI}\ns_add_u32 s{sRB}, s{sRB}, {FBOX + 20*16384}")
        A(f"s_and_b32 s{sRI}, s{sJ}, 1\ns_lshl_b32 s{sRI}, s{sRI}, 13\ns_add_u32 s{sRB}, s{sRB}, s{sRI}\ns_xor_b32 s{sRI}, s{sRB}, 8192\nv_mov_b32 v165, 0\ns_mov_b32 s{WS+2}, 0x10000000\ns_mov_b32 s{WS+3}, 0x00020000\ns_cmp_lg_u32 s{sC}, 0")
    A("s_waitcnt lgkmcnt(0)")
    if a.nf == 10:
        A(f"s_mov_b32 s{WS}, s{sWSP}\ns_cbranch_scc1 L_wnp\ns_and_b32 s{WS+1}, s{sWSP+1}, 0xffff\ns_mov_b64 exec, 1")
        A(f"buffer_load_dword v166, v165, s[{WS}:{WS+3}], s{sRB} offen {a.nfp}\nbuffer_load_dword v167, v165, s[{WS}:{WS+3}], s{sRI} offen {a.nfp}\ns_mov_b64 exec, -1\nL_wnp:")
    if a.pro: stamp(5)
    A(f"s_load_dword s{sT}, s[{sWSP}:{sWSP+1}], s9")
    srd(SR, sWQ, 640 * 12288)
    srd(SR2, sX, 1280)
    for k in range(nb // 8):
        A(f"buffer_load_dwordx4 v[{vCO+4*k}:{vCO+4*k+3}], v{vAD}, s[{SR2}:{SR2+3}], s{sTMP2} offen offset:{16*k}{XN}")
    A(f"buffer_load_dwordx2 v[{vCO+8}:{vCO+9}], v{vAD}, s[{SR2}:{SR2+3}], s{sTMP2} offen offset:32{XN}")
    nw = WIN[0] if WIN else nb
    def wq_load(b):
        A(f"buffer_load_dwordx4 v[{vD+4*b}:{vD+4*b+3}], v{vOFF}, s[{SR}:{SR+3}], s{sOFF} offen nt")
        if b < nb - 1: A(f"s_add_u32 s{sOFF}, s{sOFF}, {1024 if 'q' in a.contig else (8 * 12288 if 'N' in a.contig else 12288)}")
    for b in range(nw):
        thr(b)
        wq_load(b)
    stamp(1)
    if not a.lb: A("s_barrier")
    srd(WS, sWSP, 0x10000000)
    make_selectors()
    if a.nf == 10:
        A(f"s_cmp_lg_u32 s{sC}, 0\ns_cbranch_scc1 L_wnq\ns_waitcnt vmcnt({nw+4})")
        A(f"s_sleep {a.nfs}" if a.nfs > 0 else f"s_nop {-a.nfs}")
        A(f"s_getreg_b32 s{sRI}, hwreg(HW_REG_IB_STS, 0, 4)\ns_bitcmp1_b32 s{sJ}, 0\ns_cselect_b32 s{sRB}, 0, 16\ns_cmp_eq_u32 s{sRI}, {nw+4}\ns_cselect_b32 s{sRB}, s{sRB}, 32\nL_wnq:")
    get_T()
    if a.lb == 1: A("s_barrier")
    A(f"s_waitcnt vmcnt({nw})")
    if a.pro:
        A(f"s_waitcnt vmcnt({nw-1})")
        stamp(6)
    if WIN:
        A(f"s_lshl_b32 s{sTMP}, s{sC}, 2\nv_mov_b32 v{vAD}, s{sTMP}")
        def hook(b):
            if a.lb >= 2 and b == a.lb - 2 + 1: A("s_barrier")
            if b + nw < nb: wq_load(b + nw)
            else: credit(L_PW, vAD, vCO - 1 - 0 if False else 164, b + nw - nb + 1)
        diag_gemv(nb, win=nw, hook=hook)
    else:
        diag_gemv(nb)
stamp(2)
publish_gather(QBOX, L_Q, L_QF, False, g=vD, h=136)
if not a.pro: stamp(5)
if a.nf == 10:
    A(f"s_cmp_lg_u32 s{sC}, 0\ns_cbranch_scc1 L_wnv\ns_xor_b32 s{sRB}, s{sRB}, s{sT}\nv_mov_b32 v166, s{sRB}\ns_lshl_b32 s{sRI}, s{sXCC}, 10\ns_add_u32 s{sRI}, s{sRI}, {VBOX}\ns_lshl_b32 s{sTMP}, s2, 2\nv_mov_b32 v165, s{sTMP}")
    A(f"s_mov_b64 exec, 1\nbuffer_store_dword v166, v165, s[{WS}:{WS+3}], s{sRI} offen\ns_mov_b64 exec, -1\nL_wnv:")
A("L_wo:")
vF = 160
A(f"s_lshl_b32 s{sTMP}, s{sC}, 2\nv_mov_b32 v{vF+1}, s{sTMP}")
A(f"{'s_lshr_b32' if a.lmap else 's_and_b32'} s{sTMP}, s{sJ}, 1\ns_add_u32 s{sTMP}, s{sTMP}, s{sC}\ns_cmp_eq_u32 s{sTMP}, 3\ns_cbranch_scc1 L_w_fin")
prio(0)
if a.dry & 1: A(f"s_mov_b32 s{sDRY}, 1\ns_branch L_fc\nL_fcb:\ns_mov_b32 s{sDRY}, 0")
srd(SR, sWO, 6144 * 1280)
data_voff(1280 if 'O' in a.contig else (8 * 1280 if a.slab else 24 * 1280))
if a.lmap: A(f"s_mul_i32 s{sTMP}, s{sJ}, 3\ns_add_u32 s{sM}, s{sJ}, 1\ns_lshr_b32 s{sM}, s{sM}, 2\ns_sub_u32 s{sTMP}, s{sTMP}, s{sM}\ns_add_u32 s{sM}, s{sTMP}, s{sC}")
else: A(f"s_mul_i32 s{sTMP}, s{sJ}, 5\ns_add_u32 s{sTMP}, s{sTMP}, 1\ns_lshr_b32 s{sTMP}, s{sTMP}, 1\ns_add_u32 s{sM}, s{sTMP}, s{sC}")
A(f"s_mul_i32 s{sOFF}, s{sHH}, {192*1280}\ns_lshl_b32 s{sTMP}, s{sM}, 7\ns_add_u32 s{sOFF}, s{sOFF}, s{sTMP}")
if "o" in a.contig:
    A(f"v_lshlrev_b32 v{vOFF}, 4, v{vL}\ns_mul_i32 s{sOFF}, s{sHH}, 10\ns_add_u32 s{sOFF}, s{sOFF}, s{sM}\ns_mul_i32 s{sOFF}, s{sOFF}, 24576")
if WIN: gate_init(sC, 3 * WIN[2], vCO)
def wo_issue(nO, kS):
    rest = [A.label("Lb") for b in range(24)]
    for b in range(24):
        thr(b)
        if WIN:
            if b < nO: gate(L_PV, kS, 3 * WIN[2], kS * nO, vCO, vCO + 4)
            else:
                if a.boost:
                    t = vCO + 4
                    if THX and THX[4] & 2:
                        lnb = A.label("Lnb"); A(f"s_cmp_lg_u32 s{sTH}, 0\ns_cbranch_scc1 {lnb}")
                    if LV: A(f"ds_read_b32 v{t+4}, v{vCO} offset:{L_LV}")
                    A(f"ds_read_b128 v[{t}:{t+3}], v{vCO} offset:{L_OF}\ns_waitcnt lgkmcnt(0)")
                    if LV: A(f"v_readfirstlane_b32 s{sTH}, v{t+4}")
                    op = "v_or3_b32" if a.boost == 2 else None
                    if a.boost == 1:
                        A(f"v_and_b32 v{t}, v{t}, v{t+1}\nv_and_or_b32 v{t}, v{t}, v{t+2}, v{t+3}")
                    else:
                        A(f"v_or3_b32 v{t}, v{t}, v{t+1}, v{t+2}")
                    A(f"v_cmp_ne_u32 vcc, 0, v{t}\ns_cbranch_vccnz {rest[b]}")
                    if THX and THX[4] & 2: A(f"{lnb}:")
                if LV: lvwait(nO, LV[7], LV[8])
                else: A(f"s_waitcnt vmcnt({nO-1})")
            if THX and b >= nO - THX[3]: thx(nO, THX[3])
        A(f"buffer_load_dwordx4 v[{vD+4*b}:{vD+4*b+3}], v{vOFF}, s[{SR}:{SR+3}], s{sOFF} offen nt")
        if b < 23: A(f"s_add_u32 s{sOFF}, s{sOFF}, {1024 if 'o' in a.contig else (8 * 1280 if 'O' in a.contig else (57 * 1280 if a.slab and b % 8 == 7 else 1280))}")
    if a.boost and WIN:
        A("s_branch L_wo_j")
        for b in range(nO, 24):
            A(f"{rest[b]}:")
            A(f"buffer_load_dwordx4 v[{vD+4*b}:{vD+4*b+3}], v{vOFF}, s[{SR}:{SR+3}], s{sOFF} offen nt")
            if b < 23: A(f"s_add_u32 s{sOFF}, s{sOFF}, {1024 if 'o' in a.contig else (8 * 1280 if 'O' in a.contig else (57 * 1280 if a.slab and b % 8 == 7 else 1280))}")
        A("s_branch L_wo_j")
    return
    for b in range(24):
        A(f"buffer_load_dwordx4 v[{vD+4*b}:{vD+4*b+3}], v{vOFF}, s[{SR}:{SR+3}], s{sOFF} offen nt")
        if b < 23: A(f"s_add_u32 s{sOFF}, s{sOFF}, {1024 if 'o' in a.contig else (8 * 1280 if 'O' in a.contig else (57 * 1280 if a.slab and b % 8 == 7 else 1280))}")
if a.wj:
    assert a.boost
    wj = [int(x) for x in a.wj.split(",")]
    for jj in range(4):
        heavy = (jj < 2) if a.lmap else (jj % 2 == 0)
        if jj < 3: A(f"s_cmp_lg_u32 s{sJ}, {jj}\ns_cbranch_scc1 L_wj{jj}")
        wo_issue(wj[jj], 3 if heavy else 2)
        A(f"L_wj{jj}:")
elif a.no2:
    A(f"s_bitcmp1_b32 s{sJ}, {1 if a.lmap else 0}\ns_cbranch_scc0 L_wo_e")
    wo_issue(a.no2, a.ks2)
    A("s_branch L_wo_j\nL_wo_e:")
if not a.wj: wo_issue(WIN[3] if WIN else 24, 3)
A("L_wo_j:")
prio(3)
if not a.pro: stamp(6)
coef_addr(vAD, 16 if a.slab else 48)
if a.fp:
    gp = a.fp // 16; lg = gp.bit_length() - 1
    A(f"v_and_b32 v{vF}, 7, v{vL}\nv_lshrrev_b32 v{vF+2}, 5, v{vL}\nv_lshl_add_u32 v{vF}, v{vF}, 1, v{vF+2}")
    A(f"v_and_b32 v{vF+2}, {gp-1}, v{vF}\nv_lshrrev_b32 v{vF}, {lg}, v{vF}\nv_mul_u32_u24 v{vF}, {32*a.fp}, v{vF}\nv_lshl_add_u32 v{vF}, v{vF+2}, 4, v{vF}")
    A(f"s_mul_i32 s{sOFF}, s{sP}, 10\ns_add_u32 s{sOFF}, s{sOFF}, s{sM}\ns_lshl_b32 s{sOFF}, s{sOFF}, {14 if a.nf else 13}\ns_mul_i32 s{sTMP}, s{sHH}, {a.fp}\ns_add_u32 s{sOFF}, s{sOFF}, s{sTMP}\ns_add_u32 s{sOFF}, s{sOFF}, {FBOX}")
else:
    A(f"v_and_b32 v{vF}, 7, v{vL}\nv_lshrrev_b32 v{vF+2}, 5, v{vL}\nv_lshlrev_b32 v{vF}, 10, v{vF}\nv_lshl_add_u32 v{vF}, v{vF+2}, 9, v{vF}")
    A(f"s_lshl_b32 s{sTMP}, s{sP}, 2\ns_add_u32 s{sTMP}, s{sTMP}, s{sJ}\ns_mul_i32 s{sOFF}, s{sTMP}, 24576\ns_lshl_b32 s{sTMP}, s{sHH}, 4\ns_add_u32 s{sOFF}, s{sOFF}, s{sTMP}\ns_lshl_b32 s{sTMP}, s{sC}, 13\ns_add_u32 s{sOFF}, s{sOFF}, s{sTMP}\ns_add_u32 s{sOFF}, s{sOFF}, {FBOX}")
if a.slab:
    vfl = vCO + 12
    A(f"v_mov_b32 v{vF+2}, 0\ns_mov_b32 s{sM}, 7")
    for k in range(4): A(f"v_mov_b32 v{vACC+k}, 0")
    A("L_kl:")
    A(f"ds_read_b128 v[{vfl}:{vfl+3}], v{vF+2} offset:{L_OF}")
    for c in range(3): A(f"ds_read_b128 v[{vCO+4*c}:{vCO+4*c+3}], v{vAD} offset:{L_O+128*c}")
    A("s_waitcnt lgkmcnt(0)")
    for c in range(3): A(f"v_readfirstlane_b32 s{sTMP+c}, v{vfl+c}")
    for c in range(3):
        A(f"s_bitcmp0_b32 s{sM}, {c}\ns_cbranch_scc1 L_kn{c}")
        if a.nopoll < 2: A(f"s_cmp_lg_u32 s{sTMP+c}, s{sT}\ns_cbranch_scc1 L_kn{c}")
        A(f"s_bitset0_b32 s{sM}, {c}")
        def bA(b, buf):
            for t in range(4): A(f"v_perm_b32 v{buf+t}, v{vCO+4*c+b//2}, v{vCO+4*c+b//2}, v{vSEL+2*t+(b&1)}")
        bA(0, vA0)
        for b in range(8):
            if b < 7: bA(b + 1, vA1 if (b & 1) == 0 else vA0)
            else: A("s_nop 1")
            buf = vA0 if (b & 1) == 0 else vA1
            n = 8 * c + b
            A(f"s_waitcnt vmcnt({23-n})")
            A(f"v_mfma_f32_16x16x32_bf16 v[{vACC}:{vACC+3}], v[{buf}:{buf+3}], v[{vD+4*n}:{vD+4*n+3}], v[{vACC}:{vACC+3}]")
        A(f"L_kn{c}:")
    A(f"s_cmp_eq_u32 s{sM}, 0\ns_cbranch_scc1 L_kd")
    spin_tail("L_kl", a.wsl)
    A("L_kd:")
else:
    lds_wait(L_OF, [0, 1, 2], 4, vCO)
    for k in range(3):
        A(f"ds_read_b128 v[{vCO+4*k}:{vCO+4*k+3}], v{vAD} offset:{L_O+16*k}")
    A("s_waitcnt lgkmcnt(0)")
    A("L_fc:")
    diag_gemv(24)
combine(vCO)
if a.dry & 1: A(f"s_cmp_lg_u32 s{sDRY}, 0\ns_cbranch_scc1 L_fcb")
A("s_mov_b32 exec_lo, 0xff\ns_mov_b32 exec_hi, 0xff")
if a.nofin != 1: A(f"buffer_store_dwordx4 v[{vCO}:{vCO+3}], v{vF}, s[{WS}:{WS+3}], s{sOFF} offen{'' if a.nofin == 3 else ' sc1'}")
if a.nf and a.nofin != 1: A(f"s_add_u32 s{sOFF}, s{sOFF}, 8192\nbuffer_store_dwordx4 v[{vCO}:{vCO+3}], v{vF}, s[{WS}:{WS+3}], s{sOFF} offen sc1")
A("s_mov_b64 exec, -1")
A("L_w_fin:")
A(f"ds_write_b32 v{vF+1}, v{vT} offset:{L_PF}")
stamp(7)
A("s_branch L_end")

A("L_k:")
prio(2)
A(f"s_sub_u32 s{sC}, s{sWAVE}, 4")
A(f"v_and_b32 v{vOFF}, 7, v{vL}\nv_mul_u32_u24 v{vOFF}, 384, v{vOFF}\nv_bfe_u32 v8, v{vL}, 3, 1\nv_lshl_add_u32 v{vOFF}, v8, 6, v{vOFF}\nv_lshrrev_b32 v8, 4, v{vL}\nv_lshl_add_u32 v{vOFF}, v8, 4, v{vOFF}")
KA = [152, 156, 160, 164, 16, 20]
if a.kq:
    A(f"v_and_b32 v{vAD}, 3, v{vL}\nv_lshlrev_b32 v{vAD}, 4, v{vAD}\nv_and_b32 v6, 1, v8\nv_lshl_add_u32 v6, v6, 6, v{vAD}\nv_lshl_add_u32 v{vAD}, v8, 6, v{vAD}")
else:
    A(f"v_and_b32 v{vAD}, 1, v{vL}\nv_lshlrev_b32 v{vAD}, 6, v{vAD}\nv_lshl_add_u32 v{vAD}, v8, 4, v{vAD}")
A(f"s_mul_i32 s{sOFF}, s{sHH}, 1572864\ns_mul_i32 s{sTMP}, s{sJ}, 98304\ns_add_u32 s{sOFF}, s{sOFF}, s{sTMP}\ns_mul_i32 s{sTMP}, s{sC}, 24576\ns_add_u32 s{sOFF}, s{sOFF}, s{sTMP}\ns_add_u32 s{sOFF}, s{sOFF}, {3072*384}")
if not a.pads:
    A("s_waitcnt lgkmcnt(0)")
    A(f"s_load_dword s{sT}, s[{sWSP}:{sWSP+1}], s9")
if "K" in a.contig: A(f"v_lshlrev_b32 v{vOFF}, 4, v{vL}")
if "L" in a.contig: A(f"v_and_b32 v{vOFF}, 3, v{vL}\nv_mul_u32_u24 v{vOFF}, 768, v{vOFF}\nv_bfe_u32 v8, v{vL}, 2, 2\nv_lshl_add_u32 v{vOFF}, v8, 6, v{vOFF}\nv_lshrrev_b32 v8, 4, v{vL}\nv_lshl_add_u32 v{vOFF}, v8, 4, v{vOFF}")
if "Q" in a.contig:
    A(f"v_bfe_u32 v{vOFF}, v{vL}, 2, 2\nv_mul_u32_u24 v{vOFF}, 384, v{vOFF}\nv_and_b32 v8, 3, v{vL}\nv_lshl_add_u32 v{vOFF}, v8, 4, v{vOFF}")
    A(f"v_lshrrev_b32 v8, 5, v{vL}\nv_mul_u32_u24 v7, 1536, v8\nv_add_u32 v7, v7, v{vOFF}\nv_bfe_u32 v8, v{vL}, 4, 1\nv_lshl_add_u32 v7, v8, 6, v7")
    A(f"v_lshrrev_b32 v8, 4, v{vL}\nv_lshl_add_u32 v{vOFF}, v8, 6, v{vOFF}")
srd(SR, sK, 50331648)
if a.tlb & 1: A(f"v_mul_u32_u24 v9, 24448, v{vL}\ns_mov_b64 exec, 3\nbuffer_load_dword v10, v9, s[{SR}:{SR+3}], s{sOFF} offen nt\ns_mov_b64 exec, -1")
srd(WS, sWSP, 0x10000000)
if not a.pads: A("s_barrier")
get_T()
if a.kq:
    for r in KA:
        for q in range(4): A(f"v_mov_b32 v{r+q}, 0")
if a.kq or a.near == 2:
    vPA = 5
    if a.kq and a.near == 2:
        A(f"v_bfe_u32 v{vPA}, v{vL}, 2, 3\nv_lshlrev_b32 v{vPA}, 6, v{vPA}\nv_and_b32 v4, 3, v{vL}\nv_lshl_add_u32 v{vPA}, v4, 2, v{vPA}\nv_lshrrev_b32 v4, 5, v{vL}\nv_lshl_add_u32 v{vPA}, v4, 1, v{vPA}\ns_lshl_b32 s{sTMP}, s{sC}, 4")
    elif a.kq:
        A(f"v_bfe_u32 v{vPA}, v{vL}, 2, 3\nv_lshlrev_b32 v{vPA}, 1, v{vPA}\nv_and_b32 v4, 3, v{vL}\nv_lshl_add_u32 v{vPA}, v4, 5, v{vPA}\nv_lshrrev_b32 v4, 5, v{vL}\nv_lshl_add_u32 v{vPA}, v4, 4, v{vPA}\ns_lshl_b32 s{sTMP}, s{sC}, 7")
    else:
        A(f"v_and_b32 v{vPA}, 7, v{vL}\nv_lshlrev_b32 v{vPA}, 6, v{vPA}\nv_lshrrev_b32 v4, 3, v{vL}\nv_lshl_add_u32 v{vPA}, v4, 1, v{vPA}\ns_lshl_b32 s{sTMP}, s{sC}, 4")
    A(f"v_add_u32 v{vPA}, s{sTMP}, v{vPA}")
if WIN: gate_init(sC, 3 * WIN[0], 24)
krest = [A.label("Lkb") for b in range(24)]
def k_load(t):
    if "Q" in a.contig:
        u = t % 3
        A(f"buffer_load_dwordx4 v[{vD+4*t}:{vD+4*t+3}], v{vOFF if u < 2 else 7}, s[{SR}:{SR+3}], s{sOFF} offen offset:{(0, 1536, 256)[u]} nt")
        if t % 3 == 2 and t < 23: A(f"s_add_u32 s{sOFF}, s{sOFF}, 3072")
        return
    if "L" in a.contig:
        A(f"buffer_load_dwordx4 v[{vD+4*t}:{vD+4*t+3}], v{vOFF}, s[{SR}:{SR+3}], s{sOFF} offen offset:{256*(t%3)} nt")
        if t % 3 == 2 and t < 23: A(f"s_add_u32 s{sOFF}, s{sOFF}, 3072")
        return
    if "K" in a.contig:
        A(f"buffer_load_dwordx4 v[{vD+4*t}:{vD+4*t+3}], v{vOFF}, s[{SR}:{SR+3}], s{sOFF} offen nt\ns_add_u32 s{sOFF}, s{sOFF}, 1024"); return
    A(f"buffer_load_dwordx4 v[{vD+4*t}:{vD+4*t+3}], v{vOFF}, s[{SR}:{SR+3}], s{sOFF} offen offset:{128*(t%3)} nt")
    if t % 3 == 2 and t < 23: A(f"s_add_u32 s{sOFF}, s{sOFF}, 3072")
for t in range(24):
    thr(t)
    if WIN:
        if t < WIN[1]: gate(L_PW, 4, 3 * WIN[0], 4 * WIN[1], 24, 28)
        else:
            if a.kboost:
                A(f"ds_read_b128 v[28:31], v24 offset:{L_QF}\ns_waitcnt lgkmcnt(0)\nv_and_b32 v28, v28, v29\nv_and_b32 v28, v28, v30\nv_cmp_ne_u32 vcc, 0, v28\ns_cbranch_vccnz {krest[t]}")
            A(f"s_waitcnt vmcnt({WIN[1]-1})")
        if THX and t >= WIN[1] - THX[1]: thx(WIN[1], THX[1])
    k_load(t)
    if LV and t == LV[0]: A(f"s_lshl_b32 s{sTMP}, s{sC}, 2\nv_mov_b32 v28, s{sTMP}\nds_write_b32 v28, v{vT} offset:{L_VT}")
if a.kboost:
    A("s_branch L_kb_j")
    for t in range(WIN[1], 24):
        if t >= a.kboost: A(f"s_waitcnt vmcnt({a.kboost-1})")
        A(f"{krest[t]}:")
        k_load(t)
    A("L_kb_j:")
if WIN:
    prio(3)
    A(f"s_lshl_b32 s{sTMP}, s{sC}, 2\nv_mov_b32 v8, s{sTMP}")
    for i in range(WIN[1]):
        A(f"s_waitcnt vmcnt({WIN[1]-1-i})")
        credit(L_PK, 8, 9, i + 1)
elif a.g2:
    A(f"s_lshl_b32 s{sTMP}, s{sC}, 2\nv_mov_b32 v8, s{sTMP}\nds_write_b32 v8, v{vT} offset:{L_KI}")
prio(3)
stamp(1)
vQ = 8
vS = 136
lds_wait(L_QF, [0, 1, 2], 4, 24)
stamp(2)
s_ = 24
if a.kq:
    for e in range(2):
        m0 = 0x000f000f << (8 * e); m1 = m0 << 4
        for u, (lo, hi) in enumerate(((m0, m0), (m1, m1), (m0, m1))):
            r = KA[3 * e + u]
            A(f"s_mov_b32 exec_lo, {lo:#x}\ns_mov_b32 exec_hi, {hi:#x}")
            A(f"ds_read_b128 v[{r}:{r+3}], v{vAD if u < 2 else 6} offset:{L_Q + (256 if u == 2 else 0)}")
    A("s_mov_b64 exec, -1")
    for k in range(3): A(f"s_mov_b32 s{84+2*k}, {0x11111111 << (k+1):#x}\ns_mov_b32 s{85+2*k}, {0x11111111 << (k+1):#x}")
    A("s_waitcnt lgkmcnt(0)")
    for t in range(24):
        blk, u = divmod(t, 3); e = blk & 1; be = blk >> 1
        r = KA[3 * e + u]
        A(f"s_waitcnt vmcnt({23-t})")
        c = "0" if t % 6 == 0 else f"v[{vS+4*be}:{vS+4*be+3}]"
        A(f"v_mfma_f32_16x16x32_bf16 v[{vS+4*be}:{vS+4*be+3}], v[{r}:{r+3}], v[{vD+4*t}:{vD+4*t+3}], {c}")
        if t % 6 == 5 and be >= 1:
            pb = be - 1
            A(f"v_mov_b32_dpp v{s_+pb}, v{vS+4*pb} quad_perm:[0,0,0,0] row_mask:0xf bank_mask:0xf")
            for q in range(1, 4): A(f"v_add_f32_dpp v{s_+pb}, v{vS+4*pb+q}, v{s_+pb} quad_perm:[{q},{q},{q},{q}] row_mask:0xf bank_mask:0xf")
            if pb >= 1: A(f"v_cndmask_b32_e64 v{s_}, v{s_}, v{s_+pb}, s[{84+2*(pb-1)}:{85+2*(pb-1)}]")
    stamp(3)
    A("s_nop 7")
    A(f"v_mov_b32_dpp v{s_+3}, v{vS+12} quad_perm:[0,0,0,0] row_mask:0xf bank_mask:0xf")
    for q in range(1, 4): A(f"v_add_f32_dpp v{s_+3}, v{vS+12+q}, v{s_+3} quad_perm:[{q},{q},{q},{q}] row_mask:0xf bank_mask:0xf")
    A(f"v_cndmask_b32_e64 v{s_}, v{s_}, v{s_+3}, s[88:89]")
else:
    for u in range(3):
        A(f"ds_read_b128 v[{vQ+4*u}:{vQ+4*u+3}], v{vAD} offset:{L_Q+128*u}")
    A("s_waitcnt lgkmcnt(0)")
    s_ = 24
    for t in range(24):
        G, u = divmod(t, 3)
        A(f"s_waitcnt vmcnt({23-t})")
        c = "0" if u == 0 else f"v[{vS+4*G}:{vS+4*G+3}]"
        A(f"v_mfma_f32_16x16x32_bf16 v[{vS+4*G}:{vS+4*G+3}], v[{vQ+4*u}:{vQ+4*u+3}], v[{vD+4*t}:{vD+4*t+3}], {c}")
    stamp(3)
    A("s_nop 7")
    for G in range(8):
        d0, d1 = vS + 4 * G, vS + 4 * G + 1
        if G & 1:
            A(f"v_add_f32_dpp v{s_}, v{d0}, v{d1} row_ror:8 row_mask:{1 << (G >> 1):#x} bank_mask:0xc")
        else:
            A(f"v_add_f32_dpp v{s_}, v{d1}, v{d0} row_ror:8 row_mask:{1 << (G >> 1):#x} bank_mask:0x3")
A(f"v_cvt_pk_bf16_f32 v{s_}, v{s_}, v{s_}\nv_lshlrev_b32 v{s_}, 16, v{s_}")
A(f"v_mul_f32 v{s_}, 0x3d93cd3a, v{s_}")
A(f"v_cvt_pk_bf16_f32 v{s_}, v{s_}, v{s_}\nv_lshlrev_b32 v{s_}, 16, v{s_}")
def wave_reduce(op, v):
    for d in ["row_shr:1", "row_shr:2", "row_shr:4", "row_shr:8"]:
        A(f"s_nop 1\n{op}_dpp v{v}, v{v}, v{v} {d} row_mask:0xf bank_mask:0xf")
    A(f"s_nop 1\n{op}_dpp v{v}, v{v}, v{v} row_bcast:15 row_mask:0xa bank_mask:0xf")
    A(f"s_nop 1\n{op}_dpp v{v}, v{v}, v{v} row_bcast:31 row_mask:0xc bank_mask:0xf")
A(f"v_mov_b32 v{s_+1}, v{s_}")
wave_reduce("v_max_f32", s_ + 1)
A(f"s_nop 0\nv_readlane_b32 s{sTMP}, v{s_+1}, 63")
A(f"s_lshl_b32 s{sTMP2}, s{sC}, 3\nv_mov_b32 v{s_+4}, s{sTMP2}\nv_mov_b32 v{s_+2}, s{sTMP}\nv_mov_b32 v{s_+3}, s{sT}")
A(f"ds_write_b64 v{s_+4}, v[{s_+2}:{s_+3}] offset:{L_MX}")
lds_wait(L_MX, [1, 3, 5, 7], 8, s_ + 8)
A(f"v_max_f32 v{s_+8}, v{s_+8}, v{s_+10}\nv_max3_f32 v{s_+8}, v{s_+8}, v{s_+12}, v{s_+14}")
A(f"v_sub_f32 v{s_}, v{s_}, v{s_+8}\nv_mul_f32 v{s_}, 0x3fb8aa3b, v{s_}\nv_exp_f32 v{s_}, v{s_}\ns_nop 0")
A(f"v_cvt_pk_bf16_f32 v{s_+1}, v{s_}, v{s_}")
if a.kq or a.near == 2:
    A(f"ds_write_b16 v{vPA}, v{s_+1} offset:{L_P}")
else:
    A(f"s_lshl_b32 s{sTMP}, s{sC}, 7\nv_lshlrev_b32 v{s_+5}, 1, v{vL}\nv_add_u32 v{s_+5}, s{sTMP}, v{s_+5}")
    A(f"ds_write_b16 v{s_+5}, v{s_+1} offset:{L_P}")
wave_reduce("v_add_f32", s_)
A(f"s_nop 0\nv_readlane_b32 s{sTMP}, v{s_}, 63\ns_nop 1\nv_mov_b32 v{s_+2}, s{sTMP}")
A(f"ds_write_b64 v{s_+4}, v[{s_+2}:{s_+3}] offset:{L_LS}")
stamp(4)
A("s_branch L_end")

A("L_v:")
prio(1)
A(f"s_sub_u32 s{sC}, s{sWAVE}, 8")
data_voff(384 if a.near else 32 * 384)
A(f"s_mul_i32 s{sOFF}, s{sHH}, 1572864\ns_mul_i32 s{sTMP}, s{sJ}, 98304\ns_add_u32 s{sOFF}, s{sOFF}, s{sTMP}\ns_lshl_b32 s{sTMP}, s{sC}, 7\ns_add_u32 s{sOFF}, s{sOFF}, s{sTMP}\ns_add_u32 s{sOFF}, s{sOFF}, {3072*384}")
if "k" in a.contig:
    data_voff(384)
    A(f"s_mul_i32 s{sTMP}, s{sC}, {30720-128}\ns_add_u32 s{sOFF}, s{sOFF}, s{sTMP}")
if "w" in a.contig:
    A(f"v_lshrrev_b32 v{vOFF}, 4, v{vL}\nv_mul_u32_u24 v{vOFF}, 768, v{vOFF}\nv_and_b32 v8, 15, v{vL}\nv_lshl_add_u32 v{vOFF}, v8, 4, v{vOFF}\ns_lshl_b32 s{sTMP}, s{sC}, 7\ns_add_u32 s{sOFF}, s{sOFF}, s{sTMP}")
if "v" in a.contig:
    A(f"v_lshlrev_b32 v{vOFF}, 4, v{vL}\ns_mul_i32 s{sTMP}, s{sC}, {32768-128}\ns_add_u32 s{sOFF}, s{sOFF}, s{sTMP}")
if not a.pads:
    A("s_waitcnt lgkmcnt(0)")
    A(f"s_load_dword s{sT}, s[{sWSP}:{sWSP+1}], s9")
srd(SR, sV, 50331648)
if a.tlb & 2: A(f"v_mul_u32_u24 v9, {255*384}, v{vL}\ns_mov_b64 exec, 3\nbuffer_load_dword v10, v9, s[{SR}:{SR+3}], s{sOFF} offen nt\ns_mov_b64 exec, -1")
srd(WS, sWSP, 0x10000000)
if not a.pads: A("s_barrier")
get_T()
if WIN:
    gate_init(sC, 4 * WIN[1], vCO)
elif a.g2:
    lds_wait(L_KI, [0, 1, 2, 3], 4, vCO)
if WIN:
    make_selectors()
    coef_addr(vAD, 64)
vrest = [A.label("Lvb") for b in range(32)]
def v_load(b):
    if "w" in a.contig or a.near:
        A(f"buffer_load_dwordx4 v[{vD+4*b}:{vD+4*b+3}], v{vOFF}, s[{SR}:{SR+3}], s{sOFF} offen nt\ns_add_u32 s{sOFF}, s{sOFF}, 3072"); return
    if "v" in a.contig:
        A(f"buffer_load_dwordx4 v[{vD+4*b}:{vD+4*b+3}], v{vOFF}, s[{SR}:{SR+3}], s{sOFF} offen nt\ns_add_u32 s{sOFF}, s{sOFF}, 1024"); return
    A(f"buffer_load_dwordx4 v[{vD+4*b}:{vD+4*b+3}], v{vOFF}, s[{SR}:{SR+3}], s{sOFF} offen offset:{384*(b%8)} nt")
    if b % 8 == 7 and b < 31: A(f"s_add_u32 s{sOFF}, s{sOFF}, 3072")
    if a.rank and b == a.vr: A(f"ds_write_b32 v{vCO}, v{vT} offset:{L_VT}")
for b in range(32):
    thr(b)
    if WIN:
        if b < WIN[2]: gate(L_PK, 3, 4 * WIN[1], 3 * WIN[2], vCO, vCO + 4)
        else:
            if a.vboost:
                t = vCO + 4
                if a.vtrig == 0:
                    if THX and THX[4] & 1:
                        lnb = A.label("Lnb"); A(f"s_cmp_lg_u32 s{sTH}, 0\ns_cbranch_scc1 {lnb}")
                    if LV: A(f"ds_read2_b32 v[{t}:{t+1}], v{vCO} offset0:{L_FFLAG//4} offset1:{L_LV//4}\ns_waitcnt lgkmcnt(0)\nv_readfirstlane_b32 s{sTH}, v{t+1}\nv_cmp_ne_u32 vcc, 0, v{t}\ns_cbranch_vccnz {vrest[b]}")
                    else: A(f"ds_read_b32 v{t}, v{vCO} offset:{L_FFLAG}\ns_waitcnt lgkmcnt(0)\nv_cmp_ne_u32 vcc, 0, v{t}\ns_cbranch_vccnz {vrest[b]}")
                    if THX and THX[4] & 1: A(f"{lnb}:")
                elif a.vtrig == 1:
                    A(f"ds_read_b32 v{t}, v{vCO} offset:{L_LS+4}\ns_waitcnt lgkmcnt(0)\nv_cmp_ne_u32 vcc, 0, v{t}\ns_cbranch_vccnz {vrest[b]}")
                elif b == a.vtrig:
                    A(f"s_branch {vrest[b]}")
            if LV: lvwait(WIN[2], LV[3], LV[4])
            else: A(f"s_waitcnt vmcnt({WIN[2]-1})")
        if THX and b >= WIN[2] - THX[2]: thx(WIN[2], THX[2])
    if "k" in a.contig:
        A(f"buffer_load_dwordx4 v[{vD+4*b}:{vD+4*b+3}], v{vOFF}, s[{SR}:{SR+3}], s{sOFF} offen offset:{128*(b%3)} nt")
        if b % 3 == 2: A(f"s_add_u32 s{sOFF}, s{sOFF}, 3072")
        continue
    if a.near or "v" in a.contig:
        A(f"buffer_load_dwordx4 v[{vD+4*b}:{vD+4*b+3}], v{vOFF}, s[{SR}:{SR+3}], s{sOFF} offen nt\ns_add_u32 s{sOFF}, s{sOFF}, {3072 if a.near else 1024}")
        continue
    v_load(b)
if a.vboost:
    A("s_branch L_vb_j")
    for b in range(WIN[2], 32):
        if LV and b >= a.vboost - LV[5]: lvwait(a.vboost, LV[5], LV[6])
        elif b >= a.vboost: A(f"s_waitcnt vmcnt({a.vboost-1})")
        A(f"{vrest[b]}:")
        v_load(b)
    A("L_vb_j:")
prio(3)
stamp(1)
if WIN:
    nv = WIN[2]
    A(f"s_lshl_b32 s{sTMP}, s{sC}, 2\nv_mov_b32 v{vOFF}, s{sTMP}")
    A(f"v_mov_b32 v{vCO+9}, 0\nds_read_b128 v[{vCO}:{vCO+3}], v{vCO+9} offset:{L_LS}\nds_read_b128 v[{vCO+4}:{vCO+7}], v{vCO+9} offset:{L_LS+16}\ns_waitcnt lgkmcnt(0)")
    A(f"v_xor_b32 v{vCO+1}, s{sFL}, v{vCO+1}\nv_xor_b32 v{vCO+3}, s{sFL}, v{vCO+3}\nv_xor_b32 v{vCO+5}, s{sFL}, v{vCO+5}\nv_xor_b32 v{vCO+7}, s{sFL}, v{vCO+7}")
    A(f"v_or3_b32 v{vCO+1}, v{vCO+1}, v{vCO+3}, v{vCO+5}\nv_or_b32 v{vCO+1}, v{vCO+1}, v{vCO+7}\nv_cmp_ne_u32 vcc, 0, v{vCO+1}\ns_cmp_eq_u64 vcc, 0\ns_cbranch_scc1 L_v_fast")
    for i in range(nv):
        A(f"s_waitcnt vmcnt({nv-1-i})")
        credit(L_PV, vOFF, vCO, i + 1)
    lds_wait(L_LS, [1, 3, 5, 7], 8, vCO)
    A(f"s_mov_b32 s{sNEED}, 1\ns_branch L_v_go\nL_v_fast:\ns_mov_b32 s{sNEED}, 0\nL_v_go:")
else:
    make_selectors()
    coef_addr(vAD, 64)
    lds_wait(L_LS, [1, 3, 5, 7], 8, vCO)
for k in range(4):
    A(f"ds_read_b128 v[{vCO+4*k}:{vCO+4*k+3}], v{vAD} offset:{L_P+16*k}")
lds_mode(vA0, vA0 + 1)
A(f"s_waitcnt lgkmcnt(0)\nv_readfirstlane_b32 s{sMODE}, v{vA0+1}")
stamp(2)
if WIN:
    def vhook(b):
        if b >= 32 - nv: credit(L_PV, vOFF, vAD, b - (32 - nv) + 1)
    diag_gemv(32, hook=vhook)
else:
    diag_gemv(32)
publish_gather(OBOX, L_O, L_OF, True)
stamp(5)
A("s_branch L_end")

A("L_aux:")
prio(3)
if a.dbg: A("s_memtime s[84:85]")
if not a.pads: A(f"v_lshlrev_b32 v8, 2, v{vL}\nv_mov_b32 v9, 0\nds_write_b32 v8, v9")
A(f"s_load_dwordx4 s[{sM}:{sM+3}], s[0:1], 80")
if a.nf:
    assert a.fp == 128
    A(f"s_and_b32 s{sTMP}, s{sHH}, 7\ns_lshl_b32 s{sTMP}, s{sTMP}, 2\ns_lshr_b32 s{sTMP2}, s{sHH}, 3\ns_add_u32 s{sTMP}, s{sTMP}, s{sTMP2}\ns_lshl_b32 s{sTMP}, s{sTMP}, 1\n{'s_and_b32' if a.lmap else 's_lshr_b32'} s{sTMP2}, s{sJ}, 1\ns_add_u32 s{sTMP}, s{sTMP}, s{sTMP2}")
    A(f"{'s_lshr_b32' if a.lmap else 's_and_b32'} s{sTMP2}, s{sJ}, 1\ns_xor_b32 s{sTMP2}, s{sTMP2}, 1\ns_lshl_b32 s{sTMP2}, s{sTMP2}, 6\ns_add_u32 s{sRI}, s{sTMP}, s{sTMP2}")
    A(f"s_mul_i32 s{sRB}, s{sP}, 20\ns_add_u32 s{sRB}, s{sRB}, s{sRI}\ns_and_b32 s{sTMP}, s{sRB}, 1\ns_lshr_b32 s{sRB}, s{sRB}, 1\ns_lshl_b32 s{sRB}, s{sRB}, 14\ns_lshl_b32 s{sTMP}, s{sTMP}, 12\ns_add_u32 s{sRB}, s{sRB}, s{sTMP}\ns_add_u32 s{sRB}, s{sRB}, {FBOX}\ns_add_u32 s{sTMP3}, s{sRB}, 8192\nv_mov_b32 v30, 0")
if a.nf == 8:
    A(f"s_mul_i32 s{sTMP}, s{sP}, 20\ns_add_u32 s{sTMP}, s{sTMP}, s{sRI}\ns_lshl_b32 s{sTMP}, s{sTMP}, 14\ns_add_u32 s{sTMP}, s{sTMP}, {FBOX + 20*16384}\ns_add_u32 s{sTMP2}, s{sTMP}, 8192")
if a.nf == 9:
    A(f"s_lshr_b32 s{sTMP}, s2, 4\ns_lshl_b32 s{sTMP}, s{sTMP}, 14\ns_and_b32 s{sTMP2}, s2, 15\ns_lshl_b32 s{sTMP2}, s{sTMP2}, 9\ns_add_u32 s{sTMP}, s{sTMP}, s{sTMP2}\ns_add_u32 s{sTMP}, s{sTMP}, {FBOX + 20*16384}\ns_add_u32 s{sTMP2}, s{sTMP}, 8192")
A("s_waitcnt lgkmcnt(0)")
if a.nf not in (8, 9): srd(WS, sWSP, 0x10000000)
if a.nf == 9:
    sPA, sPB = sM + 4, sM + 5
    if a.nfr:
        A(f"s_load_dword s{sT}, s[{sWSP}:{sWSP+1}], s9")
    elif a.nfo:
        A(f"s_load_dword s{sT}, s[{sWSP}:{sWSP+1}], s9")
        A("s_barrier")
        A(f"s_load_dword s{sPA}, s[{sWSP}:{sWSP+1}], s{sTMP}\ns_load_dword s{sPB}, s[{sWSP}:{sWSP+1}], s{sTMP2}")
    else:
        A(f"s_load_dword s{sPA}, s[{sWSP}:{sWSP+1}], s{sTMP}\ns_load_dword s{sPB}, s[{sWSP}:{sWSP+1}], s{sTMP2}")
        A(f"s_load_dword s{sT}, s[{sWSP}:{sWSP+1}], s9")
        A("s_barrier")
    srd(WS, sWSP, 0x10000000)
    srd(SR2, sM, 2560)
    A(f"s_lshl_b32 s{SR}, s{sXCC}, 10\ns_add_u32 s{SR}, s{SR}, {VBOX}\ns_lshl_b32 s{sTMP2}, s2, 2\nv_mov_b32 v60, s{sTMP2}")
    if a.nfr:
        A(f"s_mov_b32 s{SR+2}, s{sTMP}\ns_add_u32 s{SR+3}, s{sTMP}, 8192")
        A("s_waitcnt lgkmcnt(0)\ns_barrier")
        d = a.nfdl
        while d > 0:
            A(f"s_sleep {min(d, 127)}"); d -= 127
        A(f"s_mov_b32 s{SR+1}, 0")
        if a.nfx: A(f"s_mov_b32 s{SR}, {VBOX}\ns_bitcmp1_b32 s{sXCC}, 0\ns_cbranch_scc0 L_npr")
        if a.nfj >= 0: A(f"s_cmp_lg_u32 s{sJ}, {a.nfj}\ns_cbranch_scc1 L_npr")
        for r in range(a.nfr):
            f1, f2 = (SR + 2, SR + 3) if r % 2 == 0 else (SR + 3, SR + 2)
            A(f"s_load_dword s{sPA}, s[{sWSP}:{sWSP+1}], s{f1}\ns_load_dword s{sPB}, s[{sWSP}:{sWSP+1}], s{f2}")
            if r + 1 < a.nfr: A(f"s_add_u32 s{SR+2}, s{SR+2}, 128\ns_add_u32 s{SR+3}, s{SR+3}, 128")
            A("s_waitcnt lgkmcnt(1)")
            A(f"s_sleep {a.nfs}" if a.nfs > 0 else f"s_nop {-a.nfs}")
            A(f"s_getreg_b32 s{sTMP}, hwreg(HW_REG_IB_STS, 8, 4)\n{'s_add_u32' if r % 2 == 0 else 's_sub_u32'} s{SR+1}, s{SR+1}, s{sTMP}\ns_waitcnt lgkmcnt(0)")
        A("L_npr:")
        A(f"s_cmp_gt_i32 s{SR+1}, 0\ns_cselect_b32 s{sTMP}, 16, 32\ns_cmp_lt_i32 s{SR+1}, 0\ns_cselect_b32 s{SR+1}, 0, s{sTMP}")
    else:
        A(f"s_waitcnt lgkmcnt({2 - a.nfo})")
        A(f"s_sleep {a.nfs}" if a.nfs > 0 else f"s_nop {-a.nfs}")
        A(f"s_getreg_b32 s{sTMP}, hwreg(HW_REG_IB_STS, 8, 4)\ns_cmp_eq_u32 s{sTMP}, {2 - a.nfo}\ns_cselect_b32 s{SR+1}, 16, 0")
def vote_store():
    A(f"s_xor_b32 s{SR+1}, s{SR+1}, s{sT}\nv_mov_b32 v61, s{SR+1}")
    if a.nfx: A(f"s_bitcmp1_b32 s{sXCC}, 0\ns_cbranch_scc0 L_nvs")
    A(f"s_mov_b64 exec, 1\nbuffer_store_dword v61, v60, s[{WS}:{WS+3}], s{SR} offen{' sc1' if a.nfx else ''}\ns_mov_b64 exec, -1")
    if a.nfx: A("L_nvs:")
if a.nf == 1:
    A(f"s_cmp_ge_u32 s{sRI}, 20\ns_cbranch_scc1 L_nc1\ns_mov_b64 exec, 1")
    A(f"buffer_load_dword v10, v30, s[{WS}:{WS+3}], s{sRB} offen sc1\nbuffer_load_dword v11, v30, s[{WS}:{WS+3}], s{sTMP3} offen sc1\ns_mov_b64 exec, -1\nL_nc1:")
if a.nf == 8:
    sPA, sPB = sM + 4, sM + 5
    A(f"s_cmp_ge_u32 s{sRI}, 20\ns_cbranch_scc1 L_nc1")
    A(f"s_load_dword s{sPA}, s[{sWSP}:{sWSP+1}], s{sTMP}\ns_load_dword s{sPB}, s[{sWSP}:{sWSP+1}], s{sTMP2}")
    A(f"s_load_dword s{sT}, s[{sWSP}:{sWSP+1}], s9")
    if a.nfd:
        A(f"s_mov_b32 s{sST+14}, 0")
        for k, inc in ((3, 1), (2, 1 << 12), (1, 1 << 22)):
            A(f"L_nd{k}:\ns_add_u32 s{sST+14}, s{sST+14}, {inc}\ns_getreg_b32 s{sTMP}, hwreg(HW_REG_IB_STS, 8, 4)\ns_cmp_ge_u32 s{sTMP}, {k}\ns_cbranch_scc1 L_nd{k}")
        A(f"s_bfe_u32 s{sTMP}, s{sST+14}, {12 | (10 << 16)}\ns_cmp_gt_u32 s{sTMP}, {a.nfd}\ns_cselect_b32 s{sRB}, s{sRB}, s{sTMP3}")
    else:
        A("s_waitcnt lgkmcnt(2)")
        A(f"s_sleep {a.nfs}" if a.nfs > 0 else f"s_nop {-a.nfs}")
        A(f"s_getreg_b32 s{sTMP}, hwreg(HW_REG_IB_STS, 8, 4)\ns_cmp_eq_u32 s{sTMP}, 2\ns_cselect_b32 s{sRB}, s{sRB}, s{sTMP3}")
        if a.stamps: A(f"s_sub_u32 s{sST+14}, 3, s{sTMP}")
    A("s_branch L_nc2\nL_nc1:")
    A(f"s_load_dword s{sT}, s[{sWSP}:{sWSP+1}], s9")
    A("L_nc2:")
    srd(WS, sWSP, 0x10000000)
    srd(SR2, sM, 2560)
    A("s_barrier")
elif a.nf != 9 and not a.pads: A(f"s_load_dword s{sT}, s[{sWSP}:{sWSP+1}], s9")
if a.nf in (8, 9): pass
elif a.nf == 7:
    sPA, sPB = sM + 4, sM + 5
    A(f"s_cmp_ge_u32 s{sRI}, 20\ns_cbranch_scc1 L_nc1")
    A(f"s_mul_i32 s{sTMP}, s{sP}, 20\ns_add_u32 s{sTMP}, s{sTMP}, s{sRI}\ns_lshl_b32 s{sTMP}, s{sTMP}, 14\ns_add_u32 s{sTMP}, s{sTMP}, {FBOX + 20*16384}\ns_add_u32 s{sTMP2}, s{sTMP}, 8192")
    A(f"s_load_dword s{sPA}, s[{sWSP}:{sWSP+1}], s{sTMP}\ns_load_dword s{sPB}, s[{sWSP}:{sWSP+1}], s{sTMP2}")
    A("s_waitcnt lgkmcnt(1)")
    A(f"s_sleep {a.nfs}" if a.nfs else "s_nop 15\ns_nop 15")
    A(f"s_getreg_b32 s{sTMP}, hwreg(HW_REG_IB_STS, 8, 4)\ns_cmp_lg_u32 s{sTMP}, 0\ns_cselect_b32 s{sRB}, s{sRB}, s{sTMP3}")
    if a.stamps: A(f"s_sub_u32 s{sST+14}, 2, s{sTMP}")
    A("L_nc1:")
    srd(SR2, sM, 2560)
    A("s_barrier")
elif a.nf == 6:
    SENT = 0x5a17c3e9
    sPA, sPB = sM + 4, sM + 5
    A(f"s_cmp_ge_u32 s{sRI}, 20\ns_cbranch_scc1 L_nc1")
    A(f"s_mul_i32 s{sTMP}, s{sP}, 20\ns_add_u32 s{sTMP}, s{sTMP}, s{sRI}\ns_lshl_b32 s{sTMP}, s{sTMP}, 14\ns_add_u32 s{sTMP}, s{sTMP}, {FBOX + 20*16384}\ns_add_u32 s{sTMP2}, s{sTMP}, 8192")
    A(f"s_mov_b32 s{sPA}, {SENT:#x}\ns_mov_b32 s{sPB}, {SENT:#x}")
    A(f"s_load_dword s{sPA}, s[{sWSP}:{sWSP+1}], s{sTMP}\ns_load_dword s{sPB}, s[{sWSP}:{sWSP+1}], s{sTMP2}\nL_nc1:")
    srd(SR2, sM, 2560)
    A(f"s_cmp_ge_u32 s{sRI}, 20\ns_cbranch_scc1 L_prA")
    A(f"L_pr:\ns_cmp_lg_u32 s{sPA}, {SENT:#x}\ns_cbranch_scc1 L_prA\ns_cmp_lg_u32 s{sPB}, {SENT:#x}\ns_cbranch_scc1 L_prB")
    A(f"s_getreg_b32 s{sTMP}, hwreg(HW_REG_IB_STS, 8, 4)\ns_cmp_lg_u32 s{sTMP}, 0\ns_cbranch_scc1 L_pr")
    A(f"L_prB:\ns_mov_b32 s{sRB}, s{sTMP3}")
    if a.stamps: A(f"s_mov_b32 s{sST+14}, 1")
    A("L_prA:")
    if a.stamps: A(f"s_add_u32 s{sST+14}, s{sST+14}, 1")
    A("s_barrier")
else:
    srd(SR2, sM, 2560)
    if not a.pads: A("s_barrier" if a.nf == 10 or a.eb else "s_waitcnt lgkmcnt(0)\ns_barrier")
get_T()
if a.nf == 9 and a.nfv == 0: vote_store()
if a.nf == 1:
    A(f"s_waitcnt vmcnt(1)\ns_memtime s[{sM+4}:{sM+5}]\ns_waitcnt vmcnt(0)\ns_memtime s[{sM+6}:{sM+7}]\ns_waitcnt lgkmcnt(0)")
    A(f"s_sub_u32 s{sM+4}, s{sM+6}, s{sM+4}\ns_cmp_gt_u32 s{sM+4}, {a.nft}\ns_cselect_b32 s{sRB}, s{sRB}, s{sTMP3}")
    if a.stamps: A(f"s_add_u32 s{sST+14}, s{sM+4}, 1\ns_mov_b32 s{sST+15}, 0")
elif a.nf == 3:
    A(f"s_mov_b32 s{sRB}, s{sTMP3}")
if a.lat:
    A(f"v_lshlrev_b32 v37, 4, v{vL}")
    A(f"s_lshl_b32 s{sOFF}, s2, 10\ns_add_u32 s{sOFF}, s{sOFF}, 0x200000")
    A(f"s_cmp_eq_u32 s{sWAVE}, 11\ns_cbranch_scc1 L_lat2")
    for k in range(4):
        A(f"s_memrealtime s[{sST+4*k}:{sST+4*k+1}]\ns_waitcnt lgkmcnt(0)")
        A(f"buffer_load_dwordx4 v[40:43], v37, s[{WS}:{WS+3}], s{sOFF} offen sc1\ns_waitcnt vmcnt(0)")
        A(f"s_memrealtime s[{sST+4*k+2}:{sST+4*k+3}]\ns_waitcnt lgkmcnt(0)")
        A("s_sleep 40")
    A("s_branch L_end")
    A("L_lat2:")
    A(f"s_add_u32 s{sOFF}, s{sOFF}, 0x100000")
    A(f"buffer_load_dwordx4 v[40:43], v37, s[{WS}:{WS+3}], s{sOFF} offen {'nt' if a.lat == 1 else 'sc1'}\ns_waitcnt vmcnt(0)")
    for k in range(4):
        A(f"s_memrealtime s[{sST+4*k}:{sST+4*k+1}]\ns_waitcnt lgkmcnt(0)")
        A(f"buffer_load_dwordx4 v[40:43], v37, s[{WS}:{WS+3}], s{sOFF} offen {'nt' if a.lat == 1 else 'sc1'}\ns_waitcnt vmcnt(0)")
        A(f"s_memrealtime s[{sST+4*k+2}:{sST+4*k+3}]\ns_waitcnt lgkmcnt(0)")
        A("s_sleep 40")
    A("s_branch L_end")
if a.rank:
    A(f"s_lshl_b32 s{sNEED}, s{sJ}, 7\ns_add_u32 s{sNEED}, s{sNEED}, {RBOX}\nv_mov_b32 v30, 0\nbuffer_load_dword v60, v30, s[{WS}:{WS+3}], s{sNEED} offen sc1 nt")
if a.tlb & 4:
    srd(SR, sWO, 6144 * 1280)
    A(f"s_mul_i32 s{sTMP}, s{sHH}, {192*1280}\nv_mul_u32_u24 v9, {191*1280+1024}, v{vL}\ns_mov_b64 exec, 3\nbuffer_load_dword v70, v9, s[{SR}:{SR+3}], s{sTMP} offen nt\ns_mov_b64 exec, -1")
if a.enc >= 20:
    A(f"s_cmp_lg_u32 s2, 0\ns_cbranch_scc1 L_e20\nv_mov_b32 v60, s{sST}\nv_mov_b32 v61, 0\ns_mov_b32 s{sTMP}, {RBOX}\ns_mov_b64 exec, 1\nbuffer_store_dword v60, v61, s[{WS}:{WS+3}], s{sTMP} offen sc1\ns_mov_b64 exec, -1\nL_e20:")
if LV:
    A(f"s_bfe_u32 s{sNEED}, s2, {5 | (1 << 16)}\ns_lshl_b32 s{sTMP}, s{sJ}, 1\ns_add_u32 s{sNEED}, s{sNEED}, s{sTMP}\ns_lshl_b32 s{sNEED}, s{sNEED}, 7\ns_add_u32 s{sNEED}, s{sNEED}, {RBOX}\nv_mov_b32 v30, 0")
    A(f"s_mov_b64 exec, 1\nbuffer_load_dword v60, v30, s[{WS}:{WS+3}], s{sNEED} offen sc1 nt\ns_mov_b64 exec, -1")
    lds_wait(L_VT, [0, 1, 2, 3], 4, 8)
    A(f"v_mov_b32 v61, 1\ns_mov_b64 exec, 1\nbuffer_atomic_add v61, v30, s[{WS}:{WS+3}], s{sNEED} offen sc0 sc1\ns_mov_b64 exec, -1\ns_waitcnt vmcnt(0)")
    A(f"v_sub_u32 v61, v61, v60\ns_nop 0\nv_readfirstlane_b32 s{sTMP}, v61")
    A(f"s_cmp_ge_u32 s{sTMP}, {LV[2]}\ns_cselect_b32 s{sTMP2}, 2, 0\ns_cmp_lt_u32 s{sTMP}, {LV[1]}\ns_cselect_b32 s{sTMP2}, 1, s{sTMP2}\ns_cmp_gt_u32 s{sTMP}, 31\ns_cselect_b32 s{sTMP2}, 0, s{sTMP2}")
    A(f"v_mov_b32 v61, s{sTMP2}\nds_write_b32 v30, v61 offset:{L_LV}")
if a.enc == 11: lds_wait(L_QF, [0, 1, 2], 4, 8)
stamp(1)
lds_wait(L_LS, [1, 3, 5, 7], 8, 8)
A(f"v_mov_b32 v30, 0\nds_read_b128 v[20:23], v30 offset:{L_MX}\nds_read_b128 v[24:27], v30 offset:{L_MX+16}\nds_read_b32 v31, v30 offset:{L_MODE}\ns_waitcnt lgkmcnt(0)\nv_readfirstlane_b32 s{sMODE}, v31")
A("v_max_f32 v32, v20, v22\nv_max3_f32 v32, v32, v24, v26")
A("v_add_f32 v33, v8, v10\nv_add_f32 v34, v12, v14\nv_add_f32 v33, v33, v34\nv_mov_b32 v34, 0\nv_mov_b32 v35, 0")
for k in range(4):
    A(f"v_perm_b32 v{32+k}, v{32+k}, v{vT}, s{sSEL+k}")
A(f"s_lshl_b32 s{sOFF}, s{sH}, 7\ns_add_u32 s{sOFF}, s{sOFF}, {SBOX}\ns_lshl_b32 s{sTMP}, s{sJ}, 4\ns_add_u32 s{sTMP}, s{sTMP}, s{sOFF}")
A("s_mov_b64 exec, 1")
A(f"s_cmp_lg_u32 s{sMODE}, 0\ns_cbranch_scc1 L_ux1")
A(f"buffer_store_dwordx4 v[32:35], v30, s[{WS}:{WS+3}], s{sTMP} offen\ns_branch L_ux2\nL_ux1:")
A(f"buffer_store_dwordx4 v[32:35], v30, s[{WS}:{WS+3}], s{sTMP} offen sc1\nL_ux2:")
A("s_mov_b64 exec, -1")
if a.nf == 9 and a.nfv == 1: vote_store()
stamp(2)
A(f"v_and_b32 v36, 3, v{vL}\nv_lshlrev_b32 v37, 4, v36")
poll(40, 37, sOFF)
stamp(3)
A("v_and_b32 v40, 0xffffff00, v40\ns_nop 1")
A("v_max_f32_dpp v44, v40, v40 quad_perm:[1,0,3,2] row_mask:0xf bank_mask:0xf\ns_nop 1")
A("v_max_f32_dpp v44, v44, v44 quad_perm:[2,3,0,1] row_mask:0xf bank_mask:0xf")
A("v_sub_f32 v40, v40, v44\nv_mul_f32 v40, 0x3fb8aa3b, v40\nv_exp_f32 v40, v40\ns_nop 0")
A("v_mul_f32 v41, v41, v40\ns_nop 1")
A("v_add_f32_dpp v44, v41, v41 quad_perm:[1,0,3,2] row_mask:0xf bank_mask:0xf\ns_nop 1")
A("v_add_f32_dpp v44, v44, v44 quad_perm:[2,3,0,1] row_mask:0xf bank_mask:0xf")
A("v_rcp_f32 v44, v44\ns_nop 0\nv_mul_f32 v40, v40, v44")
A("v_lshlrev_b32 v36, 2, v36")
A("s_mov_b64 exec, 15")
A(f"ds_write_b32 v36, v40 offset:{L_FF}")
A(f"ds_write_b32 v30, v{vT} offset:{L_FFLAG}")
A("s_mov_b64 exec, -1")
if a.dirty:
    A(f"v_lshlrev_b32 v37, 4, v{vL}\ns_lshl_b32 s{sTMP}, s2, 14\ns_add_u32 s{sTMP}, s{sTMP}, 0x1000000")
    for k in range(a.dirty):
        A(f"buffer_store_dwordx4 v[40:43], v37, s[{WS}:{WS+3}], s{sTMP} offen\ns_add_u32 s{sTMP}, s{sTMP}, 1024")
if a.rank:
    lds_wait(L_VT, [0], 1, 8)
    A(f"v_mov_b32 v61, 1\ns_mov_b64 exec, 1\nbuffer_atomic_add v61, v30, s[{WS}:{WS+3}], s{sNEED} offen sc0 sc1\ns_mov_b64 exec, -1\ns_waitcnt vmcnt(0)")
    A(f"v_sub_u32 v61, v61, v60\ns_nop 0\nv_readfirstlane_b32 s{sTMP}, v61\ns_cmp_lt_u32 s{sTMP}, {a.rank}\ns_cbranch_scc1 L_rk")
    if a.stamps: A(f"s_mov_b32 s{sST+14}, s{sTMP}\ns_mov_b32 s{sST+15}, 0")
    if a.rop: lds_wait(L_VT, [1, 2, 3], 4, 8)
    A(f"ds_write_b32 v30, v{vT} offset:{L_OF+12}")
    A("L_rk:")
if a.fp:
    gp = a.fp // 16; lg = gp.bit_length() - 1; nx = 256 // a.fp; R = 10 * nx; nl = a.fp // 32
    if a.nf:
        A(f"s_mov_b32 s{sCNT}, s{sRI}\ns_cmp_ge_u32 s{sCNT}, {R}\ns_cbranch_scc1 L_end")
    else:
        A(f"s_and_b32 s{sTMP}, s{sHH}, 7\ns_lshl_b32 s{sTMP}, s{sTMP}, 2\ns_lshr_b32 s{sTMP2}, s{sHH}, 3\ns_add_u32 s{sTMP}, s{sTMP}, s{sTMP2}\ns_lshl_b32 s{sTMP}, s{sTMP}, 1\n{'s_and_b32' if a.lmap else 's_lshr_b32'} s{sTMP2}, s{sJ}, 1\ns_add_u32 s{sTMP}, s{sTMP}, s{sTMP2}")
        A(f"{'s_lshr_b32' if a.lmap else 's_and_b32'} s{sTMP2}, s{sJ}, 1\ns_xor_b32 s{sTMP2}, s{sTMP2}, 1\ns_lshl_b32 s{sTMP2}, s{sTMP2}, 6\ns_add_u32 s{sCNT}, s{sTMP}, s{sTMP2}\ns_cmp_ge_u32 s{sCNT}, {R}\ns_cbranch_scc1 L_end")
    A(f"s_mul_i32 s{sOFF}, s{sP}, {R}\ns_add_u32 s{sOFF}, s{sOFF}, s{sCNT}\ns_mul_i32 s{sTMP2}, s{sOFF}, {gp*8}\ns_mul_i32 s{sOFF}, s{sOFF}, {32*a.fp}\ns_add_u32 s{sOFF}, s{sOFF}, {FBOX}")
    if a.nf == 10: A(f"s_lshl_b32 s{SR}, s{sXCC}, 10\ns_add_u32 s{SR}, s{SR}, {VBOX}")
    if a.nf in (9, 10):
        A(f"v_lshlrev_b32 v37, 4, v{vL}\nbuffer_load_dwordx4 v[60:63], v37, s[{WS}:{WS+3}], s{SR} offen sc1{'' if a.nfx else ' nt'}\ns_waitcnt vmcnt(0)")
        A(f"s_mov_b32 s{sTMP}, 0\ns_mov_b32 s{sTMP3}, 0\ns_xor_b32 s{SR+1}, s{sT}, 16")
        for k in range(4):
            if a.nfx:
                A(f"v_xor_b32 v{60+k}, s{sT}, v{60+k}\nv_and_b32 v{60+k}, -4, v{60+k}")
                for c, d in ((0, sTMP), (20, sTMP), (16, sTMP3), (4, sTMP3)):
                    A(f"v_cmp_eq_u32 vcc, {c}, v{60+k}\ns_bcnt1_i32_b64 s{SR+2}, vcc\ns_add_u32 s{d}, s{d}, s{SR+2}")
            else:
                A(f"v_cmp_eq_u32 vcc, s{sT}, v{60+k}\ns_bcnt1_i32_b64 s{SR+2}, vcc\ns_add_u32 s{sTMP}, s{sTMP}, s{SR+2}")
                A(f"v_cmp_eq_u32 vcc, s{SR+1}, v{60+k}\ns_bcnt1_i32_b64 s{SR+2}, vcc\ns_add_u32 s{sTMP3}, s{sTMP3}, s{SR+2}")
        if a.stamps: A(f"s_add_u32 s{sST+14}, s{sTMP}, s{sTMP3}\ns_lshl_b32 s{sST+14}, s{sST+14}, 16\ns_add_u32 s{sST+14}, s{sST+14}, s{sTMP3}")
        if a.dbgv == 2:
            A(f"s_max_u32 s{SR+2}, s{sTMP}, s{sTMP3}\ns_min_u32 s{SR+3}, s{sTMP}, s{sTMP3}\ns_lshl_b32 s{SR+3}, s{SR+3}, 1\ns_add_u32 s{SR+3}, s{SR+3}, 6\ns_cmp_gt_u32 s{SR+2}, s{SR+3}\ns_cbranch_scc1 L_dv")
            for k in range(6): A("s_sleep 127")
            A("L_dv:")
        if a.dbgv >= 10:
            A(f"s_max_u32 s{SR+2}, s{sTMP}, s{sTMP3}\ns_min_u32 s{SR+3}, s{sTMP}, s{sTMP3}\ns_add_u32 s{SR+3}, s{SR+3}, {a.dbgv - 10}\ns_cmp_ge_u32 s{SR+2}, s{SR+3}\ns_cbranch_scc1 L_dv")
            for k in range(6): A("s_sleep 127")
            A("L_dv:")
        if a.dbgv == 1:
            A(f"s_lshl_b32 s{SR+2}, s{sTMP}, 8\ns_add_u32 s{SR+2}, s{SR+2}, s{sTMP3}\nv_mov_b32 v60, s{SR+2}\ns_lshl_b32 s{SR+2}, s{sXCC}, 2\nv_mov_b32 v61, s{SR+2}")
            srd(SR, sM + 2, 256)
            A(f"s_mov_b64 exec, 1\nbuffer_store_dword v60, v61, s[{SR}:{SR+3}], 0 offen sc1\ns_mov_b64 exec, -1")
        if not a.nfr and a.nf == 9: A(f"s_lshl_b32 s{sTMP3}, s{sTMP3}, 1")
        A(f"s_cmp_gt_u32 s{sTMP3}, s{sTMP}\ns_cselect_b32 s{sTMP}, 0, 8192\ns_add_u32 s{sRB}, s{sRB}, s{sTMP}")
    if a.nf: A(f"s_mov_b32 s{sOFF}, s{sRB}")
    A(f"v_lshlrev_b32 v37, 4, v{vL}\nv_lshlrev_b32 v38, 3, v{vL}")
    lds_wait(L_PF, [0, 1, 2], 4, 8)
    stamp(4)
    if a.nofin: A("s_branch L_end")
    if a.nf == 5:
        A(f"s_add_u32 s{sTMP3}, s{sOFF}, 8192")
        for cp in range(2):
            for i in range(nl):
                A(f"buffer_load_dwordx4 v[{80+16*cp+4*i}:{83+16*cp+4*i}], v37, s[{WS}:{WS+3}], s{sTMP3 if cp else sOFF} offen offset:{1024*i} sc1{FN}")
        for cp in range(2):
            for i in range(nl):
                r = 80 + 16 * cp + 4 * i
                if cp == 0:
                    if i == 0: A(f"s_waitcnt vmcnt({nl})")
                else: A(f"s_waitcnt vmcnt({nl-1-i})")
                A(f"v_perm_b32 v44, v{r+1}, v{r}, s{sSELA}\nv_perm_b32 v45, v{r+3}, v{r+2}, s{sSELB}\nv_or_b32 v44, v44, v45\nv_xor_b32 v44, s{sT}, v44")
                A(f"v_or_b32 v46, v46, v44" if i else "v_mov_b32 v46, v44")
                for k in range(4):
                    A(f"v_add_f32 v{40+k}, v{40+k}, v{r+k}" if i else f"v_mov_b32 v{40+k}, v{r+k}")
                if cp == 0 and i == a.nfi:
                    A(f"s_getreg_b32 s{sTMP}, hwreg(HW_REG_IB_STS, 0, 4)")
                    if a.stamps: A(f"s_add_u32 s{sST+14}, s{sTMP}, 1\ns_mov_b32 s{sST+15}, 0")
            A("v_cmp_lt_u32 vcc, 7, v46\ns_cmp_eq_u64 vcc, 0\ns_cbranch_scc1 L_fpd")
        A(f"s_cmp_eq_u32 s{sTMP}, {nl}\ns_cselect_b32 s{sOFF}, s{sOFF}, s{sTMP3}")
    if a.fdepth > 1:
        D = a.fdepth
        def fissue(k):
            for i in range(nl):
                A(f"buffer_load_dwordx4 v[{80+16*k+4*i}:{83+16*k+4*i}], v37, s[{WS}:{WS+3}], s{sOFF} offen offset:{1024*i} sc1{FN}")
        for k in range(D - 1):
            fissue(k)
            A(f"s_sleep {a.fgap}")
        A("L_fq:")
        for k in range(D):
            fissue((k + D - 1) % D)
            for i in range(nl):
                r = 80 + 16 * k + 4 * i
                A(f"s_waitcnt vmcnt({nl*(D-1)+nl-1-i})")
                A(f"v_perm_b32 v44, v{r+1}, v{r}, s{sSELA}\nv_perm_b32 v45, v{r+3}, v{r+2}, s{sSELB}\nv_or_b32 v44, v44, v45\nv_xor_b32 v44, s{sT}, v44")
                A(f"v_or_b32 v46, v46, v44" if i else "v_mov_b32 v46, v44")
                for q in range(4):
                    A(f"v_add_f32 v{40+q}, v{40+q}, v{r+q}" if i else f"v_mov_b32 v{40+q}, v{r+q}")
            A("v_cmp_lt_u32 vcc, 7, v46\ns_cmp_eq_u64 vcc, 0\ns_cbranch_scc1 L_fpd")
        spin_tail("L_fq", 0)
    if a.fm:
        D = a.fm; MK = 84; E = 92
        def mk(i): return f"s[{MK+2*i}:{MK+2*i+1}]"
        def missue(k):
            for i in range(nl):
                A(f"s_cmp_eq_u64 {mk(i)}, 0\ns_cselect_b64 exec, 1, {mk(i)}")
                A(f"buffer_load_dwordx4 v[{80+16*k+4*i}:{83+16*k+4*i}], v37, s[{WS}:{WS+3}], s{sOFF} offen offset:{1024*i} sc1{FN}")
            A("s_mov_b64 exec, -1")
        def mcheck(k, infl):
            for i in range(nl):
                r = 80 + 16 * k + 4 * i
                sk = A.label("Lms")
                A(f"s_cmp_eq_u64 {mk(i)}, 0\ns_cbranch_scc1 {sk}")
                A(f"s_waitcnt vmcnt({nl*infl+nl-1-i})")
                A(f"v_perm_b32 v44, v{r+1}, v{r}, s{sSELA}\nv_perm_b32 v45, v{r+3}, v{r+2}, s{sSELB}\nv_or_b32 v44, v44, v45\nv_xor_b32 v44, s{sT}, v44")
                A(f"v_cmp_ge_u32 vcc, 7, v44\ns_and_b64 exec, vcc, {mk(i)}\ns_andn2_b64 {mk(i)}, {mk(i)}, exec")
                for q in range(4): A(f"v_mov_b32 v{64+4*i+q}, v{r+q}")
                A(f"s_mov_b64 exec, -1\n{sk}:")
            A(f"s_or_b64 s[{E}:{E+1}], {mk(0)}, {mk(1)}\ns_or_b64 vcc, {mk(2)}, {mk(3)}\ns_or_b64 s[{E}:{E+1}], s[{E}:{E+1}], vcc\ns_cbranch_scc0 L_fms")
        for i in range(nl): A(f"s_mov_b64 {mk(i)}, -1")
        missue(D - 1)
        mcheck(D - 1, 0)
        for k in range(D - 1):
            missue(k)
            if a.fgap: A(f"s_sleep {a.fgap}")
        A("L_fq:")
        for k in range(D):
            missue((k + D - 1) % D)
            mcheck(k, D - 1)
        spin_tail("L_fq", 0)
        A("L_fms:")
        for i in range(1, nl):
            for q in range(4): A(f"v_add_f32 v{40+q}, v{(64 if i == 1 else 40)+q}, v{64+4*i+q}")
        A("s_branch L_fpd")
    A("L_fp:")
    for i in range(nl):
        A(f"buffer_load_dwordx4 v[{80+4*i}:{83+4*i}], v37, s[{WS}:{WS+3}], s{sOFF} offen offset:{1024*i} sc1{FN}")
    for i in range(nl):
        r = 80 + 4 * i
        A(f"s_waitcnt vmcnt({nl-1-i})")
        A(f"v_perm_b32 v44, v{r+1}, v{r}, s{sSELA}\nv_perm_b32 v45, v{r+3}, v{r+2}, s{sSELB}\nv_or_b32 v44, v44, v45\nv_xor_b32 v44, s{sT}, v44")
        A(f"v_or_b32 v46, v46, v44" if i else "v_mov_b32 v46, v44")
        for k in range(4):
            A(f"v_add_f32 v{40+k}, v{40+k}, v{r+k}" if i else f"v_mov_b32 v{40+k}, v{r+k}")
    A("v_cmp_lt_u32 vcc, 7, v46\ns_cmp_eq_u64 vcc, 0\ns_cbranch_scc1 L_fpd")
    spin_tail("L_fp", a.fsl)
    A("L_fpd:")
    stamp(5)
    d = gp
    while d < 16:
        for k in range(4):
            A(f"v_add_f32_dpp v{40+k}, v{40+k}, v{40+k} row_ror:{d} row_mask:0xf bank_mask:0xf")
        if d * 2 < 16: A("s_nop 0")
        d *= 2
    for op in ("v_permlane16_swap_b32", "v_permlane32_swap_b32"):
        for k in range(4): A(f"v_mov_b32 v{44+k}, v{40+k}")
        A("s_nop 1")
        for k in range(4): A(f"{op} v{40+k}, v{44+k}")
        A("s_nop 1")
        for k in range(4): A(f"v_add_f32 v{40+k}, v{40+k}, v{44+k}")
    A("v_cvt_pk_bf16_f32 v44, v40, v41\nv_cvt_pk_bf16_f32 v45, v42, v43")
    A(f"s_mov_b64 exec, {(1 << gp) - 1}")
    A(f"buffer_store_dwordx2 v[44:45], v38, s[{SR2}:{SR2+3}], s{sTMP2} offen")
    A(f"s_cmp_lg_u32 s{sCNT}, 0\ns_cbranch_scc1 L_aux2")
    A("s_mov_b64 exec, 1")
    A(f"buffer_store_dword v{vT}, v30, s[{WS}:{WS+3}], s9 offen")
    A("L_aux2:")
    A("s_mov_b64 exec, -1")
    stamp(6)
    if a.enc >= 20:
        A(f"s_cmp_lg_u32 s{sXCC}, {a.enc-20}\ns_cbranch_scc1 L_end")
        A(f"s_mov_b32 s{sTMP}, {RBOX}\nbuffer_load_dword v60, v30, s[{WS}:{WS+3}], s{sTMP} offen sc1\ns_waitcnt vmcnt(0) lgkmcnt(0)\nv_readfirstlane_b32 s{sTMP2}, v60")
        A(f"s_sub_u32 s{sTMP}, s{sST}, s{sTMP2}\ns_add_u32 s{sTMP}, s{sTMP}, 100\ns_max_i32 s{sTMP}, s{sTMP}, 0\ns_min_i32 s{sTMP}, s{sTMP}, 1000\ns_lshl_b32 s{sTMP}, s{sTMP}, 3\ns_add_u32 s{sTMP}, s{sTMP}, s{sST+12}")
        A(f"L_enc:\ns_sleep 2\ns_memrealtime s[{SR}:{SR+1}]\ns_waitcnt lgkmcnt(0)\ns_sub_u32 s{sTMP2}, s{sTMP}, s{SR}\ns_cmp_gt_i32 s{sTMP2}, 0\ns_cbranch_scc1 L_enc")
    elif a.enc:
        A(f"s_waitcnt lgkmcnt(0)\ns_sub_u32 s{sTMP}, s{sST+2*(a.enc%10)}, s{sST}\ns_lshl_b32 s{sTMP}, s{sTMP}, 2\ns_add_u32 s{sTMP}, s{sTMP}, s{sST+12}")
        A(f"L_enc:\ns_sleep 2\ns_memrealtime s[{SR}:{SR+1}]\ns_waitcnt lgkmcnt(0)\ns_sub_u32 s{sTMP2}, s{sTMP}, s{SR}\ns_cmp_gt_i32 s{sTMP2}, 0\ns_cbranch_scc1 L_enc")
else:
    A(f"s_and_b32 s{sTMP}, s{sJ}, 1\ns_lshl_b32 s{sTMP}, s{sTMP}, 3\ns_add_u32 s{sTMP}, s{sTMP}, s{sHH}\ns_cmp_ge_u32 s{sTMP}, 24\ns_cbranch_scc1 L_end")
    A(f"s_lshl_b32 s{sTMP}, s{sP}, 2\ns_add_u32 s{sTMP}, s{sTMP}, s{sJ}\ns_mul_i32 s{sOFF}, s{sTMP}, 24\ns_add_u32 s{sOFF}, s{sOFF}, s{sHH}")
    A(f"s_lshl_b32 s{sOFF}, s{sOFF}, 10\ns_add_u32 s{sOFF}, s{sOFF}, {FBOX}")
    A(f"s_mul_i32 s{sTMP}, s{sJ}, 5\ns_add_u32 s{sTMP}, s{sTMP}, 1\ns_lshr_b32 s{sTMP}, s{sTMP}, 1\ns_lshl_b32 s{sTMP2}, s{sTMP}, 7")
    A(f"s_mul_i32 s{sTMP}, s{sP}, 1280\ns_add_u32 s{sTMP2}, s{sTMP2}, s{sTMP}\ns_lshl_b32 s{sTMP}, s{sHH}, 4\ns_add_u32 s{sTMP2}, s{sTMP2}, s{sTMP}")
    A(f"v_lshlrev_b32 v37, 4, v{vL}\nv_lshrrev_b32 v38, 5, v{vL}\nv_lshlrev_b32 v38, 3, v38")
    lds_wait(L_PF, [0, 1, 2], 4, 8)
    stamp(4)
    if a.nofin: A("s_branch L_end")
    if a.fmask:
        D = a.fdepth
        mk = sM + 4
        sets = [80 + 4 * k for k in range(D)]
        A(f"s_mov_b64 s[{mk}:{mk+1}], -1")
        for k in range(D):
            for q in range(4): A(f"v_mov_b32 v{sets[k]+q}, 0")
        A(f"v_not_b32 v{sets[0]}, v{vT}")
        for k in range(1, D): A(f"v_mov_b32 v{sets[k]}, v{sets[0]}")
        def issue(r):
            A(f"s_mov_b64 exec, s[{mk}:{mk+1}]\nbuffer_load_dwordx4 v[{r}:{r+3}], v37, s[{WS}:{WS+3}], s{sOFF} offen sc1\ns_mov_b64 exec, -1")
        for k in range(D - 1):
            issue(sets[k])
            if a.fgap: A(f"s_sleep {a.fgap}")
        A("L_fp:")
        for k in range(D):
            issue(sets[(k + D - 1) % D])
            r = sets[k]
            A(f"s_waitcnt vmcnt({D-1})")
            A(f"v_perm_b32 v44, v{r+1}, v{r}, s{sSELA}\nv_perm_b32 v45, v{r+3}, v{r+2}, s{sSELB}\nv_or_b32 v44, v44, v45\nv_xor_b32 v44, s{sT}, v44")
            A(f"v_cmp_ge_u32 vcc, 7, v44")
            A(f"s_and_b64 vcc, vcc, s[{mk}:{mk+1}]\ns_andn2_b64 s[{mk}:{mk+1}], s[{mk}:{mk+1}], vcc\ns_mov_b64 exec, vcc")
            for q in range(4): A(f"v_mov_b32 v{40+q}, v{r+q}")
            A(f"s_mov_b64 exec, -1\ns_cmp_eq_u64 s[{mk}:{mk+1}], 0\ns_cbranch_scc1 L_fpd")
            if a.fsl: A(f"s_sleep {a.fsl}")
        spin_tail("L_fp", 0)
        A("L_fpd:")
    else:
        poll(80, 37, sOFF, depth=a.fdepth, gap=a.fgap, lfl=FN)
        for k in range(4):
            A(f"v_mov_b32 v{40+k}, v{80+k}")
    A("s_nop 1")
    stamp(5)
    for d in ["row_shr:1", "row_shr:2", "row_shr:4", "row_shr:8"]:
        for k in range(4):
            A(f"v_add_f32_dpp v{40+k}, v{40+k}, v{40+k} {d} row_mask:0xf bank_mask:0xf")
    for k in range(4):
        A(f"v_add_f32_dpp v{40+k}, v{40+k}, v{40+k} row_bcast:15 row_mask:0xa bank_mask:0xf")
    A("v_cvt_pk_bf16_f32 v44, v40, v41\nv_cvt_pk_bf16_f32 v45, v42, v43")
    A("s_mov_b32 exec_lo, 0x80000000\ns_mov_b32 exec_hi, 0x80000000")
    A(f"buffer_store_dwordx2 v[44:45], v38, s[{SR2}:{SR2+3}], s{sTMP2} offen")
    A(f"s_or_b32 s{sTMP}, s{sJ}, s{sHH}\ns_cmp_lg_u32 s{sTMP}, 0\ns_cbranch_scc1 L_aux2")
    A("s_mov_b64 exec, 1")
    A(f"buffer_store_dword v{vT}, v30, s[{WS}:{WS+3}], s9 offen")
    A("L_aux2:")
    A("s_mov_b64 exec, -1")
    stamp(6)


A("L_end:")
if a.dbg:
    A("s_mov_b64 exec, -1")
    A("s_waitcnt vmcnt(0) lgkmcnt(0)")
    A(f"s_memrealtime s[{sST+16}:{sST+17}]\ns_memtime s[86:87]\ns_waitcnt lgkmcnt(0)")
    for k in range(9):
        A(f"v_mov_b32 v{8+k}, s{sST+2*k}")
    A(f"s_sub_u32 s86, s86, s84\ns_sub_u32 s87, s{sST+16}, s{sST}\nv_mov_b32 v17, s86\nv_mov_b32 v18, s87\nv_not_b32 v19, v8")
    A(f"s_lshl_b32 s{sTMP}, s{sWAVE}, 6\nv_mov_b32 v30, s{sTMP}\ns_lshl_b32 s{sTMP}, s{sWAVE}, 2\nv_mov_b32 v31, s{sTMP}\ns_mov_b64 exec, 1")
    for k in range(3):
        A(f"ds_write_b128 v30, v[{8+4*k}:{11+4*k}] offset:{L_ST+16*k}")
    A(f"ds_write_b32 v31, v{vT} offset:{L_DN}")
    A("s_mov_b64 exec, -1")
    A(f"s_cmp_lg_u32 s{sWAVE}, 3\ns_cbranch_scc1 L_done")
    A(f"L_dw:\nv_lshlrev_b32 v8, 2, v{vL}\nv_min_u32 v8, 40, v8\nds_read_b32 v9, v8 offset:{L_DN}\ns_waitcnt lgkmcnt(0)\nv_cmp_ne_u32 vcc, s{sT}, v9\ns_cmp_eq_u64 vcc, 0\ns_cbranch_scc1 L_dw2\ns_sleep 4\ns_sub_u32 s{sSPIN}, s{sSPIN}, 1\ns_cbranch_scc0 L_dw\ns_branch L_done\nL_dw2:")
    A("s_sleep 127\ns_sleep 127")
    adds = [(3,0,1),(0,2,2),(0,4,3),(4,4,4),(8,2,5),(8,3,6),(8,4,7),(0,7,8),(3,9,13),(3,10,14)]
    maxs = [(3,11,0),(0,7,9),(1,7,9),(2,7,9),(3,8,10),(8,3,11),(9,3,11),(10,3,11),(8,4,12),(9,4,12),(10,4,12),(3,0,15)]
    A("v_mov_b32 v20, 0\nv_mov_b32 v21, 0")
    for k, (w, st, d) in enumerate(adds + maxs):
        A(f"s_mov_b32 s{sTMP}, {L_ST + w*64 + st*4}\nv_writelane_b32 v20, s{sTMP}, {k}\ns_mov_b32 s{sTMP}, {d*4}\nv_writelane_b32 v21, s{sTMP}, {k}")
    A("ds_read_b32 v22, v20")
    A(f"s_load_dwordx2 s[{sM+2}:{sM+3}], s[0:1], 88\ns_waitcnt lgkmcnt(0)")
    srd(SR, sM + 2, 256)
    A("s_waitcnt lgkmcnt(0)")
    A(f"s_mov_b64 exec, {(1 << len(adds)) - 1}")
    A(f"buffer_atomic_add v22, v21, s[{SR}:{SR+3}], 0 offen")
    A(f"s_mov_b64 exec, {((1 << len(maxs)) - 1) << len(adds)}")
    A(f"buffer_atomic_umax v22, v21, s[{SR}:{SR+3}], 0 offen")
elif a.stamps:
    A("s_mov_b64 exec, -1")
    A("s_waitcnt vmcnt(0) lgkmcnt(0)")
    A(f"s_memrealtime s[{sST+16}:{sST+17}]\ns_waitcnt lgkmcnt(0)")
    A(f"s_lshl_b32 s{sTMP}, s2, 4\ns_add_u32 s{sTMP}, s{sTMP}, s{sWAVE}\ns_mul_i32 s{sTMP}, s{sTMP}, 80\ns_add_u32 s{sTMP}, s{sTMP}, {STAMP}")
    for k in range(18):
        A(f"v_mov_b32 v{8+k}, s{sST+k}")
    A("v_mov_b32 v30, 0\ns_mov_b64 exec, 1")
    for k in range(4):
        A(f"buffer_store_dwordx4 v[{8+4*k}:{11+4*k}], v30, s[{WS}:{WS+3}], s{sTMP} offen offset:{16*k}")
    A("s_getreg_b32 s3, hwreg(HW_REG_XCC_ID)\nv_mov_b32 v26, s3\nv_mov_b32 v27, 0")
    A(f"buffer_store_dwordx4 v[24:27], v30, s[{WS}:{WS+3}], s{sTMP} offen offset:64")
A("L_done:\ns_endpgm")
A.footer(168)
if a.pads:
    assert a.nf in (0, 2, 3, 10) and not a.lat
    A.L = [l.replace(".p2align 8\n.type", ".p2align 12\n.type") for l in A.L]
if a.pads in (1, 3):
    import padlib
    def plan3(pads, lines, i0):
        def li(lab): return next(i for i, l in enumerate(lines) if l.strip() == lab) - i0
        wo, k, v, ax = li("L_wo:"), li("L_k:"), li("L_v:"), li("L_aux:")
        W = [i for i, p in enumerate(pads) if p[1] < wo]
        O = [i for i, p in enumerate(pads) if wo <= p[1] < k]
        K = [i for i, p in enumerate(pads) if k <= p[1] < v]
        V = [i for i, p in enumerate(pads) if v <= p[1] < ax]
        X = [i for i, p in enumerate(pads) if ax <= p[1]]
        pri = (W + K + O + V + X)
        e = pri[:8]; rest = pri[8:]
        order = [1, 2, 3, 4, 0, 5, 6, 7]
        e2 = [p for p in e if p in K] + [p for p in e if p not in K]
        early = {order[i]: p for i, p in enumerate(e2)}
        ch = {0: [], 5: [], 6: [], 7: []}
        ws = [5, 6, 7, 0]
        rx = [p for p in rest if p in X]; ro = [p for p in rest if p not in X]
        ch[0] += rx
        i = 0
        for p in ro:
            w = min(ws, key=lambda q: len(ch[q])); ch[w].append(p)
        return early, ch
    A.L = padlib.add_pads(A.L, 8, plan=plan3 if a.pads == 3 else None)
A.write(a.out)
```

```python
import sys, argparse
from asmlib import *
ap = argparse.ArgumentParser()
ap.add_argument("out")
ap.add_argument("--stamps", type=int, default=0)
ap.add_argument("--prio", type=int, default=1)
ap.add_argument("--lds", type=int, default=163840)
ap.add_argument("--nopoll", type=int, default=0)
ap.add_argument("--near", type=int, default=0)
ap.add_argument("--kfull", type=int, default=0)
ap.add_argument("--psleep", type=int, default=0)
ap.add_argument("--lat", type=int, default=0)
ap.add_argument("--thr", type=int, default=0)
ap.add_argument("--rot", type=int, default=0)
ap.add_argument("--pdepth", type=int, default=3)
ap.add_argument("--pgap", type=int, default=16)
ap.add_argument("--fgap", type=int, default=5)
ap.add_argument("--fdepth", type=int, default=3)
ap.add_argument("--g2", type=int, default=1)
ap.add_argument("--dbg", type=int, default=0)
ap.add_argument("--win", type=str, default="")
ap.add_argument("--gsleep", type=int, default=1)
ap.add_argument("--nt", type=int, default=12)
ap.add_argument("--nofin", type=int, default=0)
ap.add_argument("--lsleep", type=int, default=1)
ap.add_argument("--x1", type=int, default=0)
ap.add_argument("--fmask", type=int, default=0)
ap.add_argument("--fsl", type=int, default=0)
ap.add_argument("--pro", type=int, default=0)
ap.add_argument("--contig", type=str, default="")
ap.add_argument("--fp", type=int, default=0)
ap.add_argument("--xmap", type=int, default=0)
ap.add_argument("--dly", type=str, default="")
ap.add_argument("--pnt", type=int, default=3)
ap.add_argument("--slab", type=int, default=0)
ap.add_argument("--wsl", type=int, default=1)
ap.add_argument("--no2", type=int, default=0)
ap.add_argument("--ks2", type=int, default=2)
ap.add_argument("--lmap", type=int, default=0)
ap.add_argument("--boost", type=int, default=0)
ap.add_argument("--vboost", type=int, default=0)
ap.add_argument("--kboost", type=int, default=0)
ap.add_argument("--vtrig", type=int, default=0)
ap.add_argument("--wj", type=str, default="")
ap.add_argument("--rank", type=int, default=0)
ap.add_argument("--vr", type=int, default=24)
ap.add_argument("--rop", type=int, default=1)
ap.add_argument("--dirty", type=int, default=0)
ap.add_argument("--nf", type=int, default=0)
ap.add_argument("--nft", type=int, default=110)
ap.add_argument("--nfi", type=int, default=0)
ap.add_argument("--nfs", type=int, default=1)
ap.add_argument("--nfd", type=int, default=0)
ap.add_argument("--nfv", type=int, default=0)
ap.add_argument("--enc", type=int, default=0)
ap.add_argument("--pads", type=int, default=0)
ap.add_argument("--dbgv", type=int, default=0)
ap.add_argument("--eb", type=int, default=0)
ap.add_argument("--nfp", default="sc1")
ap.add_argument("--nfx", type=int, default=0)
ap.add_argument("--nfj", type=int, default=-1)
ap.add_argument("--dry", type=int, default=0)
ap.add_argument("--nfr", type=int, default=0)
ap.add_argument("--nfdl", type=int, default=32)
ap.add_argument("--nfo", type=int, default=0)
ap.add_argument("--nfw", type=int, default=0)
ap.add_argument("--thx", type=str, default="")
ap.add_argument("--lb", type=int, default=0)
ap.add_argument("--fm", type=int, default=0)
ap.add_argument("--tlb", type=int, default=0)
ap.add_argument("--lv", type=str, default="")
ap.add_argument("--kq", type=int, default=0)
ap.add_argument("--shf", type=str, default="")
ap.add_argument("--gx", type=int, default=0)
a = ap.parse_args()
LV = [int(x) for x in a.lv.split(",")] if a.lv else None
L_LV = 208

THX = [int(x, 0) for x in a.thx.split(",")] if a.thx else None
sTH = 3
def lvwait(n, e, l):
    if not LV or (e == 0 and l == 0):
        A(f"s_waitcnt vmcnt({n-1})"); return
    go = A.label("Llv")
    if l: A(f"s_waitcnt vmcnt({n+l-1})\ns_cmp_eq_u32 s{sTH}, 2\ns_cbranch_scc1 {go}")
    A(f"s_waitcnt vmcnt({n-1})")
    if e: A(f"s_cmp_lg_u32 s{sTH}, 1\ns_cbranch_scc1 {go}\ns_waitcnt vmcnt({n-e-1})")
    A(f"{go}:")
def thx(n, d):
    if THX and d:
        l = A.label("Lth")
        A(f"s_cmp_eq_u32 s{sTH}, 0\ns_cbranch_scc1 {l}\ns_waitcnt vmcnt({n-1-d})\n{l}:")

PN = " nt" if a.pnt & 1 else ""
FN = " nt" if a.pnt & 2 else ""
XN = " nt" if a.pnt & 4 else ""
WIN = [int(x) for x in a.win.split(",")] if a.win else None
if a.dbg: a.stamps = 1
if a.kq: a.contig += "Q"

A = Asm()
NW = 12 if a.lat else 11
A.header(256, 64 * NW, a.lds)

QBOX = 0x10000
OBOX = 0x40000
SBOX = 0x70000
FBOX = 0x80000
RBOX = 0x78000
VBOX = 0x7a000
STAMP = 0x8000000
L_PW, L_PK, L_PV = 0, 16, 32
L_QF = 48
L_MX = 64
L_LS = 96
L_FF = 128
L_FFLAG = 144
L_MODE = 148
L_OF = 160
L_PF = 176
L_KI = 192
L_VT = 192
L_DN = 208
L_ST = 2048
L_Q = 256
L_P = 640
L_O = 1152
sH, sJ, sP, sHH = 4, 5, 6, 7
sX, sK, sV, sWQ, sWO = 12, 14, 16, 18, 20
sWSP = 22
sWAVE = 24
sT = 25
sSPIN = 26
sC = 27
WS = 28
SR = 32
sOFF = 36
sTMP, sTMP2, sTMP3 = 37, 38, 39
sSEL = 40
sSELA, sSELB = 44, 45
sFL = sT
SR2 = 48
sM = 52
sNEED, sHAVE = 56, 57
sMODE, sCNT = 58, 59
sXCC = 60
sRB, sRI = 62, 63
sDRY = 61
sST = 64
vL = 0
vOFF = 1
vAD = 2
vT = 3
vACC = 4
vA0, vA1 = 8, 12
vSEL = 16
vCO = 24
vD = 40

nstamp = [0]
def stamp(k):
    if a.stamps:
        A(f"s_memrealtime s[{sST+2*k}:{sST+2*k+1}]")

def thr(n):
    if a.thr and n >= a.thr:
        A(f"s_waitcnt vmcnt({a.thr-1})")

def prio(p):
    if a.prio:
        A(f"s_setprio {p}")

def spin_tail(loop, sleep=1):
    if sleep:
        A(f"s_sleep {sleep}")
    A(f"s_sub_u32 s{sSPIN}, s{sSPIN}, 1\ns_cbranch_scc0 {loop}\ns_branch L_end")

def lds_wait(off, positions, nread, vt):
    if a.nopoll >= 2: return
    lp = A.label("Lw"); dn = A.label("Lwd")
    vz = vt + nread + 1
    vx = vt + nread
    A(f"v_mov_b32 v{vz}, 0")
    A(f"{lp}:")
    k = 0
    while k < nread:
        n = min(4, nread - k)
        op = {1: "ds_read_b32", 2: "ds_read_b64", 4: "ds_read_b128"}[n]
        reg = f"v{vt+k}" if n == 1 else f"v[{vt+k}:{vt+k+n-1}]"
        A(f"{op} {reg}, v{vz} offset:{off+4*k}")
        k += n
    A("s_waitcnt lgkmcnt(0)")
    first = True
    for p in positions:
        if first:
            A(f"v_xor_b32 v{vx}, s{sFL}, v{vt+p}")
            first = False
        else:
            A(f"v_xor_b32 v{vz}, s{sFL}, v{vt+p}\nv_or_b32 v{vx}, v{vx}, v{vz}")
    A(f"v_mov_b32 v{vz}, 0")
    A(f"v_cmp_ne_u32 vcc, 0, v{vx}")
    A(f"s_cmp_eq_u64 vcc, 0\ns_cbranch_scc1 {dn}")
    spin_tail(lp, a.lsleep)
    A(f"{dn}:")

def gate_init(widx, NP, vz):
    A(f"s_add_u32 s{sNEED}, s{widx}, 1\ns_mul_i32 s{sNEED}, s{sNEED}, {NP}\ns_mov_b32 s{sHAVE}, 0\nv_mov_b32 v{vz}, 0")

def gate(loff, kS, NP, NS, vz, vt):
    lp = A.label("Lg"); go = A.label("Lgo")
    A(f"{lp}:\ns_cmp_ge_u32 s{sHAVE}, s{sNEED}\ns_cbranch_scc1 {go}")
    if a.x1: A("s_mov_b64 exec, 1")
    A(f"ds_read_b128 v[{vt}:{vt+3}], v{vz} offset:{loff}\ns_waitcnt lgkmcnt(0)")
    A(f"v_add3_u32 v{vt}, v{vt}, v{vt+1}, v{vt+2}\nv_add_u32 v{vt}, v{vt}, v{vt+3}\ns_nop 0\nv_readfirstlane_b32 s{sHAVE}, v{vt}")
    if a.x1: A("s_mov_b64 exec, -1")
    A(f"s_mul_i32 s{sHAVE}, s{sHAVE}, {NS}\ns_cmp_ge_u32 s{sHAVE}, s{sNEED}\ns_cbranch_scc1 {go}")
    spin_tail(lp, a.gsleep)
    A(f"{go}:\ns_add_u32 s{sNEED}, s{sNEED}, {kS*NP}")

def credit(loff, vaddr, vval, n):
    A(f"v_mov_b32 v{vval}, {n}\nds_write_b32 v{vaddr}, v{vval} offset:{loff}")

def lds_flag(off, vtmp):
    A(f"v_mov_b32 v{vtmp}, 0\nds_write_b32 v{vtmp}, v{vT} offset:{off}")

def get_T():
    A("s_waitcnt lgkmcnt(0)")
    A(f"s_mul_i32 s{sT}, s{sT}, 0x9E3779B1\ns_add_u32 s{sT}, s{sT}, 0x7F4A7C15\ns_andn2_b32 s{sT}, s{sT}, 15\ns_or_b32 s{sT}, s{sT}, 8\ns_or_b32 s{sT}, s{sT}, s{sXCC}")
    A(f"v_mov_b32 v{vT}, s{sT}")

def make_selectors():
    t0, t1, t2, t3 = vA0, vA0 + 1, vA0 + 2, vA0 + 3
    A(f"v_bfe_u32 v{t0}, v{vL}, 2, 2")
    A(f"v_bfe_u32 v{t1}, v{vL}, 1, 1")
    A(f"v_cmp_eq_u32 vcc, 1, v{t1}")
    A(f"v_mov_b32 v{t2}, 0x0c0c0100\nv_mov_b32 v{t3}, 0x01000c0c")
    A(f"v_cndmask_b32 v{t2}, v{t2}, v{t3}, vcc")
    A(f"v_mov_b32 v{t1}, 0x0c0c0302\nv_mov_b32 v{t3}, 0x03020c0c")
    A(f"v_cndmask_b32 v{t3}, v{t1}, v{t3}, vcc")
    A(f"v_mov_b32 v{t1}, 0x0c0c0c0c")
    for t in range(4):
        A(f"v_cmp_eq_u32 vcc, {t}, v{t0}\ns_nop 1")
        A(f"v_cndmask_b32 v{vSEL+2*t}, v{t1}, v{t2}, vcc\nv_cndmask_b32 v{vSEL+2*t+1}, v{t1}, v{t3}, vcc")

def build_A(b, buf):
    src = vCO + b // 2
    for t in range(4):
        A(f"v_perm_b32 v{buf+t}, v{src}, v{src}, v{vSEL+2*t+(b&1)}")

def diag_gemv(nb, extra_after=0, win=None, hook=None):
    build_A(0, vA0)
    for b in range(nb):
        if b + 1 < nb:
            build_A(b + 1, vA1 if (b & 1) == 0 else vA0)
        else:
            A("s_nop 1")
        A(f"s_waitcnt vmcnt({min(nb-1-b, (win or nb)-1)+extra_after})")
        if hook: hook(b)
        buf = vA0 if (b & 1) == 0 else vA1
        c = "0" if b == 0 else f"v[{vACC}:{vACC+3}]"
        A(f"v_mfma_f32_16x16x32_bf16 v[{vACC}:{vACC+3}], v[{buf}:{buf+3}], v[{vD+4*b}:{vD+4*b+3}], {c}")

def combine(g):
    A("s_nop 7")
    A(f"v_add_f32_dpp v{g}, v{vACC+1}, v{vACC} row_ror:8 row_mask:0xf bank_mask:0xf")
    A(f"v_add_f32_dpp v{g+1}, v{vACC+3}, v{vACC+2} row_ror:8 row_mask:0xf bank_mask:0xf")
    A(f"v_mov_b32 v{g+2}, 0\nv_mov_b32 v{g+3}, 0")
    A("s_nop 1")
    A(f"v_permlane16_swap_b32 v{g}, v{g+2}\nv_permlane16_swap_b32 v{g+1}, v{g+3}")
    A("s_nop 1")
    for k in range(4):
        A(f"v_perm_b32 v{g+k}, v{g+k}, v{vT}, s{sSEL+k}")

def poll(g, voff, soff, sleep=0, depth=None, gap=None, on_timeout=None, lfl=None, after_first=None):
    if a.nopoll >= 1: return
    depth = depth or a.pdepth
    gap = a.pgap if gap is None else gap
    lp = A.label("Lp"); dn = A.label("Lpd")
    sets = [g + 8 + 4 * k for k in range(depth)]
    def issue(r):
        A(f"buffer_load_dwordx4 v[{r}:{r+3}], v{voff}, s[{WS}:{WS+3}], s{soff} offen sc1{PN if lfl is None else lfl}")
    for k in range(depth - 1):
        issue(sets[k])
        if k == 0 and after_first: after_first()
        if gap: A(f"s_sleep {gap}")
    if on_timeout: A(f"s_mov_b32 s{sCNT}, 0")
    A(f"{lp}:")
    fins = []
    for k in range(depth):
        issue(sets[(k + depth - 1) % depth])
        r = sets[k]
        A(f"s_waitcnt vmcnt({depth-1})")
        A(f"v_perm_b32 v{g+4}, v{r+1}, v{r}, s{sSELA}\nv_perm_b32 v{g+5}, v{r+3}, v{r+2}, s{sSELB}")
        A(f"v_or_b32 v{g+4}, v{g+4}, v{g+5}\nv_xor_b32 v{g+4}, s{sT}, v{g+4}")
        A(f"v_cmp_lt_u32 vcc, 7, v{g+4}")
        fl = A.label("Lpf"); fins.append((fl, r))
        A(f"s_cmp_eq_u64 vcc, 0\ns_cbranch_scc1 {fl}")
    if on_timeout:
        A(f"s_add_u32 s{sCNT}, s{sCNT}, 1\ns_cmp_lg_u32 s{sCNT}, {a.nt}\ns_cbranch_scc1 {lp}_t")
        on_timeout()
        A(f"{lp}_t:")
    spin_tail(lp, 0)
    for i, (fl, r) in enumerate(fins):
        A(f"{fl}:")
        for k in range(4):
            A(f"v_mov_b32 v{g+k}, v{r+k}")
        if i < len(fins) - 1: A(f"s_branch {dn}")
    A(f"{dn}:")
    A("s_nop 1")

def lds_mode(vz, vr):
    A(f"v_mov_b32 v{vz}, 0\nds_read_b32 v{vr}, v{vz} offset:{L_MODE}")

def publish_gather(box, ldsdst, ldsflag, fscale, g=vD, h=None):
    gx = a.gx & (2 if fscale else 1)
    combine(g)
    A(f"v_and_b32 v{g+8}, 7, v{vL}\nv_lshrrev_b32 v{g+9}, 5, v{vL}\nv_lshl_add_u32 v{g+8}, v{g+8}, 1, v{g+9}\nv_lshlrev_b32 v{g+8}, {6 if gx else 4}, v{g+8}")
    A(f"s_mul_i32 s{sOFF}, s{sH}, 3072\ns_lshl_b32 s{sTMP}, s{sC}, 10\ns_add_u32 s{sOFF}, s{sOFF}, s{sTMP}\ns_add_u32 s{sOFF}, s{sOFF}, {box}")
    A(f"s_lshl_b32 s{sTMP3}, s{sJ}, {4 if gx else 8}\ns_add_u32 s{sTMP3}, s{sTMP3}, s{sOFF}")
    def store(fl):
        A("s_mov_b32 exec_lo, 0xff\ns_mov_b32 exec_hi, 0xff")
        A(f"buffer_store_dwordx4 v[{g}:{g+3}], v{g+8}, s[{WS}:{WS+3}], s{sTMP3} offen{fl}")
        A("s_mov_b64 exec, -1")
    if fscale:
        l1 = A.label("Ls"); l2 = A.label("Ls")
        A(f"s_cmp_lg_u32 s{sMODE}, 0\ns_cbranch_scc1 {l1}")
        store("")
        A(f"s_branch {l2}\n{l1}:")
        store(" sc1")
        A(f"{l2}:")
    else:
        store("")
    stamp(3)
    A(f"v_and_b32 v{g+10}, 3, v{vL}\nv_lshrrev_b32 v{g+11}, 2, v{vL}\n" + (f"v_lshlrev_b32 v{g+12}, 4, v{vL}" if gx else f"v_lshlrev_b32 v{g+12}, 4, v{g+11}\nv_lshl_add_u32 v{g+12}, v{g+10}, 8, v{g+12}"))
    if fscale:
        lds_wait(L_FFLAG, [0], 1, g + 16)
        A(f"v_lshlrev_b32 v{g+13}, 2, v{g+10}\nds_read_b32 v{g+13}, v{g+13} offset:{L_FF}")
    h = h or g + 20
    def opf(): A(f"s_lshl_b32 s{sTMP}, s{sC}, 2\nv_mov_b32 v{g+14}, s{sTMP}\nds_write_b32 v{g+14}, v{vT} offset:{L_VT+4}")
    poll(h, g + 12, sOFF, on_timeout=None if fscale else (lambda: store(" sc1")), after_first=opf if fscale and a.rank else None)
    stamp(4)
    if fscale:
        A("s_waitcnt lgkmcnt(0)")
        for k in range(4):
            A(f"v_mul_f32 v{h+k}, v{h+k}, v{g+13}")
    else:
        if a.nopoll: A(f"v_mov_b32 v{h+4}, 0")
        A(f"v_cmp_ne_u32 vcc, 0, v{h+4}\ns_cmp_lg_u64 vcc, 0\ns_cselect_b32 s{sMODE}, 1, 0\nv_mov_b32 v{g+13}, s{sMODE}\nv_mov_b32 v{g+14}, 0")
        l1 = A.label("Ls")
        A(f"s_cbranch_scc0 {l1}")
        store(" sc1")
        A(f"{l1}:")
    for k in range(4):
        A(f"v_add_f32_dpp v{h+4+k}, v{h+k}, v{h+k} quad_perm:[1,0,3,2] row_mask:0xf bank_mask:0xf")
    for k in range(4):
        A(f"v_add_f32_dpp v{h+k}, v{h+4+k}, v{h+4+k} quad_perm:[2,3,0,1] row_mask:0xf bank_mask:0xf")
    A(f"v_cvt_pk_bf16_f32 v{h+4}, v{h}, v{h+1}\nv_cvt_pk_bf16_f32 v{h+5}, v{h+2}, v{h+3}")
    A(f"s_lshl_b32 s{sTMP}, s{sC}, 7\nv_lshlrev_b32 v{g+11}, 3, v{g+11}\nv_add_u32 v{g+11}, s{sTMP}, v{g+11}")
    A(f"s_lshl_b32 s{sTMP}, s{sC}, 2\nv_mov_b32 v{g+10}, s{sTMP}")
    A("s_mov_b32 exec_lo, 0x11111111\ns_mov_b32 exec_hi, 0x11111111")
    A(f"ds_write_b64 v{g+11}, v[{h+4}:{h+5}] offset:{ldsdst}")
    if not fscale:
        A(f"ds_write_b32 v{g+14}, v{g+13} offset:{L_MODE}")
    A(f"ds_write_b32 v{g+10}, v{vT} offset:{ldsflag}")
    A("s_mov_b64 exec, -1")

def coef_addr(vdst, per):
    A(f"v_lshrrev_b32 v{vdst}, 4, v{vL}\nv_and_b32 v{vA0}, 1, v{vL}\nv_lshl_add_u32 v{vdst}, v{vdst}, 1, v{vA0}\nv_mul_u32_u24 v{vdst}, {per}, v{vdst}")

def data_voff(rowstep):
    A(f"v_lshrrev_b32 v{vOFF}, 3, v{vL}\nv_mul_u32_u24 v{vOFF}, {rowstep}, v{vOFF}\nv_and_b32 v{vA0}, 7, v{vL}\nv_lshl_add_u32 v{vOFF}, v{vA0}, 4, v{vOFF}")

def srd(d, lo, n):
    A.srd(d, lo, n)

A("s_cmp_ge_u32 s2, 256\ns_cbranch_scc1 L_done")
stamp(0)
if a.stamps:
    for k in range(2, 18):
        A(f"s_mov_b32 s{sST+k}, 0")
if a.dly:
    dl = a.dly
    if dl[0] == "w":
        dl = dl[1:]; A("s_and_b32 s3, s2, 7")
    else:
        A("s_getreg_b32 s3, hwreg(HW_REG_XCC_ID, 0, 3)")
    dl = [int(x) for x in dl.split(",")]
    lo = sum(v << (8 * i) for i, v in enumerate(dl[:4])); hi = sum(v << (8 * i) for i, v in enumerate(dl[4:]))
    A(f"s_mov_b32 s4, {lo}\ns_mov_b32 s5, {hi}\ns_lshl_b32 s3, s3, 3\ns_lshr_b64 s[4:5], s[4:5], s3\ns_and_b32 s4, s4, 0xff")
    A("L_dl:\ns_sub_u32 s4, s4, 1\ns_cbranch_scc1 L_nd\ns_sleep 2\ns_branch L_dl\nL_nd:")
A(f"s_load_dwordx2 s[{sWSP}:{sWSP+1}], s[0:1], 96")
if a.xmap == 1:
    A(f"s_and_b32 s{sJ}, s2, 3\ns_lshr_b32 s{sH}, s2, 2")
elif a.xmap == 2:
    A(f"s_lshr_b32 s{sH}, s2, 3\ns_and_b32 s{sJ}, s{sH}, 3\ns_cmp_eq_u32 s{sJ}, 3\ns_cselect_b32 s3, 1, 0\ns_add_u32 s3, s3, s2\ns_and_b32 s3, s3, 7\ns_lshr_b32 s{sH}, s{sH}, 2\ns_lshl_b32 s3, s3, 3\ns_add_u32 s{sH}, s{sH}, s3")
else:
    A(f"s_add_u32 s3, s2, {a.rot}\ns_and_b32 s3, s3, 7\ns_lshr_b32 s{sH}, s2, 3\ns_and_b32 s{sJ}, s{sH}, 3\ns_lshr_b32 s{sH}, s{sH}, 2\ns_lshl_b32 s3, s3, 3\ns_add_u32 s{sH}, s{sH}, s3")
A(f"s_lshr_b32 s{sP}, s{sH}, 5\ns_and_b32 s{sHH}, s{sH}, 31")
A(f"s_lshl_b32 s9, s{sP}, 7")
A(f"s_mul_i32 s8, s{sP}, 40\ns_add_u32 s10, s0, s8\ns_addc_u32 s11, s1, 0")
A(f"s_load_dwordx8 s[{sX}:{sX+7}], s[10:11], 0")
A(f"s_load_dwordx2 s[{sWO}:{sWO+1}], s[10:11], 32")
A(f"v_lshrrev_b32 v1, 6, v0\nv_and_b32 v0, 63, v0\nv_readfirstlane_b32 s{sWAVE}, v1")
A(f"s_mov_b32 s{sSPIN}, 200000\ns_getreg_b32 s{sXCC}, hwreg(HW_REG_XCC_ID, 0, 3)")
if LV: A(f"s_mov_b32 s{sTH}, 0")
if THX: A(f"s_lshr_b32 s{sTH}, {THX[0]}, s{sXCC}\ns_and_b32 s{sTH}, s{sTH}, 1")
for k in range(4):
    A(f"s_mov_b32 s{sSEL+k}, {0x07060500 + k:#x}")
A(f"s_mov_b32 s{sSELA}, 0x0c0c0400\ns_mov_b32 s{sSELB}, 0x04000c0c")
if a.pads == 3:
    A(f"s_cmp_lt_u32 s{sWAVE}, 3\ns_cbranch_scc1 L_w")
    A(f"v_lshlrev_b32 v8, 2, v{vL}\nv_mov_b32 v9, 0\ns_cmp_lg_u32 s{sWAVE}, 3\ns_cbranch_scc1 L_nz\nds_write_b32 v8, v9\ns_branch @PAE0@\nL_nz:")
    for w in range(1, 7): A(f"s_cmp_eq_u32 s{sWAVE}, {3+w}\ns_cbranch_scc1 @PAE{w}@")
    A("s_branch @PAE7@")
    A("L_p1done:")
    A(f"s_waitcnt lgkmcnt(0)\ns_load_dword s{sT}, s[{sWSP}:{sWSP+1}], s9\ns_barrier")
    A(f"s_cmp_eq_u32 s{sWAVE}, 3\ns_cbranch_scc1 @PAD0@\ns_cmp_lt_u32 s{sWAVE}, 8\ns_cbranch_scc1 L_k")
    for w in (5, 6): A(f"s_cmp_eq_u32 s{sWAVE}, {3+w}\ns_cbranch_scc1 @PAD{w}@")
    A("s_branch @PAD7@")
    A("L_pdone:")
    A(f"s_cmp_eq_u32 s{sWAVE}, 3\ns_cbranch_scc1 L_aux\ns_branch L_v")
elif a.pads:
    A(f"s_cmp_lt_u32 s{sWAVE}, 3\ns_cbranch_scc1 L_w")
    A(f"v_lshlrev_b32 v8, 2, v{vL}\nv_mov_b32 v9, 0\ns_cmp_lg_u32 s{sWAVE}, 3\ns_cbranch_scc1 L_nz\nds_write_b32 v8, v9\nL_nz:")
    A(f"s_waitcnt lgkmcnt(0)\ns_load_dword s{sT}, s[{sWSP}:{sWSP+1}], s9\ns_barrier")
    if a.pads == 1:
        for w in range(7): A(f"s_cmp_eq_u32 s{sWAVE}, {3+w}\ns_cbranch_scc1 @PAD{w}@")
        A("s_branch @PAD7@")
    A("L_pdone:")
    A(f"""s_cmp_eq_u32 s{sWAVE}, 3
s_cbranch_scc1 L_aux
s_cmp_lt_u32 s{sWAVE}, 8
s_cbranch_scc1 L_k
s_branch L_v""")
else:
    A(f"""s_cmp_lt_u32 s{sWAVE}, 3
s_cbranch_scc1 L_w
s_cmp_eq_u32 s{sWAVE}, 3
s_cbranch_scc1 L_aux
s_cmp_lt_u32 s{sWAVE}, 8
s_cbranch_scc1 L_k
s_cmp_lt_u32 s{sWAVE}, 11
s_cbranch_scc1 L_v
s_branch L_aux""")

A("L_w:")
prio(3)
A(f"s_mov_b32 s{sC}, s{sWAVE}")
A(f"s_mul_i32 s{sOFF}, s{sJ}, {160*12288}\ns_mul_i32 s{sTMP3}, s{sHH}, 384\ns_add_u32 s{sOFF}, s{sOFF}, s{sTMP3}\ns_lshl_b32 s{sTMP3}, s{sC}, 7\ns_add_u32 s{sOFF}, s{sOFF}, s{sTMP3}")
A(f"s_mul_i32 s{sTMP2}, s{sJ}, 320")
for nb in (20,):
    data_voff(12288 if 'N' in a.contig else nb * 12288)
    if "q" in a.contig:
        A(f"v_lshlrev_b32 v{vOFF}, 4, v{vL}\ns_lshl_b32 s{sOFF}, s{sHH}, 2\ns_add_u32 s{sOFF}, s{sOFF}, s{sJ}\ns_mul_i32 s{sOFF}, s{sOFF}, 3\ns_add_u32 s{sOFF}, s{sOFF}, s{sC}\ns_mul_i32 s{sOFF}, s{sOFF}, 20480")
    coef_addr(vAD, 2 * nb)
    if a.nf == 10:
        A(f"s_lshr_b32 s{sRB}, s2, 4\ns_lshl_b32 s{sRB}, s{sRB}, 14\ns_and_b32 s{sRI}, s2, 15\ns_lshl_b32 s{sRI}, s{sRI}, 9\ns_add_u32 s{sRB}, s{sRB}, s{sRI}\ns_add_u32 s{sRB}, s{sRB}, {FBOX + 20*16384}")
        A(f"s_and_b32 s{sRI}, s{sJ}, 1\ns_lshl_b32 s{sRI}, s{sRI}, 13\ns_add_u32 s{sRB}, s{sRB}, s{sRI}\ns_xor_b32 s{sRI}, s{sRB}, 8192\nv_mov_b32 v165, 0\ns_mov_b32 s{WS+2}, 0x10000000\ns_mov_b32 s{WS+3}, 0x00020000\ns_cmp_lg_u32 s{sC}, 0")
    A("s_waitcnt lgkmcnt(0)")
    if a.nf == 10:
        A(f"s_mov_b32 s{WS}, s{sWSP}\ns_cbranch_scc1 L_wnp\ns_and_b32 s{WS+1}, s{sWSP+1}, 0xffff\ns_mov_b64 exec, 1")
        A(f"buffer_load_dword v166, v165, s[{WS}:{WS+3}], s{sRB} offen {a.nfp}\nbuffer_load_dword v167, v165, s[{WS}:{WS+3}], s{sRI} offen {a.nfp}\ns_mov_b64 exec, -1\nL_wnp:")
    if a.pro: stamp(5)
    A(f"s_load_dword s{sT}, s[{sWSP}:{sWSP+1}], s9")
    srd(SR, sWQ, 640 * 12288)
    srd(SR2, sX, 1280)
    for k in range(nb // 8):
        A(f"buffer_load_dwordx4 v[{vCO+4*k}:{vCO+4*k+3}], v{vAD}, s[{SR2}:{SR2+3}], s{sTMP2} offen offset:{16*k}{XN}")
    A(f"buffer_load_dwordx2 v[{vCO+8}:{vCO+9}], v{vAD}, s[{SR2}:{SR2+3}], s{sTMP2} offen offset:32{XN}")
    nw = WIN[0] if WIN else nb
    def wq_load(b):
        A(f"buffer_load_dwordx4 v[{vD+4*b}:{vD+4*b+3}], v{vOFF}, s[{SR}:{SR+3}], s{sOFF} offen nt")
        if b < nb - 1: A(f"s_add_u32 s{sOFF}, s{sOFF}, {1024 if 'q' in a.contig else (8 * 12288 if 'N' in a.contig else 12288)}")
    for b in range(nw):
        thr(b)
        wq_load(b)
    stamp(1)
    if not a.lb: A("s_barrier")
    srd(WS, sWSP, 0x10000000)
    make_selectors()
    if a.nf == 10:
        A(f"s_cmp_lg_u32 s{sC}, 0\ns_cbranch_scc1 L_wnq\ns_waitcnt vmcnt({nw+4})")
        A(f"s_sleep {a.nfs}" if a.nfs > 0 else f"s_nop {-a.nfs}")
        A(f"s_getreg_b32 s{sRI}, hwreg(HW_REG_IB_STS, 0, 4)\ns_bitcmp1_b32 s{sJ}, 0\ns_cselect_b32 s{sRB}, 0, 16\ns_cmp_eq_u32 s{sRI}, {nw+4}\ns_cselect_b32 s{sRB}, s{sRB}, 32\nL_wnq:")
    get_T()
    if a.lb == 1: A("s_barrier")
    A(f"s_waitcnt vmcnt({nw})")
    if a.pro:
        A(f"s_waitcnt vmcnt({nw-1})")
        stamp(6)
    if WIN:
        A(f"s_lshl_b32 s{sTMP}, s{sC}, 2\nv_mov_b32 v{vAD}, s{sTMP}")
        def hook(b):
            if a.lb >= 2 and b == a.lb - 2 + 1: A("s_barrier")
            if b + nw < nb: wq_load(b + nw)
            else: credit(L_PW, vAD, vCO - 1 - 0 if False else 164, b + nw - nb + 1)
        diag_gemv(nb, win=nw, hook=hook)
    else:
        diag_gemv(nb)
stamp(2)
publish_gather(QBOX, L_Q, L_QF, False, g=vD, h=136)
if not a.pro: stamp(5)
if a.nf == 10:
    A(f"s_cmp_lg_u32 s{sC}, 0\ns_cbranch_scc1 L_wnv\ns_xor_b32 s{sRB}, s{sRB}, s{sT}\nv_mov_b32 v166, s{sRB}\ns_lshl_b32 s{sRI}, s{sXCC}, 10\ns_add_u32 s{sRI}, s{sRI}, {VBOX}\ns_lshl_b32 s{sTMP}, s2, 2\nv_mov_b32 v165, s{sTMP}")
    A(f"s_mov_b64 exec, 1\nbuffer_store_dword v166, v165, s[{WS}:{WS+3}], s{sRI} offen\ns_mov_b64 exec, -1\nL_wnv:")
A("L_wo:")
vF = 160
A(f"s_lshl_b32 s{sTMP}, s{sC}, 2\nv_mov_b32 v{vF+1}, s{sTMP}")
A(f"{'s_lshr_b32' if a.lmap else 's_and_b32'} s{sTMP}, s{sJ}, 1\ns_add_u32 s{sTMP}, s{sTMP}, s{sC}\ns_cmp_eq_u32 s{sTMP}, 3\ns_cbranch_scc1 L_w_fin")
prio(0)
if a.dry & 1: A(f"s_mov_b32 s{sDRY}, 1\ns_branch L_fc\nL_fcb:\ns_mov_b32 s{sDRY}, 0")
srd(SR, sWO, 6144 * 1280)
data_voff(1280 if 'O' in a.contig else (8 * 1280 if a.slab else 24 * 1280))
if a.lmap: A(f"s_mul_i32 s{sTMP}, s{sJ}, 3\ns_add_u32 s{sM}, s{sJ}, 1\ns_lshr_b32 s{sM}, s{sM}, 2\ns_sub_u32 s{sTMP}, s{sTMP}, s{sM}\ns_add_u32 s{sM}, s{sTMP}, s{sC}")
else: A(f"s_mul_i32 s{sTMP}, s{sJ}, 5\ns_add_u32 s{sTMP}, s{sTMP}, 1\ns_lshr_b32 s{sTMP}, s{sTMP}, 1\ns_add_u32 s{sM}, s{sTMP}, s{sC}")
A(f"s_mul_i32 s{sOFF}, s{sHH}, {192*1280}\ns_lshl_b32 s{sTMP}, s{sM}, 7\ns_add_u32 s{sOFF}, s{sOFF}, s{sTMP}")
if "o" in a.contig:
    A(f"v_lshlrev_b32 v{vOFF}, 4, v{vL}\ns_mul_i32 s{sOFF}, s{sHH}, 10\ns_add_u32 s{sOFF}, s{sOFF}, s{sM}\ns_mul_i32 s{sOFF}, s{sOFF}, 24576")
if WIN: gate_init(sC, 3 * WIN[2], vCO)
def wo_issue(nO, kS):
    rest = [A.label("Lb") for b in range(24)]
    for b in range(24):
        thr(b)
        if WIN:
            if b < nO: gate(L_PV, kS, 3 * WIN[2], kS * nO, vCO, vCO + 4)
            else:
                if a.boost:
                    t = vCO + 4
                    if THX and THX[4] & 2:
                        lnb = A.label("Lnb"); A(f"s_cmp_lg_u32 s{sTH}, 0\ns_cbranch_scc1 {lnb}")
                    if LV: A(f"ds_read_b32 v{t+4}, v{vCO} offset:{L_LV}")
                    A(f"ds_read_b128 v[{t}:{t+3}], v{vCO} offset:{L_OF}\ns_waitcnt lgkmcnt(0)")
                    if LV: A(f"v_readfirstlane_b32 s{sTH}, v{t+4}")
                    op = "v_or3_b32" if a.boost == 2 else None
                    if a.boost == 1:
                        A(f"v_and_b32 v{t}, v{t}, v{t+1}\nv_and_or_b32 v{t}, v{t}, v{t+2}, v{t+3}")
                    else:
                        A(f"v_or3_b32 v{t}, v{t}, v{t+1}, v{t+2}")
                    A(f"v_cmp_ne_u32 vcc, 0, v{t}\ns_cbranch_vccnz {rest[b]}")
                    if THX and THX[4] & 2: A(f"{lnb}:")
                if LV: lvwait(nO, LV[7], LV[8])
                else: A(f"s_waitcnt vmcnt({nO-1})")
            if THX and b >= nO - THX[3]: thx(nO, THX[3])
        A(f"buffer_load_dwordx4 v[{vD+4*b}:{vD+4*b+3}], v{vOFF}, s[{SR}:{SR+3}], s{sOFF} offen nt")
        if b < 23: A(f"s_add_u32 s{sOFF}, s{sOFF}, {1024 if 'o' in a.contig else (8 * 1280 if 'O' in a.contig else (57 * 1280 if a.slab and b % 8 == 7 else 1280))}")
    if a.boost and WIN:
        A("s_branch L_wo_j")
        for b in range(nO, 24):
            A(f"{rest[b]}:")
            A(f"buffer_load_dwordx4 v[{vD+4*b}:{vD+4*b+3}], v{vOFF}, s[{SR}:{SR+3}], s{sOFF} offen nt")
            if b < 23: A(f"s_add_u32 s{sOFF}, s{sOFF}, {1024 if 'o' in a.contig else (8 * 1280 if 'O' in a.contig else (57 * 1280 if a.slab and b % 8 == 7 else 1280))}")
        A("s_branch L_wo_j")
    return
    for b in range(24):
        A(f"buffer_load_dwordx4 v[{vD+4*b}:{vD+4*b+3}], v{vOFF}, s[{SR}:{SR+3}], s{sOFF} offen nt")
        if b < 23: A(f"s_add_u32 s{sOFF}, s{sOFF}, {1024 if 'o' in a.contig else (8 * 1280 if 'O' in a.contig else (57 * 1280 if a.slab and b % 8 == 7 else 1280))}")
if a.wj:
    assert a.boost
    wj = [int(x) for x in a.wj.split(",")]
    for jj in range(4):
        heavy = (jj < 2) if a.lmap else (jj % 2 == 0)
        if jj < 3: A(f"s_cmp_lg_u32 s{sJ}, {jj}\ns_cbranch_scc1 L_wj{jj}")
        wo_issue(wj[jj], 3 if heavy else 2)
        A(f"L_wj{jj}:")
elif a.no2:
    A(f"s_bitcmp1_b32 s{sJ}, {1 if a.lmap else 0}\ns_cbranch_scc0 L_wo_e")
    wo_issue(a.no2, a.ks2)
    A("s_branch L_wo_j\nL_wo_e:")
if not a.wj: wo_issue(WIN[3] if WIN else 24, 3)
A("L_wo_j:")
prio(3)
if not a.pro: stamp(6)
coef_addr(vAD, 16 if a.slab else 48)
if a.fp:
    gp = a.fp // 16; lg = gp.bit_length() - 1
    A(f"v_and_b32 v{vF}, 7, v{vL}\nv_lshrrev_b32 v{vF+2}, 5, v{vL}\nv_lshl_add_u32 v{vF}, v{vF}, 1, v{vF+2}")
    A(f"v_and_b32 v{vF+2}, {gp-1}, v{vF}\nv_lshrrev_b32 v{vF}, {lg}, v{vF}\nv_mul_u32_u24 v{vF}, {32*a.fp}, v{vF}\nv_lshl_add_u32 v{vF}, v{vF+2}, 4, v{vF}")
    A(f"s_mul_i32 s{sOFF}, s{sP}, 10\ns_add_u32 s{sOFF}, s{sOFF}, s{sM}\ns_lshl_b32 s{sOFF}, s{sOFF}, {14 if a.nf else 13}\ns_mul_i32 s{sTMP}, s{sHH}, {a.fp}\ns_add_u32 s{sOFF}, s{sOFF}, s{sTMP}\ns_add_u32 s{sOFF}, s{sOFF}, {FBOX}")
else:
    A(f"v_and_b32 v{vF}, 7, v{vL}\nv_lshrrev_b32 v{vF+2}, 5, v{vL}\nv_lshlrev_b32 v{vF}, 10, v{vF}\nv_lshl_add_u32 v{vF}, v{vF+2}, 9, v{vF}")
    A(f"s_lshl_b32 s{sTMP}, s{sP}, 2\ns_add_u32 s{sTMP}, s{sTMP}, s{sJ}\ns_mul_i32 s{sOFF}, s{sTMP}, 24576\ns_lshl_b32 s{sTMP}, s{sHH}, 4\ns_add_u32 s{sOFF}, s{sOFF}, s{sTMP}\ns_lshl_b32 s{sTMP}, s{sC}, 13\ns_add_u32 s{sOFF}, s{sOFF}, s{sTMP}\ns_add_u32 s{sOFF}, s{sOFF}, {FBOX}")
if a.slab:
    vfl = vCO + 12
    A(f"v_mov_b32 v{vF+2}, 0\ns_mov_b32 s{sM}, 7")
    for k in range(4): A(f"v_mov_b32 v{vACC+k}, 0")
    A("L_kl:")
    A(f"ds_read_b128 v[{vfl}:{vfl+3}], v{vF+2} offset:{L_OF}")
    for c in range(3): A(f"ds_read_b128 v[{vCO+4*c}:{vCO+4*c+3}], v{vAD} offset:{L_O+128*c}")
    A("s_waitcnt lgkmcnt(0)")
    for c in range(3): A(f"v_readfirstlane_b32 s{sTMP+c}, v{vfl+c}")
    for c in range(3):
        A(f"s_bitcmp0_b32 s{sM}, {c}\ns_cbranch_scc1 L_kn{c}")
        if a.nopoll < 2: A(f"s_cmp_lg_u32 s{sTMP+c}, s{sT}\ns_cbranch_scc1 L_kn{c}")
        A(f"s_bitset0_b32 s{sM}, {c}")
        def bA(b, buf):
            for t in range(4): A(f"v_perm_b32 v{buf+t}, v{vCO+4*c+b//2}, v{vCO+4*c+b//2}, v{vSEL+2*t+(b&1)}")
        bA(0, vA0)
        for b in range(8):
            if b < 7: bA(b + 1, vA1 if (b & 1) == 0 else vA0)
            else: A("s_nop 1")
            buf = vA0 if (b & 1) == 0 else vA1
            n = 8 * c + b
            A(f"s_waitcnt vmcnt({23-n})")
            A(f"v_mfma_f32_16x16x32_bf16 v[{vACC}:{vACC+3}], v[{buf}:{buf+3}], v[{vD+4*n}:{vD+4*n+3}], v[{vACC}:{vACC+3}]")
        A(f"L_kn{c}:")
    A(f"s_cmp_eq_u32 s{sM}, 0\ns_cbranch_scc1 L_kd")
    spin_tail("L_kl", a.wsl)
    A("L_kd:")
else:
    lds_wait(L_OF, [0, 1, 2], 4, vCO)
    for k in range(3):
        A(f"ds_read_b128 v[{vCO+4*k}:{vCO+4*k+3}], v{vAD} offset:{L_O+16*k}")
    A("s_waitcnt lgkmcnt(0)")
    A("L_fc:")
    diag_gemv(24)
combine(vCO)
if a.dry & 1: A(f"s_cmp_lg_u32 s{sDRY}, 0\ns_cbranch_scc1 L_fcb")
A("s_mov_b32 exec_lo, 0xff\ns_mov_b32 exec_hi, 0xff")
if a.nofin != 1: A(f"buffer_store_dwordx4 v[{vCO}:{vCO+3}], v{vF}, s[{WS}:{WS+3}], s{sOFF} offen{'' if a.nofin == 3 else ' sc1'}")
if a.nf and a.nofin != 1: A(f"s_add_u32 s{sOFF}, s{sOFF}, 8192\nbuffer_store_dwordx4 v[{vCO}:{vCO+3}], v{vF}, s[{WS}:{WS+3}], s{sOFF} offen sc1")
A("s_mov_b64 exec, -1")
A("L_w_fin:")
A(f"ds_write_b32 v{vF+1}, v{vT} offset:{L_PF}")
stamp(7)
A("s_branch L_end")

A("L_k:")
prio(2)
A(f"s_sub_u32 s{sC}, s{sWAVE}, 4")
if a.kq: A(f"v_lshrrev_b32 v8, 4, v{vL}")
else: A(f"v_and_b32 v{vOFF}, 7, v{vL}\nv_mul_u32_u24 v{vOFF}, 384, v{vOFF}\nv_bfe_u32 v8, v{vL}, 3, 1\nv_lshl_add_u32 v{vOFF}, v8, 6, v{vOFF}\nv_lshrrev_b32 v8, 4, v{vL}\nv_lshl_add_u32 v{vOFF}, v8, 4, v{vOFF}")
KA = [152, 156, 160, 164, 16, 20]
if a.kq:
    A(f"v_and_b32 v{vAD}, 3, v{vL}\nv_lshlrev_b32 v{vAD}, 4, v{vAD}\nv_and_b32 v6, 1, v8\nv_lshl_add_u32 v6, v6, 6, v{vAD}\nv_lshl_add_u32 v{vAD}, v8, 6, v{vAD}")
else:
    A(f"v_and_b32 v{vAD}, 1, v{vL}\nv_lshlrev_b32 v{vAD}, 6, v{vAD}\nv_lshl_add_u32 v{vAD}, v8, 4, v{vAD}")
A(f"s_mul_i32 s{sOFF}, s{sHH}, 1572864\ns_mul_i32 s{sTMP}, s{sJ}, 98304\ns_add_u32 s{sOFF}, s{sOFF}, s{sTMP}\ns_mul_i32 s{sTMP}, s{sC}, {3072 if a.kq == 2 else 24576}\ns_add_u32 s{sOFF}, s{sOFF}, s{sTMP}\ns_add_u32 s{sOFF}, s{sOFF}, {3072*384}")
if not a.pads:
    A("s_waitcnt lgkmcnt(0)")
    A(f"s_load_dword s{sT}, s[{sWSP}:{sWSP+1}], s9")
if "K" in a.contig: A(f"v_lshlrev_b32 v{vOFF}, 4, v{vL}")
if "L" in a.contig: A(f"v_and_b32 v{vOFF}, 3, v{vL}\nv_mul_u32_u24 v{vOFF}, 768, v{vOFF}\nv_bfe_u32 v8, v{vL}, 2, 2\nv_lshl_add_u32 v{vOFF}, v8, 6, v{vOFF}\nv_lshrrev_b32 v8, 4, v{vL}\nv_lshl_add_u32 v{vOFF}, v8, 4, v{vOFF}")
if "Q" in a.contig:
    A(f"v_bfe_u32 v{vOFF}, v{vL}, 2, 2\nv_mul_u32_u24 v{vOFF}, 384, v{vOFF}\nv_and_b32 v8, 3, v{vL}\nv_lshl_add_u32 v{vOFF}, v8, 4, v{vOFF}")
    A(f"v_lshrrev_b32 v8, 5, v{vL}\nv_mul_u32_u24 v7, 1536, v8\nv_add_u32 v7, v7, v{vOFF}\nv_bfe_u32 v8, v{vL}, 4, 1\nv_lshl_add_u32 v7, v8, 6, v7")
    A(f"v_lshrrev_b32 v8, 4, v{vL}\nv_lshl_add_u32 v{vOFF}, v8, 6, v{vOFF}")
if "k" in a.shf: A(f"s_mul_i32 s{sTMP}, s2, 37\ns_and_b32 s{sTMP}, s{sTMP}, 7\ns_mul_i32 s{sTMP}, s{sTMP}, 3072\ns_sub_u32 s{sOFF}, s{sOFF}, s{sTMP}")
srd(SR, sK, 50331648)
if a.tlb & 1: A(f"v_mul_u32_u24 v9, 24448, v{vL}\ns_mov_b64 exec, 3\nbuffer_load_dword v10, v9, s[{SR}:{SR+3}], s{sOFF} offen nt\ns_mov_b64 exec, -1")
srd(WS, sWSP, 0x10000000)
if not a.pads: A("s_barrier")
get_T()
if a.kq:
    for r in KA:
        for q in range(4): A(f"v_mov_b32 v{r+q}, 0")
if a.kq or a.near == 2:
    vPA = 5
    if a.kq == 2:
        assert a.near == 2
        A(f"v_bfe_u32 v{vPA}, v{vL}, 2, 3\nv_lshlrev_b32 v{vPA}, 6, v{vPA}\nv_and_b32 v4, 3, v{vL}\nv_lshl_add_u32 v{vPA}, v4, 4, v{vPA}\nv_lshrrev_b32 v4, 5, v{vL}\nv_lshl_add_u32 v{vPA}, v4, 3, v{vPA}\ns_lshl_b32 s{sTMP}, s{sC}, 1")
    elif a.kq and a.near == 2:
        A(f"v_bfe_u32 v{vPA}, v{vL}, 2, 3\nv_lshlrev_b32 v{vPA}, 6, v{vPA}\nv_and_b32 v4, 3, v{vL}\nv_lshl_add_u32 v{vPA}, v4, 2, v{vPA}\nv_lshrrev_b32 v4, 5, v{vL}\nv_lshl_add_u32 v{vPA}, v4, 1, v{vPA}\ns_lshl_b32 s{sTMP}, s{sC}, 4")
    elif a.kq:
        A(f"v_bfe_u32 v{vPA}, v{vL}, 2, 3\nv_lshlrev_b32 v{vPA}, 1, v{vPA}\nv_and_b32 v4, 3, v{vL}\nv_lshl_add_u32 v{vPA}, v4, 5, v{vPA}\nv_lshrrev_b32 v4, 5, v{vL}\nv_lshl_add_u32 v{vPA}, v4, 4, v{vPA}\ns_lshl_b32 s{sTMP}, s{sC}, 7")
    else:
        A(f"v_and_b32 v{vPA}, 7, v{vL}\nv_lshlrev_b32 v{vPA}, 6, v{vPA}\nv_lshrrev_b32 v4, 3, v{vL}\nv_lshl_add_u32 v{vPA}, v4, 1, v{vPA}\ns_lshl_b32 s{sTMP}, s{sC}, 4")
    A(f"v_add_u32 v{vPA}, s{sTMP}, v{vPA}")
if WIN: gate_init(sC, 3 * WIN[0], 24)
krest = [A.label("Lkb") for b in range(24)]
def k_load(t):
    if "Q" in a.contig:
        u = t % 3
        A(f"buffer_load_dwordx4 v[{vD+4*t}:{vD+4*t+3}], v{vOFF if u < 2 else 7}, s[{SR}:{SR+3}], s{sOFF} offen offset:{(0, 1536, 256)[u]} nt")
        if t % 3 == 2 and t < 23: A(f"s_add_u32 s{sOFF}, s{sOFF}, {4*3072 if a.kq == 2 else 3072}")
        return
    if "L" in a.contig:
        A(f"buffer_load_dwordx4 v[{vD+4*t}:{vD+4*t+3}], v{vOFF}, s[{SR}:{SR+3}], s{sOFF} offen offset:{256*(t%3)} nt")
        if t % 3 == 2 and t < 23: A(f"s_add_u32 s{sOFF}, s{sOFF}, 3072")
        return
    if "K" in a.contig:
        A(f"buffer_load_dwordx4 v[{vD+4*t}:{vD+4*t+3}], v{vOFF}, s[{SR}:{SR+3}], s{sOFF} offen nt\ns_add_u32 s{sOFF}, s{sOFF}, 1024"); return
    A(f"buffer_load_dwordx4 v[{vD+4*t}:{vD+4*t+3}], v{vOFF}, s[{SR}:{SR+3}], s{sOFF} offen offset:{128*(t%3)} nt")
    if t % 3 == 2 and t < 23: A(f"s_add_u32 s{sOFF}, s{sOFF}, 3072")
for t in range(24):
    thr(t)
    if WIN:
        if t < WIN[1]: gate(L_PW, 4, 3 * WIN[0], 4 * WIN[1], 24, 28)
        else:
            if a.kboost:
                A(f"ds_read_b128 v[28:31], v24 offset:{L_QF}\ns_waitcnt lgkmcnt(0)\nv_and_b32 v28, v28, v29\nv_and_b32 v28, v28, v30\nv_cmp_ne_u32 vcc, 0, v28\ns_cbranch_vccnz {krest[t]}")
            A(f"s_waitcnt vmcnt({WIN[1]-1})")
        if THX and t >= WIN[1] - THX[1]: thx(WIN[1], THX[1])
    k_load(t)
    if LV and t == LV[0]: A(f"s_lshl_b32 s{sTMP}, s{sC}, 2\nv_mov_b32 v28, s{sTMP}\nds_write_b32 v28, v{vT} offset:{L_VT}")
if a.kboost:
    A("s_branch L_kb_j")
    for t in range(WIN[1], 24):
        if t >= a.kboost: A(f"s_waitcnt vmcnt({a.kboost-1})")
        A(f"{krest[t]}:")
        k_load(t)
    A("L_kb_j:")
if WIN:
    prio(3)
    A(f"s_lshl_b32 s{sTMP}, s{sC}, 2\nv_mov_b32 v8, s{sTMP}")
    for i in range(WIN[1]):
        A(f"s_waitcnt vmcnt({WIN[1]-1-i})")
        credit(L_PK, 8, 9, i + 1)
elif a.g2:
    A(f"s_lshl_b32 s{sTMP}, s{sC}, 2\nv_mov_b32 v8, s{sTMP}\nds_write_b32 v8, v{vT} offset:{L_KI}")
prio(3)
stamp(1)
vQ = 8
vS = 136
lds_wait(L_QF, [0, 1, 2], 4, 24)
stamp(2)
s_ = 24
if a.kq:
    for e in range(2):
        m0 = 0x000f000f << (8 * e); m1 = m0 << 4
        for u, (lo, hi) in enumerate(((m0, m0), (m1, m1), (m0, m1))):
            r = KA[3 * e + u]
            A(f"s_mov_b32 exec_lo, {lo:#x}\ns_mov_b32 exec_hi, {hi:#x}")
            A(f"ds_read_b128 v[{r}:{r+3}], v{vAD if u < 2 else 6} offset:{L_Q + (256 if u == 2 else 0)}")
    A("s_mov_b64 exec, -1")
    for k in range(3): A(f"s_mov_b32 s{84+2*k}, {0x11111111 << (k+1):#x}\ns_mov_b32 s{85+2*k}, {0x11111111 << (k+1):#x}")
    A("s_waitcnt lgkmcnt(0)")
    for t in range(24):
        blk, u = divmod(t, 3); e = blk & 1; be = blk >> 1
        r = KA[3 * e + u]
        A(f"s_waitcnt vmcnt({23-t})")
        c = "0" if t % 6 == 0 else f"v[{vS+4*be}:{vS+4*be+3}]"
        A(f"v_mfma_f32_16x16x32_bf16 v[{vS+4*be}:{vS+4*be+3}], v[{r}:{r+3}], v[{vD+4*t}:{vD+4*t+3}], {c}")
        if t % 6 == 5 and be >= 1:
            pb = be - 1
            A(f"v_mov_b32_dpp v{s_+pb}, v{vS+4*pb} quad_perm:[0,0,0,0] row_mask:0xf bank_mask:0xf")
            for q in range(1, 4): A(f"v_add_f32_dpp v{s_+pb}, v{vS+4*pb+q}, v{s_+pb} quad_perm:[{q},{q},{q},{q}] row_mask:0xf bank_mask:0xf")
            if pb >= 1: A(f"v_cndmask_b32_e64 v{s_}, v{s_}, v{s_+pb}, s[{84+2*(pb-1)}:{85+2*(pb-1)}]")
    stamp(3)
    A("s_nop 7")
    A(f"v_mov_b32_dpp v{s_+3}, v{vS+12} quad_perm:[0,0,0,0] row_mask:0xf bank_mask:0xf")
    for q in range(1, 4): A(f"v_add_f32_dpp v{s_+3}, v{vS+12+q}, v{s_+3} quad_perm:[{q},{q},{q},{q}] row_mask:0xf bank_mask:0xf")
    A(f"v_cndmask_b32_e64 v{s_}, v{s_}, v{s_+3}, s[88:89]")
else:
    for u in range(3):
        A(f"ds_read_b128 v[{vQ+4*u}:{vQ+4*u+3}], v{vAD} offset:{L_Q+128*u}")
    A("s_waitcnt lgkmcnt(0)")
    s_ = 24
    for t in range(24):
        G, u = divmod(t, 3)
        A(f"s_waitcnt vmcnt({23-t})")
        c = "0" if u == 0 else f"v[{vS+4*G}:{vS+4*G+3}]"
        A(f"v_mfma_f32_16x16x32_bf16 v[{vS+4*G}:{vS+4*G+3}], v[{vQ+4*u}:{vQ+4*u+3}], v[{vD+4*t}:{vD+4*t+3}], {c}")
    stamp(3)
    A("s_nop 7")
    for G in range(8):
        d0, d1 = vS + 4 * G, vS + 4 * G + 1
        if G & 1:
            A(f"v_add_f32_dpp v{s_}, v{d0}, v{d1} row_ror:8 row_mask:{1 << (G >> 1):#x} bank_mask:0xc")
        else:
            A(f"v_add_f32_dpp v{s_}, v{d1}, v{d0} row_ror:8 row_mask:{1 << (G >> 1):#x} bank_mask:0x3")
A(f"v_cvt_pk_bf16_f32 v{s_}, v{s_}, v{s_}\nv_lshlrev_b32 v{s_}, 16, v{s_}")
A(f"v_mul_f32 v{s_}, 0x3d93cd3a, v{s_}")
A(f"v_cvt_pk_bf16_f32 v{s_}, v{s_}, v{s_}\nv_lshlrev_b32 v{s_}, 16, v{s_}")
def wave_reduce(op, v):
    for d in ["row_shr:1", "row_shr:2", "row_shr:4", "row_shr:8"]:
        A(f"s_nop 1\n{op}_dpp v{v}, v{v}, v{v} {d} row_mask:0xf bank_mask:0xf")
    A(f"s_nop 1\n{op}_dpp v{v}, v{v}, v{v} row_bcast:15 row_mask:0xa bank_mask:0xf")
    A(f"s_nop 1\n{op}_dpp v{v}, v{v}, v{v} row_bcast:31 row_mask:0xc bank_mask:0xf")
A(f"v_mov_b32 v{s_+1}, v{s_}")
wave_reduce("v_max_f32", s_ + 1)
A(f"s_nop 0\nv_readlane_b32 s{sTMP}, v{s_+1}, 63")
A(f"s_lshl_b32 s{sTMP2}, s{sC}, 3\nv_mov_b32 v{s_+4}, s{sTMP2}\nv_mov_b32 v{s_+2}, s{sTMP}\nv_mov_b32 v{s_+3}, s{sT}")
A(f"ds_write_b64 v{s_+4}, v[{s_+2}:{s_+3}] offset:{L_MX}")
lds_wait(L_MX, [1, 3, 5, 7], 8, s_ + 8)
A(f"v_max_f32 v{s_+8}, v{s_+8}, v{s_+10}\nv_max3_f32 v{s_+8}, v{s_+8}, v{s_+12}, v{s_+14}")
A(f"v_sub_f32 v{s_}, v{s_}, v{s_+8}\nv_mul_f32 v{s_}, 0x3fb8aa3b, v{s_}\nv_exp_f32 v{s_}, v{s_}\ns_nop 0")
A(f"v_cvt_pk_bf16_f32 v{s_+1}, v{s_}, v{s_}")
if a.kq or a.near == 2:
    A(f"ds_write_b16 v{vPA}, v{s_+1} offset:{L_P}")
else:
    A(f"s_lshl_b32 s{sTMP}, s{sC}, 7\nv_lshlrev_b32 v{s_+5}, 1, v{vL}\nv_add_u32 v{s_+5}, s{sTMP}, v{s_+5}")
    A(f"ds_write_b16 v{s_+5}, v{s_+1} offset:{L_P}")
wave_reduce("v_add_f32", s_)
A(f"s_nop 0\nv_readlane_b32 s{sTMP}, v{s_}, 63\ns_nop 1\nv_mov_b32 v{s_+2}, s{sTMP}")
A(f"ds_write_b64 v{s_+4}, v[{s_+2}:{s_+3}] offset:{L_LS}")
stamp(4)
A("s_branch L_end")

A("L_v:")
prio(1)
A(f"s_sub_u32 s{sC}, s{sWAVE}, 8")
data_voff(384 if a.near else 32 * 384)
A(f"s_mul_i32 s{sOFF}, s{sHH}, 1572864\ns_mul_i32 s{sTMP}, s{sJ}, 98304\ns_add_u32 s{sOFF}, s{sOFF}, s{sTMP}\ns_lshl_b32 s{sTMP}, s{sC}, 7\ns_add_u32 s{sOFF}, s{sOFF}, s{sTMP}\ns_add_u32 s{sOFF}, s{sOFF}, {3072*384}")
if "k" in a.contig:
    data_voff(384)
    A(f"s_mul_i32 s{sTMP}, s{sC}, {30720-128}\ns_add_u32 s{sOFF}, s{sOFF}, s{sTMP}")
if "w" in a.contig:
    A(f"v_lshrrev_b32 v{vOFF}, 4, v{vL}\nv_mul_u32_u24 v{vOFF}, 768, v{vOFF}\nv_and_b32 v8, 15, v{vL}\nv_lshl_add_u32 v{vOFF}, v8, 4, v{vOFF}\ns_lshl_b32 s{sTMP}, s{sC}, 7\ns_add_u32 s{sOFF}, s{sOFF}, s{sTMP}")
if "v" in a.contig:
    A(f"v_lshlrev_b32 v{vOFF}, 4, v{vL}\ns_mul_i32 s{sTMP}, s{sC}, {32768-128}\ns_add_u32 s{sOFF}, s{sOFF}, s{sTMP}")
if not a.pads:
    A("s_waitcnt lgkmcnt(0)")
    A(f"s_load_dword s{sT}, s[{sWSP}:{sWSP+1}], s9")
if "v" in a.shf: A(f"s_lshr_b32 s{sTMP}, s2, 3\ns_add_u32 s{sTMP}, s{sTMP}, s2\ns_mul_i32 s{sTMP}, s{sTMP}, 5\ns_and_b32 s{sTMP}, s{sTMP}, 31\ns_mul_i32 s{sTMP}, s{sTMP}, 3072\ns_sub_u32 s{sOFF}, s{sOFF}, s{sTMP}")
srd(SR, sV, 50331648)
if a.tlb & 2: A(f"v_mul_u32_u24 v9, {255*384}, v{vL}\ns_mov_b64 exec, 3\nbuffer_load_dword v10, v9, s[{SR}:{SR+3}], s{sOFF} offen nt\ns_mov_b64 exec, -1")
srd(WS, sWSP, 0x10000000)
if not a.pads: A("s_barrier")
get_T()
if WIN:
    gate_init(sC, 4 * WIN[1], vCO)
elif a.g2:
    lds_wait(L_KI, [0, 1, 2, 3], 4, vCO)
if WIN:
    make_selectors()
    coef_addr(vAD, 64)
vrest = [A.label("Lvb") for b in range(32)]
def v_load(b):
    if "w" in a.contig or a.near:
        A(f"buffer_load_dwordx4 v[{vD+4*b}:{vD+4*b+3}], v{vOFF}, s[{SR}:{SR+3}], s{sOFF} offen nt\ns_add_u32 s{sOFF}, s{sOFF}, 3072"); return
    if "v" in a.contig:
        A(f"buffer_load_dwordx4 v[{vD+4*b}:{vD+4*b+3}], v{vOFF}, s[{SR}:{SR+3}], s{sOFF} offen nt\ns_add_u32 s{sOFF}, s{sOFF}, 1024"); return
    A(f"buffer_load_dwordx4 v[{vD+4*b}:{vD+4*b+3}], v{vOFF}, s[{SR}:{SR+3}], s{sOFF} offen offset:{384*(b%8)} nt")
    if b % 8 == 7 and b < 31: A(f"s_add_u32 s{sOFF}, s{sOFF}, 3072")
    if a.rank and b == a.vr: A(f"ds_write_b32 v{vCO}, v{vT} offset:{L_VT}")
for b in range(32):
    thr(b)
    if WIN:
        if b < WIN[2]: gate(L_PK, 3, 4 * WIN[1], 3 * WIN[2], vCO, vCO + 4)
        else:
            if a.vboost:
                t = vCO + 4
                if a.vtrig == 0:
                    if THX and THX[4] & 1:
                        lnb = A.label("Lnb"); A(f"s_cmp_lg_u32 s{sTH}, 0\ns_cbranch_scc1 {lnb}")
                    if LV: A(f"ds_read2_b32 v[{t}:{t+1}], v{vCO} offset0:{L_FFLAG//4} offset1:{L_LV//4}\ns_waitcnt lgkmcnt(0)\nv_readfirstlane_b32 s{sTH}, v{t+1}\nv_cmp_ne_u32 vcc, 0, v{t}\ns_cbranch_vccnz {vrest[b]}")
                    else: A(f"ds_read_b32 v{t}, v{vCO} offset:{L_FFLAG}\ns_waitcnt lgkmcnt(0)\nv_cmp_ne_u32 vcc, 0, v{t}\ns_cbranch_vccnz {vrest[b]}")
                    if THX and THX[4] & 1: A(f"{lnb}:")
                elif a.vtrig == 1:
                    A(f"ds_read_b32 v{t}, v{vCO} offset:{L_LS+4}\ns_waitcnt lgkmcnt(0)\nv_cmp_ne_u32 vcc, 0, v{t}\ns_cbranch_vccnz {vrest[b]}")
                elif b == a.vtrig:
                    A(f"s_branch {vrest[b]}")
            if LV: lvwait(WIN[2], LV[3], LV[4])
            else: A(f"s_waitcnt vmcnt({WIN[2]-1})")
        if THX and b >= WIN[2] - THX[2]: thx(WIN[2], THX[2])
    if "k" in a.contig:
        A(f"buffer_load_dwordx4 v[{vD+4*b}:{vD+4*b+3}], v{vOFF}, s[{SR}:{SR+3}], s{sOFF} offen offset:{128*(b%3)} nt")
        if b % 3 == 2: A(f"s_add_u32 s{sOFF}, s{sOFF}, 3072")
        continue
    if a.near or "v" in a.contig:
        A(f"buffer_load_dwordx4 v[{vD+4*b}:{vD+4*b+3}], v{vOFF}, s[{SR}:{SR+3}], s{sOFF} offen nt\ns_add_u32 s{sOFF}, s{sOFF}, {3072 if a.near else 1024}")
        continue
    v_load(b)
if a.vboost:
    A("s_branch L_vb_j")
    for b in range(WIN[2], 32):
        if LV and b >= a.vboost - LV[5]: lvwait(a.vboost, LV[5], LV[6])
        elif b >= a.vboost: A(f"s_waitcnt vmcnt({a.vboost-1})")
        A(f"{vrest[b]}:")
        v_load(b)
    A("L_vb_j:")
prio(3)
stamp(1)
if WIN:
    nv = WIN[2]
    A(f"s_lshl_b32 s{sTMP}, s{sC}, 2\nv_mov_b32 v{vOFF}, s{sTMP}")
    A(f"v_mov_b32 v{vCO+9}, 0\nds_read_b128 v[{vCO}:{vCO+3}], v{vCO+9} offset:{L_LS}\nds_read_b128 v[{vCO+4}:{vCO+7}], v{vCO+9} offset:{L_LS+16}\ns_waitcnt lgkmcnt(0)")
    A(f"v_xor_b32 v{vCO+1}, s{sFL}, v{vCO+1}\nv_xor_b32 v{vCO+3}, s{sFL}, v{vCO+3}\nv_xor_b32 v{vCO+5}, s{sFL}, v{vCO+5}\nv_xor_b32 v{vCO+7}, s{sFL}, v{vCO+7}")
    A(f"v_or3_b32 v{vCO+1}, v{vCO+1}, v{vCO+3}, v{vCO+5}\nv_or_b32 v{vCO+1}, v{vCO+1}, v{vCO+7}\nv_cmp_ne_u32 vcc, 0, v{vCO+1}\ns_cmp_eq_u64 vcc, 0\ns_cbranch_scc1 L_v_fast")
    for i in range(nv):
        A(f"s_waitcnt vmcnt({nv-1-i})")
        credit(L_PV, vOFF, vCO, i + 1)
    lds_wait(L_LS, [1, 3, 5, 7], 8, vCO)
    A(f"s_mov_b32 s{sNEED}, 1\ns_branch L_v_go\nL_v_fast:\ns_mov_b32 s{sNEED}, 0\nL_v_go:")
else:
    make_selectors()
    coef_addr(vAD, 64)
    lds_wait(L_LS, [1, 3, 5, 7], 8, vCO)
for k in range(4):
    A(f"ds_read_b128 v[{vCO+4*k}:{vCO+4*k+3}], v{vAD} offset:{L_P+16*k}")
lds_mode(vA0, vA0 + 1)
A(f"s_waitcnt lgkmcnt(0)\nv_readfirstlane_b32 s{sMODE}, v{vA0+1}")
stamp(2)
if WIN:
    def vhook(b):
        if b >= 32 - nv: credit(L_PV, vOFF, vAD, b - (32 - nv) + 1)
    diag_gemv(32, hook=vhook)
else:
    diag_gemv(32)
publish_gather(OBOX, L_O, L_OF, True)
stamp(5)
A("s_branch L_end")

A("L_aux:")
prio(3)
if a.dbg: A("s_memtime s[84:85]")
if not a.pads: A(f"v_lshlrev_b32 v8, 2, v{vL}\nv_mov_b32 v9, 0\nds_write_b32 v8, v9")
A(f"s_load_dwordx4 s[{sM}:{sM+3}], s[0:1], 80")
if a.nf:
    assert a.fp == 128
    A(f"s_and_b32 s{sTMP}, s{sHH}, 7\ns_lshl_b32 s{sTMP}, s{sTMP}, 2\ns_lshr_b32 s{sTMP2}, s{sHH}, 3\ns_add_u32 s{sTMP}, s{sTMP}, s{sTMP2}\ns_lshl_b32 s{sTMP}, s{sTMP}, 1\n{'s_and_b32' if a.lmap else 's_lshr_b32'} s{sTMP2}, s{sJ}, 1\ns_add_u32 s{sTMP}, s{sTMP}, s{sTMP2}")
    A(f"{'s_lshr_b32' if a.lmap else 's_and_b32'} s{sTMP2}, s{sJ}, 1\ns_xor_b32 s{sTMP2}, s{sTMP2}, 1\ns_lshl_b32 s{sTMP2}, s{sTMP2}, 6\ns_add_u32 s{sRI}, s{sTMP}, s{sTMP2}")
    A(f"s_mul_i32 s{sRB}, s{sP}, 20\ns_add_u32 s{sRB}, s{sRB}, s{sRI}\ns_and_b32 s{sTMP}, s{sRB}, 1\ns_lshr_b32 s{sRB}, s{sRB}, 1\ns_lshl_b32 s{sRB}, s{sRB}, 14\ns_lshl_b32 s{sTMP}, s{sTMP}, 12\ns_add_u32 s{sRB}, s{sRB}, s{sTMP}\ns_add_u32 s{sRB}, s{sRB}, {FBOX}\ns_add_u32 s{sTMP3}, s{sRB}, 8192\nv_mov_b32 v30, 0")
if a.nf == 8:
    A(f"s_mul_i32 s{sTMP}, s{sP}, 20\ns_add_u32 s{sTMP}, s{sTMP}, s{sRI}\ns_lshl_b32 s{sTMP}, s{sTMP}, 14\ns_add_u32 s{sTMP}, s{sTMP}, {FBOX + 20*16384}\ns_add_u32 s{sTMP2}, s{sTMP}, 8192")
if a.nf == 9:
    A(f"s_lshr_b32 s{sTMP}, s2, 4\ns_lshl_b32 s{sTMP}, s{sTMP}, 14\ns_and_b32 s{sTMP2}, s2, 15\ns_lshl_b32 s{sTMP2}, s{sTMP2}, 9\ns_add_u32 s{sTMP}, s{sTMP}, s{sTMP2}\ns_add_u32 s{sTMP}, s{sTMP}, {FBOX + 20*16384}\ns_add_u32 s{sTMP2}, s{sTMP}, 8192")
A("s_waitcnt lgkmcnt(0)")
if a.nf not in (8, 9): srd(WS, sWSP, 0x10000000)
if a.nf == 9:
    sPA, sPB = sM + 4, sM + 5
    if a.nfr:
        A(f"s_load_dword s{sT}, s[{sWSP}:{sWSP+1}], s9")
    elif a.nfo:
        A(f"s_load_dword s{sT}, s[{sWSP}:{sWSP+1}], s9")
        A("s_barrier")
        A(f"s_load_dword s{sPA}, s[{sWSP}:{sWSP+1}], s{sTMP}\ns_load_dword s{sPB}, s[{sWSP}:{sWSP+1}], s{sTMP2}")
    else:
        A(f"s_load_dword s{sPA}, s[{sWSP}:{sWSP+1}], s{sTMP}\ns_load_dword s{sPB}, s[{sWSP}:{sWSP+1}], s{sTMP2}")
        A(f"s_load_dword s{sT}, s[{sWSP}:{sWSP+1}], s9")
        A("s_barrier")
    srd(WS, sWSP, 0x10000000)
    srd(SR2, sM, 2560)
    A(f"s_lshl_b32 s{SR}, s{sXCC}, 10\ns_add_u32 s{SR}, s{SR}, {VBOX}\ns_lshl_b32 s{sTMP2}, s2, 2\nv_mov_b32 v60, s{sTMP2}")
    if a.nfr:
        A(f"s_mov_b32 s{SR+2}, s{sTMP}\ns_add_u32 s{SR+3}, s{sTMP}, 8192")
        A("s_waitcnt lgkmcnt(0)\ns_barrier")
        d = a.nfdl
        while d > 0:
            A(f"s_sleep {min(d, 127)}"); d -= 127
        A(f"s_mov_b32 s{SR+1}, 0")
        if a.nfx: A(f"s_mov_b32 s{SR}, {VBOX}\ns_bitcmp1_b32 s{sXCC}, 0\ns_cbranch_scc0 L_npr")
        if a.nfj >= 0: A(f"s_cmp_lg_u32 s{sJ}, {a.nfj}\ns_cbranch_scc1 L_npr")
        for r in range(a.nfr):
            f1, f2 = (SR + 2, SR + 3) if r % 2 == 0 else (SR + 3, SR + 2)
            A(f"s_load_dword s{sPA}, s[{sWSP}:{sWSP+1}], s{f1}\ns_load_dword s{sPB}, s[{sWSP}:{sWSP+1}], s{f2}")
            if r + 1 < a.nfr: A(f"s_add_u32 s{SR+2}, s{SR+2}, 128\ns_add_u32 s{SR+3}, s{SR+3}, 128")
            A("s_waitcnt lgkmcnt(1)")
            A(f"s_sleep {a.nfs}" if a.nfs > 0 else f"s_nop {-a.nfs}")
            A(f"s_getreg_b32 s{sTMP}, hwreg(HW_REG_IB_STS, 8, 4)\n{'s_add_u32' if r % 2 == 0 else 's_sub_u32'} s{SR+1}, s{SR+1}, s{sTMP}\ns_waitcnt lgkmcnt(0)")
        A("L_npr:")
        A(f"s_cmp_gt_i32 s{SR+1}, 0\ns_cselect_b32 s{sTMP}, 16, 32\ns_cmp_lt_i32 s{SR+1}, 0\ns_cselect_b32 s{SR+1}, 0, s{sTMP}")
    else:
        A(f"s_waitcnt lgkmcnt({2 - a.nfo})")
        A(f"s_sleep {a.nfs}" if a.nfs > 0 else f"s_nop {-a.nfs}")
        A(f"s_getreg_b32 s{sTMP}, hwreg(HW_REG_IB_STS, 8, 4)\ns_cmp_eq_u32 s{sTMP}, {2 - a.nfo}\ns_cselect_b32 s{SR+1}, 16, 0")
def vote_store():
    A(f"s_xor_b32 s{SR+1}, s{SR+1}, s{sT}\nv_mov_b32 v61, s{SR+1}")
    if a.nfx: A(f"s_bitcmp1_b32 s{sXCC}, 0\ns_cbranch_scc0 L_nvs")
    A(f"s_mov_b64 exec, 1\nbuffer_store_dword v61, v60, s[{WS}:{WS+3}], s{SR} offen{' sc1' if a.nfx else ''}\ns_mov_b64 exec, -1")
    if a.nfx: A("L_nvs:")
if a.nf == 1:
    A(f"s_cmp_ge_u32 s{sRI}, 20\ns_cbranch_scc1 L_nc1\ns_mov_b64 exec, 1")
    A(f"buffer_load_dword v10, v30, s[{WS}:{WS+3}], s{sRB} offen sc1\nbuffer_load_dword v11, v30, s[{WS}:{WS+3}], s{sTMP3} offen sc1\ns_mov_b64 exec, -1\nL_nc1:")
if a.nf == 8:
    sPA, sPB = sM + 4, sM + 5
    A(f"s_cmp_ge_u32 s{sRI}, 20\ns_cbranch_scc1 L_nc1")
    A(f"s_load_dword s{sPA}, s[{sWSP}:{sWSP+1}], s{sTMP}\ns_load_dword s{sPB}, s[{sWSP}:{sWSP+1}], s{sTMP2}")
    A(f"s_load_dword s{sT}, s[{sWSP}:{sWSP+1}], s9")
    if a.nfd:
        A(f"s_mov_b32 s{sST+14}, 0")
        for k, inc in ((3, 1), (2, 1 << 12), (1, 1 << 22)):
            A(f"L_nd{k}:\ns_add_u32 s{sST+14}, s{sST+14}, {inc}\ns_getreg_b32 s{sTMP}, hwreg(HW_REG_IB_STS, 8, 4)\ns_cmp_ge_u32 s{sTMP}, {k}\ns_cbranch_scc1 L_nd{k}")
        A(f"s_bfe_u32 s{sTMP}, s{sST+14}, {12 | (10 << 16)}\ns_cmp_gt_u32 s{sTMP}, {a.nfd}\ns_cselect_b32 s{sRB}, s{sRB}, s{sTMP3}")
    else:
        A("s_waitcnt lgkmcnt(2)")
        A(f"s_sleep {a.nfs}" if a.nfs > 0 else f"s_nop {-a.nfs}")
        A(f"s_getreg_b32 s{sTMP}, hwreg(HW_REG_IB_STS, 8, 4)\ns_cmp_eq_u32 s{sTMP}, 2\ns_cselect_b32 s{sRB}, s{sRB}, s{sTMP3}")
        if a.stamps: A(f"s_sub_u32 s{sST+14}, 3, s{sTMP}")
    A("s_branch L_nc2\nL_nc1:")
    A(f"s_load_dword s{sT}, s[{sWSP}:{sWSP+1}], s9")
    A("L_nc2:")
    srd(WS, sWSP, 0x10000000)
    srd(SR2, sM, 2560)
    A("s_barrier")
elif a.nf != 9 and not a.pads: A(f"s_load_dword s{sT}, s[{sWSP}:{sWSP+1}], s9")
if a.nf in (8, 9): pass
elif a.nf == 7:
    sPA, sPB = sM + 4, sM + 5
    A(f"s_cmp_ge_u32 s{sRI}, 20\ns_cbranch_scc1 L_nc1")
    A(f"s_mul_i32 s{sTMP}, s{sP}, 20\ns_add_u32 s{sTMP}, s{sTMP}, s{sRI}\ns_lshl_b32 s{sTMP}, s{sTMP}, 14\ns_add_u32 s{sTMP}, s{sTMP}, {FBOX + 20*16384}\ns_add_u32 s{sTMP2}, s{sTMP}, 8192")
    A(f"s_load_dword s{sPA}, s[{sWSP}:{sWSP+1}], s{sTMP}\ns_load_dword s{sPB}, s[{sWSP}:{sWSP+1}], s{sTMP2}")
    A("s_waitcnt lgkmcnt(1)")
    A(f"s_sleep {a.nfs}" if a.nfs else "s_nop 15\ns_nop 15")
    A(f"s_getreg_b32 s{sTMP}, hwreg(HW_REG_IB_STS, 8, 4)\ns_cmp_lg_u32 s{sTMP}, 0\ns_cselect_b32 s{sRB}, s{sRB}, s{sTMP3}")
    if a.stamps: A(f"s_sub_u32 s{sST+14}, 2, s{sTMP}")
    A("L_nc1:")
    srd(SR2, sM, 2560)
    A("s_barrier")
elif a.nf == 6:
    SENT = 0x5a17c3e9
    sPA, sPB = sM + 4, sM + 5
    A(f"s_cmp_ge_u32 s{sRI}, 20\ns_cbranch_scc1 L_nc1")
    A(f"s_mul_i32 s{sTMP}, s{sP}, 20\ns_add_u32 s{sTMP}, s{sTMP}, s{sRI}\ns_lshl_b32 s{sTMP}, s{sTMP}, 14\ns_add_u32 s{sTMP}, s{sTMP}, {FBOX + 20*16384}\ns_add_u32 s{sTMP2}, s{sTMP}, 8192")
    A(f"s_mov_b32 s{sPA}, {SENT:#x}\ns_mov_b32 s{sPB}, {SENT:#x}")
    A(f"s_load_dword s{sPA}, s[{sWSP}:{sWSP+1}], s{sTMP}\ns_load_dword s{sPB}, s[{sWSP}:{sWSP+1}], s{sTMP2}\nL_nc1:")
    srd(SR2, sM, 2560)
    A(f"s_cmp_ge_u32 s{sRI}, 20\ns_cbranch_scc1 L_prA")
    A(f"L_pr:\ns_cmp_lg_u32 s{sPA}, {SENT:#x}\ns_cbranch_scc1 L_prA\ns_cmp_lg_u32 s{sPB}, {SENT:#x}\ns_cbranch_scc1 L_prB")
    A(f"s_getreg_b32 s{sTMP}, hwreg(HW_REG_IB_STS, 8, 4)\ns_cmp_lg_u32 s{sTMP}, 0\ns_cbranch_scc1 L_pr")
    A(f"L_prB:\ns_mov_b32 s{sRB}, s{sTMP3}")
    if a.stamps: A(f"s_mov_b32 s{sST+14}, 1")
    A("L_prA:")
    if a.stamps: A(f"s_add_u32 s{sST+14}, s{sST+14}, 1")
    A("s_barrier")
else:
    srd(SR2, sM, 2560)
    if not a.pads: A("s_barrier" if a.nf == 10 or a.eb else "s_waitcnt lgkmcnt(0)\ns_barrier")
get_T()
if a.nf == 9 and a.nfv == 0: vote_store()
if a.nf == 1:
    A(f"s_waitcnt vmcnt(1)\ns_memtime s[{sM+4}:{sM+5}]\ns_waitcnt vmcnt(0)\ns_memtime s[{sM+6}:{sM+7}]\ns_waitcnt lgkmcnt(0)")
    A(f"s_sub_u32 s{sM+4}, s{sM+6}, s{sM+4}\ns_cmp_gt_u32 s{sM+4}, {a.nft}\ns_cselect_b32 s{sRB}, s{sRB}, s{sTMP3}")
    if a.stamps: A(f"s_add_u32 s{sST+14}, s{sM+4}, 1\ns_mov_b32 s{sST+15}, 0")
elif a.nf == 3:
    A(f"s_mov_b32 s{sRB}, s{sTMP3}")
if a.lat:
    A(f"v_lshlrev_b32 v37, 4, v{vL}")
    A(f"s_lshl_b32 s{sOFF}, s2, 10\ns_add_u32 s{sOFF}, s{sOFF}, 0x200000")
    A(f"s_cmp_eq_u32 s{sWAVE}, 11\ns_cbranch_scc1 L_lat2")
    for k in range(4):
        A(f"s_memrealtime s[{sST+4*k}:{sST+4*k+1}]\ns_waitcnt lgkmcnt(0)")
        A(f"buffer_load_dwordx4 v[40:43], v37, s[{WS}:{WS+3}], s{sOFF} offen sc1\ns_waitcnt vmcnt(0)")
        A(f"s_memrealtime s[{sST+4*k+2}:{sST+4*k+3}]\ns_waitcnt lgkmcnt(0)")
        A("s_sleep 40")
    A("s_branch L_end")
    A("L_lat2:")
    A(f"s_add_u32 s{sOFF}, s{sOFF}, 0x100000")
    A(f"buffer_load_dwordx4 v[40:43], v37, s[{WS}:{WS+3}], s{sOFF} offen {'nt' if a.lat == 1 else 'sc1'}\ns_waitcnt vmcnt(0)")
    for k in range(4):
        A(f"s_memrealtime s[{sST+4*k}:{sST+4*k+1}]\ns_waitcnt lgkmcnt(0)")
        A(f"buffer_load_dwordx4 v[40:43], v37, s[{WS}:{WS+3}], s{sOFF} offen {'nt' if a.lat == 1 else 'sc1'}\ns_waitcnt vmcnt(0)")
        A(f"s_memrealtime s[{sST+4*k+2}:{sST+4*k+3}]\ns_waitcnt lgkmcnt(0)")
        A("s_sleep 40")
    A("s_branch L_end")
if a.rank:
    A(f"s_lshl_b32 s{sNEED}, s{sJ}, 7\ns_add_u32 s{sNEED}, s{sNEED}, {RBOX}\nv_mov_b32 v30, 0\nbuffer_load_dword v60, v30, s[{WS}:{WS+3}], s{sNEED} offen sc1 nt")
if a.tlb & 4:
    srd(SR, sWO, 6144 * 1280)
    A(f"s_mul_i32 s{sTMP}, s{sHH}, {192*1280}\nv_mul_u32_u24 v9, {191*1280+1024}, v{vL}\ns_mov_b64 exec, 3\nbuffer_load_dword v70, v9, s[{SR}:{SR+3}], s{sTMP} offen nt\ns_mov_b64 exec, -1")
if a.enc >= 20:
    A(f"s_cmp_lg_u32 s2, 0\ns_cbranch_scc1 L_e20\nv_mov_b32 v60, s{sST}\nv_mov_b32 v61, 0\ns_mov_b32 s{sTMP}, {RBOX}\ns_mov_b64 exec, 1\nbuffer_store_dword v60, v61, s[{WS}:{WS+3}], s{sTMP} offen sc1\ns_mov_b64 exec, -1\nL_e20:")
if LV:
    A(f"s_bfe_u32 s{sNEED}, s2, {5 | (1 << 16)}\ns_lshl_b32 s{sTMP}, s{sJ}, 1\ns_add_u32 s{sNEED}, s{sNEED}, s{sTMP}\ns_lshl_b32 s{sNEED}, s{sNEED}, 7\ns_add_u32 s{sNEED}, s{sNEED}, {RBOX}\nv_mov_b32 v30, 0")
    A(f"s_mov_b64 exec, 1\nbuffer_load_dword v60, v30, s[{WS}:{WS+3}], s{sNEED} offen sc1 nt\ns_mov_b64 exec, -1")
    lds_wait(L_VT, [0, 1, 2, 3], 4, 8)
    A(f"v_mov_b32 v61, 1\ns_mov_b64 exec, 1\nbuffer_atomic_add v61, v30, s[{WS}:{WS+3}], s{sNEED} offen sc0 sc1\ns_mov_b64 exec, -1\ns_waitcnt vmcnt(0)")
    A(f"v_sub_u32 v61, v61, v60\ns_nop 0\nv_readfirstlane_b32 s{sTMP}, v61")
    A(f"s_cmp_ge_u32 s{sTMP}, {LV[2]}\ns_cselect_b32 s{sTMP2}, 2, 0\ns_cmp_lt_u32 s{sTMP}, {LV[1]}\ns_cselect_b32 s{sTMP2}, 1, s{sTMP2}\ns_cmp_gt_u32 s{sTMP}, 31\ns_cselect_b32 s{sTMP2}, 0, s{sTMP2}")
    A(f"v_mov_b32 v61, s{sTMP2}\nds_write_b32 v30, v61 offset:{L_LV}")
if a.enc == 11: lds_wait(L_QF, [0, 1, 2], 4, 8)
stamp(1)
lds_wait(L_LS, [1, 3, 5, 7], 8, 8)
A(f"v_mov_b32 v30, 0\nds_read_b128 v[20:23], v30 offset:{L_MX}\nds_read_b128 v[24:27], v30 offset:{L_MX+16}\nds_read_b32 v31, v30 offset:{L_MODE}\ns_waitcnt lgkmcnt(0)\nv_readfirstlane_b32 s{sMODE}, v31")
A("v_max_f32 v32, v20, v22\nv_max3_f32 v32, v32, v24, v26")
A("v_add_f32 v33, v8, v10\nv_add_f32 v34, v12, v14\nv_add_f32 v33, v33, v34\nv_mov_b32 v34, 0\nv_mov_b32 v35, 0")
for k in range(4):
    A(f"v_perm_b32 v{32+k}, v{32+k}, v{vT}, s{sSEL+k}")
A(f"s_lshl_b32 s{sOFF}, s{sH}, 7\ns_add_u32 s{sOFF}, s{sOFF}, {SBOX}\ns_lshl_b32 s{sTMP}, s{sJ}, 4\ns_add_u32 s{sTMP}, s{sTMP}, s{sOFF}")
A("s_mov_b64 exec, 1")
A(f"s_cmp_lg_u32 s{sMODE}, 0\ns_cbranch_scc1 L_ux1")
A(f"buffer_store_dwordx4 v[32:35], v30, s[{WS}:{WS+3}], s{sTMP} offen\ns_branch L_ux2\nL_ux1:")
A(f"buffer_store_dwordx4 v[32:35], v30, s[{WS}:{WS+3}], s{sTMP} offen sc1\nL_ux2:")
A("s_mov_b64 exec, -1")
if a.nf == 9 and a.nfv == 1: vote_store()
stamp(2)
A(f"v_and_b32 v36, 3, v{vL}\nv_lshlrev_b32 v37, 4, v36")
poll(40, 37, sOFF)
stamp(3)
A("v_and_b32 v40, 0xffffff00, v40\ns_nop 1")
A("v_max_f32_dpp v44, v40, v40 quad_perm:[1,0,3,2] row_mask:0xf bank_mask:0xf\ns_nop 1")
A("v_max_f32_dpp v44, v44, v44 quad_perm:[2,3,0,1] row_mask:0xf bank_mask:0xf")
A("v_sub_f32 v40, v40, v44\nv_mul_f32 v40, 0x3fb8aa3b, v40\nv_exp_f32 v40, v40\ns_nop 0")
A("v_mul_f32 v41, v41, v40\ns_nop 1")
A("v_add_f32_dpp v44, v41, v41 quad_perm:[1,0,3,2] row_mask:0xf bank_mask:0xf\ns_nop 1")
A("v_add_f32_dpp v44, v44, v44 quad_perm:[2,3,0,1] row_mask:0xf bank_mask:0xf")
A("v_rcp_f32 v44, v44\ns_nop 0\nv_mul_f32 v40, v40, v44")
A("v_lshlrev_b32 v36, 2, v36")
A("s_mov_b64 exec, 15")
A(f"ds_write_b32 v36, v40 offset:{L_FF}")
A(f"ds_write_b32 v30, v{vT} offset:{L_FFLAG}")
A("s_mov_b64 exec, -1")
if a.dirty:
    A(f"v_lshlrev_b32 v37, 4, v{vL}\ns_lshl_b32 s{sTMP}, s2, 14\ns_add_u32 s{sTMP}, s{sTMP}, 0x1000000")
    for k in range(a.dirty):
        A(f"buffer_store_dwordx4 v[40:43], v37, s[{WS}:{WS+3}], s{sTMP} offen\ns_add_u32 s{sTMP}, s{sTMP}, 1024")
if a.rank:
    lds_wait(L_VT, [0], 1, 8)
    A(f"v_mov_b32 v61, 1\ns_mov_b64 exec, 1\nbuffer_atomic_add v61, v30, s[{WS}:{WS+3}], s{sNEED} offen sc0 sc1\ns_mov_b64 exec, -1\ns_waitcnt vmcnt(0)")
    A(f"v_sub_u32 v61, v61, v60\ns_nop 0\nv_readfirstlane_b32 s{sTMP}, v61\ns_cmp_lt_u32 s{sTMP}, {a.rank}\ns_cbranch_scc1 L_rk")
    if a.stamps: A(f"s_mov_b32 s{sST+14}, s{sTMP}\ns_mov_b32 s{sST+15}, 0")
    if a.rop: lds_wait(L_VT, [1, 2, 3], 4, 8)
    A(f"ds_write_b32 v30, v{vT} offset:{L_OF+12}")
    A("L_rk:")
if a.fp:
    gp = a.fp // 16; lg = gp.bit_length() - 1; nx = 256 // a.fp; R = 10 * nx; nl = a.fp // 32
    if a.nf:
        A(f"s_mov_b32 s{sCNT}, s{sRI}\ns_cmp_ge_u32 s{sCNT}, {R}\ns_cbranch_scc1 L_end")
    else:
        A(f"s_and_b32 s{sTMP}, s{sHH}, 7\ns_lshl_b32 s{sTMP}, s{sTMP}, 2\ns_lshr_b32 s{sTMP2}, s{sHH}, 3\ns_add_u32 s{sTMP}, s{sTMP}, s{sTMP2}\ns_lshl_b32 s{sTMP}, s{sTMP}, 1\n{'s_and_b32' if a.lmap else 's_lshr_b32'} s{sTMP2}, s{sJ}, 1\ns_add_u32 s{sTMP}, s{sTMP}, s{sTMP2}")
        A(f"{'s_lshr_b32' if a.lmap else 's_and_b32'} s{sTMP2}, s{sJ}, 1\ns_xor_b32 s{sTMP2}, s{sTMP2}, 1\ns_lshl_b32 s{sTMP2}, s{sTMP2}, 6\ns_add_u32 s{sCNT}, s{sTMP}, s{sTMP2}\ns_cmp_ge_u32 s{sCNT}, {R}\ns_cbranch_scc1 L_end")
    A(f"s_mul_i32 s{sOFF}, s{sP}, {R}\ns_add_u32 s{sOFF}, s{sOFF}, s{sCNT}\ns_mul_i32 s{sTMP2}, s{sOFF}, {gp*8}\ns_mul_i32 s{sOFF}, s{sOFF}, {32*a.fp}\ns_add_u32 s{sOFF}, s{sOFF}, {FBOX}")
    if a.nf == 10: A(f"s_lshl_b32 s{SR}, s{sXCC}, 10\ns_add_u32 s{SR}, s{SR}, {VBOX}")
    if a.nf in (9, 10):
        A(f"v_lshlrev_b32 v37, 4, v{vL}\nbuffer_load_dwordx4 v[60:63], v37, s[{WS}:{WS+3}], s{SR} offen sc1{'' if a.nfx else ' nt'}\ns_waitcnt vmcnt(0)")
        A(f"s_mov_b32 s{sTMP}, 0\ns_mov_b32 s{sTMP3}, 0\ns_xor_b32 s{SR+1}, s{sT}, 16")
        for k in range(4):
            if a.nfx:
                A(f"v_xor_b32 v{60+k}, s{sT}, v{60+k}\nv_and_b32 v{60+k}, -4, v{60+k}")
                for c, d in ((0, sTMP), (20, sTMP), (16, sTMP3), (4, sTMP3)):
                    A(f"v_cmp_eq_u32 vcc, {c}, v{60+k}\ns_bcnt1_i32_b64 s{SR+2}, vcc\ns_add_u32 s{d}, s{d}, s{SR+2}")
            else:
                A(f"v_cmp_eq_u32 vcc, s{sT}, v{60+k}\ns_bcnt1_i32_b64 s{SR+2}, vcc\ns_add_u32 s{sTMP}, s{sTMP}, s{SR+2}")
                A(f"v_cmp_eq_u32 vcc, s{SR+1}, v{60+k}\ns_bcnt1_i32_b64 s{SR+2}, vcc\ns_add_u32 s{sTMP3}, s{sTMP3}, s{SR+2}")
        if a.stamps: A(f"s_add_u32 s{sST+14}, s{sTMP}, s{sTMP3}\ns_lshl_b32 s{sST+14}, s{sST+14}, 16\ns_add_u32 s{sST+14}, s{sST+14}, s{sTMP3}")
        if a.dbgv == 2:
            A(f"s_max_u32 s{SR+2}, s{sTMP}, s{sTMP3}\ns_min_u32 s{SR+3}, s{sTMP}, s{sTMP3}\ns_lshl_b32 s{SR+3}, s{SR+3}, 1\ns_add_u32 s{SR+3}, s{SR+3}, 6\ns_cmp_gt_u32 s{SR+2}, s{SR+3}\ns_cbranch_scc1 L_dv")
            for k in range(6): A("s_sleep 127")
            A("L_dv:")
        if a.dbgv >= 10:
            A(f"s_max_u32 s{SR+2}, s{sTMP}, s{sTMP3}\ns_min_u32 s{SR+3}, s{sTMP}, s{sTMP3}\ns_add_u32 s{SR+3}, s{SR+3}, {a.dbgv - 10}\ns_cmp_ge_u32 s{SR+2}, s{SR+3}\ns_cbranch_scc1 L_dv")
            for k in range(6): A("s_sleep 127")
            A("L_dv:")
        if a.dbgv == 1:
            A(f"s_lshl_b32 s{SR+2}, s{sTMP}, 8\ns_add_u32 s{SR+2}, s{SR+2}, s{sTMP3}\nv_mov_b32 v60, s{SR+2}\ns_lshl_b32 s{SR+2}, s{sXCC}, 2\nv_mov_b32 v61, s{SR+2}")
            srd(SR, sM + 2, 256)
            A(f"s_mov_b64 exec, 1\nbuffer_store_dword v60, v61, s[{SR}:{SR+3}], 0 offen sc1\ns_mov_b64 exec, -1")
        if not a.nfr and a.nf == 9: A(f"s_lshl_b32 s{sTMP3}, s{sTMP3}, 1")
        A(f"s_cmp_gt_u32 s{sTMP3}, s{sTMP}\ns_cselect_b32 s{sTMP}, 0, 8192\ns_add_u32 s{sRB}, s{sRB}, s{sTMP}")
    if a.nf: A(f"s_mov_b32 s{sOFF}, s{sRB}")
    A(f"v_lshlrev_b32 v37, 4, v{vL}\nv_lshlrev_b32 v38, 3, v{vL}")
    lds_wait(L_PF, [0, 1, 2], 4, 8)
    stamp(4)
    if a.nofin: A("s_branch L_end")
    if a.nf == 5:
        A(f"s_add_u32 s{sTMP3}, s{sOFF}, 8192")
        for cp in range(2):
            for i in range(nl):
                A(f"buffer_load_dwordx4 v[{80+16*cp+4*i}:{83+16*cp+4*i}], v37, s[{WS}:{WS+3}], s{sTMP3 if cp else sOFF} offen offset:{1024*i} sc1{FN}")
        for cp in range(2):
            for i in range(nl):
                r = 80 + 16 * cp + 4 * i
                if cp == 0:
                    if i == 0: A(f"s_waitcnt vmcnt({nl})")
                else: A(f"s_waitcnt vmcnt({nl-1-i})")
                A(f"v_perm_b32 v44, v{r+1}, v{r}, s{sSELA}\nv_perm_b32 v45, v{r+3}, v{r+2}, s{sSELB}\nv_or_b32 v44, v44, v45\nv_xor_b32 v44, s{sT}, v44")
                A(f"v_or_b32 v46, v46, v44" if i else "v_mov_b32 v46, v44")
                for k in range(4):
                    A(f"v_add_f32 v{40+k}, v{40+k}, v{r+k}" if i else f"v_mov_b32 v{40+k}, v{r+k}")
                if cp == 0 and i == a.nfi:
                    A(f"s_getreg_b32 s{sTMP}, hwreg(HW_REG_IB_STS, 0, 4)")
                    if a.stamps: A(f"s_add_u32 s{sST+14}, s{sTMP}, 1\ns_mov_b32 s{sST+15}, 0")
            A("v_cmp_lt_u32 vcc, 7, v46\ns_cmp_eq_u64 vcc, 0\ns_cbranch_scc1 L_fpd")
        A(f"s_cmp_eq_u32 s{sTMP}, {nl}\ns_cselect_b32 s{sOFF}, s{sOFF}, s{sTMP3}")
    if a.fdepth > 1:
        D = a.fdepth
        def fissue(k):
            for i in range(nl):
                A(f"buffer_load_dwordx4 v[{80+16*k+4*i}:{83+16*k+4*i}], v37, s[{WS}:{WS+3}], s{sOFF} offen offset:{1024*i} sc1{FN}")
        for k in range(D - 1):
            fissue(k)
            A(f"s_sleep {a.fgap}")
        A("L_fq:")
        for k in range(D):
            fissue((k + D - 1) % D)
            for i in range(nl):
                r = 80 + 16 * k + 4 * i
                A(f"s_waitcnt vmcnt({nl*(D-1)+nl-1-i})")
                A(f"v_perm_b32 v44, v{r+1}, v{r}, s{sSELA}\nv_perm_b32 v45, v{r+3}, v{r+2}, s{sSELB}\nv_or_b32 v44, v44, v45\nv_xor_b32 v44, s{sT}, v44")
                A(f"v_or_b32 v46, v46, v44" if i else "v_mov_b32 v46, v44")
                for q in range(4):
                    A(f"v_add_f32 v{40+q}, v{40+q}, v{r+q}" if i else f"v_mov_b32 v{40+q}, v{r+q}")
            A("v_cmp_lt_u32 vcc, 7, v46\ns_cmp_eq_u64 vcc, 0\ns_cbranch_scc1 L_fpd")
        spin_tail("L_fq", 0)
    if a.fm:
        D = a.fm; MK = 84; E = 92
        def mk(i): return f"s[{MK+2*i}:{MK+2*i+1}]"
        def missue(k):
            for i in range(nl):
                A(f"s_cmp_eq_u64 {mk(i)}, 0\ns_cselect_b64 exec, 1, {mk(i)}")
                A(f"buffer_load_dwordx4 v[{80+16*k+4*i}:{83+16*k+4*i}], v37, s[{WS}:{WS+3}], s{sOFF} offen offset:{1024*i} sc1{FN}")
            A("s_mov_b64 exec, -1")
        def mcheck(k, infl):
            for i in range(nl):
                r = 80 + 16 * k + 4 * i
                sk = A.label("Lms")
                A(f"s_cmp_eq_u64 {mk(i)}, 0\ns_cbranch_scc1 {sk}")
                A(f"s_waitcnt vmcnt({nl*infl+nl-1-i})")
                A(f"v_perm_b32 v44, v{r+1}, v{r}, s{sSELA}\nv_perm_b32 v45, v{r+3}, v{r+2}, s{sSELB}\nv_or_b32 v44, v44, v45\nv_xor_b32 v44, s{sT}, v44")
                A(f"v_cmp_ge_u32 vcc, 7, v44\ns_and_b64 exec, vcc, {mk(i)}\ns_andn2_b64 {mk(i)}, {mk(i)}, exec")
                for q in range(4): A(f"v_mov_b32 v{64+4*i+q}, v{r+q}")
                A(f"s_mov_b64 exec, -1\n{sk}:")
            A(f"s_or_b64 s[{E}:{E+1}], {mk(0)}, {mk(1)}\ns_or_b64 vcc, {mk(2)}, {mk(3)}\ns_or_b64 s[{E}:{E+1}], s[{E}:{E+1}], vcc\ns_cbranch_scc0 L_fms")
        for i in range(nl): A(f"s_mov_b64 {mk(i)}, -1")
        missue(D - 1)
        mcheck(D - 1, 0)
        for k in range(D - 1):
            missue(k)
            if a.fgap: A(f"s_sleep {a.fgap}")
        A("L_fq:")
        for k in range(D):
            missue((k + D - 1) % D)
            mcheck(k, D - 1)
        spin_tail("L_fq", 0)
        A("L_fms:")
        for i in range(1, nl):
            for q in range(4): A(f"v_add_f32 v{40+q}, v{(64 if i == 1 else 40)+q}, v{64+4*i+q}")
        A("s_branch L_fpd")
    A("L_fp:")
    for i in range(nl):
        A(f"buffer_load_dwordx4 v[{80+4*i}:{83+4*i}], v37, s[{WS}:{WS+3}], s{sOFF} offen offset:{1024*i} sc1{FN}")
    for i in range(nl):
        r = 80 + 4 * i
        A(f"s_waitcnt vmcnt({nl-1-i})")
        A(f"v_perm_b32 v44, v{r+1}, v{r}, s{sSELA}\nv_perm_b32 v45, v{r+3}, v{r+2}, s{sSELB}\nv_or_b32 v44, v44, v45\nv_xor_b32 v44, s{sT}, v44")
        A(f"v_or_b32 v46, v46, v44" if i else "v_mov_b32 v46, v44")
        for k in range(4):
            A(f"v_add_f32 v{40+k}, v{40+k}, v{r+k}" if i else f"v_mov_b32 v{40+k}, v{r+k}")
    A("v_cmp_lt_u32 vcc, 7, v46\ns_cmp_eq_u64 vcc, 0\ns_cbranch_scc1 L_fpd")
    spin_tail("L_fp", a.fsl)
    A("L_fpd:")
    stamp(5)
    d = gp
    while d < 16:
        for k in range(4):
            A(f"v_add_f32_dpp v{40+k}, v{40+k}, v{40+k} row_ror:{d} row_mask:0xf bank_mask:0xf")
        if d * 2 < 16: A("s_nop 0")
        d *= 2
    for op in ("v_permlane16_swap_b32", "v_permlane32_swap_b32"):
        for k in range(4): A(f"v_mov_b32 v{44+k}, v{40+k}")
        A("s_nop 1")
        for k in range(4): A(f"{op} v{40+k}, v{44+k}")
        A("s_nop 1")
        for k in range(4): A(f"v_add_f32 v{40+k}, v{40+k}, v{44+k}")
    A("v_cvt_pk_bf16_f32 v44, v40, v41\nv_cvt_pk_bf16_f32 v45, v42, v43")
    A(f"s_mov_b64 exec, {(1 << gp) - 1}")
    A(f"buffer_store_dwordx2 v[44:45], v38, s[{SR2}:{SR2+3}], s{sTMP2} offen")
    A(f"s_cmp_lg_u32 s{sCNT}, 0\ns_cbranch_scc1 L_aux2")
    A("s_mov_b64 exec, 1")
    A(f"buffer_store_dword v{vT}, v30, s[{WS}:{WS+3}], s9 offen")
    A("L_aux2:")
    A("s_mov_b64 exec, -1")
    stamp(6)
    if a.enc >= 20:
        A(f"s_cmp_lg_u32 s{sXCC}, {a.enc-20}\ns_cbranch_scc1 L_end")
        A(f"s_mov_b32 s{sTMP}, {RBOX}\nbuffer_load_dword v60, v30, s[{WS}:{WS+3}], s{sTMP} offen sc1\ns_waitcnt vmcnt(0) lgkmcnt(0)\nv_readfirstlane_b32 s{sTMP2}, v60")
        A(f"s_sub_u32 s{sTMP}, s{sST}, s{sTMP2}\ns_add_u32 s{sTMP}, s{sTMP}, 100\ns_max_i32 s{sTMP}, s{sTMP}, 0\ns_min_i32 s{sTMP}, s{sTMP}, 1000\ns_lshl_b32 s{sTMP}, s{sTMP}, 3\ns_add_u32 s{sTMP}, s{sTMP}, s{sST+12}")
        A(f"L_enc:\ns_sleep 2\ns_memrealtime s[{SR}:{SR+1}]\ns_waitcnt lgkmcnt(0)\ns_sub_u32 s{sTMP2}, s{sTMP}, s{SR}\ns_cmp_gt_i32 s{sTMP2}, 0\ns_cbranch_scc1 L_enc")
    elif a.enc:
        A(f"s_waitcnt lgkmcnt(0)\ns_sub_u32 s{sTMP}, s{sST+2*(a.enc%10)}, s{sST}\ns_lshl_b32 s{sTMP}, s{sTMP}, 2\ns_add_u32 s{sTMP}, s{sTMP}, s{sST+12}")
        A(f"L_enc:\ns_sleep 2\ns_memrealtime s[{SR}:{SR+1}]\ns_waitcnt lgkmcnt(0)\ns_sub_u32 s{sTMP2}, s{sTMP}, s{SR}\ns_cmp_gt_i32 s{sTMP2}, 0\ns_cbranch_scc1 L_enc")
else:
    A(f"s_and_b32 s{sTMP}, s{sJ}, 1\ns_lshl_b32 s{sTMP}, s{sTMP}, 3\ns_add_u32 s{sTMP}, s{sTMP}, s{sHH}\ns_cmp_ge_u32 s{sTMP}, 24\ns_cbranch_scc1 L_end")
    A(f"s_lshl_b32 s{sTMP}, s{sP}, 2\ns_add_u32 s{sTMP}, s{sTMP}, s{sJ}\ns_mul_i32 s{sOFF}, s{sTMP}, 24\ns_add_u32 s{sOFF}, s{sOFF}, s{sHH}")
    A(f"s_lshl_b32 s{sOFF}, s{sOFF}, 10\ns_add_u32 s{sOFF}, s{sOFF}, {FBOX}")
    A(f"s_mul_i32 s{sTMP}, s{sJ}, 5\ns_add_u32 s{sTMP}, s{sTMP}, 1\ns_lshr_b32 s{sTMP}, s{sTMP}, 1\ns_lshl_b32 s{sTMP2}, s{sTMP}, 7")
    A(f"s_mul_i32 s{sTMP}, s{sP}, 1280\ns_add_u32 s{sTMP2}, s{sTMP2}, s{sTMP}\ns_lshl_b32 s{sTMP}, s{sHH}, 4\ns_add_u32 s{sTMP2}, s{sTMP2}, s{sTMP}")
    A(f"v_lshlrev_b32 v37, 4, v{vL}\nv_lshrrev_b32 v38, 5, v{vL}\nv_lshlrev_b32 v38, 3, v38")
    lds_wait(L_PF, [0, 1, 2], 4, 8)
    stamp(4)
    if a.nofin: A("s_branch L_end")
    if a.fmask:
        D = a.fdepth
        mk = sM + 4
        sets = [80 + 4 * k for k in range(D)]
        A(f"s_mov_b64 s[{mk}:{mk+1}], -1")
        for k in range(D):
            for q in range(4): A(f"v_mov_b32 v{sets[k]+q}, 0")
        A(f"v_not_b32 v{sets[0]}, v{vT}")
        for k in range(1, D): A(f"v_mov_b32 v{sets[k]}, v{sets[0]}")
        def issue(r):
            A(f"s_mov_b64 exec, s[{mk}:{mk+1}]\nbuffer_load_dwordx4 v[{r}:{r+3}], v37, s[{WS}:{WS+3}], s{sOFF} offen sc1\ns_mov_b64 exec, -1")
        for k in range(D - 1):
            issue(sets[k])
            if a.fgap: A(f"s_sleep {a.fgap}")
        A("L_fp:")
        for k in range(D):
            issue(sets[(k + D - 1) % D])
            r = sets[k]
            A(f"s_waitcnt vmcnt({D-1})")
            A(f"v_perm_b32 v44, v{r+1}, v{r}, s{sSELA}\nv_perm_b32 v45, v{r+3}, v{r+2}, s{sSELB}\nv_or_b32 v44, v44, v45\nv_xor_b32 v44, s{sT}, v44")
            A(f"v_cmp_ge_u32 vcc, 7, v44")
            A(f"s_and_b64 vcc, vcc, s[{mk}:{mk+1}]\ns_andn2_b64 s[{mk}:{mk+1}], s[{mk}:{mk+1}], vcc\ns_mov_b64 exec, vcc")
            for q in range(4): A(f"v_mov_b32 v{40+q}, v{r+q}")
            A(f"s_mov_b64 exec, -1\ns_cmp_eq_u64 s[{mk}:{mk+1}], 0\ns_cbranch_scc1 L_fpd")
            if a.fsl: A(f"s_sleep {a.fsl}")
        spin_tail("L_fp", 0)
        A("L_fpd:")
    else:
        poll(80, 37, sOFF, depth=a.fdepth, gap=a.fgap, lfl=FN)
        for k in range(4):
            A(f"v_mov_b32 v{40+k}, v{80+k}")
    A("s_nop 1")
    stamp(5)
    for d in ["row_shr:1", "row_shr:2", "row_shr:4", "row_shr:8"]:
        for k in range(4):
            A(f"v_add_f32_dpp v{40+k}, v{40+k}, v{40+k} {d} row_mask:0xf bank_mask:0xf")
    for k in range(4):
        A(f"v_add_f32_dpp v{40+k}, v{40+k}, v{40+k} row_bcast:15 row_mask:0xa bank_mask:0xf")
    A("v_cvt_pk_bf16_f32 v44, v40, v41\nv_cvt_pk_bf16_f32 v45, v42, v43")
    A("s_mov_b32 exec_lo, 0x80000000\ns_mov_b32 exec_hi, 0x80000000")
    A(f"buffer_store_dwordx2 v[44:45], v38, s[{SR2}:{SR2+3}], s{sTMP2} offen")
    A(f"s_or_b32 s{sTMP}, s{sJ}, s{sHH}\ns_cmp_lg_u32 s{sTMP}, 0\ns_cbranch_scc1 L_aux2")
    A("s_mov_b64 exec, 1")
    A(f"buffer_store_dword v{vT}, v30, s[{WS}:{WS+3}], s9 offen")
    A("L_aux2:")
    A("s_mov_b64 exec, -1")
    stamp(6)


A("L_end:")
if a.dbg:
    A("s_mov_b64 exec, -1")
    A("s_waitcnt vmcnt(0) lgkmcnt(0)")
    A(f"s_memrealtime s[{sST+16}:{sST+17}]\ns_memtime s[86:87]\ns_waitcnt lgkmcnt(0)")
    for k in range(9):
        A(f"v_mov_b32 v{8+k}, s{sST+2*k}")
    A(f"s_sub_u32 s86, s86, s84\ns_sub_u32 s87, s{sST+16}, s{sST}\nv_mov_b32 v17, s86\nv_mov_b32 v18, s87\nv_not_b32 v19, v8")
    A(f"s_lshl_b32 s{sTMP}, s{sWAVE}, 6\nv_mov_b32 v30, s{sTMP}\ns_lshl_b32 s{sTMP}, s{sWAVE}, 2\nv_mov_b32 v31, s{sTMP}\ns_mov_b64 exec, 1")
    for k in range(3):
        A(f"ds_write_b128 v30, v[{8+4*k}:{11+4*k}] offset:{L_ST+16*k}")
    A(f"ds_write_b32 v31, v{vT} offset:{L_DN}")
    A("s_mov_b64 exec, -1")
    A(f"s_cmp_lg_u32 s{sWAVE}, 3\ns_cbranch_scc1 L_done")
    A(f"L_dw:\nv_lshlrev_b32 v8, 2, v{vL}\nv_min_u32 v8, 40, v8\nds_read_b32 v9, v8 offset:{L_DN}\ns_waitcnt lgkmcnt(0)\nv_cmp_ne_u32 vcc, s{sT}, v9\ns_cmp_eq_u64 vcc, 0\ns_cbranch_scc1 L_dw2\ns_sleep 4\ns_sub_u32 s{sSPIN}, s{sSPIN}, 1\ns_cbranch_scc0 L_dw\ns_branch L_done\nL_dw2:")
    A("s_sleep 127\ns_sleep 127")
    adds = [(3,0,1),(0,2,2),(0,4,3),(4,4,4),(8,2,5),(8,3,6),(8,4,7),(0,7,8),(3,9,13),(3,10,14)]
    maxs = [(3,11,0),(0,7,9),(1,7,9),(2,7,9),(3,8,10),(8,3,11),(9,3,11),(10,3,11),(8,4,12),(9,4,12),(10,4,12),(3,0,15)]
    A("v_mov_b32 v20, 0\nv_mov_b32 v21, 0")
    for k, (w, st, d) in enumerate(adds + maxs):
        A(f"s_mov_b32 s{sTMP}, {L_ST + w*64 + st*4}\nv_writelane_b32 v20, s{sTMP}, {k}\ns_mov_b32 s{sTMP}, {d*4}\nv_writelane_b32 v21, s{sTMP}, {k}")
    A("ds_read_b32 v22, v20")
    A(f"s_load_dwordx2 s[{sM+2}:{sM+3}], s[0:1], 88\ns_waitcnt lgkmcnt(0)")
    srd(SR, sM + 2, 256)
    A("s_waitcnt lgkmcnt(0)")
    A(f"s_mov_b64 exec, {(1 << len(adds)) - 1}")
    A(f"buffer_atomic_add v22, v21, s[{SR}:{SR+3}], 0 offen")
    A(f"s_mov_b64 exec, {((1 << len(maxs)) - 1) << len(adds)}")
    A(f"buffer_atomic_umax v22, v21, s[{SR}:{SR+3}], 0 offen")
elif a.stamps:
    A("s_mov_b64 exec, -1")
    A("s_waitcnt vmcnt(0) lgkmcnt(0)")
    A(f"s_memrealtime s[{sST+16}:{sST+17}]\ns_waitcnt lgkmcnt(0)")
    A(f"s_lshl_b32 s{sTMP}, s2, 4\ns_add_u32 s{sTMP}, s{sTMP}, s{sWAVE}\ns_mul_i32 s{sTMP}, s{sTMP}, 80\ns_add_u32 s{sTMP}, s{sTMP}, {STAMP}")
    for k in range(18):
        A(f"v_mov_b32 v{8+k}, s{sST+k}")
    A("v_mov_b32 v30, 0\ns_mov_b64 exec, 1")
    for k in range(4):
        A(f"buffer_store_dwordx4 v[{8+4*k}:{11+4*k}], v30, s[{WS}:{WS+3}], s{sTMP} offen offset:{16*k}")
    A("s_getreg_b32 s3, hwreg(HW_REG_XCC_ID)\nv_mov_b32 v26, s3\nv_mov_b32 v27, 0")
    A(f"buffer_store_dwordx4 v[24:27], v30, s[{WS}:{WS+3}], s{sTMP} offen offset:64")
A("L_done:\ns_endpgm")
A.footer(168)
if a.pads:
    assert a.nf in (0, 2, 3, 10) and not a.lat
    A.L = [l.replace(".p2align 8\n.type", ".p2align 12\n.type") for l in A.L]
if a.pads in (1, 3):
    import padlib
    def plan3(pads, lines, i0):
        def li(lab): return next(i for i, l in enumerate(lines) if l.strip() == lab) - i0
        wo, k, v, ax = li("L_wo:"), li("L_k:"), li("L_v:"), li("L_aux:")
        W = [i for i, p in enumerate(pads) if p[1] < wo]
        O = [i for i, p in enumerate(pads) if wo <= p[1] < k]
        K = [i for i, p in enumerate(pads) if k <= p[1] < v]
        V = [i for i, p in enumerate(pads) if v <= p[1] < ax]
        X = [i for i, p in enumerate(pads) if ax <= p[1]]
        pri = (W + K + O + V + X)
        e = pri[:8]; rest = pri[8:]
        order = [1, 2, 3, 4, 0, 5, 6, 7]
        e2 = [p for p in e if p in K] + [p for p in e if p not in K]
        early = {order[i]: p for i, p in enumerate(e2)}
        ch = {0: [], 5: [], 6: [], 7: []}
        ws = [5, 6, 7, 0]
        rx = [p for p in rest if p in X]; ro = [p for p in rest if p not in X]
        ch[0] += rx
        i = 0
        for p in ro:
            w = min(ws, key=lambda q: len(ch[q])); ch[w].append(p)
        return early, ch
    A.L = padlib.add_pads(A.L, 8, plan=plan3 if a.pads == 3 else None)
A.write(a.out)
```
